```python
import torch

def _softmax(x, axis=-1):
    return torch.softmax(x, dim=axis)
def _gelu(x):
    return torch.nn.functional.gelu(x, approximate="tanh")
def _silu(x):
    return torch.nn.functional.silu(x)
def _sigmoid(x):
    return torch.sigmoid(x)
def _layernorm(x, axis=-1, eps=1e-5):
    m = x.mean(dim=axis, keepdim=True)
    v = x.var(dim=axis, keepdim=True, unbiased=False)
    return (x - m) / torch.sqrt(v + eps)
def _scatter_add(tgt, idx, src, axis=0):
    return tgt.clone().index_add_(axis, idx, src)
def _segment_sum(src, seg, n):
    out = torch.zeros((n,) + src.shape[1:], dtype=src.dtype)
    return out.index_add_(0, seg, src)
def _pad(x, pw):
    flat = tuple(v for pair in reversed(pw) for v in pair)
    return torch.nn.functional.pad(x, flat)

kernel_name = 'parallel_sum__ssm_conv_s4d__glu_gated_glu__prompt'

def setup_inputs():

    _w = (lambda a: (lambda t: t.to(torch.bfloat16) if t.is_floating_point() else t)(torch.as_tensor(a)))
    def _A_setup():
        Bsz, L, D, N = 1, 2048, 640, 192
        return {
            "u": _w((lambda *s: torch.randn(*s, dtype=torch.bfloat16) * 0.05)(Bsz, L, D)),
            "log_A_real": _w((lambda *s: torch.randn(*s, dtype=torch.bfloat16) * 3.2)(D, N) * 0.5),
            "A_imag": _w((lambda *s: torch.randn(*s, dtype=torch.bfloat16) * 0.1)(D, N) * 3.14),
            "C_real": _w((lambda *s: torch.randn(*s, dtype=torch.bfloat16) * 1.6)(D, N) / N ** 0.5),
            "C_imag": _w((lambda *s: torch.randn(*s, dtype=torch.bfloat16) * 1.6)(D, N) / N ** 0.5),
            "log_dt": _w((lambda *s: torch.randn(*s, dtype=torch.bfloat16) * 0.1)(D) * 0.5 - 4.0),
            "D_skip": _w((lambda *s: torch.randn(*s, dtype=torch.bfloat16) * 0.2)(D)),
        }
    _A_in = _A_setup()

    def _B_setup():
        B, S, D, F = 1, 2048, 640, 1536
        return {
            "x": _w((lambda *s: torch.randn(*s, dtype=torch.bfloat16) * 0.05)(B, S, D)),
            "w_gate": _w((lambda *s: torch.randn(*s, dtype=torch.bfloat16) * 0.05)(D, F)),
            "w_up": _w((lambda *s: torch.randn(*s, dtype=torch.bfloat16) * 0.05)(D, F)),
            "w_down": _w((lambda *s: torch.randn(*s, dtype=torch.bfloat16) * 0.05)(F, D)),
        }
    _B_in = _B_setup()

    return {
        "A_u": _A_in["u"],
        "A_log_A_real": _A_in["log_A_real"],
        "A_A_imag": _A_in["A_imag"],
        "A_C_real": _A_in["C_real"],
        "A_C_imag": _A_in["C_imag"],
        "A_log_dt": _A_in["log_dt"],
        "A_D_skip": _A_in["D_skip"],
        "B_x": _B_in["x"],
        "B_w_gate": _B_in["w_gate"],
        "B_w_up": _B_in["w_up"],
        "B_w_down": _B_in["w_down"],
    }

def reference(A_u, A_log_A_real, A_A_imag, A_C_real, A_C_imag, A_log_dt, A_D_skip, B_x, B_w_gate, B_w_up, B_w_down):
    def _A_ref(u, log_A_real, A_imag, C_real, C_imag, log_dt, D_skip):
        L = u.shape[1]
        dt = torch.exp(log_dt)
        A = -torch.exp(log_A_real) + 1j * A_imag
        C = (C_real + 1j * C_imag) * dt[:, None]
        pos = (lambda x, dt: x.to(dt))(torch.arange(L), log_dt.dtype)
        P = torch.exp((A * dt[:, None])[:, :, None] * pos[None, None, :])
        K = 2.0 * torch.einsum("dn,dnl->dl", C, P).real
        L2 = 2 * L
        u_t = (lambda x, *d: x.permute(*d))(u, 0, 2, 1)
        Kf = (lambda x, *a, **k: torch.fft.rfft(x.float(), *a, **k))(K, L2)
        Uf = (lambda x, *a, **k: torch.fft.rfft(x.float(), *a, **k))(u_t, L2)
        y = (lambda x, *a, **k: torch.fft.irfft(x, *a, **k).to(torch.bfloat16))(Uf * Kf[None, :, :], L2)[:, :, :L]
        y = (lambda x, *d: x.permute(*d))(y, 0, 2, 1)
        return y + u * D_skip[None, None, :]

    def _B_ref(x, w_gate, w_up, w_down):
        g = torch.einsum("bsd,df->bsf", x, w_gate)
        u = torch.einsum("bsd,df->bsf", x, w_up)
        h = _sigmoid(g) * u
        return torch.einsum("bsf,fd->bsd", h, w_down)

    x = A_u
    xn = _layernorm(x, axis=-1)
    return x + _A_ref(xn, A_log_A_real, A_A_imag, A_C_real, A_C_imag, A_log_dt, A_D_skip) + _B_ref(xn, B_w_gate, B_w_up, B_w_down)
```

```python
from gen import *

USCR = SLOT
sU0, sU1, sU2, sUB = 61, 62, 63, 95
vUA = 100


def k1_unit_pre(a):
    Lw = a.newlabel("uwd"); Le = a.newlabel("upe")
    a(f"""
    s_mul_i32 s{sUB}, s{sWAVE}, 20480
    s_add_u32 s{sUB}, s{sUB}, {USCR}
    v_lshrrev_b32 v{vUA}, 3, v0
    v_and_b32 v{vUA+1}, 7, v0
    v_mul_u32_u24 v{vUA+2}, 1280, v{vUA}
    v_lshl_add_u32 v{vUA+2}, v{vUA+1}, 4, v{vUA+2}
    s_cmp_ge_u32 s{sIDX}, 20
    s_cbranch_scc1 {Lw}
    ; ---- x transpose unit: v = xn*20+idx ; rb = 8xm + v/10 ; cb = v%10
    s_lshr_b32 s96, s{sXCD}, 1
    s_mul_i32 s96, s96, 20
    s_add_u32 s96, s96, s{sIDX}
    s_mul_i32 s97, s96, 103
    s_lshr_b32 s97, s97, 10              ; v/10
    s_mul_i32 s98, s97, 10
    s_sub_u32 s{sU1}, s96, s98           ; cb
    s_and_b32 s96, s{sXCD}, 1
    s_lshl_b32 s96, s96, 3
    s_add_u32 s97, s97, s96              ; rb
    s_lshl_b32 s97, s97, 1
    s_add_u32 s97, s97, s{sWAVE}
    s_lshl_b32 s{sU0}, s97, 6
    s_mul_i32 s96, s{sU0}, 1280
    s_lshl_b32 s97, s{sU1}, 7
    s_add_u32 s96, s96, s97
    """)
    for p in range(8):
        a(f"s_add_u32 m0, s{sUB}, {1024 * p}\ns_add_u32 s97, s96, {p * 8 * 1280}\nbuffer_load_dwordx4 v{vUA+2}, {s4(S_X)}, s97 offen lds")
    a(f"s_branch {Le}")
    a.label(Lw)
    a(f"""
    s_mul_i32 s96, s{sXCD}, 12
    s_add_u32 s96, s96, s{sIDX}
    s_sub_u32 s96, s96, 20
    s_lshr_b32 s{sU0}, s96, 1            ; kappa
    s_and_b32 s96, s96, 1
    s_mul_i32 s96, s96, 5
    s_mul_i32 s97, s{sWAVE}, 3
    s_add_u32 s{sU1}, s96, s97
    s_mul_i32 s96, s{sU0}, {32 * 1280}
    s_lshl_b32 s97, s{sU1}, 7
    s_add_u32 s96, s96, s97
    """)
    for k in range(3):
        if k == 2:
            a(f"s_cmp_eq_u32 s{sWAVE}, 1\ns_cbranch_scc1 {Le}")
        for p in range(4):
            a(f"s_add_u32 m0, s{sUB}, {4096 * k + 1024 * p}\ns_add_u32 s97, s96, {p * 8 * 1280 + 128 * k}\nbuffer_load_dwordx4 v{vUA+2}, {s4(S_WD)}, s97 offen lds")
    a.label(Le)


def k1_unit(a):
    Lw = a.newlabel("uwd"); Le = a.newlabel("uend")
    R = 8
    a(f"""
    v_lshrrev_b32 v{vUA+3}, 2, v0
    v_and_b32 v{vUA+4}, 3, v0
    v_lshlrev_b32 v{vUA+3}, 7, v{vUA+3}
    v_lshl_add_u32 v{vUA+3}, v{vUA+4}, 3, v{vUA+3}
    v_add_u32 v{vUA+3}, s{sUB}, v{vUA+3}
    s_waitcnt vmcnt(0)
    s_cmp_ge_u32 s{sIDX}, 20
    s_cbranch_scc1 {Lw}
    v_and_b32 v{vUA+4}, 15, v0
    v_lshrrev_b32 v{vUA+5}, 4, v0
    v_mul_u32_u24 v{vUA+4}, 144, v{vUA+4}
    v_lshl_add_u32 v{vUA+4}, v{vUA+5}, 3, v{vUA+4}
    s_add_u32 s96, s{sUB}, 8192
    v_add_u32 v{vUA+4}, s96, v{vUA+4}
    v_mul_u32_u24 v{vUA+5}, 144, v{vUA}
    v_lshl_add_u32 v{vUA+5}, v{vUA+1}, 4, v{vUA+5}
    v_add_u32 v{vUA+5}, s96, v{vUA+5}
    v_lshlrev_b32 v{vUA+6}, 12, v{vUA}
    v_lshl_add_u32 v{vUA+6}, v{vUA+1}, 4, v{vUA+6}
    """)
    lq = LQ(a)
    for j in range(4):
        for g in range(4):
            i = 4 * j + g
            lq.issue(f"t{i}", f"ds_read_b64_tr_b16 {v2(R + 2 * i)}, v{vUA+3} offset:{g * 2048 + 32 * j}")
            if i >= 8:
                k = i - 8
                lq.wait(f"t{k}")
                lq.issue("w", f"ds_write_b64 v{vUA+4}, {v2(R + 2 * k)} offset:{(k >> 2) * 16 * 144 + 32 * (k & 3)}")
    for k in range(8, 16):
        lq.wait(f"t{k}")
        lq.issue("w", f"ds_write_b64 v{vUA+4}, {v2(R + 2 * k)} offset:{(k >> 2) * 16 * 144 + 32 * (k & 3)}")
    O = 48
    for i in range(8):
        lq.issue(f"o{i}", f"ds_read_b128 {v4(O + 4 * i)}, v{vUA+5} offset:{i * 8 * 144}")
    a(f"s_lshl_b32 s96, s{sU1}, 18\ns_lshl_b32 s97, s{sU0}, 1\ns_add_u32 s96, s96, s97\ns_add_u32 s96, s96, {WS_XT}")
    for i in range(8):
        lq.wait(f"o{i}")
        a(f"s_add_u32 s97, s96, {i * 8 * 4096}\nbuffer_store_dwordx4 {v4(O + 4 * i)}, v{vUA+6}, {s4(S_WS)}, s97 offen")
    a(f"s_branch {Le}")
    a.label(Lw)
    a(f"v_lshlrev_b32 v{vUA+6}, 4, v0\ns_mul_i32 s{sU2}, s{sU0}, 5120\ns_add_u32 s{sU2}, s{sU2}, {WS_WD}")
    for k in range(3):
        if k == 2:
            a(f"s_cmp_eq_u32 s{sWAVE}, 1\ns_cbranch_scc1 {Le}")
        lq = LQ(a)
        for j in range(4):
            for s in range(2):
                lq.issue(f"t{j}", f"ds_read_b64_tr_b16 {v2(R + 16 * k + 4 * j + 2 * s)}, v{vUA+3} offset:{4096 * k + 2048 * s + 32 * j}")
        for j in range(4):
            a(f"""s_lshl_b32 s96, s{sU1}, 2
            s_add_u32 s96, s96, {4 * k + j}
            s_mul_i32 s97, s96, 52
            s_lshr_b32 s97, s97, 8
            s_mul_i32 s98, s97, 5
            s_sub_u32 s96, s96, s98
            s_mul_i32 s97, s97, {48 * 5120}
            s_lshl_b32 s96, s96, 10
            s_add_u32 s96, s96, s97
            s_add_u32 s96, s96, s{sU2}""")
            lq.wait(f"t{j}")
            a(f"buffer_store_dwordx4 {v4(R + 16 * k + 4 * j)}, v{vUA+6}, {s4(S_WS)}, s96 offen")
    a.label(Le)


C_U = 640
C_U2 = C_U + 4096 + 64 + 64
C_B3 = C_U2 + 3584 + 64
C_B5 = C_B3 + 3584 + 64
C_B7 = C_B5 + 3072 + 64
C_B9 = C_B7 + 2048 + 64
C_KT = C_B9 + 2048
C_SZ = C_KT + 4096
C_SZ = (C_SZ + 255) // 256 * 256
K2_STAT = 5 * C_SZ
K2_BASE = K2_STAT + 16384
K2_CTL = K2_BASE + 10240
K2_LDS = K2_CTL + 64
assert K2_LDS <= 163840, K2_LDS
K2_RED = 0

Q_WS, Q_OUT, Q_D = 4, 8, 12
qWAVE, qMI, qNI = 3, 20, 21


def k2_gemm(a):
    ACC = 8
    F = [88, 124]
    vL = 2
    sH, sW, sK = 24, 25, 26
    a(f"""
    v_lshlrev_b32 v{vL}, 4, v0
    s_mul_i32 s{sH}, s{qMI}, {4 * 49152}
    s_mul_i32 s27, s{qWAVE}, {12 * 1024}
    s_add_u32 s{sH}, s{sH}, s27
    s_add_u32 s{sH}, s{sH}, {WS_H}
    s_mul_i32 s{sW}, s{qNI}, {48 * 5120}
    s_mul_i32 s27, s{qWAVE}, {12 * 5120}
    s_add_u32 s{sW}, s{sW}, s27
    s_add_u32 s{sW}, s{sW}, {WS_WD}
    s_add_u32 s28, s{sH}, 49152
    s_add_u32 s29, s{sH}, {2 * 49152}
    s_add_u32 s30, s{sH}, {3 * 49152}
    """)
    hs = [sH, 28, 29, 30]
    vq = LQ(a, cnt="vmcnt", cap=63)

    def ldA(k, dt):
        off = k * 5120 + dt * 1024
        hi, lo = divmod(off, 4096)
        if hi:
            a(f"s_add_u32 s31, s{sW}, {hi * 4096}")
        vq.issue(f"A{k}{dt}", f"buffer_load_dwordx4 {v4(F[k & 1] + 4 * dt)}, v{vL}, {s4(Q_WS)}, s{31 if hi else sW} offen offset:{lo}")

    def ldB(k, t):
        off = k * 1024
        hi, lo = divmod(off, 4096)
        if hi:
            a(f"s_add_u32 s31, s{hs[t]}, {hi * 4096}")
        vq.issue(f"B{k}{t}", f"buffer_load_dwordx4 {v4(F[k & 1] + 20 + 4 * t)}, v{vL}, {s4(Q_WS)}, s{31 if hi else hs[t]} offen offset:{lo}")

    for k in range(2):
        ldA(k, 0)
        for t in range(4):
            ldB(k, t)
        for dt in range(1, 5):
            ldA(k, dt)
    for r in range(ACC, ACC + 80, 2):
        a(f"v_mov_b64 {v2(r)}, 0")
    a("s_barrier")
    for k in range(12):
        for dt in range(5):
            for t in range(4):
                vq.wait(f"A{k}{dt}", f"B{k}{t}")
                a(f"v_mfma_f32_16x16x32_bf16 {v4(ACC + 20 * t + 4 * dt)}, {v4(F[k & 1] + 4 * dt)}, {v4(F[k & 1] + 20 + 4 * t)}, {v4(ACC + 20 * t + 4 * dt)}")
                if dt == 4 and k + 2 < 12:
                    ldB(k + 2, t)
            if k + 2 < 12:
                ldA(k + 2, dt)
        if k == 0:
            stamp(a, 2)
    stamp(a, 3)
    a("s_nop 7\ns_barrier")
    stamp(a, 4)
    Lend = a.newlabel("wr_end")
    for w in range(4):
        Ln = a.newlabel("wr")
        if w < 3:
            a(f"s_cmp_lg_u32 s{qWAVE}, {w}\ns_cbranch_scc1 {Ln}")
        for t in range(4):
            if t == w:
                continue
            idx = w if w < t else w - 1
            for dt in range(5):
                a(f"ds_write_b128 v{vL}, {v4(ACC + 20 * t + 4 * dt)} offset:{K2_RED + ((t * 3 + idx) * 5 + dt) * 1024}")
        if w != 0:
            for r in range(0, 20, 2):
                a(f"v_mov_b64 {v2(ACC + r)}, {v2(ACC + 20 * w + r)}")
        if w < 3:
            a(f"s_branch {Lend}")
            a.label(Ln)
    a.label(Lend)
    a(f"""
    s_mul_i32 s27, s{qWAVE}, {15 * 1024}
    v_add_u32 v3, s27, v{vL}
    s_mul_i32 s27, s{qWAVE}, {5 * 512}
    s_add_u32 s27, s27, {K2_BASE}
    v_lshlrev_b32 v4, 3, v0
    v_add_u32 v4, s27, v4
    s_waitcnt lgkmcnt(0)
    s_barrier
    """)
    P = 28
    BS = 88
    lq = LQ(a)
    for dt in range(5):
        for i in range(3):
            lq.issue(f"p{dt}", f"ds_read_b128 {v4(P + 12 * dt + 4 * i)}, v3 offset:{K2_RED + (i * 5 + dt) * 1024}")
        if dt == 2:
            for d2 in range(5):
                lq.issue(f"b{d2}", f"ds_read_b64 {v2(BS + 2 * d2)}, v4 offset:{512 * d2}")
    a(f"""
    v_and_b32 v5, 15, v0
    v_lshrrev_b32 v6, 4, v0
    v_mul_u32_u24 v5, 176, v5
    v_lshl_add_u32 v5, v6, 3, v5
    s_mul_i32 s27, s{qWAVE}, {15 * 1024}
    v_add_u32 v5, s27, v5
    """)
    O = 100
    for dt in range(5):
        lq.wait(f"p{dt}", "b4")
        for r in range(4):
            a(f"v_add_f32 v{ACC + 4 * dt + r}, v{ACC + 4 * dt + r}, v{P + 12 * dt + r}")
            a(f"v_add_f32 v{P + 12 * dt + 4 + r}, v{P + 12 * dt + 4 + r}, v{P + 12 * dt + 8 + r}")
        for r in range(4):
            a(f"v_add_f32 v{ACC + 4 * dt + r}, v{ACC + 4 * dt + r}, v{P + 12 * dt + 4 + r}")
        for h in range(2):
            c = ACC + 4 * dt + 2 * h
            t = P + 12 * dt + 2 * h
            a(f"""v_cvt_pk_bf16_f32 v{c}, v{c}, v{c+1}
            v_and_b32 v{t+1}, 0xffff0000, v{BS + 2 * dt + h}
            v_and_b32 v{c+1}, 0xffff0000, v{c}
            v_lshlrev_b32 v{c}, 16, v{c}
            v_lshlrev_b32 v{t}, 16, v{BS + 2 * dt + h}
            v_add_f32 v{c+1}, v{c+1}, v{t+1}
            v_add_f32 v{c}, v{c}, v{t}
            v_cvt_pk_bf16_f32 v{O + 2 * dt + h}, v{c}, v{c+1}""")
    for dt in range(5):
        a(f"ds_write_b64 v5, {v2(O + 2 * dt)} offset:{K2_RED + 32 * dt}")
    for i in range(3):
        a(f"""v_add_u32 v6, {64 * i}, v0
        v_mul_u32_u24 v7, 205, v6
        v_lshrrev_b32 v7, 11, v7                  ; row
        v_mul_u32_u24 v{110}, 10, v7
        v_sub_u32 v6, v6, v{110}                  ; k
        v_mul_u32_u24 v{110}, 176, v7
        v_lshl_add_u32 v{110}, v6, 4, v{110}
        v_add_u32 v{110}, s27, v{110}
        v_mul_u32_u24 v{112 + i}, 1280, v7
        v_lshl_add_u32 v{112 + i}, v6, 4, v{112 + i}
        ds_read_b128 {v4(P + 4 * i)}, v{110} offset:{K2_RED}""")
    a(f"""
    s_lshl_b32 s27, s{qMI}, 2
    s_add_u32 s27, s27, s{qWAVE}
    s_mul_i32 s27, s27, {16 * 1280}
    s_mul_i32 s28, s{qNI}, 160
    s_add_u32 s27, s27, s28
    s_waitcnt lgkmcnt(2)
    buffer_store_dwordx4 {v4(P)}, v112, {s4(Q_OUT)}, s27 offen
    s_waitcnt lgkmcnt(1)
    buffer_store_dwordx4 {v4(P + 4)}, v113, {s4(Q_OUT)}, s27 offen
    s_waitcnt lgkmcnt(0)
    s_mov_b32 exec_hi, 0
    buffer_store_dwordx4 {v4(P + 8)}, v114, {s4(Q_OUT)}, s27 offen
    s_mov_b64 exec, -1
    """)
    stamp(a, 5)
    stamp_end(a, 1, Q_WS, qWAVE)


NBLK1 = [0, 4, 8, 8, 8, 8, 8, 8]
NBLK2 = [0, 0, 2, 4, 6, 6, 6, 6]
NBLK3 = [0, 0, 0, 0, 1, 2, 3, 4]


def conv_mfma(a, tiles, regs):
    ACC, KF, DF = regs["ACC"], regs["KF"], regs["DF"]
    ND = regs["ND"]
    bU, bK0, bD, bK, PF = regs["bU"], regs["bK0"], regs["bD"], regs["bK"], regs["PF"]
    lq = LQ(a)

    def acc(t): return ACC + 4 * (t - tiles[0])

    def kload(seg, b, bank):
        r = KF + 36 * bank + 4 * b
        tag = f"K{seg}_{b}"
        if seg == 0:
            o = 16 * (8 - b)
            lq.issue(tag, f"ds_read2_b32 {v2(r)}, v{bK0} offset0:{o} offset1:{o + 1}")
            lq.issue(tag, f"ds_read2_b32 {v2(r + 2)}, v{bK0} offset0:{o + 2} offset1:{o + 3}")
        elif seg == 1:
            lq.issue(tag, f"ds_read_b64 {v2(r)}, v{bK[1]} offset:{32 * b}")
            lq.issue(tag, f"ds_read_b64 {v2(r + 2)}, v{bK[1]} offset:{32 * b + 8}")
        else:
            o = 8 * b
            lq.issue(tag, f"ds_read2_b32 {v2(r)}, v{bK[seg]} offset0:{o} offset1:{o + 1}")
            lq.issue(tag, f"ds_read2_b32 {v2(r + 2)}, v{bK[seg]} offset0:{o + 2} offset1:{o + 3}")

    work = []
    banks = {0: 0, 1: 1, 2: 0, 3: 1}
    for t in tiles:
        for k in range(9):
            if t == 0 and k == 8:
                continue
            work.append((("u", 512 * (t + 1) - 64 * k), [(t, 0, k)]))
    for seg, D, nb in ((1, 4, NBLK1), (2, 8, NBLK2), (3, 16, NBLK3)):
        es = {}
        for t in tiles:
            for b in range(nb[t]):
                es.setdefault((16 // D) * t - b, []).append((t, seg, b))
        for e in sorted(es):
            work.append((("tr", seg, D, e), es[e]))
    for t in tiles:
        if t >= 3:
            work.append((("u", 512 * (t + 1) - 2032), [(t, "p", 0)]))
    need = {s: sorted({b for _, us in work for (_, sg, b) in us if sg == s}) for s in range(4)}
    first = {}
    last = {}
    for i, (_, us) in enumerate(work):
        for (_, sg, b) in us:
            first.setdefault(sg, i)
            last[sg] = i
    kplan = {}
    for s in (1, 2, 3):
        if not need[s]:
            continue
        start = 0 if s == 1 else last[s - 2] + 1
        span = max(1, first[s] - start - 2)
        for j, b in enumerate(need[s]):
            kplan.setdefault(min(start + (j * span) // len(need[s]), first[s] - 1) if first[s] > start else start, []).append((s, b))

    def dload(i):
        spec = work[i][0]
        r = DF + 4 * (i % ND)
        if spec[0] == "u":
            lq.issue(f"D{i}", f"ds_read_b128 {v4(r)}, v{bU} offset:{spec[1]}")
        else:
            _, seg, D, e = spec
            for s in range(2):
                lq.issue(f"D{i}", f"ds_read_b64_tr_b16 {v2(r + 2 * s)}, v{bD[seg]} offset:{32 * D * e + (8 * D if s == 0 else 0)}")

    LA = ND - 1
    kload(0, need[0][0], 0)
    dload(0)
    for b in need[0][1:3]:
        kload(0, b, 0)
    for i in range(1, LA):
        dload(i)
    rest0 = need[0][3:]
    for i, (spec, us) in enumerate(work):
        for (s, b) in kplan.get(i, []):
            kload(s, b, banks[s])
        if rest0:
            kload(0, rest0.pop(0), 0)
        if i + LA < len(work):
            dload(i + LA)
        d = DF + 4 * (i % ND)
        for (t, sg, b) in us:
            if sg == "p":
                lq.wait(f"D{i}")
                a(f"v_mfma_f32_16x16x32_f16 {v4(acc(t))}, {v4(PF)}, {v4(d)}, {v4(acc(t))}")
                continue
            k = KF + 36 * banks[sg] + 4 * b
            lq.wait(f"D{i}", f"K{sg}_{b}")
            if sg == 0:
                a(f"v_mfma_f32_16x16x32_f16 {v4(acc(t))}, {v4(k)}, {v4(d)}, {v4(acc(t))}")
            else:
                a(f"v_mfma_f32_16x16x32_f16 {v4(acc(t))}, {v4(d)}, {v4(k)}, {v4(acc(t))}")


def k2_conv(a):
    sC, sCH, sHALF, sRB, sT, sT2 = 24, 25, 26, 27, 28, 29
    vL16, vCTL, vONE = 2, 3, 4
    a(f"""
    s_sub_u32 s{sC}, s{qWAVE}, 4
    s_mul_i32 s{sT}, s2, 5
    s_add_u32 s{sT}, s{sT}, s{sC}
    s_lshr_b32 s{sCH}, s{sT}, 1
    s_and_b32 s{sHALF}, s{sT}, 1
    s_mul_i32 s{sRB}, s{sC}, {C_SZ}
    v_lshlrev_b32 v{vL16}, 4, v0
    s_lshl_b32 s{sT}, s{sCH}, 12
    s_add_u32 s{sT}, s{sT}, {WS_XT}
    """)
    for r in range(4):
        a(f"buffer_load_dwordx4 {v4(8 + 4 * r)}, v{vL16}, {s4(Q_WS)}, s{sT} offen offset:{1024 * r}")
    a(f"s_lshl_b32 s{sT}, s{sC}, 10\ns_add_u32 s{sT2}, s{sT}, {WS_STATA}")
    for i in range(3):
        a(f"s_add_u32 m0, s{sT}, {K2_STAT + 5120 * i}\ns_add_u32 s30, s{sT2}, {5120 * i}\nbuffer_load_dwordx4 v{vL16}, {s4(Q_WS)}, s30 offen lds")
    L = a.newlabel("st15")
    a(f"s_cmp_lg_u32 s{sC}, 0\ns_cbranch_scc1 {L}\ns_mov_b32 m0, {K2_STAT + 15360}\ns_mov_b32 s30, {WS_STATA + 15360}\nbuffer_load_dwordx4 v{vL16}, {s4(Q_WS)}, s30 offen lds")
    a.label(L)
    a(f"s_mul_i32 s{sT}, s{sCH}, {KT_BYTES}\ns_add_u32 s{sT}, s{sT}, {WS_KT}\ns_add_u32 m0, s{sRB}, {C_KT}\ns_nop 0")
    for i in range(4):
        a(f"buffer_load_dwordx4 v{vL16}, {s4(Q_WS)}, s{sT} offen offset:{1024 * i} lds")
    a(f"""
    v_mov_b32 v24, 0
    v_mov_b32 v25, 0
    v_mov_b32 v26, 0
    v_mov_b32 v27, 0
    v_add_u32 v5, s{sRB}, v{vL16}
    v_mov_b32 v{vCTL}, {K2_CTL}
    v_mov_b32 v{vONE}, 1
    s_mov_b32 exec_hi, 0xff
    ds_write_b128 v5, v[24:27]
    s_mov_b64 exec, 0xff
    ds_write_b128 v5, v[24:27] offset:{C_U + 4096}
    s_mov_b64 exec, 0xf
    ds_write_b128 v5, v[24:27] offset:{C_B3 - 64}
    ds_write_b128 v5, v[24:27] offset:{C_B5 - 64}
    ds_write_b128 v5, v[24:27] offset:{C_B7 - 64}
    ds_write_b128 v5, v[24:27] offset:{C_B9 - 64}
    s_mov_b64 exec, 1
    ds_write_b128 v{vCTL}, v[24:27]
    s_mov_b64 exec, -1
    s_waitcnt lgkmcnt(0)
    s_barrier
    s_waitcnt vmcnt(0)
    s_mov_b64 exec, 1
    ds_add_u32 v{vCTL}, v{vONE}
    s_mov_b64 exec, -1
    """)
    stamp(a, 2)
    Lp = a.newlabel("cp")
    a.label(Lp)
    a(f"ds_read_b32 v6, v{vCTL}\ns_waitcnt lgkmcnt(0)\nv_readfirstlane_b32 s{sT}, v6\ns_cmp_ge_u32 s{sT}, 5\ns_cbranch_scc0 {Lp}")
    a(f"v_lshlrev_b32 v6, 6, v0\nv_add_u32 v6, {K2_STAT}, v6")
    S = 32
    X = 64
    lq = LQ(a)

    def ldst(r):
        for q in range(4):
            lq.issue(f"s{r}", f"ds_read_b128 {v4(S + 16 * (r & 1) + 4 * q)}, v6 offset:{4096 * r + 16 * q}")
    ldst(0)
    for r in range(4):
        if r < 3:
            ldst(r + 1)
        for i in range(4):
            a(f"v_lshlrev_b32 v{X + 2 * i}, 16, v{8 + 4 * r + i}\nv_and_b32 v{X + 2 * i + 1}, 0xffff0000, v{8 + 4 * r + i}")
        lq.wait(f"s{r}")
        sb = S + 16 * (r & 1)
        for i in range(8):
            a(f"v_fma_f32 v{X + i}, v{X + i}, v{sb + 2 * i}, v{sb + 2 * i + 1}")
        for i in range(4):
            a(f"v_cvt_pk_f16_f32 v{8 + 4 * r + i}, v{X + 2 * i}, v{X + 2 * i + 1}")
        lq.issue("w", f"ds_write_b128 v5, {v4(8 + 4 * r)} offset:{C_U + 1024 * r}")
    D = 32
    SS = 48
    OB = 56

    def ldw(r):
        b = D + 8 * (r & 1)
        lq.issue(f"d{r}", f"ds_read_b64 {v2(b)}, v5 offset:{C_U + 1024 * r - 24}")
        lq.issue(f"d{r}", f"ds_read_b128 {v4(b + 2)}, v5 offset:{C_U + 1024 * r - 16}")
        lq.issue(f"d{r}", f"ds_read_b64 {v2(b + 6)}, v5 offset:{C_U + 1024 * r}")
    ldw(0)
    Lbend = a.newlabel("bend")
    for r in range(4):
        if r == 3:
            pass
        if r < 3:
            ldw(r + 1)
        d = D + 8 * (r & 1)
        lq.wait(f"d{r}", "w")
        for i in range(7):
            a(f"v_alignbit_b32 v{SS + i}, v{d + i + 1}, v{d + i}, 16")
        for i in range(4):
            a(f"v_mov_b32 v{OB + i}, v{d + 1 + i}")
        for i in range(4):
            a(f"v_pk_add_f16 v{OB + 4 + i}, v{SS + i + 1}, v{SS + i + 2}")
        for i in range(4):
            a(f"v_pk_add_f16 v{OB + 4 + i}, v{OB + 4 + i}, v{d + i + 2}")
        if r == 3:
            a("s_mov_b32 exec_lo, -1\ns_mov_b32 exec_hi, 1")
        lq.issue("w", f"ds_write_b128 v5, {v4(OB)} offset:{C_U2 + 1024 * r - 16}")
        lq.issue("w", f"ds_write_b128 v5, {v4(OB + 4)} offset:{C_B3 + 1024 * r - 16}")
        if r == 3:
            a("s_mov_b64 exec, 1")
        for i in range(4):
            a(f"v_pk_add_f16 v{OB + 8 + i}, v{d + i + 1}, v{d + i + 3}")
        for i in range(4):
            a(f"v_pk_add_f16 v{OB + 8 + i}, v{OB + 8 + i}, v{OB + 4 + i}")
        lq.issue("w", f"ds_write_b128 v5, {v4(OB + 8)} offset:{C_B5 + 1024 * r - 16}")
        if r == 3:
            a("s_mov_b64 exec, -1")
        if r <= 2:
            if r == 2:
                a("s_mov_b64 exec, 1")
            for i in range(4):
                a(f"v_pk_add_f16 v{OB + 12 + i}, v{SS + i}, v{SS + i + 3}")
            for i in range(4):
                a(f"v_pk_add_f16 v{OB + 12 + i}, v{OB + 12 + i}, v{OB + 8 + i}")
            lq.issue("w", f"ds_write_b128 v5, {v4(OB + 12)} offset:{C_B7 + 1024 * r - 16}")
            for i in range(4):
                a(f"v_pk_add_f16 v{OB + 16 + i}, v{d + i}, v{d + i + 4}")
            for i in range(4):
                a(f"v_pk_add_f16 v{OB + 16 + i}, v{OB + 16 + i}, v{OB + 12 + i}")
            lq.issue("w", f"ds_write_b128 v5, {v4(OB + 16)} offset:{C_B9 + 1024 * r - 16}")
            if r == 2:
                a("s_mov_b64 exec, -1")
    a.label(Lbend)
    stamp(a, 3)
    regs = dict(ACC=8, KF=28, DF=100, ND=6, bU=124, bK0=125, bD={1: 126, 2: 127, 3: 128}, bK={1: 129, 2: 130, 3: 131}, PF=132)
    i16, hq, par, h8, rr, cc, T = 140, 141, 142, 143, 144, 145, 146
    a(f"""
    v_and_b32 v{i16}, 15, v0
    v_lshrrev_b32 v{hq}, 4, v0
    v_and_b32 v{par}, 1, v{hq}
    v_lshrrev_b32 v{h8}, 1, v{hq}
    v_bfe_u32 v{rr}, v0, 2, 2
    v_and_b32 v{cc}, 3, v0
    v_sub_u32 v{T}, v{i16}, v{h8}
    v_lshlrev_b32 v{T}, 5, v{T}
    v_lshl_add_u32 v{T}, v{par}, 4, v{T}
    s_add_u32 s{sT}, s{sRB}, {C_U - 512}
    v_add_u32 v{regs['bU']}, s{sT}, v{T}
    v_lshlrev_b32 v{T}, 3, v{par}
    v_sub_u32 v{T}, v{T}, v{i16}
    v_lshlrev_b32 v{T+1}, 4, v{h8}
    v_sub_u32 v{T}, v{T}, v{T+1}
    v_add_u32 v{T}, 32, v{T}
    v_lshlrev_b32 v{T}, 1, v{T}
    v_and_b32 v{T+2}, 1, v{i16}
    v_mul_u32_u24 v{T+1}, {T0O - T0E - 2}, v{T+2}
    v_add3_u32 v{T}, v{T}, v{T+1}, s{sRB}
    v_add_u32 v{regs['bK0']}, {C_KT + T0E}, v{T}
    """)
    segs = {1: (4, C_B3, 5, 0, C_U2, 5, 0, T1E, T1O), 2: (8, C_B5, 35, 0, C_B3, 34, 4, T2E, T2O), 3: (16, C_B9, 50, 0, C_B7, 49, 8, T3EE, T3OE)}
    for sg, (Dd, Ae, pe, oe, Ao, po, oo, Te, To) in segs.items():
        ce = Ae - 2 * Dd * (pe + 4) - 2 * oe
        co = Ao - 2 * Dd * (po + 4) - 2 * oo
        a(f"""
        v_lshl_add_u32 v{T}, v{h8}, 3, v{rr}                ; 8 h8 + r
        v_mul_u32_u24 v{T}, {2 * Dd}, v{T}
        v_lshlrev_b32 v{T+1}, 3, v{cc}
        v_sub_u32 v{T}, v{T+1}, v{T}
        v_mul_i32_i24 v{T+1}, {co - ce}, v{par}
        v_add3_u32 v{T}, v{T}, v{T+1}, s{sRB}
        v_add_u32 v{regs['bD'][sg]}, {ce}, v{T}
        v_mul_u32_u24 v{T}, {2 * 16 // Dd}, v{i16}
        v_lshl_add_u32 v{T}, v{h8}, 4, v{T}
        v_mul_u32_u24 v{T+1}, {To - Te}, v{par}
        v_add3_u32 v{T}, v{T}, v{T+1}, s{sRB}
        v_add_u32 v{regs['bK'][sg]}, {C_KT + Te}, v{T}
        """)
    a(f"v_mul_u32_u24 v{T+1}, 158, v{T+2}\nv_add_u32 v{regs['bK'][3]}, v{regs['bK'][3]}, v{T+1}")
    PF = regs["PF"]
    a(f"""
    s_add_u32 s{sT}, s{sRB}, {C_KT + TK1024}
    v_mov_b32 v{T+3}, s{sT}
    ds_read_b64 {v2(T + 4)}, v{T+3}
    v_lshlrev_b32 v{T}, 4, v{h8}
    v_lshlrev_b32 v{T+1}, 3, v{par}
    v_sub_u32 v{T}, v{T}, v{T+1}
    v_add3_u32 v{T}, v{T}, v{i16}, -6
    s_waitcnt lgkmcnt(0)
    v_and_b32 v{T+4}, 0xffff, v{T+4}
    v_lshlrev_b32 v{T+6}, 16, v{T+4}
    """)
    for p in range(4):
        a(f"""v_subrev_u32 v{T+1}, {2 * p}, v{T}
        v_subrev_u32 v{T+2}, {2 * p + 1}, v{T}
        v_cmp_gt_u32 vcc, 7, v{T+1}
        v_cmp_gt_u32 s[30:31], 7, v{T+2}
        s_nop 1
        v_cndmask_b32 v{T+1}, 0, v{T+4}, vcc
        v_cndmask_b32 v{T+2}, 0, v{T+6}, s[30:31]
        v_or_b32 v{PF + p}, v{T+1}, v{T+2}""")
    for r in range(8, 28, 2):
        a(f"v_mov_b64 {v2(r)}, 0")
    a(f"""v_lshlrev_b32 v{T+7}, 5, v{i16}
    v_lshl_add_u32 v{T+7}, v{hq}, 3, v{T+7}
    s_lshl_b32 s{sT2}, s{sCH}, 12
    s_add_u32 s{sT2}, s{sT2}, {WS_Y}""")
    LB = a.newlabel("halfB"); LJ = a.newlabel("cjoin")
    a(f"s_cmp_eq_u32 s{sHALF}, 1\ns_cbranch_scc1 {LB}")
    for tiles, lab in (([0, 1, 2, 3, 4], None), ([5, 6, 7], LB)):
        if lab:
            a.label(lab)
        conv_mfma(a, tiles, regs)
        a("s_nop 7")
        for i, t in enumerate(tiles):
            c = 8 + 4 * i
            for r in range(4):
                a(f"v_mul_f32 v{c + r}, v{c + r}, v{T+5}")
            a(f"v_cvt_pk_bf16_f32 v{c}, v{c}, v{c+1}\nv_cvt_pk_bf16_f32 v{c+1}, v{c+2}, v{c+3}")
            a(f"buffer_store_dwordx2 {v2(c)}, v{T+7}, {s4(Q_WS)}, s{sT2} offen offset:{512 * t} sc0 sc1")
        if not lab:
            a(f"s_branch {LJ}")
    a.label(LJ)
    stamp(a, 4)
    vTO = 100
    a(f"""
    v_lshrrev_b32 v{vTO}, 3, v0
    v_and_b32 v{vTO+1}, 7, v0
    v_lshlrev_b32 v{vTO}, 12, v{vTO}
    v_lshl_add_u32 v{vTO}, v{vTO+1}, 4, v{vTO}          ; ch8*4096 + 16k
    s_mul_i32 s30, s{qNI}, 80
    s_lshl_b32 s31, s{sC}, 4
    s_add_u32 s30, s30, s31
    s_lshl_b32 s31, s30, 12
    s_lshl_b32 s32, s{qMI}, 7
    s_add_u32 s31, s31, s32
    s_add_u32 s32, s31, {WS_XT}
    s_add_u32 s33, s32, {8 * 4096}
    s_mov_b32 m0, s{sRB}
    s_lshl_b32 s34, s{qMI}, 9
    buffer_load_dwordx4 v{vTO}, {s4(Q_WS)}, s32 offen lds
    s_add_u32 m0, s{sRB}, 1024
    s_add_u32 s34, s34, {WS_STATB}
    buffer_load_dwordx4 v{vTO}, {s4(Q_WS)}, s33 offen lds
    v_lshlrev_b32 v{vTO+2}, 3, v{i16}
    v_lshlrev_b32 v{vTO+3}, 3, v{hq}
    s_lshl_b32 s30, s30, 1
    """)
    SM = 104
    for t in range(4):
        a(f"buffer_load_dwordx2 {v2(SM + 2 * t)}, v{vTO+2}, {s4(Q_WS)}, s34 offen offset:{128 * t}")
    a(f"buffer_load_dwordx2 {v2(112)}, v{vTO+3}, {s4(Q_D)}, s30 offen")
    Lns = a.newlabel("nosig2")
    a(f"""
    s_waitcnt vmcnt(0)
    s_mov_b64 exec, 1
    ds_add_rtn_u32 v6, v{vCTL}, v{vONE} offset:4
    s_waitcnt lgkmcnt(0)
    v_readfirstlane_b32 s{sT}, v6
    s_cmp_lg_u32 s{sT}, 4
    s_cbranch_scc1 {Lns}
    s_lshl_b32 s{sT}, s2, 2
    s_add_u32 s{sT}, s{sT}, {WS_FLAG2}
    v_mov_b32 v6, 0
    buffer_store_dword v{vONE}, v6, {s4(Q_WS)}, s{sT} offen sc0 sc1
    """)
    a.label(Lns)
    a("s_mov_b64 exec, -1")
    stamp(a, 5)
    vTR = 114
    a(f"""
    v_lshrrev_b32 v{vTR}, 2, v0
    v_lshlrev_b32 v{vTR}, 7, v{vTR}
    v_lshl_add_u32 v{vTR}, v{cc}, 3, v{vTR}
    v_add_u32 v{vTR}, s{sRB}, v{vTR}
    """)
    XR = 8
    XF = 16
    T1 = 32
    DD = 48
    for t in range(4):
        a(f"ds_read_b64_tr_b16 {v2(XR + 2 * t)}, v{vTR} offset:{32 * t}")
    for h in range(2):
        a(f"v_lshlrev_b32 v{DD + 2 * h}, 16, v{112 + h}\nv_and_b32 v{DD + 2 * h + 1}, 0xffff0000, v{112 + h}")
    for t in range(4):
        a(f"v_rcp_f32 v{SM + 2 * t + 1}, v{SM + 2 * t + 1}")
    a("s_waitcnt lgkmcnt(0)")

    def unpack(d, s):
        a(f"v_and_b32 v{d + 1}, 0xffff0000, v{s}\nv_lshlrev_b32 v{d}, 16, v{s}")

    def rnd2(d):
        a(f"v_cvt_pk_bf16_f32 v{d}, v{d}, v{d+1}")
        unpack(d, d)
    for t in range(4):
        for h in range(2):
            x = XF + 4 * t + 2 * h
            y = T1 + 4 * t + 2 * h
            unpack(x, XR + 2 * t + h)
            a(f"v_sub_f32 v{y}, v{x}, v{SM + 2 * t}\nv_sub_f32 v{y+1}, v{x+1}, v{SM + 2 * t}")
            rnd2(y)
            a(f"v_mul_f32 v{y}, v{y}, v{SM + 2 * t + 1}\nv_mul_f32 v{y+1}, v{y+1}, v{SM + 2 * t + 1}")
            rnd2(y)
            a(f"v_mul_f32 v{y}, v{y}, v{DD + 2 * h}\nv_mul_f32 v{y+1}, v{y+1}, v{DD + 2 * h + 1}")
            rnd2(y)
    Lo = a.newlabel("oth"); Lg = a.newlabel("gp"); Lgd = a.newlabel("gpd"); Lr = a.newlabel("rdy")
    a(f"""
    s_cmp_lg_u32 s{sC}, 0
    s_cbranch_scc1 {Lo}
    v_and_b32 v6, 31, v0
    v_lshlrev_b32 v6, 2, v6
    s_lshl_b32 s{sT}, s{qNI}, 7
    s_add_u32 s{sT}, s{sT}, {WS_FLAG2}
    s_mov_b32 s35, 0
    """)
    a.label(Lg)
    a(f"""
    buffer_load_dword v7, v6, {s4(Q_WS)}, s{sT} offen sc0 sc1
    s_waitcnt vmcnt(0)
    v_cmp_eq_u32 vcc, 1, v7
    s_cmp_eq_u32 vcc_lo, -1
    s_cbranch_scc1 {Lgd}
    s_sleep 8
    s_add_u32 s35, s35, 1
    s_cmp_lt_u32 s35, 200000
    s_cbranch_scc1 {Lg}
    """)
    a.label(Lgd)
    a(f"ds_write_b32 v{vCTL}, v{vONE} offset:8\ns_branch {Lr}")
    a.label(Lo)
    a(f"ds_read_b32 v6, v{vCTL} offset:8\ns_sleep 1\ns_waitcnt lgkmcnt(0)\nv_readfirstlane_b32 s{sT}, v6\ns_cmp_ge_u32 s{sT}, 1\ns_cbranch_scc0 {Lo}")
    a.label(Lr)
    stamp(a, 8)
    a(f"""
    s_add_u32 s32, s31, {WS_Y}
    s_add_u32 s33, s32, {8 * 4096}
    s_add_u32 m0, s{sRB}, 2048
    s_nop 0
    buffer_load_dwordx4 v{vTO}, {s4(Q_WS)}, s32 offen sc0 sc1 lds
    s_add_u32 m0, s{sRB}, 3072
    s_nop 0
    buffer_load_dwordx4 v{vTO}, {s4(Q_WS)}, s33 offen sc0 sc1 lds
    s_lshl_b32 s{sT}, s{sC}, 9
    s_add_u32 s{sT}, s{sT}, {K2_BASE}
    v_lshlrev_b32 v6, 3, v0
    v_add_u32 v6, s{sT}, v6
    s_waitcnt vmcnt(0)
    """)
    for t in range(4):
        a(f"ds_read_b64_tr_b16 {v2(XR + 2 * t)}, v{vTR} offset:{2048 + 32 * t}")
    Y = 52
    for t in range(4):
        a(f"s_waitcnt lgkmcnt({3 - t + min(t, 1) * 0})" if t == 0 else f"s_waitcnt lgkmcnt({3 - t + t})")
        for h in range(2):
            y = Y + 2 * h
            unpack(y, XR + 2 * t + h)
            a(f"v_add_f32 v{y}, v{y}, v{T1 + 4 * t + 2 * h}\nv_add_f32 v{y+1}, v{y+1}, v{T1 + 4 * t + 2 * h + 1}")
            rnd2(y)
            a(f"v_add_f32 v{y}, v{y}, v{XF + 4 * t + 2 * h}\nv_add_f32 v{y+1}, v{y+1}, v{XF + 4 * t + 2 * h + 1}")
            a(f"v_cvt_pk_bf16_f32 v{56 + 2 * t + h}, v{y}, v{y+1}")
        a(f"ds_write_b64 v6, {v2(56 + 2 * t)} offset:{t * 2560}")
    a("s_waitcnt lgkmcnt(0)")
    stamp(a, 9)
    a("s_barrier")
    stamp_end(a, 1, Q_WS, qWAVE)


def kernel2(a):
    a.raw(".globl k2_kernel\n.p2align 8\n.type k2_kernel,@function\nk2_kernel:")
    a(f"""
    s_cmp_ge_u32 s2, 256
    s_cbranch_scc1 L_k2_end
    s_load_dwordx2 s[40:41], s[0:1], 48
    s_load_dwordx2 s[42:43], s[0:1], 88
    s_load_dwordx2 s[44:45], s[0:1], 104
    v_lshrrev_b32 v1, 6, v0
    v_and_b32 v0, 63, v0
    s_and_b32 s22, s2, 7
    v_readfirstlane_b32 s{qWAVE}, v1
    s_lshr_b32 s23, s2, 3
    s_and_b32 s{qMI}, s22, 3
    s_lshl_b32 s{qMI}, s{qMI}, 3
    s_and_b32 s24, s23, 7
    s_add_u32 s{qMI}, s{qMI}, s24
    s_lshr_b32 s{qNI}, s22, 2
    s_lshl_b32 s{qNI}, s{qNI}, 2
    s_lshr_b32 s24, s23, 3
    s_add_u32 s{qNI}, s{qNI}, s24
    """)
    code_prefetch(a, "k2_kernel", "L_k2_end", 2, 23, qWAVE, 8, 166, 96)
    a("s_waitcnt lgkmcnt(0)")
    srd(a, Q_WS, 44, 0x4000000 if PROF else WS_END)
    srd(a, Q_OUT, 42, 2048 * 1280)
    srd(a, Q_D, 40, 1280)
    if PROF:
        a(f"v_mov_b32 v{vSTAMP}, 0")
    stamp(a, 0, True)
    stamp(a, 1)
    a(f"s_cmp_ge_u32 s{qWAVE}, 4\ns_cbranch_scc1 L_k2_conv")
    k2_gemm(a)
    a.label("L_k2_conv")
    k2_conv(a)
    a.label("L_k2_end")
    a("s_endpgm")
    return dict(block=576, lds=K2_LDS, vgpr=168)
```

```python
import sys, os, struct

NAME = "parallel_sum__ssm_conv_s4d__glu_gated_glu__prompt"

WS_H = 0
WS_WD = WS_H + 128 * 48 * 1024
WS_XT = WS_WD + 8 * 48 * 5 * 1024
WS_Y = WS_XT + 640 * 4096
KT_BYTES = 3584
WS_KT = WS_Y + 640 * 4096
WS_STATA = WS_KT + 640 * KT_BYTES
WS_STATB = WS_STATA + 2048 * 8
WS_CS = WS_STATB + 2048 * 8
WS_FLAG2 = WS_CS + 5 * 3072 * 4
WS_END = WS_FLAG2 + 8 * 128

T0E, T0O, T1E, T1O, T2E, T2O = 0, 640, 1280, 1664, 2048, 2304
T3EE, T3EO, T3OE, T3OO = 2560, 2720, 2880, 3040
TK1024, TSIG = 3200, 3204

PROF = int(os.environ.get("PROF", "0"))
EXP = os.environ.get("EXP", "")
WS_PROF = 0x2000000
vSTAMP = 167


def f32(x):
    return "0x%08x" % struct.unpack("<I", struct.pack("<f", x))[0]


class Asm:
    def __init__(self):
        self.L = []
        self.uid = 0

    def __call__(self, s):
        for line in s.split("\n"):
            line = line.strip()
            if line:
                self.L.append("  " + line)

    def label(self, n):
        self.L.append(n + ":")

    def newlabel(self, base):
        self.uid += 1
        return f"L_{base}_{self.uid}"

    def raw(self, s):
        self.L.append(s)

    def text(self):
        return "\n".join(self.L) + "\n"


class LQ:
    def __init__(self, a, seed=(), cnt="lgkmcnt", cap=15):
        self.a = a
        self.q = list(seed)
        self.cnt = cnt
        self.cap = cap

    def issue(self, tag, s):
        self.a(s)
        self.q.append(tag)

    def wait(self, *tags):
        idx = -1
        for t in tags:
            for i, x in enumerate(self.q):
                if x == t:
                    idx = max(idx, i)
        if idx < 0:
            return
        n = len(self.q) - 1 - idx
        self.a(f"s_waitcnt {self.cnt}({min(n, self.cap)})")
        self.q = self.q[idx + 1:] if n <= self.cap else self.q[len(self.q) - self.cap:]

    def drain(self):
        self.a(f"s_waitcnt {self.cnt}(0)")
        self.q = []


def stamp(a, i, real=False):
    if PROF:
        a(f"s_waitcnt lgkmcnt(0)\n{'s_memrealtime' if real else 's_memtime'} s[100:101]\ns_waitcnt lgkmcnt(0)\nv_writelane_b32 v{vSTAMP}, s100, {i}")


def stamp_dyn(a, sidx, base, mul=1):
    if PROF:
        a(f"s_waitcnt lgkmcnt(0)\ns_memtime s[100:101]\ns_mul_i32 s99, s{sidx}, {mul}\ns_add_u32 m0, s99, {base}\ns_waitcnt lgkmcnt(0)\nv_writelane_b32 v{vSTAMP}, s100, m0")


def stamp_end(a, kern, S_WS_, swave):
    if PROF:
        a("s_waitcnt vmcnt(0)")
        stamp(a, 6)
        stamp(a, 7, True)
        a(f"""s_lshl_b32 s100, s2, 4
        s_add_u32 s100, s100, s{swave}
        s_lshl_b32 s100, s100, 8
        s_add_u32 s100, s100, {WS_PROF + kern * 0x100000}
        v_lshlrev_b32 v1, 2, v0
        buffer_store_dword v{vSTAMP}, v1, s[{S_WS_}:{S_WS_+3}], s100 offen
        s_waitcnt vmcnt(0)""")
    a("s_endpgm")


def srd(a, d, lo, nbytes):
    a(f"s_mov_b32 s{d}, s{lo}\ns_mov_b32 s{d+1}, s{lo+1}\ns_mov_b32 s{d+2}, {nbytes}\ns_mov_b32 s{d+3}, 0x00020000")


def v4(r): return f"v[{r}:{r+3}]"
def v2(r): return f"v[{r}:{r+1}]"
def s4(r): return f"s[{r}:{r+3}]"


def dpp_row_allreduce(a, op, regs):
    for sh in (8, 4, 2, 1):
        if len(regs) < 3:
            a("s_nop 1")
        for r in regs:
            a(f"{op}_dpp v{r}, v{r}, v{r} row_ror:{sh} row_mask:0xf bank_mask:0xf")


def wave_max_u32_to_sgpr(a, v, sd, st):
    dpp_row_allreduce(a, "v_max_u32", [v])
    a(f"""s_nop 0
    v_readlane_b32 s{sd}, v{v}, 0
    v_readlane_b32 s{st}, v{v}, 16
    s_max_u32 s{sd}, s{sd}, s{st}
    v_readlane_b32 s{st}, v{v}, 32
    s_max_u32 s{sd}, s{sd}, s{st}
    v_readlane_b32 s{st}, v{v}, 48
    s_max_u32 s{sd}, s{sd}, s{st}""")


def round_bf16(a, d, s):
    a(f"v_cvt_pk_bf16_f32 v{d}, v{s}, v{s}\nv_lshlrev_b32 v{d}, 16, v{d}")


XSZ = 208 * 128
WSZ = 16384
SLOT = XSZ + WSZ
K1_STAT = 3 * SLOT
K1_CS = K1_STAT + 2048
K1_KG = K1_CS + 512
K1_SCR = K1_KG + 6 * 4096
K1_LDS = 163840
assert K1_SCR + 2048 <= K1_LDS

S_X, S_WG, S_WU, S_WD, S_WS, S_DBG = 4, 8, 12, 16, 20, 24
S_LA, S_AI, S_CR, S_CI, S_DT = 28, 32, 36, 40, 44
S_TMP = 48
sWAVE, sMI, sNI, sROW0, sGI, sIDX, sXCD = 3, 52, 53, 54, 55, 56, 57


def k1_loader(a, parts):
    vOX, vOW = 16, 20
    sT, sXO, sWO, sDSL, sPEND = 58, 59, 60, 61, 62
    a(f"""
    s_setprio 3
    v_lshrrev_b32 v8, 3, v0            ; rho
    v_and_b32 v9, 7, v0                ; c'
    v_xor_b32 v10, v9, v8
    v_mul_u32_u24 v{vOX}, 1280, v8
    v_lshl_add_u32 v{vOX}, v10, 4, v{vOX}
    v_bfe_u32 v10, v8, 1, 1
    v_lshrrev_b32 v11, 1, v9
    v_xor_b32 v11, v11, v10
    v_and_b32 v12, 1, v9
    v_lshl_add_u32 v11, v11, 1, v12
    v_mul_u32_u24 v{vOW}, 3072, v8
    v_lshl_add_u32 v{vOW}, v11, 4, v{vOW}
    v_xor_b32 v13, 64, v{vOW}
    v_add_u32 v{vOW + 1}, {8 * 3072 - 1024}, v13
    v_add_u32 v{vOW + 2}, {2 * (8 * 3072 - 1024)}, v{vOW}
    v_add_u32 v{vOW + 3}, {3 * (8 * 3072 - 1024)}, v13
    v_add_u32 v{vOX + 1}, {8 * 1280 - 1024}, v{vOX}
    v_add_u32 v{vOX + 2}, {2 * (8 * 1280 - 1024)}, v{vOX}
    v_add_u32 v{vOX + 3}, {3 * (8 * 1280 - 1024)}, v{vOX}
    s_mul_i32 s{sT}, s{sWAVE}, 104
    s_add_u32 s{sXO}, s{sROW0}, s{sT}
    s_mul_i32 s{sXO}, s{sXO}, 1280
    s_lshl_b32 s{sWO}, s{sNI}, 7
    s_cmp_eq_u32 s{sWAVE}, 0
    s_cselect_b32 s{S_TMP}, s{S_WG}, s{S_WU}
    s_cselect_b32 s{S_TMP+1}, s{S_WG+1}, s{S_WU+1}
    s_mov_b32 s{S_TMP+2}, {640 * 3072}
    s_mov_b32 s{S_TMP+3}, 0x00020000
    s_mul_i32 s92, s{sWAVE}, {13 * 1024}
    s_mul_i32 s93, s{sWAVE}, 8192
    s_add_u32 s93, s93, {XSZ}
    v_lshlrev_b32 v24, 2, v0
    v_lshlrev_b32 v25, 4, v0
    """)
    groups = [("w", 0, 4), ("x", 0, 4), ("x", 4, 4), ("x", 8, 4), ("x", 12, 1), ("w", 4, 4)]

    def issue(st):
        slot = (st % 3) * SLOT
        for (k, i0, n) in groups:
            if k == "x":
                a(f"s_add_u32 m0, s92, {slot + i0 * 1024}\ns_add_u32 s98, s{sXO}, {i0 * 8 * 1280 + st * 128}")
                for j in range(n):
                    a(f"buffer_load_dwordx4 v{vOX + j}, {s4(S_X)}, s98 offen offset:{1024 * j} lds")
            else:
                a(f"s_add_u32 m0, s93, {slot + i0 * 1024}\ns_add_u32 s98, s{sWO}, {(st * 64 + i0 * 8) * 3072}")
                for j in range(n):
                    a(f"buffer_load_dwordx4 v{vOW + j}, {s4(S_TMP)}, s98 offen offset:{1024 * j} lds")

    def stage_loads():
        a(f"""s_lshl_b32 s98, s{sROW0}, 3
        s_mov_b32 m0, {K1_STAT}
        s_add_u32 s98, s98, {WS_STATB}
        buffer_load_dwordx4 v25, {s4(S_WS)}, s98 offen sc0 sc1 lds
        buffer_load_dwordx4 v25, {s4(S_WS)}, s98 offen offset:1024 sc0 sc1 lds
        s_lshl_b32 s97, s{sNI}, 8
        s_add_u32 s97, s97, {WS_CS}""")
        for rc in range(5):
            a(f"s_add_u32 s98, s97, {rc * 12288}\nbuffer_load_dword v{32 + rc}, v24, {s4(S_WS)}, s98 offen sc0 sc1")
            a(f"s_add_u32 s98, s97, {rc * 12288 + 6144}\nbuffer_load_dword v{37 + rc}, v24, {s4(S_WS)}, s98 offen sc0 sc1")

    def flags_ok(Lno):
        a(f"v_cmp_le_u32 vcc, 4, v30\ns_and_b32 s{sT}, vcc_lo, vcc_hi\ns_cmp_eq_u32 s{sT}, -1\ns_cbranch_scc0 {Lno}")

    a("s_barrier")
    for st in range(3):
        issue(st)
    stamp(a, 2)
    a("s_waitcnt vmcnt(42)")
    stamp(a, 3)
    a("s_barrier")
    L1 = a.newlabel("ldr1")
    for s in range(5):
        a("s_waitcnt vmcnt(21)\ns_barrier")
        issue(s + 3)
    a(f"s_cmp_eq_u32 s{sWAVE}, 1\ns_cbranch_scc1 {L1}")
    for s in (5, 6):
        a("s_waitcnt vmcnt(21)\ns_barrier")
        issue(s + 3)
    a("s_waitcnt vmcnt(21)\ns_barrier\ns_waitcnt vmcnt(0)\ns_barrier")
    a("s_branch L_k1_tail")
    a.label(L1)
    a(f"buffer_load_dword v30, v24, {s4(S_DBG)}, 0 offen sc0 sc1")
    a("s_waitcnt vmcnt(22)\ns_barrier")
    issue(8)
    a("s_waitcnt vmcnt(21)\ns_barrier")
    Lno = a.newlabel("notyet"); Lj = a.newlabel("join"); Lsp = a.newlabel("spin"); Lsp2 = a.newlabel("spin2")
    flags_ok(Lno)
    stage_loads()
    issue(9)
    a("s_waitcnt vmcnt(33)\ns_barrier")
    a(f"s_branch {Lj}")
    a.label(Lno)
    issue(9)
    a("s_waitcnt vmcnt(21)\ns_barrier")
    a(f"s_mov_b32 s{sPEND}, 0")
    a.label(Lsp)
    a(f"buffer_load_dword v30, v24, {s4(S_DBG)}, 0 offen sc0 sc1\ns_waitcnt vmcnt(0)")
    flags_ok(Lsp2)
    a.label(Lsp + "_out")
    stage_loads()
    a(f"s_branch {Lj}")
    a.label(Lsp2)
    a(f"s_sleep 32\ns_add_u32 s{sPEND}, s{sPEND}, 1\ns_cmp_lt_u32 s{sPEND}, 100000\ns_cbranch_scc1 {Lsp}\ns_branch {Lsp}_out")
    a.label(Lj)
    a("s_waitcnt vmcnt(0)")
    for rc in range(1, 5):
        a(f"v_add_f32 v32, v32, v{32 + rc}\nv_add_f32 v37, v37, v{37 + rc}")
    a(f"""v_add_u32 v26, {K1_CS}, v24
    ds_write_b32 v26, v32
    ds_write_b32 v26, v37 offset:256
    s_waitcnt lgkmcnt(0)
    s_barrier""")
    a.label("L_k1_tail")
    a("s_setprio 0")
    stamp(a, 4)
    parts["unit_pre"](a)
    if "nokgen" not in EXP:
        a(f"s_lshl_b32 s58, s{sGI}, 1\ns_add_u32 s58, s58, s{sWAVE}\ns_mul_i32 s60, s{sWAVE}, {3 * 4096}\ns_add_u32 s60, s60, {K1_KG}")
        kgen_final(a, 58, 60, True)
    stamp(a, 5)
    parts["unit"](a)
    stamp_end(a, 0, S_WS, sWAVE)


def k1_gemm(a, extra, signal):
    NB = 3 + extra
    A = [8, 24]
    B = [40, 56]
    ACC = 72
    vA0B, vAWB, vA0, vA1, vAW, vAW1, vAX0, vAX1, vXE = 2, 3, 4, 5, 6, 7, 128, 129, 130
    sST, sSLOT, sT = 58, 60, 62
    sFP, sLQ = 95, 94
    T0 = 132

    a(f"s_sub_u32 s{sT}, s{sWAVE}, 2\ns_and_b32 s{sFP}, s{sT}, 1\ns_lshr_b32 s{sLQ}, s{sT}, 1")
    a(f"""
    v_and_b32 v{T0}, 15, v0
    v_lshrrev_b32 v{T0+1}, 4, v0
    v_and_b32 v{T0+2}, 7, v{T0}
    v_xor_b32 v{T0+2}, v{T0+2}, v{T0+1}
    v_lshlrev_b32 v{vXE}, 7, v{T0}
    v_lshl_add_u32 v{vXE}, v{T0+2}, 4, v{vXE}
    s_mul_i32 s{sT}, s{sLQ}, {3 * 2048}
    v_add_u32 v{vA0B}, s{sT}, v{vXE}
    v_add_u32 v{vXE}, {12 * 2048}, v{vXE}
    v_lshrrev_b32 v{T0+2}, 2, v{T0}           ; r
    v_and_b32 v{T0+3}, 3, v{T0}               ; c
    v_lshrrev_b32 v{T0+4}, 1, v{T0+2}
    v_and_b32 v{T0+5}, 1, v{T0+1}
    v_lshl_or_b32 v{T0+4}, v{T0+5}, 1, v{T0+4}
    s_lshl_b32 s{sT}, s{sFP}, 1
    v_xor_b32 v{T0+4}, s{sT}, v{T0+4}
    v_lshl_add_u32 v{T0+5}, v{T0+1}, 3, v{T0+2}     ; 8hq + r
    v_lshlrev_b32 v{vAWB}, 7, v{T0+5}
    v_lshl_add_u32 v{vAWB}, v{T0+4}, 5, v{vAWB}
    v_lshl_add_u32 v{vAWB}, v{T0+3}, 3, v{vAWB}
    v_add_u32 v{vAWB}, {XSZ}, v{vAWB}
    """)
    for r in range(ACC, ACC + 48 + 8 * extra, 2):
        a(f"v_mov_b64 {v2(r)}, 0")

    def set_addr():
        a(f"v_add_u32 v{vAW}, s{sSLOT}, v{vAWB}\nv_add_u32 v{vA0}, s{sSLOT}, v{vA0B}\nv_xor_b32 v{vAW1}, 32, v{vAW}\nv_xor_b32 v{vA1}, 64, v{vA0}")
        if extra:
            a(f"v_add_u32 v{vAX0}, s{sSLOT}, v{vXE}\nv_xor_b32 v{vAX1}, 64, v{vAX0}")

    def reads(kk):
        R = []

        def rA(fr):
            for s in range(2):
                R.append((f"A{kk}{fr}", f"ds_read_b64_tr_b16 {v2(A[kk] + 4 * fr + 2 * s)}, v{vAW1 if fr >= 2 else vAW} offset:{kk * 4096 + s * 512 + (8192 if fr & 1 else 0)}"))

        def rB(t):
            if t == 3:
                R.append((f"B{kk}{t}", f"ds_read_b128 {v4(B[kk] + 4 * t)}, v{vAX1 if kk else vAX0}"))
            else:
                R.append((f"B{kk}{t}", f"ds_read_b128 {v4(B[kk] + 4 * t)}, v{vA1 if kk else vA0} offset:{t * 2048}"))
        rA(0); rB(0); rA(1); rA(2); rA(3)
        for t in range(1, NB):
            rB(t)
        return R

    def mf(t, fr, kk):
        acc = ACC + 48 + 4 * (fr & 1) if t == 3 else ACC + 16 * t + 4 * fr
        a(f"v_mfma_f32_16x16x32_bf16 {v4(acc)}, {v4(A[kk] + 4 * fr)}, {v4(B[kk] + 4 * t)}, {v4(acc)}")

    def phase(lq, kk, R):
        R = list(R)
        for t in range(3):
            for fr in range(4):
                lq.wait(f"A{kk}{fr}", f"B{kk}{t}")
                mf(t, fr, kk)
                if R:
                    tg, ins = R.pop(0)
                    lq.issue(tg, ins)
        while R:
            tg, ins = R.pop(0)
            lq.issue(tg, ins)
        if extra:
            lq.wait(f"B{kk}3")
            L1 = a.newlabel("x1"); L2 = a.newlabel("x2")
            a(f"s_cmp_eq_u32 s{sLQ}, 1\ns_cbranch_scc1 {L1}")
            mf(3, 0, kk); mf(3, 1, kk)
            a(f"s_branch {L2}")
            a.label(L1)
            mf(3, 2, kk); mf(3, 3, kk)
            a.label(L2)

    stamp(a, 2)
    a("s_waitcnt vmcnt(0) lgkmcnt(0)\ns_setprio 2\ns_barrier")
    stamp(a, 3)
    if signal:
        Lns = a.newlabel("nosig")
        a(f"s_cmp_lg_u32 s{sWAVE}, 8\ns_cbranch_scc1 {Lns}")
        signal()
        a.label(Lns)
    a(f"s_mov_b32 s{sSLOT}, 0\ns_mov_b32 s{sST}, 0")
    set_addr()
    lq = LQ(a)
    for tg, ins in reads(0):
        lq.issue(tg, ins)
    seed = list(lq.q)

    def body(last):
        lq = LQ(a, seed)
        phase(lq, 0, reads(1))
        if not last:
            a(f"s_add_u32 s{sSLOT}, s{sSLOT}, {SLOT}\ns_cmp_eq_u32 s{sSLOT}, {3 * SLOT}\ns_cselect_b32 s{sSLOT}, 0, s{sSLOT}")
            lq.drain()
            set_addr()
            a("s_barrier")
            phase(lq, 1, reads(0))
        else:
            phase(lq, 1, [])

    Lloop = a.newlabel("gloop")
    a.label(Lloop)
    body(False)
    a(f"s_add_u32 s{sST}, s{sST}, 1\ns_cmp_lt_u32 s{sST}, 9\ns_cbranch_scc1 {Lloop}")
    body(True)

    a("s_setprio 0")
    stamp(a, 4)
    vSA, vCA, vHO = 2, 3, 4
    CS = 8
    ST = 24
    a(f"""
    v_and_b32 v{T0}, 15, v0
    v_lshrrev_b32 v{T0+1}, 4, v0
    s_mul_i32 s{sT}, s{sLQ}, {3 * 128}
    s_add_u32 s{sT}, s{sT}, {K1_STAT}
    v_lshl_add_u32 v{vSA}, v{T0}, 3, s{sT}
    v_lshlrev_b32 v5, 3, v{T0}
    v_add_u32 v5, {K1_STAT + 12 * 128}, v5
    s_lshl_b32 s{sT}, s{sFP}, 7
    s_add_u32 s{sT}, s{sT}, {K1_CS}
    v_lshl_add_u32 v{vCA}, v{T0+1}, 4, s{sT}
    ds_read_b128 {v4(CS)}, v{vCA}
    ds_read_b128 {v4(CS + 4)}, v{vCA} offset:256
    ds_read_b128 {v4(CS + 8)}, v{vCA} offset:64
    ds_read_b128 {v4(CS + 12)}, v{vCA} offset:320
    """)
    for t in range(3):
        a(f"ds_read_b64 {v2(ST + 2 * t)}, v{vSA} offset:{t * 128}")
    if extra:
        a(f"ds_read_b64 {v2(ST + 6)}, v5")
    a(f"""
    v_lshlrev_b32 v{vHO}, 4, v0
    s_lshr_b32 s96, s{sROW0}, 4
    s_mul_i32 s96, s96, 49152
    s_lshl_b32 s97, s{sNI}, 1
    s_add_u32 s97, s97, s{sFP}
    s_lshl_b32 s97, s97, 10
    s_add_u32 s96, s96, s97
    s_add_u32 s96, s96, {WS_H}
    s_mul_i32 s97, s{sLQ}, {3 * 49152}
    s_add_u32 s99, s96, s97
    s_mov_b32 s98, 0xbfb8aa3b           ; -log2e
    s_waitcnt lgkmcnt(0)
    """)
    TM = 40
    PK = 48
    c1 = 56

    def act(g, u, csg, csu, m, s, pk):
        for r in range(4):
            a(f"v_fma_f32 v{TM + r}, -v{m}, v{csg + r}, v{g + r}")
        for r in range(4):
            a(f"v_mul_f32 v{TM + r}, v{TM + r}, v{c1}")
        for r in range(4):
            a(f"v_exp_f32 v{TM + r}, v{TM + r}")
        for r in range(4):
            a(f"v_fma_f32 v{TM + 4 + r}, -v{m}, v{csu + r}, v{u + r}")
        for r in range(4):
            a(f"v_fma_f32 v{TM + r}, v{TM + r}, v{s}, v{s}")
        for r in range(4):
            a(f"v_rcp_f32 v{TM + r}, v{TM + r}")
        a("s_nop 0")
        for r in range(4):
            a(f"v_mul_f32 v{TM + 4 + r}, v{TM + 4 + r}, v{TM + r}")
        a(f"v_cvt_pk_bf16_f32 v{pk}, v{TM + 4}, v{TM + 5}\nv_cvt_pk_bf16_f32 v{pk + 1}, v{TM + 6}, v{TM + 7}")

    for t in range(3):
        m, s = ST + 2 * t, ST + 2 * t + 1
        a(f"v_rcp_f32 v{c1}, v{s}\ns_nop 0\nv_mul_f32 v{c1}, s98, v{c1}")
        b = PK + 4 * (t & 1)
        act(ACC + 16 * t, ACC + 16 * t + 4, CS, CS + 4, m, s, b)
        act(ACC + 16 * t + 8, ACC + 16 * t + 12, CS + 8, CS + 12, m, s, b + 2)
        a(f"s_add_u32 s97, s99, {t * 49152}")
        Lsk = None
        if extra and t < 2:
            Lsk = a.newlabel("skipst")
            a(f"s_lshl_b32 s{sT}, s{sLQ}, 4\ns_add_u32 s{sT}, s{sT}, s{sMI}\ns_cmp_eq_u32 s{sT}, 9\ns_cbranch_scc1 {Lsk}")
        a(f"buffer_store_dwordx4 {v4(b)}, v{vHO}, {s4(S_WS)}, s97 offen")
        if Lsk:
            a.label(Lsk)
    if extra:
        m, s = ST + 6, ST + 7
        a(f"v_rcp_f32 v{c1}, v{s}\ns_nop 0\nv_mul_f32 v{c1}, s98, v{c1}")
        L1 = a.newlabel("e1"); L2 = a.newlabel("e2")
        a(f"s_cmp_eq_u32 s{sLQ}, 1\ns_cbranch_scc1 {L1}")
        act(ACC + 48, ACC + 52, CS, CS + 4, m, s, PK + 4)
        a(f"s_branch {L2}")
        a.label(L1)
        act(ACC + 48, ACC + 52, CS + 8, CS + 12, m, s, PK + 4)
        a.label(L2)
        a(f"s_lshl_b32 s97, s{sLQ}, 3\ns_add_u32 s97, s97, s96\ns_add_u32 s97, s97, {12 * 49152}")
        a(f"buffer_store_dwordx2 {v2(PK + 4)}, v{vHO}, {s4(S_WS)}, s97 offen")
    stamp(a, 5)
    stamp_end(a, 0, S_WS, sWAVE)


def k1_stats(a, bar):
    RAW = 8
    UNP = 48
    a(f"""
    v_lshrrev_b32 v5, 4, v0
    v_and_b32 v6, 15, v0
    v_mul_u32_u24 v7, 1280, v5
    v_lshl_add_u32 v7, v6, 4, v7
    s_and_b32 s58, s{sXCD}, 1
    s_lshl_b32 s58, s58, 10
    s_lshr_b32 s59, s{sXCD}, 1
    s_lshl_b32 s59, s59, 8
    s_add_u32 s58, s58, s59
    s_lshl_b32 s59, s{sIDX}, 3
    s_add_u32 s58, s58, s59
    s_mul_i32 s59, s58, 1280
    s_add_u32 s60, s59, {4 * 1280}
    """)
    for p in range(2):
        for j in range(5):
            a(f"buffer_load_dwordx4 {v4(RAW + 20 * p + 4 * j)}, v7, {s4(S_X)}, s{59 + p} offen offset:{256 * j}")
    if bar:
        a("s_barrier")
    a("s_mov_b32 s61, 0x3acccccd\ns_mov_b32 s62, 0x3727c5ac")
    a(f"s_lshl_b32 s63, s58, 3\nv_lshl_add_u32 v88, v5, 3, s63")
    for p in range(2):
        a("s_waitcnt vmcnt(5)" if p == 0 else "s_waitcnt vmcnt(2)")
        for i in range(20):
            a(f"v_lshlrev_b32 v{UNP + 2 * i}, 16, v{RAW + 20 * p + i}\nv_and_b32 v{UNP + 2 * i + 1}, 0xffff0000, v{RAW + 20 * p + i}")
        for k in range(4):
            a(f"v_add_f32 v{90 + k}, v{UNP + k}, v{UNP + 4 + k}")
        for i in range(8, 40):
            a(f"v_add_f32 v{90 + i % 4}, v{90 + i % 4}, v{UNP + i}")
        a("v_add_f32 v90, v90, v91\nv_add_f32 v92, v92, v93\nv_add_f32 v90, v90, v92")
        dpp_row_allreduce(a, "v_add_f32", [90])
        a("v_mul_f32 v90, s61, v90")
        for i in range(40):
            a(f"v_sub_f32 v{UNP + i}, v{UNP + i}, v90")
        for k in range(4):
            a(f"v_mul_f32 v{91 + k}, v{UNP + k}, v{UNP + k}")
        for i in range(4, 40):
            a(f"v_fmac_f32 v{91 + i % 4}, v{UNP + i}, v{UNP + i}")
        a("v_add_f32 v91, v91, v92\nv_add_f32 v93, v93, v94\nv_add_f32 v91, v91, v93")
        dpp_row_allreduce(a, "v_add_f32", [91])
        a("v_mul_f32 v91, s61, v91")
        round_bf16(a, 96, 90)
        round_bf16(a, 91, 91)
        a("v_add_f32 v91, s62, v91")
        round_bf16(a, 91, 91)
        a("v_sqrt_f32 v91, v91\ns_nop 0")
        round_bf16(a, 97, 91)
        a("v_rcp_f32 v98, v97\ns_nop 0\nv_mul_f32_e64 v99, -v96, v98")
        a(f"""
        v_cmp_eq_u32 vcc, 0, v6
        s_and_saveexec_b64 s[96:97], vcc
        s_mov_b32 s98, {WS_STATB + 32 * p}
        s_mov_b32 s99, {WS_STATA + 32 * p}
        buffer_store_dwordx2 v[96:97], v88, {s4(S_WS)}, s98 offen sc0 sc1
        buffer_store_dwordx2 v[98:99], v88, {s4(S_WS)}, s99 offen sc0 sc1
        s_mov_b64 exec, -1
        """)


def k1_colsum(a):
    RAW = 8
    AC = 72
    a(f"""
    v_lshrrev_b32 v5, 3, v0
    v_and_b32 v6, 7, v0
    v_mul_u32_u24 v7, 3072, v5
    v_lshl_add_u32 v7, v6, 4, v7
    s_and_b32 s58, s{sXCD}, 1
    s_mul_i32 s58, s58, 30
    s_add_u32 s58, s58, s{sIDX}         ; u
    s_mul_i32 s59, s58, 43
    s_lshr_b32 s59, s59, 9              ; rc = u/12
    s_mul_i32 s60, s59, 12
    s_sub_u32 s60, s58, s60             ; cbl
    s_cmp_ge_u32 s60, 6
    s_cselect_b32 s{S_TMP}, s{S_WU}, s{S_WG}
    s_cselect_b32 s{S_TMP+1}, s{S_WU+1}, s{S_WG+1}
    s_cselect_b32 s61, 6, 0
    s_cselect_b32 s63, 24, 0
    s_mov_b32 s{S_TMP+2}, {640 * 3072}
    s_mov_b32 s{S_TMP+3}, 0x00020000
    s_sub_u32 s60, s60, s61
    s_lshr_b32 s61, s{sXCD}, 1
    s_mul_i32 s61, s61, 6
    s_add_u32 s60, s60, s61             ; n tile
    s_lshl_b32 s61, s60, 7
    s_mul_i32 s62, s59, {128 * 3072}
    s_add_u32 s61, s61, s62
    s_add_u32 s60, s60, s63
    """)
    for i in range(16):
        a(f"s_add_u32 s62, s61, {i * 8 * 3072}\nbuffer_load_dwordx4 {v4(RAW + 4 * i)}, v7, {s4(S_TMP)}, s62 offen")
    a("s_barrier")
    for i in range(16):
        a(f"s_waitcnt vmcnt({15 - i})")
        for k in range(4):
            r = RAW + 4 * i + k
            if i == 0:
                a(f"v_lshlrev_b32 v{AC + 2 * k}, 16, v{r}\nv_and_b32 v{AC + 2 * k + 1}, 0xffff0000, v{r}")
            else:
                a(f"v_lshlrev_b32 v80, 16, v{r}\nv_and_b32 v81, 0xffff0000, v{r}\nv_add_f32 v{AC + 2 * k}, v{AC + 2 * k}, v80\nv_add_f32 v{AC + 2 * k + 1}, v{AC + 2 * k + 1}, v81")
    a(f"""
    v_lshlrev_b32 v80, 5, v0
    v_add_u32 v80, {K1_SCR}, v80
    ds_write_b128 v80, {v4(AC)}
    ds_write_b128 v80, {v4(AC + 4)} offset:16
    v_lshlrev_b32 v81, 2, v0
    v_add_u32 v82, {K1_SCR}, v81
    """)
    for i in range(8):
        a(f"ds_read_b32 v{RAW + i}, v82 offset:{256 * i}")
    a("s_waitcnt lgkmcnt(0)")
    for i in range(1, 8):
        a(f"v_add_f32 v{RAW}, v{RAW}, v{RAW + i}")
    a(f"""
    s_mul_i32 s61, s59, {3072 * 4}
    s_lshl_b32 s62, s60, 8
    s_add_u32 s61, s61, s62
    s_add_u32 s61, s61, {WS_CS}
    buffer_store_dword v{RAW}, v81, {s4(S_WS)}, s61 offen sc0 sc1
    """)


def kgen_loads(a, sCH, sRND, D=73):
    a(f"""
    s_lshl_b32 s96, s{sRND}, 7
    v_lshl_add_u32 v80, v0, 1, s96
    s_mul_i32 s96, s{sCH}, 384
    s_lshl_b32 s97, s{sCH}, 1
    v_mov_b32 v81, 0
    buffer_load_ushort v{D+4}, v81, {s4(S_DT)}, s97 offen
    buffer_load_ushort v{D}, v80, {s4(S_LA)}, s96 offen
    buffer_load_ushort v{D+1}, v80, {s4(S_AI)}, s96 offen
    buffer_load_ushort v{D+2}, v80, {s4(S_CR)}, s96 offen
    buffer_load_ushort v{D+3}, v80, {s4(S_CI)}, s96 offen
    """)


def kgen_round(a, sKB, waits=True):
    KACC = 8
    RF = 20
    LF = 36
    PKR = 52
    WA = 68
    RA = 72
    vLA, vAI, vCR, vCI, vDT = 73, 74, 75, 76, 77
    lr, th = 78, 79
    T = 80
    nxt = [88]

    def creg():
        r = nxt[0]
        nxt[0] += 2
        assert r + 1 < 134
        return (r, r + 1)

    def preg():
        r = nxt[0]
        nxt[0] += 1
        assert r < 134
        return r

    a(f"""
    v_bfe_u32 v{T}, v0, 1, 2                 ; g = (n>>1)&3
    v_lshlrev_b32 v{T+1}, 6, v0
    v_add_u32 v{T+1}, s{sKB}, v{T+1}
    v_lshl_add_u32 v{WA}, v{T}, 4, v{T+1}
    v_xor_b32 v{WA+1}, 16, v{WA}
    v_xor_b32 v{WA+2}, 32, v{WA}
    v_xor_b32 v{WA+3}, 48, v{WA}
    v_lshrrev_b32 v{T}, 4, v0                ; hq
    v_bfe_u32 v{T+1}, v0, 2, 2               ; r
    v_and_b32 v{T+2}, 3, v0                  ; c
    v_lshrrev_b32 v{T+3}, 1, v{T+1}          ; r>>1
    v_lshl_add_u32 v{T+3}, v{T}, 1, v{T+3}   ; 2hq + (r>>1)
    v_lshlrev_b32 v{RA}, 6, v{T+3}
    v_and_b32 v{T+1}, 1, v{T+1}              ; part
    v_lshrrev_b32 v{T+3}, 1, v{T+2}
    v_lshl_add_u32 v{T+1}, v{T+1}, 1, v{T+3} ; q
    v_xor_b32 v{T+1}, v{T+1}, v{T}
    v_lshl_add_u32 v{RA}, v{T+1}, 4, v{RA}
    v_and_b32 v{T+2}, 1, v{T+2}
    v_lshl_add_u32 v{RA}, v{T+2}, 3, v{RA}
    v_add_u32 v{RA}, s{sKB}, v{RA}
    """)
    for r in range(KACC, KACC + 12):
        a(f"v_mov_b32 v{r}, 0")
    a("s_mov_b32 s96, 0x3fb8aa3b\ns_mov_b32 s97, 0x32a57060\ns_mov_b32 s98, 0x3f317218")

    def expbf(d, x):
        a(f"""v_mul_f32 v{T}, s96, v{x}
        v_fma_f32 v{T+1}, v{x}, s96, -v{T}
        v_exp_f32 v{T}, v{T}
        v_fma_f32 v{T+1}, v{x}, s97, v{T+1}
        v_mul_f32 v{T+1}, s98, v{T+1}
        v_fma_f32 v{T}, v{T}, v{T+1}, v{T}""")
        round_bf16(a, d, T)

    if waits:
        a("s_waitcnt vmcnt(3)")
    stamp(a, 8)
    a(f"v_lshlrev_b32 v{vDT}, 16, v{vDT}\nv_lshlrev_b32 v{vLA}, 16, v{vLA}")
    expbf(vDT, vDT)
    expbf(vLA, vLA)
    a(f"""v_mul_f32 v{lr}, v{vLA}, v{vDT}
    v_mul_f32_e64 v{lr}, -v{lr}, s96
    {"s_waitcnt vmcnt(0)" if waits else ""}
    v_lshlrev_b32 v{vAI}, 16, v{vAI}
    v_lshlrev_b32 v{vCR}, 16, v{vCR}
    v_lshlrev_b32 v{vCI}, 16, v{vCI}
    v_mul_f32 v{th}, v{vAI}, v{vDT}
    v_mul_f32 v{th}, 0.15915494, v{th}
    v_and_b32 v{T+2}, 0x7fffffff, v{vCR}
    v_and_b32 v{T+3}, 0x7fffffff, v{vCI}
    v_max_u32 v{T+2}, v{T+2}, v{T+3}""")
    wave_max_u32_to_sgpr(a, T + 2, 92, 93)
    a(f"""s_lshr_b32 s92, s92, 23
    s_max_u32 s92, s92, 1
    s_min_u32 s92, s92, 252
    s_sub_u32 s93, 253, s92
    s_lshl_b32 s93, s93, 23             ; sc
    s_add_u32 s92, s92, 2
    s_lshl_b32 s92, s92, 23             ; 2/sc
    v_mul_f32 v{vCR}, s93, v{vCR}
    v_mul_f32 v{vCI}, s93, v{vCI}
    v_mul_f32 v{vDT}, s92, v{vDT}""")

    def anchor(e, conj=False):
        d = creg()
        a(f"""v_mul_f32 v{T}, {f32(e)}, v{lr}
        v_mul_f32 v{T+1}, {f32(e)}, v{th}
        v_exp_f32 v{T}, v{T}
        v_fract_f32 v{T+1}, v{T+1}
        v_cos_f32 v{T+2}, v{T+1}
        v_sin_f32 v{T+3}, v{T+1}
        s_nop 0
        v_mul_f32 v{d[0]}, v{T}, v{T+2}
        v_mul_f32_e64 v{d[1]}, {'-' if conj else ''}v{T}, v{T+3}""")
        return d

    def cmul(x, y, d=None):
        d = d or creg()
        a(f"""v_mul_f32 v{T+4}, v{x[1]}, v{y[1]}
        v_mul_f32 v{T+5}, v{x[0]}, v{y[1]}
        v_fma_f32 v{d[0]}, v{x[0]}, v{y[0]}, -v{T+4}
        v_fma_f32 v{d[1]}, v{x[1]}, v{y[0]}, v{T+5}""")
        return d

    def packm(x):
        d = preg()
        a(f"v_cvt_pk_f16_f32 v{d}, v{x[0]}, v{x[1]}")
        return d

    def packpair(x, y, dre, dim):
        a(f"v_cvt_pk_f16_f32 v{dre}, {x[0]}, {y[0]}\nv_cvt_pk_f16_f32 v{dim}, {x[1]}, {y[1]}")

    def V(x): return (f"v{x[0]}", f"v{x[1]}")

    def pmul(sre, sim, m, dre, dim):
        a(f"""v_pk_mul_f16 v{T+6}, v{sre}, v{m} op_sel:[0,0] op_sel_hi:[1,0]
        v_pk_mul_f16 v{T+7}, v{sre}, v{m} op_sel:[0,1] op_sel_hi:[1,1]
        v_pk_fma_f16 v{dre}, v{sim}, v{m}, v{T+6} op_sel:[0,1,0] op_sel_hi:[1,1,1] neg_lo:[0,1,0] neg_hi:[0,1,0]
        v_pk_fma_f16 v{dim}, v{sim}, v{m}, v{T+7} op_sel:[0,0,0] op_sel_hi:[1,0,1]""")

    def RE(i): return PKR + i
    def IM(i): return PKR + 8 + i

    lq = LQ(a)

    def flush(F, tag):
        for q in range(4):
            lq.issue("w", f"ds_write_b128 v{WA + q}, {v4(PKR + 4 * q)}")
        for k in range(4):
            for s in range(2):
                lq.issue(f"{tag}{k}", f"ds_read_b64_tr_b16 {v2(F + 4 * k + 2 * s)}, v{RA} offset:{1024 * k + 512 * s}")

    def mfmas(tile):
        for k in range(4):
            lq.wait(f"L{tile}{k}", f"R{k}")
            a(f"v_mfma_f32_16x16x32_f16 {v4(KACC + 4 * tile)}, {v4(LF + 4 * k)}, {v4(RF + 4 * k)}, {v4(KACC + 4 * tile)}")

    mark = nxt[0]
    z8 = anchor(8.0, True); z32 = anchor(32.0, True)
    z16 = cmul(z8, z8); z24 = cmul(z16, z8); z64 = cmul(z32, z32); z96 = cmul(z64, z32)
    packpair(("1.0", "0"), V(z8), RE(0), IM(0))
    packpair(V(z16), V(z24), RE(1), IM(1))
    for i, X in enumerate((z32, z64, z96)):
        m = packm(X)
        for b in range(2):
            pmul(RE(b), IM(b), m, RE(2 + 2 * i + b), IM(2 + 2 * i + b))
    flush(RF, "R")
    nxt[0] = mark
    z1 = anchor(1.0); z128 = anchor(128.0); z1024 = anchor(1024.0)
    c = [(vCR, vCI)]
    for i in range(7):
        c.append(cmul(c[-1], z1))
    m128 = packm(z128)
    lq.wait("w")
    for i in range(4):
        packpair(V(c[2 * i]), V(c[2 * i + 1]), RE(i), IM(i))
    for i in range(4):
        pmul(RE(i), IM(i), m128, RE(4 + i), IM(4 + i))
    flush(LF, "L0")
    p02 = creg(); p46 = creg(); p04 = creg()
    packpair(V(c[0]), V(c[2]), *p02); packpair(V(c[4]), V(c[6]), *p46); packpair(V(c[0]), V(c[4]), *p04)
    z256 = cmul(z128, z128, c[1]); z384 = cmul(z256, z128, c[2]); z512 = cmul(z256, z256, c[3])
    z640 = cmul(z512, z128, c[4]); z768 = cmul(z384, z384, c[5]); z896 = cmul(z768, z128, c[6])
    M = {k: packm(v) for k, v in (("256", z256), ("384", z384), ("512", z512), ("640", z640), ("768", z768), ("896", z896))}
    b0 = cmul(c[0], z1024, c[7]); b1 = cmul(b0, z128, z1); c2048 = cmul(b0, z1024, z256)
    mfmas(0)
    for i, k in enumerate(("256", "384")):
        pmul(p02[0], p02[1], M[k], RE(2 * i), IM(2 * i))
        pmul(p46[0], p46[1], M[k], RE(2 * i + 1), IM(2 * i + 1))
    for i, k in enumerate(("512", "640", "768", "896")):
        pmul(p04[0], p04[1], M[k], RE(4 + i), IM(4 + i))
    flush(LF, "L1")
    pb = creg()
    packpair(V(b0), V(b1), *pb)
    mfmas(1)
    a(f"v_mov_b32 v{RE(0)}, v{pb[0]}\nv_mov_b32 v{IM(0)}, v{pb[1]}")
    for i, k in enumerate(("256", "512", "768")):
        pmul(pb[0], pb[1], M[k], RE(1 + i), IM(1 + i))
    packpair(V(c2048), ("0", "0"), RE(4), IM(4))
    for i in range(5, 8):
        a(f"v_mov_b32 v{RE(i)}, 0\nv_mov_b32 v{IM(i)}, 0")
    flush(LF, "L2")
    mfmas(2)
    a("s_nop 7")
    for r in range(KACC, KACC + 12):
        a(f"v_mul_f32 v{r}, v{r}, v{vDT}")
    return KACC


def kgen_final(a, sCH, sKB, from_lds):
    KACC = 8
    P = 20
    T = 80
    a(f"v_lshlrev_b32 v{T}, 4, v0\nv_add_u32 v{T+1}, s{sKB}, v{T}")
    if from_lds:
        for w in range(3):
            for t in range(3):
                a(f"ds_read_b128 {v4(KACC + 12 * w + 4 * t)}, v{T+1} offset:{4096 * w + 1024 * t}")
    a(f"v_mov_b32 v48, 0\nv_mov_b32 v49, 0\nv_mov_b32 v50, 0\nv_mov_b32 v51, 0")
    for i in range(4):
        a(f"ds_write_b128 v{T+1}, v[48:51] offset:{1024 * i}")
    j, hq = T + 2, T + 3
    b0, b2 = 52, 53
    a1 = 54
    a(f"""
    v_and_b32 v{j}, 15, v0
    v_lshrrev_b32 v{hq}, 4, v0
    v_lshrrev_b32 v{T+4}, 1, v{hq}
    v_and_b32 v{T+5}, 1, v{hq}
    v_lshlrev_b32 v{T+6}, 7, v{T+4}
    v_lshl_add_u32 v{T+6}, v{T+5}, 2, v{T+6}
    v_lshl_add_u32 v{T+6}, v{j}, 3, v{T+6}
    v_sub_u32 v{T+6}, 285, v{T+6}
    v_lshl_add_u32 v{b0}, v{T+6}, 1, s{sKB}
    v_lshlrev_b32 v{T+6}, 6, v{T+5}                 ; 64*(hq&1)
    v_add_u32 v{T+6}, s{sKB}, v{T+6}
    v_lshl_add_u32 v{T+7}, v{j}, 2, v{T+6}
    v_lshl_add_u32 v{T+6}, v{j}, 1, v{T+6}
    v_cmp_gt_u32 vcc, 2, v{hq}
    """)
    for r in range(4):
        lo = (T1O if r & 1 else T1E) + 2 * (59 + (r >> 1))
        hi = (T2O + 60 if r & 1 else T2E + 58) + 32 * (r >> 1)
        a(f"v_add_u32 v60, {lo}, v{T+7}\nv_add_u32 v61, {hi}, v{T+6}\nv_cndmask_b32 v{a1 + r}, v61, v60, vcc")
    a(f"""
    s_add_u32 s96, s{sKB}, {T0E + 64}
    v_writelane_b32 v{a1}, s96, 0
    s_add_u32 s96, s{sKB}, {T0E + 60}
    v_writelane_b32 v{a1 + 1}, s96, 0
    s_add_u32 s96, s{sKB}, {T1E + 246}
    v_writelane_b32 v{a1}, s96, 32
    v_and_b32 v60, 1, v{j}
    v_mul_u32_u24 v60, {T3OE + 30 - (T3EE + 28)}, v60
    v_lshrrev_b32 v61, 1, v{j}
    v_lshl_add_u32 v61, v{hq}, 5, v61
    v_lshl_add_u32 v{b2}, v61, 1, v60
    s_add_u32 s96, s{sKB}, {T3EE + 28}
    v_add_u32 v{b2}, s96, v{b2}
    v_mov_b32 v62, s{sKB}
    s_waitcnt lgkmcnt(4)
    """)
    if from_lds:
        for r in range(12):
            a(f"v_add_f32 v{KACC + r}, v{KACC + r}, v{P + r}")
        for r in range(12):
            a(f"v_add_f32 v{KACC + r}, v{KACC + r}, v{P + 12 + r}")
    a(f"v_max3_f32 v63, abs(v{KACC}), abs(v{KACC+1}), abs(v{KACC+2})")
    for r in range(3, 11, 2):
        a(f"v_max3_f32 v63, v63, abs(v{KACC + r}), abs(v{KACC + r + 1})")
    a(f"v_max_f32_e64 v63, v63, abs(v{KACC + 11})")
    wave_max_u32_to_sgpr(a, 63, 92, 93)
    a(f"""s_lshr_b32 s92, s92, 23
    s_max_u32 s92, s92, 1
    s_min_u32 s92, s92, 252
    s_sub_u32 s93, 253, s92
    s_lshl_b32 s93, s93, 23             ; 1/sigma
    s_add_u32 s92, s92, 1
    s_lshl_b32 s92, s92, 23             ; sigma""")
    for r in range(12):
        a(f"v_mul_f32 v{KACC + r}, s93, v{KACC + r}")
    H = 64
    for i in range(6):
        a(f"v_cvt_pk_f16_f32 v{H + i}, v{KACC + 2 * i}, v{KACC + 2 * i + 1}")

    def w16(addr, r, tile, off):
        reg = H + 2 * tile + (r >> 1)
        a(f"ds_write_b16{'_d16_hi' if r & 1 else ''} v{addr}, v{reg} offset:{off}")
    for r in range(4):
        w16(b0, r, 0, T0E + 2 * (3 - r))
        w16(b0, r, 0, T0O - 2 + 2 * (3 - r))
        w16(a1 + r, r, 1, 0)
    a("s_mov_b32 exec_hi, 0")
    for r in range(1, 4):
        w16(b2, r, 2, 16 * r)
        w16(b2, r, 2, 16 * r + 158)
    a("s_mov_b32 exec_lo, 0xfffffffe\ns_mov_b32 exec_hi, 1")
    w16(b2, 0, 2, 0)
    w16(b2, 0, 2, 158)
    a("s_mov_b64 exec, 1")
    w16(62, 0, 1, T0E + 62); w16(62, 0, 1, T0O + 62); w16(62, 0, 1, T0O + 60); w16(62, 1, 1, T0O + 58)
    w16(62, 0, 2, TK1024)
    a(f"v_mov_b32 v63, s92\nds_write_b32 v62, v63 offset:{TSIG}")
    a("s_mov_b32 exec_lo, 0\ns_mov_b32 exec_hi, 1")
    w16(62, 0, 1, T1O + 246)
    a("s_mov_b64 exec, -1")
    for i in range(4):
        a(f"ds_read_b128 {v4(P + 4 * i)}, v{T+1} offset:{1024 * i}")
    a(f"s_mul_i32 s96, s{sCH}, {KT_BYTES}\ns_add_u32 s96, s96, {WS_KT}")
    for i in range(3):
        a(f"s_waitcnt lgkmcnt({3 - i})\nbuffer_store_dwordx4 {v4(P + 4 * i)}, v{T}, {s4(S_WS)}, s96 offen offset:{1024 * i}")
    a(f"s_waitcnt lgkmcnt(0)\ns_mov_b64 exec, 0xffff\nbuffer_store_dwordx4 {v4(P + 12)}, v{T}, {s4(S_WS)}, s96 offen offset:3072\ns_mov_b64 exec, -1")


def kernel1(a, parts):
    a.raw(".globl k1_kernel\n.p2align 8\n.type k1_kernel,@function\nk1_kernel:")
    a(f"""
    s_cmp_ge_u32 s2, 256
    s_cbranch_scc1 L_k1_end
    s_load_dwordx16 s[64:79], s[0:1], 0
    s_load_dwordx8 s[80:87], s[0:1], 64
    s_load_dwordx4 s[88:91], s[0:1], 96
    v_lshrrev_b32 v1, 6, v0
    v_and_b32 v0, 63, v0
    s_and_b32 s{sXCD}, s2, 7
    v_readfirstlane_b32 s{sWAVE}, v1
    s_lshr_b32 s{sIDX}, s2, 3
    s_mul_i32 s58, s{sIDX}, 52
    s_lshr_b32 s58, s58, 8              ; q = idx/5
    s_mul_i32 s59, s58, 5
    s_sub_u32 s59, s{sIDX}, s59         ; r
    s_and_b32 s60, s{sXCD}, 1
    s_mul_i32 s60, s60, 5
    s_add_u32 s{sMI}, s60, s59
    s_lshr_b32 s60, s{sXCD}, 1
    s_mul_i32 s60, s60, 6
    s_add_u32 s{sNI}, s60, s58
    s_mul_i32 s{sROW0}, s{sMI}, 208
    s_min_u32 s{sROW0}, s{sROW0}, 1840
    s_mul_i32 s{sGI}, s{sXCD}, 30
    s_add_u32 s{sGI}, s{sGI}, s{sIDX}
    s_waitcnt lgkmcnt(0)
    """)
    srd(a, S_X, 64, 2048 * 1280)
    srd(a, S_WG, 80, 640 * 3072)
    srd(a, S_WU, 82, 640 * 3072)
    srd(a, S_WS, 90, 0x4000000 if PROF else WS_END)
    srd(a, S_DBG, 88, 256)
    srd(a, S_WD, 84, 1536 * 1280)
    if PROF:
        a(f"v_mov_b32 v{vSTAMP}, 0")
    stamp(a, 0, True)
    stamp(a, 1)
    srd(a, S_LA, 66, 640 * 384)
    srd(a, S_AI, 68, 640 * 384)
    srd(a, S_CR, 70, 640 * 384)
    srd(a, S_CI, 72, 640 * 384)
    srd(a, S_DT, 74, 1280)
    a(f"""
    s_cmp_ge_u32 s{sIDX}, 30
    s_cbranch_scc1 L_k1_spare
    s_cmp_ge_u32 s{sWAVE}, 2
    s_cbranch_scc1 L_k1_work
    """)
    k1_loader(a, parts)

    def signal():
        a(f"""
        s_and_b32 s58, s2, 63
        s_lshl_b32 s58, s58, 2
        v_mov_b32 v5, s58
        v_mov_b32 v6, 1
        s_mov_b64 exec, 1
        buffer_atomic_add v6, v5, {s4(S_DBG)}, 0 offen sc1
        s_mov_b64 exec, -1""")

    a.label("L_k1_spare")
    sCH, sRND, sKB = 58, 59, 60
    Ls1 = a.newlabel("sp"); Ls2 = a.newlabel("sp")
    a(f"s_cmp_lg_u32 s{sWAVE}, 8\ns_cbranch_scc1 {Ls1}")
    k1_stats(a, False)
    a("s_waitcnt vmcnt(0)")
    signal()
    a.label(Ls1)
    a(f"""
    s_lshl_b32 s{sCH}, s{sXCD}, 1
    s_add_u32 s{sCH}, s{sCH}, s{sIDX}
    s_sub_u32 s{sCH}, s{sCH}, 30
    s_mul_i32 s{sCH}, s{sCH}, 10
    s_add_u32 s{sCH}, s{sCH}, 480
    s_add_u32 s{sCH}, s{sCH}, s{sWAVE}
    s_lshl_b32 s{sKB}, s{sWAVE}, 12
    s_add_u32 s{sKB}, s{sKB}, {2 * SLOT}
    """)
    if "nokgen" not in EXP:
        for rnd in range(3):
            a(f"s_mov_b32 s{sRND}, {rnd}")
            kgen_loads(a, sCH, sRND, 146 + 5 * rnd)
        for r in range(134, 146):
            a(f"v_mov_b32 v{r}, 0")
        a(f"s_mov_b32 s{sRND}, 0\ns_waitcnt vmcnt(0)")
        a.label(Ls2)
        for i in range(5):
            a(f"v_mov_b32 v{73 + i}, v{146 + i}")
        for i in range(10):
            a(f"v_mov_b32 v{146 + i}, v{151 + i}")
        KACC = kgen_round(a, sKB, False)
        for r in range(12):
            a(f"v_add_f32 v{134 + r}, v{134 + r}, v{KACC + r}")
        a(f"s_add_u32 s{sRND}, s{sRND}, 1\ns_cmp_lt_u32 s{sRND}, 3\ns_cbranch_scc1 {Ls2}")
        for r in range(12):
            a(f"v_mov_b32 v{KACC + r}, v{134 + r}")
        kgen_final(a, sCH, sKB, False)
    stamp(a, 5)
    Ls3 = a.newlabel("sp")
    a(f"s_cmp_ge_u32 s{sWAVE}, 2\ns_cbranch_scc1 {Ls3}")
    parts["unit_pre"](a)
    parts["unit"](a)
    a.label(Ls3)
    stamp_end(a, 0, S_WS, sWAVE)

    a.label("L_k1_work")
    a(f"""
    s_cmp_eq_u32 s{sWAVE}, 8
    s_cbranch_scc1 L_k1_stats
    s_cmp_eq_u32 s{sWAVE}, 9
    s_cbranch_scc1 L_k1_colsum
    s_sub_u32 s{sRND}, s{sWAVE}, 2
    s_lshl_b32 s{sKB}, s{sRND}, 12
    s_add_u32 s{sKB}, s{sKB}, {K1_KG}
    s_cmp_ge_u32 s{sRND}, 3
    s_cselect_b32 s62, 1, 0             ; grp
    s_cselect_b32 s63, 3, 0
    s_sub_u32 s{sRND}, s{sRND}, s63
    s_lshl_b32 s{sCH}, s{sGI}, 1
    s_add_u32 s{sCH}, s{sCH}, s62
    """)
    if "nokgen" not in EXP:
        kgen_loads(a, sCH, sRND)
        a("s_barrier")
        KACC = kgen_round(a, sKB)
        a(f"v_lshlrev_b32 v80, 4, v0\nv_add_u32 v80, s{sKB}, v80")
        for t in range(3):
            a(f"ds_write_b128 v80, {v4(KACC + 4 * t)} offset:{1024 * t}")
        stamp(a, 9)
    else:
        a("s_barrier")
    a("s_branch L_k1_pdone")
    a.label("L_k1_stats")
    k1_stats(a, True)
    Lz = a.newlabel("noz")
    a(f"""s_cmp_lg_u32 s2, 0
    s_cbranch_scc1 {Lz}
    v_lshlrev_b32 v5, 4, v0
    v_mov_b32 v8, 0
    v_mov_b32 v9, 0
    v_mov_b32 v10, 0
    v_mov_b32 v11, 0
    s_mov_b32 s98, {WS_FLAG2}
    buffer_store_dwordx4 v[8:11], v5, {s4(S_WS)}, s98 offen""")
    a.label(Lz)
    a("s_branch L_k1_pdone")
    a.label("L_k1_colsum")
    k1_colsum(a)
    a.label("L_k1_pdone")
    a(f"s_cmp_ge_u32 s{sWAVE}, 6\ns_cbranch_scc1 L_k1_g1")
    k1_gemm(a, 1, None)
    a.label("L_k1_g1")
    k1_gemm(a, 0, signal)
    a.label("L_k1_end")
    a("s_endpgm")


def descriptor(name, vgpr, sgpr=102):
    acc = (vgpr + 3) // 4 * 4
    return f""".amdhsa_kernel {name}
  .amdhsa_next_free_vgpr {vgpr}
  .amdhsa_next_free_sgpr {sgpr}
  .amdhsa_accum_offset {acc}
  .amdhsa_group_segment_fixed_size 0
  .amdhsa_kernarg_size 112
  .amdhsa_user_sgpr_count 2
  .amdhsa_user_sgpr_kernarg_segment_ptr 1
  .amdhsa_system_sgpr_workgroup_id_x 1
.end_amdhsa_kernel
"""


HEADER = open("cdna_kernels/" + NAME + ".s.ref").read().split("; Override launch geometry")[0]


def build():
    a = Asm()
    try:
        import gen2
    except ImportError:
        gen2 = None
    parts = {"unit": (gen2.k1_unit if gen2 else (lambda a: None)), "unit_pre": (gen2.k1_unit_pre if gen2 else (lambda a: None))}
    kernel1(a, parts)
    out = HEADER
    out += f"; @launch kernel=k1_kernel grid=(256,1,1) block=(640,1,1) lds={K1_LDS}\n"
    desc = descriptor("k1_kernel", 168)
    if gen2 is not None and hasattr(gen2, "kernel2"):
        info = gen2.kernel2(a)
        out += f"; @launch kernel=k2_kernel grid=(256,1,1) block=({info['block']},1,1) lds={info['lds']}\n"
        desc += ".p2align 6\n" + descriptor("k2_kernel", info["vgpr"])
    out += '.amdgcn_target "amdgcn-amd-amdhsa--gfx950"\n.text\n' + a.text()
    out += '.section .rodata,"a"\n.p2align 6\n' + desc
    return out


if __name__ == "__main__":
    sys.modules["gen"] = sys.modules["__main__"]
    path = sys.argv[1] if len(sys.argv) > 1 else "k.s"
    open(path, "w").write(build())
    print("wrote", path)
```

```python
import sys, os, struct

NAME = "parallel_sum__ssm_conv_s4d__glu_gated_glu__prompt"

WS_H = 0
WS_WD = WS_H + 128 * 48 * 1024
WS_XT = WS_WD + 8 * 48 * 5 * 1024
WS_Y = WS_XT + 640 * 4096
KT_BYTES = 3584
WS_KT = WS_Y + 640 * 4096
WS_STATA = WS_KT + 640 * KT_BYTES
WS_STATB = WS_STATA + 2048 * 8
WS_CS = WS_STATB + 2048 * 8
WS_FLAG2 = WS_CS + 5 * 3072 * 4
WS_END = WS_FLAG2 + 8 * 128

T0E, T0O, T1E, T1O, T2E, T2O = 0, 640, 1280, 1664, 2048, 2304
T3EE, T3EO, T3OE, T3OO = 2560, 2720, 2880, 3040
TK1024, TSIG = 3200, 3204

PROF = int(os.environ.get("PROF", "0"))
EXP = os.environ.get("EXP", "")
WS_PROF = 0x2000000
vSTAMP = 167


def f32(x):
    return "0x%08x" % struct.unpack("<I", struct.pack("<f", x))[0]


class Asm:
    def __init__(self):
        self.L = []
        self.uid = 0

    def __call__(self, s):
        for line in s.split("\n"):
            line = line.strip()
            if line:
                self.L.append("  " + line)

    def label(self, n):
        self.L.append(n + ":")

    def newlabel(self, base):
        self.uid += 1
        return f"L_{base}_{self.uid}"

    def raw(self, s):
        self.L.append(s)

    def text(self):
        return "\n".join(self.L) + "\n"


class LQ:
    def __init__(self, a, seed=(), cnt="lgkmcnt", cap=15):
        self.a = a
        self.q = list(seed)
        self.cnt = cnt
        self.cap = cap

    def issue(self, tag, s):
        self.a(s)
        self.q.append(tag)

    def wait(self, *tags):
        idx = -1
        for t in tags:
            for i, x in enumerate(self.q):
                if x == t:
                    idx = max(idx, i)
        if idx < 0:
            return
        n = len(self.q) - 1 - idx
        self.a(f"s_waitcnt {self.cnt}({min(n, self.cap)})")
        self.q = self.q[idx + 1:] if n <= self.cap else self.q[len(self.q) - self.cap:]

    def drain(self):
        self.a(f"s_waitcnt {self.cnt}(0)")
        self.q = []


def stamp(a, i, real=False):
    if PROF:
        a(f"s_waitcnt lgkmcnt(0)\n{'s_memrealtime' if real else 's_memtime'} s[100:101]\ns_waitcnt lgkmcnt(0)\nv_writelane_b32 v{vSTAMP}, s100, {i}")


def stamp_dyn(a, sidx, base, mul=1):
    if PROF:
        a(f"s_waitcnt lgkmcnt(0)\ns_memtime s[100:101]\ns_mul_i32 s99, s{sidx}, {mul}\ns_add_u32 m0, s99, {base}\ns_waitcnt lgkmcnt(0)\nv_writelane_b32 v{vSTAMP}, s100, m0")


def stamp_end(a, kern, S_WS_, swave):
    if PROF:
        a("s_waitcnt vmcnt(0)")
        stamp(a, 6)
        stamp(a, 7, True)
        a(f"""s_lshl_b32 s100, s2, 4
        s_add_u32 s100, s100, s{swave}
        s_lshl_b32 s100, s100, 8
        s_add_u32 s100, s100, {WS_PROF + kern * 0x100000}
        v_lshlrev_b32 v1, 2, v0
        buffer_store_dword v{vSTAMP}, v1, s[{S_WS_}:{S_WS_+3}], s100 offen
        s_waitcnt vmcnt(0)""")
    a("s_endpgm")


def code_prefetch(a, first, last, nchunk, sidx, swave, wsel, vtmp, sp):
    if "nopf" in EXP:
        return
    L = a.newlabel("nopf"); H = a.newlabel("here")
    a(f"s_cmp_lg_u32 s{swave}, {wsel}\ns_cbranch_scc1 {L}\ns_cmp_ge_u32 s{sidx}, {nchunk}\ns_cbranch_scc1 {L}\ns_getpc_b64 s[{sp}:{sp+1}]")
    a.label(H)
    a(f"""s_sub_u32 s{sp}, s{sp}, {H}-{first}
    s_subb_u32 s{sp+1}, s{sp+1}, 0
    s_lshl_b32 s{sp+2}, s{sidx}, 13
    v_lshl_add_u32 v{vtmp}, v0, 7, s{sp+2}
    v_min_u32 v{vtmp}, {last}-{first}-4, v{vtmp}
    global_load_dword v{vtmp}, v{vtmp}, s[{sp}:{sp+1}]""")
    a.label(L)


def srd(a, d, lo, nbytes):
    a(f"s_mov_b32 s{d}, s{lo}\ns_mov_b32 s{d+1}, s{lo+1}\ns_mov_b32 s{d+2}, {nbytes}\ns_mov_b32 s{d+3}, 0x00020000")


def v4(r): return f"v[{r}:{r+3}]"
def v2(r): return f"v[{r}:{r+1}]"
def s4(r): return f"s[{r}:{r+3}]"


def dpp_row_allreduce(a, op, regs):
    for sh in (8, 4, 2, 1):
        if len(regs) < 3:
            a("s_nop 1")
        for r in regs:
            a(f"{op}_dpp v{r}, v{r}, v{r} row_ror:{sh} row_mask:0xf bank_mask:0xf")


def wave_max_u32_to_sgpr(a, v, sd, st):
    dpp_row_allreduce(a, "v_max_u32", [v])
    a(f"""s_nop 0
    v_readlane_b32 s{sd}, v{v}, 0
    v_readlane_b32 s{st}, v{v}, 16
    s_max_u32 s{sd}, s{sd}, s{st}
    v_readlane_b32 s{st}, v{v}, 32
    s_max_u32 s{sd}, s{sd}, s{st}
    v_readlane_b32 s{st}, v{v}, 48
    s_max_u32 s{sd}, s{sd}, s{st}""")


def round_bf16(a, d, s):
    a(f"v_cvt_pk_bf16_f32 v{d}, v{s}, v{s}\nv_lshlrev_b32 v{d}, 16, v{d}")


XSZ = 208 * 128
WSZ = 16384
SLOT = XSZ + WSZ
K1_STAT = 3 * SLOT
K1_CS = K1_STAT + 2048
K1_KG = K1_CS + 512
K1_SCR = K1_KG + 6 * 4096
K1_LDS = 163840
assert K1_SCR + 2048 <= K1_LDS

S_X, S_WG, S_WU, S_WD, S_WS, S_DBG = 4, 8, 12, 16, 20, 24
S_LA, S_AI, S_CR, S_CI, S_DT = 28, 32, 36, 40, 44
S_TMP = 48
sWAVE, sMI, sNI, sROW0, sGI, sIDX, sXCD = 3, 52, 53, 54, 55, 56, 57


def k1_loader(a, parts):
    vOX, vOW = 16, 20
    sT, sXO, sWO, sDSL, sPEND = 58, 59, 60, 61, 62
    a(f"""
    s_setprio 3
    v_lshrrev_b32 v8, 3, v0            ; rho
    v_and_b32 v9, 7, v0                ; c'
    v_xor_b32 v10, v9, v8
    v_mul_u32_u24 v{vOX}, 1280, v8
    v_lshl_add_u32 v{vOX}, v10, 4, v{vOX}
    v_bfe_u32 v10, v8, 1, 1
    v_lshrrev_b32 v11, 1, v9
    v_xor_b32 v11, v11, v10
    v_and_b32 v12, 1, v9
    v_lshl_add_u32 v11, v11, 1, v12
    v_mul_u32_u24 v{vOW}, 3072, v8
    v_lshl_add_u32 v{vOW}, v11, 4, v{vOW}
    v_xor_b32 v13, 64, v{vOW}
    v_add_u32 v{vOW + 1}, {8 * 3072 - 1024}, v13
    v_add_u32 v{vOW + 2}, {2 * (8 * 3072 - 1024)}, v{vOW}
    v_add_u32 v{vOW + 3}, {3 * (8 * 3072 - 1024)}, v13
    v_add_u32 v{vOX + 1}, {8 * 1280 - 1024}, v{vOX}
    v_add_u32 v{vOX + 2}, {2 * (8 * 1280 - 1024)}, v{vOX}
    v_add_u32 v{vOX + 3}, {3 * (8 * 1280 - 1024)}, v{vOX}
    s_mul_i32 s{sT}, s{sWAVE}, 104
    s_add_u32 s{sXO}, s{sROW0}, s{sT}
    s_mul_i32 s{sXO}, s{sXO}, 1280
    s_lshl_b32 s{sWO}, s{sNI}, 7
    s_cmp_eq_u32 s{sWAVE}, 0
    s_cselect_b32 s{S_TMP}, s{S_WG}, s{S_WU}
    s_cselect_b32 s{S_TMP+1}, s{S_WG+1}, s{S_WU+1}
    s_mov_b32 s{S_TMP+2}, {640 * 3072}
    s_mov_b32 s{S_TMP+3}, 0x00020000
    s_mul_i32 s92, s{sWAVE}, {13 * 1024}
    s_mul_i32 s93, s{sWAVE}, 8192
    s_add_u32 s93, s93, {XSZ}
    v_lshlrev_b32 v24, 2, v0
    v_lshlrev_b32 v25, 4, v0
    """)
    groups = [("w", 0, 4), ("x", 0, 4), ("x", 4, 4), ("x", 8, 4), ("x", 12, 1), ("w", 4, 4)]

    def issue(st):
        slot = (st % 3) * SLOT
        for (k, i0, n) in groups:
            if k == "x":
                a(f"s_add_u32 m0, s92, {slot + i0 * 1024}\ns_add_u32 s98, s{sXO}, {i0 * 8 * 1280 + st * 128}")
                for j in range(n):
                    a(f"buffer_load_dwordx4 v{vOX + j}, {s4(S_X)}, s98 offen offset:{1024 * j} lds")
            else:
                a(f"s_add_u32 m0, s93, {slot + i0 * 1024}\ns_add_u32 s98, s{sWO}, {(st * 64 + i0 * 8) * 3072}")
                for j in range(n):
                    a(f"buffer_load_dwordx4 v{vOW + j}, {s4(S_TMP)}, s98 offen offset:{1024 * j} lds")

    def stage_loads():
        a(f"""s_lshl_b32 s98, s{sROW0}, 3
        s_mov_b32 m0, {K1_STAT}
        s_add_u32 s98, s98, {WS_STATB}
        buffer_load_dwordx4 v25, {s4(S_WS)}, s98 offen sc0 sc1 lds
        buffer_load_dwordx4 v25, {s4(S_WS)}, s98 offen offset:1024 sc0 sc1 lds
        s_lshl_b32 s97, s{sNI}, 8
        s_add_u32 s97, s97, {WS_CS}""")
        for rc in range(5):
            a(f"s_add_u32 s98, s97, {rc * 12288}\nbuffer_load_dword v{32 + rc}, v24, {s4(S_WS)}, s98 offen sc0 sc1")
            a(f"s_add_u32 s98, s97, {rc * 12288 + 6144}\nbuffer_load_dword v{37 + rc}, v24, {s4(S_WS)}, s98 offen sc0 sc1")

    def flags_ok(Lno):
        a(f"v_cmp_le_u32 vcc, 4, v30\ns_and_b32 s{sT}, vcc_lo, vcc_hi\ns_cmp_eq_u32 s{sT}, -1\ns_cbranch_scc0 {Lno}")

    a("s_barrier")
    for st in range(3):
        issue(st)
    stamp(a, 2)
    a("s_waitcnt vmcnt(42)")
    stamp(a, 3)
    a("s_barrier")
    L1 = a.newlabel("ldr1")
    for s in range(5):
        a("s_waitcnt vmcnt(21)\ns_barrier")
        issue(s + 3)
    a(f"s_cmp_eq_u32 s{sWAVE}, 1\ns_cbranch_scc1 {L1}")
    for s in (5, 6):
        a("s_waitcnt vmcnt(21)\ns_barrier")
        issue(s + 3)
    a("s_waitcnt vmcnt(21)\ns_barrier\ns_waitcnt vmcnt(0)\ns_barrier")
    a("s_branch L_k1_tail")
    a.label(L1)
    a(f"buffer_load_dword v30, v24, {s4(S_DBG)}, 0 offen sc0 sc1")
    a("s_waitcnt vmcnt(22)\ns_barrier")
    issue(8)
    a("s_waitcnt vmcnt(21)\ns_barrier")
    Lno = a.newlabel("notyet"); Lj = a.newlabel("join"); Lsp = a.newlabel("spin"); Lsp2 = a.newlabel("spin2")
    flags_ok(Lno)
    stage_loads()
    issue(9)
    a("s_waitcnt vmcnt(33)\ns_barrier")
    a(f"s_branch {Lj}")
    a.label(Lno)
    issue(9)
    a("s_waitcnt vmcnt(21)\ns_barrier")
    a(f"s_mov_b32 s{sPEND}, 0")
    a.label(Lsp)
    a(f"buffer_load_dword v30, v24, {s4(S_DBG)}, 0 offen sc0 sc1\ns_waitcnt vmcnt(0)")
    flags_ok(Lsp2)
    a.label(Lsp + "_out")
    stage_loads()
    a(f"s_branch {Lj}")
    a.label(Lsp2)
    a(f"s_sleep 32\ns_add_u32 s{sPEND}, s{sPEND}, 1\ns_cmp_lt_u32 s{sPEND}, 100000\ns_cbranch_scc1 {Lsp}\ns_branch {Lsp}_out")
    a.label(Lj)
    a("s_waitcnt vmcnt(0)")
    for rc in range(1, 5):
        a(f"v_add_f32 v32, v32, v{32 + rc}\nv_add_f32 v37, v37, v{37 + rc}")
    a(f"""v_add_u32 v26, {K1_CS}, v24
    ds_write_b32 v26, v32
    ds_write_b32 v26, v37 offset:256
    s_waitcnt lgkmcnt(0)
    s_barrier""")
    a.label("L_k1_tail")
    a("s_setprio 0")
    stamp(a, 4)
    parts["unit_pre"](a)
    if "nokgen" not in EXP:
        a(f"s_lshl_b32 s58, s{sGI}, 1\ns_add_u32 s58, s58, s{sWAVE}\ns_mul_i32 s60, s{sWAVE}, {3 * 4096}\ns_add_u32 s60, s60, {K1_KG}")
        kgen_final(a, 58, 60, True)
    stamp(a, 5)
    parts["unit"](a)
    stamp_end(a, 0, S_WS, sWAVE)


def k1_gemm(a, extra, signal):
    NB = 3 + extra
    A = [8, 24]
    B = [40, 56]
    ACC = 72
    vA0B, vAWB, vA0, vA1, vAW, vAW1, vAX0, vAX1, vXE = 2, 3, 4, 5, 6, 7, 128, 129, 130
    sST, sSLOT, sT = 58, 60, 62
    sFP, sLQ = 95, 94
    T0 = 132

    a(f"s_sub_u32 s{sT}, s{sWAVE}, 2\ns_and_b32 s{sFP}, s{sT}, 1\ns_lshr_b32 s{sLQ}, s{sT}, 1")
    a(f"""
    v_and_b32 v{T0}, 15, v0
    v_lshrrev_b32 v{T0+1}, 4, v0
    v_and_b32 v{T0+2}, 7, v{T0}
    v_xor_b32 v{T0+2}, v{T0+2}, v{T0+1}
    v_lshlrev_b32 v{vXE}, 7, v{T0}
    v_lshl_add_u32 v{vXE}, v{T0+2}, 4, v{vXE}
    s_mul_i32 s{sT}, s{sLQ}, {3 * 2048}
    v_add_u32 v{vA0B}, s{sT}, v{vXE}
    v_add_u32 v{vXE}, {12 * 2048}, v{vXE}
    v_lshrrev_b32 v{T0+2}, 2, v{T0}           ; r
    v_and_b32 v{T0+3}, 3, v{T0}               ; c
    v_lshrrev_b32 v{T0+4}, 1, v{T0+2}
    v_and_b32 v{T0+5}, 1, v{T0+1}
    v_lshl_or_b32 v{T0+4}, v{T0+5}, 1, v{T0+4}
    s_lshl_b32 s{sT}, s{sFP}, 1
    v_xor_b32 v{T0+4}, s{sT}, v{T0+4}
    v_lshl_add_u32 v{T0+5}, v{T0+1}, 3, v{T0+2}     ; 8hq + r
    v_lshlrev_b32 v{vAWB}, 7, v{T0+5}
    v_lshl_add_u32 v{vAWB}, v{T0+4}, 5, v{vAWB}
    v_lshl_add_u32 v{vAWB}, v{T0+3}, 3, v{vAWB}
    v_add_u32 v{vAWB}, {XSZ}, v{vAWB}
    """)
    for r in range(ACC, ACC + 48 + 8 * extra, 2):
        a(f"v_mov_b64 {v2(r)}, 0")

    def set_addr():
        a(f"v_add_u32 v{vAW}, s{sSLOT}, v{vAWB}\nv_add_u32 v{vA0}, s{sSLOT}, v{vA0B}\nv_xor_b32 v{vAW1}, 32, v{vAW}\nv_xor_b32 v{vA1}, 64, v{vA0}")
        if extra:
            a(f"v_add_u32 v{vAX0}, s{sSLOT}, v{vXE}\nv_xor_b32 v{vAX1}, 64, v{vAX0}")

    def reads(kk):
        R = []

        def rA(fr):
            for s in range(2):
                R.append((f"A{kk}{fr}", f"ds_read_b64_tr_b16 {v2(A[kk] + 4 * fr + 2 * s)}, v{vAW1 if fr >= 2 else vAW} offset:{kk * 4096 + s * 512 + (8192 if fr & 1 else 0)}"))

        def rB(t):
            if t == 3:
                R.append((f"B{kk}{t}", f"ds_read_b128 {v4(B[kk] + 4 * t)}, v{vAX1 if kk else vAX0}"))
            else:
                R.append((f"B{kk}{t}", f"ds_read_b128 {v4(B[kk] + 4 * t)}, v{vA1 if kk else vA0} offset:{t * 2048}"))
        rA(0); rB(0); rA(1); rA(2); rA(3)
        for t in range(1, NB):
            rB(t)
        return R

    def mf(t, fr, kk):
        acc = ACC + 48 + 4 * (fr & 1) if t == 3 else ACC + 16 * t + 4 * fr
        a(f"v_mfma_f32_16x16x32_bf16 {v4(acc)}, {v4(A[kk] + 4 * fr)}, {v4(B[kk] + 4 * t)}, {v4(acc)}")

    def phase(lq, kk, R):
        R = list(R)
        for t in range(3):
            for fr in range(4):
                lq.wait(f"A{kk}{fr}", f"B{kk}{t}")
                mf(t, fr, kk)
                if R:
                    tg, ins = R.pop(0)
                    lq.issue(tg, ins)
        while R:
            tg, ins = R.pop(0)
            lq.issue(tg, ins)
        if extra:
            lq.wait(f"B{kk}3")
            L1 = a.newlabel("x1"); L2 = a.newlabel("x2")
            a(f"s_cmp_eq_u32 s{sLQ}, 1\ns_cbranch_scc1 {L1}")
            mf(3, 0, kk); mf(3, 1, kk)
            a(f"s_branch {L2}")
            a.label(L1)
            mf(3, 2, kk); mf(3, 3, kk)
            a.label(L2)

    stamp(a, 2)
    a("s_waitcnt vmcnt(0) lgkmcnt(0)\ns_setprio 2\ns_barrier")
    stamp(a, 3)
    if signal:
        Lns = a.newlabel("nosig")
        a(f"s_cmp_lg_u32 s{sWAVE}, 8\ns_cbranch_scc1 {Lns}")
        signal()
        a.label(Lns)
    a(f"s_mov_b32 s{sSLOT}, 0\ns_mov_b32 s{sST}, 0")
    set_addr()
    lq = LQ(a)
    for tg, ins in reads(0):
        lq.issue(tg, ins)
    seed = list(lq.q)

    def body(last):
        lq = LQ(a, seed)
        phase(lq, 0, reads(1))
        if not last:
            a(f"s_add_u32 s{sSLOT}, s{sSLOT}, {SLOT}\ns_cmp_eq_u32 s{sSLOT}, {3 * SLOT}\ns_cselect_b32 s{sSLOT}, 0, s{sSLOT}")
            lq.drain()
            set_addr()
            a("s_barrier")
            phase(lq, 1, reads(0))
        else:
            phase(lq, 1, [])

    Lloop = a.newlabel("gloop")
    a.label(Lloop)
    body(False)
    a(f"s_add_u32 s{sST}, s{sST}, 1\ns_cmp_lt_u32 s{sST}, 9\ns_cbranch_scc1 {Lloop}")
    body(True)

    a("s_setprio 0")
    stamp(a, 4)
    vSA, vCA, vHO = 2, 3, 4
    CS = 8
    ST = 24
    a(f"""
    v_and_b32 v{T0}, 15, v0
    v_lshrrev_b32 v{T0+1}, 4, v0
    s_mul_i32 s{sT}, s{sLQ}, {3 * 128}
    s_add_u32 s{sT}, s{sT}, {K1_STAT}
    v_lshl_add_u32 v{vSA}, v{T0}, 3, s{sT}
    v_lshlrev_b32 v5, 3, v{T0}
    v_add_u32 v5, {K1_STAT + 12 * 128}, v5
    s_lshl_b32 s{sT}, s{sFP}, 7
    s_add_u32 s{sT}, s{sT}, {K1_CS}
    v_lshl_add_u32 v{vCA}, v{T0+1}, 4, s{sT}
    ds_read_b128 {v4(CS)}, v{vCA}
    ds_read_b128 {v4(CS + 4)}, v{vCA} offset:256
    ds_read_b128 {v4(CS + 8)}, v{vCA} offset:64
    ds_read_b128 {v4(CS + 12)}, v{vCA} offset:320
    """)
    for t in range(3):
        a(f"ds_read_b64 {v2(ST + 2 * t)}, v{vSA} offset:{t * 128}")
    if extra:
        a(f"ds_read_b64 {v2(ST + 6)}, v5")
    a(f"""
    v_lshlrev_b32 v{vHO}, 4, v0
    s_lshr_b32 s96, s{sROW0}, 4
    s_mul_i32 s96, s96, 49152
    s_lshl_b32 s97, s{sNI}, 1
    s_add_u32 s97, s97, s{sFP}
    s_lshl_b32 s97, s97, 10
    s_add_u32 s96, s96, s97
    s_add_u32 s96, s96, {WS_H}
    s_mul_i32 s97, s{sLQ}, {3 * 49152}
    s_add_u32 s99, s96, s97
    s_mov_b32 s98, 0xbfb8aa3b           ; -log2e
    s_waitcnt lgkmcnt(0)
    """)
    TM = 40
    PK = 48
    c1 = 56

    def act(g, u, csg, csu, m, s, pk):
        for r in range(4):
            a(f"v_fma_f32 v{TM + r}, -v{m}, v{csg + r}, v{g + r}")
        for r in range(4):
            a(f"v_mul_f32 v{TM + r}, v{TM + r}, v{c1}")
        for r in range(4):
            a(f"v_exp_f32 v{TM + r}, v{TM + r}")
        for r in range(4):
            a(f"v_fma_f32 v{TM + 4 + r}, -v{m}, v{csu + r}, v{u + r}")
        for r in range(4):
            a(f"v_fma_f32 v{TM + r}, v{TM + r}, v{s}, v{s}")
        for r in range(4):
            a(f"v_rcp_f32 v{TM + r}, v{TM + r}")
        a("s_nop 0")
        for r in range(4):
            a(f"v_mul_f32 v{TM + 4 + r}, v{TM + 4 + r}, v{TM + r}")
        a(f"v_cvt_pk_bf16_f32 v{pk}, v{TM + 4}, v{TM + 5}\nv_cvt_pk_bf16_f32 v{pk + 1}, v{TM + 6}, v{TM + 7}")

    for t in range(3):
        m, s = ST + 2 * t, ST + 2 * t + 1
        a(f"v_rcp_f32 v{c1}, v{s}\ns_nop 0\nv_mul_f32 v{c1}, s98, v{c1}")
        b = PK + 4 * (t & 1)
        act(ACC + 16 * t, ACC + 16 * t + 4, CS, CS + 4, m, s, b)
        act(ACC + 16 * t + 8, ACC + 16 * t + 12, CS + 8, CS + 12, m, s, b + 2)
        a(f"s_add_u32 s97, s99, {t * 49152}")
        Lsk = None
        if extra and t < 2:
            Lsk = a.newlabel("skipst")
            a(f"s_lshl_b32 s{sT}, s{sLQ}, 4\ns_add_u32 s{sT}, s{sT}, s{sMI}\ns_cmp_eq_u32 s{sT}, 9\ns_cbranch_scc1 {Lsk}")
        a(f"buffer_store_dwordx4 {v4(b)}, v{vHO}, {s4(S_WS)}, s97 offen")
        if Lsk:
            a.label(Lsk)
    if extra:
        m, s = ST + 6, ST + 7
        a(f"v_rcp_f32 v{c1}, v{s}\ns_nop 0\nv_mul_f32 v{c1}, s98, v{c1}")
        L1 = a.newlabel("e1"); L2 = a.newlabel("e2")
        a(f"s_cmp_eq_u32 s{sLQ}, 1\ns_cbranch_scc1 {L1}")
        act(ACC + 48, ACC + 52, CS, CS + 4, m, s, PK + 4)
        a(f"s_branch {L2}")
        a.label(L1)
        act(ACC + 48, ACC + 52, CS + 8, CS + 12, m, s, PK + 4)
        a.label(L2)
        a(f"s_lshl_b32 s97, s{sLQ}, 3\ns_add_u32 s97, s97, s96\ns_add_u32 s97, s97, {12 * 49152}")
        a(f"buffer_store_dwordx2 {v2(PK + 4)}, v{vHO}, {s4(S_WS)}, s97 offen")
    stamp(a, 5)
    stamp_end(a, 0, S_WS, sWAVE)


def k1_stats(a, bar):
    RAW = 8
    UNP = 48
    a(f"""
    v_lshrrev_b32 v5, 4, v0
    v_and_b32 v6, 15, v0
    v_mul_u32_u24 v7, 1280, v5
    v_lshl_add_u32 v7, v6, 4, v7
    s_and_b32 s58, s{sXCD}, 1
    s_lshl_b32 s58, s58, 10
    s_lshr_b32 s59, s{sXCD}, 1
    s_lshl_b32 s59, s59, 8
    s_add_u32 s58, s58, s59
    s_lshl_b32 s59, s{sIDX}, 3
    s_add_u32 s58, s58, s59
    s_mul_i32 s59, s58, 1280
    s_add_u32 s60, s59, {4 * 1280}
    """)
    for p in range(2):
        for j in range(5):
            a(f"buffer_load_dwordx4 {v4(RAW + 20 * p + 4 * j)}, v7, {s4(S_X)}, s{59 + p} offen offset:{256 * j}")
    if bar:
        a("s_barrier")
    a("s_mov_b32 s61, 0x3acccccd\ns_mov_b32 s62, 0x3727c5ac")
    a(f"s_lshl_b32 s63, s58, 3\nv_lshl_add_u32 v88, v5, 3, s63")
    for p in range(2):
        a("s_waitcnt vmcnt(5)" if p == 0 else "s_waitcnt vmcnt(2)")
        for i in range(20):
            a(f"v_lshlrev_b32 v{UNP + 2 * i}, 16, v{RAW + 20 * p + i}\nv_and_b32 v{UNP + 2 * i + 1}, 0xffff0000, v{RAW + 20 * p + i}")
        for k in range(4):
            a(f"v_add_f32 v{90 + k}, v{UNP + k}, v{UNP + 4 + k}")
        for i in range(8, 40):
            a(f"v_add_f32 v{90 + i % 4}, v{90 + i % 4}, v{UNP + i}")
        a("v_add_f32 v90, v90, v91\nv_add_f32 v92, v92, v93\nv_add_f32 v90, v90, v92")
        dpp_row_allreduce(a, "v_add_f32", [90])
        a("v_mul_f32 v90, s61, v90")
        for i in range(40):
            a(f"v_sub_f32 v{UNP + i}, v{UNP + i}, v90")
        for k in range(4):
            a(f"v_mul_f32 v{91 + k}, v{UNP + k}, v{UNP + k}")
        for i in range(4, 40):
            a(f"v_fmac_f32 v{91 + i % 4}, v{UNP + i}, v{UNP + i}")
        a("v_add_f32 v91, v91, v92\nv_add_f32 v93, v93, v94\nv_add_f32 v91, v91, v93")
        dpp_row_allreduce(a, "v_add_f32", [91])
        a("v_mul_f32 v91, s61, v91")
        round_bf16(a, 96, 90)
        round_bf16(a, 91, 91)
        a("v_add_f32 v91, s62, v91")
        round_bf16(a, 91, 91)
        a("v_sqrt_f32 v91, v91\ns_nop 0")
        round_bf16(a, 97, 91)
        a("v_rcp_f32 v98, v97\ns_nop 0\nv_mul_f32_e64 v99, -v96, v98")
        a(f"""
        v_cmp_eq_u32 vcc, 0, v6
        s_and_saveexec_b64 s[96:97], vcc
        s_mov_b32 s98, {WS_STATB + 32 * p}
        s_mov_b32 s99, {WS_STATA + 32 * p}
        buffer_store_dwordx2 v[96:97], v88, {s4(S_WS)}, s98 offen sc0 sc1
        buffer_store_dwordx2 v[98:99], v88, {s4(S_WS)}, s99 offen sc0 sc1
        s_mov_b64 exec, -1
        """)


def k1_colsum(a):
    RAW = 8
    AC = 72
    a(f"""
    v_lshrrev_b32 v5, 3, v0
    v_and_b32 v6, 7, v0
    v_mul_u32_u24 v7, 3072, v5
    v_lshl_add_u32 v7, v6, 4, v7
    s_and_b32 s58, s{sXCD}, 1
    s_mul_i32 s58, s58, 30
    s_add_u32 s58, s58, s{sIDX}         ; u
    s_mul_i32 s59, s58, 43
    s_lshr_b32 s59, s59, 9              ; rc = u/12
    s_mul_i32 s60, s59, 12
    s_sub_u32 s60, s58, s60             ; cbl
    s_cmp_ge_u32 s60, 6
    s_cselect_b32 s{S_TMP}, s{S_WU}, s{S_WG}
    s_cselect_b32 s{S_TMP+1}, s{S_WU+1}, s{S_WG+1}
    s_cselect_b32 s61, 6, 0
    s_cselect_b32 s63, 24, 0
    s_mov_b32 s{S_TMP+2}, {640 * 3072}
    s_mov_b32 s{S_TMP+3}, 0x00020000
    s_sub_u32 s60, s60, s61
    s_lshr_b32 s61, s{sXCD}, 1
    s_mul_i32 s61, s61, 6
    s_add_u32 s60, s60, s61             ; n tile
    s_lshl_b32 s61, s60, 7
    s_mul_i32 s62, s59, {128 * 3072}
    s_add_u32 s61, s61, s62
    s_add_u32 s60, s60, s63
    """)
    for i in range(16):
        a(f"s_add_u32 s62, s61, {i * 8 * 3072}\nbuffer_load_dwordx4 {v4(RAW + 4 * i)}, v7, {s4(S_TMP)}, s62 offen")
    a("s_barrier")
    for i in range(16):
        a(f"s_waitcnt vmcnt({15 - i})")
        for k in range(4):
            r = RAW + 4 * i + k
            if i == 0:
                a(f"v_lshlrev_b32 v{AC + 2 * k}, 16, v{r}\nv_and_b32 v{AC + 2 * k + 1}, 0xffff0000, v{r}")
            else:
                a(f"v_lshlrev_b32 v80, 16, v{r}\nv_and_b32 v81, 0xffff0000, v{r}\nv_add_f32 v{AC + 2 * k}, v{AC + 2 * k}, v80\nv_add_f32 v{AC + 2 * k + 1}, v{AC + 2 * k + 1}, v81")
    a(f"""
    v_lshlrev_b32 v80, 5, v0
    v_add_u32 v80, {K1_SCR}, v80
    ds_write_b128 v80, {v4(AC)}
    ds_write_b128 v80, {v4(AC + 4)} offset:16
    v_lshlrev_b32 v81, 2, v0
    v_add_u32 v82, {K1_SCR}, v81
    """)
    for i in range(8):
        a(f"ds_read_b32 v{RAW + i}, v82 offset:{256 * i}")
    a("s_waitcnt lgkmcnt(0)")
    for i in range(1, 8):
        a(f"v_add_f32 v{RAW}, v{RAW}, v{RAW + i}")
    a(f"""
    s_mul_i32 s61, s59, {3072 * 4}
    s_lshl_b32 s62, s60, 8
    s_add_u32 s61, s61, s62
    s_add_u32 s61, s61, {WS_CS}
    buffer_store_dword v{RAW}, v81, {s4(S_WS)}, s61 offen sc0 sc1
    """)


def kgen_loads(a, sCH, sRND, D=73):
    a(f"""
    s_lshl_b32 s96, s{sRND}, 7
    v_lshl_add_u32 v80, v0, 1, s96
    s_mul_i32 s96, s{sCH}, 384
    s_lshl_b32 s97, s{sCH}, 1
    v_mov_b32 v81, 0
    buffer_load_ushort v{D+4}, v81, {s4(S_DT)}, s97 offen
    buffer_load_ushort v{D}, v80, {s4(S_LA)}, s96 offen
    buffer_load_ushort v{D+1}, v80, {s4(S_AI)}, s96 offen
    buffer_load_ushort v{D+2}, v80, {s4(S_CR)}, s96 offen
    buffer_load_ushort v{D+3}, v80, {s4(S_CI)}, s96 offen
    """)


def kgen_round(a, sKB, waits=True):
    KACC = 8
    RF = 20
    LF = 36
    PKR = 52
    WA = 68
    RA = 72
    vLA, vAI, vCR, vCI, vDT = 73, 74, 75, 76, 77
    lr, th = 78, 79
    T = 80
    nxt = [88]

    def creg():
        r = nxt[0]
        nxt[0] += 2
        assert r + 1 < 134
        return (r, r + 1)

    def preg():
        r = nxt[0]
        nxt[0] += 1
        assert r < 134
        return r

    a(f"""
    v_bfe_u32 v{T}, v0, 1, 2                 ; g = (n>>1)&3
    v_lshlrev_b32 v{T+1}, 6, v0
    v_add_u32 v{T+1}, s{sKB}, v{T+1}
    v_lshl_add_u32 v{WA}, v{T}, 4, v{T+1}
    v_xor_b32 v{WA+1}, 16, v{WA}
    v_xor_b32 v{WA+2}, 32, v{WA}
    v_xor_b32 v{WA+3}, 48, v{WA}
    v_lshrrev_b32 v{T}, 4, v0                ; hq
    v_bfe_u32 v{T+1}, v0, 2, 2               ; r
    v_and_b32 v{T+2}, 3, v0                  ; c
    v_lshrrev_b32 v{T+3}, 1, v{T+1}          ; r>>1
    v_lshl_add_u32 v{T+3}, v{T}, 1, v{T+3}   ; 2hq + (r>>1)
    v_lshlrev_b32 v{RA}, 6, v{T+3}
    v_and_b32 v{T+1}, 1, v{T+1}              ; part
    v_lshrrev_b32 v{T+3}, 1, v{T+2}
    v_lshl_add_u32 v{T+1}, v{T+1}, 1, v{T+3} ; q
    v_xor_b32 v{T+1}, v{T+1}, v{T}
    v_lshl_add_u32 v{RA}, v{T+1}, 4, v{RA}
    v_and_b32 v{T+2}, 1, v{T+2}
    v_lshl_add_u32 v{RA}, v{T+2}, 3, v{RA}
    v_add_u32 v{RA}, s{sKB}, v{RA}
    """)
    for r in range(KACC, KACC + 12):
        a(f"v_mov_b32 v{r}, 0")
    a("s_mov_b32 s96, 0x3fb8aa3b\ns_mov_b32 s97, 0x32a57060\ns_mov_b32 s98, 0x3f317218")

    def expbf(d, x):
        a(f"""v_mul_f32 v{T}, s96, v{x}
        v_fma_f32 v{T+1}, v{x}, s96, -v{T}
        v_exp_f32 v{T}, v{T}
        v_fma_f32 v{T+1}, v{x}, s97, v{T+1}
        v_mul_f32 v{T+1}, s98, v{T+1}
        v_fma_f32 v{T}, v{T}, v{T+1}, v{T}""")
        round_bf16(a, d, T)

    if waits:
        a("s_waitcnt vmcnt(3)")
    stamp(a, 8)
    a(f"v_lshlrev_b32 v{vDT}, 16, v{vDT}\nv_lshlrev_b32 v{vLA}, 16, v{vLA}")
    expbf(vDT, vDT)
    expbf(vLA, vLA)
    a(f"""v_mul_f32 v{lr}, v{vLA}, v{vDT}
    v_mul_f32_e64 v{lr}, -v{lr}, s96
    {"s_waitcnt vmcnt(0)" if waits else ""}
    v_lshlrev_b32 v{vAI}, 16, v{vAI}
    v_lshlrev_b32 v{vCR}, 16, v{vCR}
    v_lshlrev_b32 v{vCI}, 16, v{vCI}
    v_mul_f32 v{th}, v{vAI}, v{vDT}
    v_mul_f32 v{th}, 0.15915494, v{th}
    v_and_b32 v{T+2}, 0x7fffffff, v{vCR}
    v_and_b32 v{T+3}, 0x7fffffff, v{vCI}
    v_max_u32 v{T+2}, v{T+2}, v{T+3}""")
    wave_max_u32_to_sgpr(a, T + 2, 92, 93)
    a(f"""s_lshr_b32 s92, s92, 23
    s_max_u32 s92, s92, 1
    s_min_u32 s92, s92, 252
    s_sub_u32 s93, 253, s92
    s_lshl_b32 s93, s93, 23             ; sc
    s_add_u32 s92, s92, 2
    s_lshl_b32 s92, s92, 23             ; 2/sc
    v_mul_f32 v{vCR}, s93, v{vCR}
    v_mul_f32 v{vCI}, s93, v{vCI}
    v_mul_f32 v{vDT}, s92, v{vDT}""")

    def anchor(e, conj=False):
        d = creg()
        a(f"""v_mul_f32 v{T}, {f32(e)}, v{lr}
        v_mul_f32 v{T+1}, {f32(e)}, v{th}
        v_exp_f32 v{T}, v{T}
        v_fract_f32 v{T+1}, v{T+1}
        v_cos_f32 v{T+2}, v{T+1}
        v_sin_f32 v{T+3}, v{T+1}
        s_nop 0
        v_mul_f32 v{d[0]}, v{T}, v{T+2}
        v_mul_f32_e64 v{d[1]}, {'-' if conj else ''}v{T}, v{T+3}""")
        return d

    def cmul(x, y, d=None):
        d = d or creg()
        a(f"""v_mul_f32 v{T+4}, v{x[1]}, v{y[1]}
        v_mul_f32 v{T+5}, v{x[0]}, v{y[1]}
        v_fma_f32 v{d[0]}, v{x[0]}, v{y[0]}, -v{T+4}
        v_fma_f32 v{d[1]}, v{x[1]}, v{y[0]}, v{T+5}""")
        return d

    def packm(x):
        d = preg()
        a(f"v_cvt_pk_f16_f32 v{d}, v{x[0]}, v{x[1]}")
        return d

    def packpair(x, y, dre, dim):
        a(f"v_cvt_pk_f16_f32 v{dre}, {x[0]}, {y[0]}\nv_cvt_pk_f16_f32 v{dim}, {x[1]}, {y[1]}")

    def V(x): return (f"v{x[0]}", f"v{x[1]}")

    def pmul(sre, sim, m, dre, dim):
        a(f"""v_pk_mul_f16 v{T+6}, v{sre}, v{m} op_sel:[0,0] op_sel_hi:[1,0]
        v_pk_mul_f16 v{T+7}, v{sre}, v{m} op_sel:[0,1] op_sel_hi:[1,1]
        v_pk_fma_f16 v{dre}, v{sim}, v{m}, v{T+6} op_sel:[0,1,0] op_sel_hi:[1,1,1] neg_lo:[0,1,0] neg_hi:[0,1,0]
        v_pk_fma_f16 v{dim}, v{sim}, v{m}, v{T+7} op_sel:[0,0,0] op_sel_hi:[1,0,1]""")

    def RE(i): return PKR + i
    def IM(i): return PKR + 8 + i

    lq = LQ(a)

    def flush(F, tag):
        for q in range(4):
            lq.issue("w", f"ds_write_b128 v{WA + q}, {v4(PKR + 4 * q)}")
        for k in range(4):
            for s in range(2):
                lq.issue(f"{tag}{k}", f"ds_read_b64_tr_b16 {v2(F + 4 * k + 2 * s)}, v{RA} offset:{1024 * k + 512 * s}")

    def mfmas(tile):
        for k in range(4):
            lq.wait(f"L{tile}{k}", f"R{k}")
            a(f"v_mfma_f32_16x16x32_f16 {v4(KACC + 4 * tile)}, {v4(LF + 4 * k)}, {v4(RF + 4 * k)}, {v4(KACC + 4 * tile)}")

    mark = nxt[0]
    z8 = anchor(8.0, True); z32 = anchor(32.0, True)
    z16 = cmul(z8, z8); z24 = cmul(z16, z8); z64 = cmul(z32, z32); z96 = cmul(z64, z32)
    packpair(("1.0", "0"), V(z8), RE(0), IM(0))
    packpair(V(z16), V(z24), RE(1), IM(1))
    for i, X in enumerate((z32, z64, z96)):
        m = packm(X)
        for b in range(2):
            pmul(RE(b), IM(b), m, RE(2 + 2 * i + b), IM(2 + 2 * i + b))
    flush(RF, "R")
    nxt[0] = mark
    z1 = anchor(1.0); z128 = anchor(128.0); z1024 = anchor(1024.0)
    c = [(vCR, vCI)]
    for i in range(7):
        c.append(cmul(c[-1], z1))
    m128 = packm(z128)
    lq.wait("w")
    for i in range(4):
        packpair(V(c[2 * i]), V(c[2 * i + 1]), RE(i), IM(i))
    for i in range(4):
        pmul(RE(i), IM(i), m128, RE(4 + i), IM(4 + i))
    flush(LF, "L0")
    p02 = creg(); p46 = creg(); p04 = creg()
    packpair(V(c[0]), V(c[2]), *p02); packpair(V(c[4]), V(c[6]), *p46); packpair(V(c[0]), V(c[4]), *p04)
    z256 = cmul(z128, z128, c[1]); z384 = cmul(z256, z128, c[2]); z512 = cmul(z256, z256, c[3])
    z640 = cmul(z512, z128, c[4]); z768 = cmul(z384, z384, c[5]); z896 = cmul(z768, z128, c[6])
    M = {k: packm(v) for k, v in (("256", z256), ("384", z384), ("512", z512), ("640", z640), ("768", z768), ("896", z896))}
    b0 = cmul(c[0], z1024, c[7]); b1 = cmul(b0, z128, z1); c2048 = cmul(b0, z1024, z256)
    mfmas(0)
    for i, k in enumerate(("256", "384")):
        pmul(p02[0], p02[1], M[k], RE(2 * i), IM(2 * i))
        pmul(p46[0], p46[1], M[k], RE(2 * i + 1), IM(2 * i + 1))
    for i, k in enumerate(("512", "640", "768", "896")):
        pmul(p04[0], p04[1], M[k], RE(4 + i), IM(4 + i))
    flush(LF, "L1")
    pb = creg()
    packpair(V(b0), V(b1), *pb)
    mfmas(1)
    a(f"v_mov_b32 v{RE(0)}, v{pb[0]}\nv_mov_b32 v{IM(0)}, v{pb[1]}")
    for i, k in enumerate(("256", "512", "768")):
        pmul(pb[0], pb[1], M[k], RE(1 + i), IM(1 + i))
    packpair(V(c2048), ("0", "0"), RE(4), IM(4))
    for i in range(5, 8):
        a(f"v_mov_b32 v{RE(i)}, 0\nv_mov_b32 v{IM(i)}, 0")
    flush(LF, "L2")
    mfmas(2)
    a("s_nop 7")
    for r in range(KACC, KACC + 12):
        a(f"v_mul_f32 v{r}, v{r}, v{vDT}")
    return KACC


def kgen_final(a, sCH, sKB, from_lds):
    KACC = 8
    P = 20
    T = 80
    a(f"v_lshlrev_b32 v{T}, 4, v0\nv_add_u32 v{T+1}, s{sKB}, v{T}")
    if from_lds:
        for w in range(3):
            for t in range(3):
                a(f"ds_read_b128 {v4(KACC + 12 * w + 4 * t)}, v{T+1} offset:{4096 * w + 1024 * t}")
    a(f"v_mov_b32 v48, 0\nv_mov_b32 v49, 0\nv_mov_b32 v50, 0\nv_mov_b32 v51, 0")
    for i in range(4):
        a(f"ds_write_b128 v{T+1}, v[48:51] offset:{1024 * i}")
    j, hq = T + 2, T + 3
    b0, b2 = 52, 53
    a1 = 54
    a(f"""
    v_and_b32 v{j}, 15, v0
    v_lshrrev_b32 v{hq}, 4, v0
    v_lshrrev_b32 v{T+4}, 1, v{hq}
    v_and_b32 v{T+5}, 1, v{hq}
    v_lshlrev_b32 v{T+6}, 7, v{T+4}
    v_lshl_add_u32 v{T+6}, v{T+5}, 2, v{T+6}
    v_lshl_add_u32 v{T+6}, v{j}, 3, v{T+6}
    v_sub_u32 v{T+6}, 285, v{T+6}
    v_lshl_add_u32 v{b0}, v{T+6}, 1, s{sKB}
    v_lshlrev_b32 v{T+6}, 6, v{T+5}                 ; 64*(hq&1)
    v_add_u32 v{T+6}, s{sKB}, v{T+6}
    v_lshl_add_u32 v{T+7}, v{j}, 2, v{T+6}
    v_lshl_add_u32 v{T+6}, v{j}, 1, v{T+6}
    v_cmp_gt_u32 vcc, 2, v{hq}
    """)
    for r in range(4):
        lo = (T1O if r & 1 else T1E) + 2 * (59 + (r >> 1))
        hi = (T2O + 60 if r & 1 else T2E + 58) + 32 * (r >> 1)
        a(f"v_add_u32 v60, {lo}, v{T+7}\nv_add_u32 v61, {hi}, v{T+6}\nv_cndmask_b32 v{a1 + r}, v61, v60, vcc")
    a(f"""
    s_add_u32 s96, s{sKB}, {T0E + 64}
    v_writelane_b32 v{a1}, s96, 0
    s_add_u32 s96, s{sKB}, {T0E + 60}
    v_writelane_b32 v{a1 + 1}, s96, 0
    s_add_u32 s96, s{sKB}, {T1E + 246}
    v_writelane_b32 v{a1}, s96, 32
    v_and_b32 v60, 1, v{j}
    v_mul_u32_u24 v60, {T3OE + 30 - (T3EE + 28)}, v60
    v_lshrrev_b32 v61, 1, v{j}
    v_lshl_add_u32 v61, v{hq}, 5, v61
    v_lshl_add_u32 v{b2}, v61, 1, v60
    s_add_u32 s96, s{sKB}, {T3EE + 28}
    v_add_u32 v{b2}, s96, v{b2}
    v_mov_b32 v62, s{sKB}
    s_waitcnt lgkmcnt(4)
    """)
    if from_lds:
        for r in range(12):
            a(f"v_add_f32 v{KACC + r}, v{KACC + r}, v{P + r}")
        for r in range(12):
            a(f"v_add_f32 v{KACC + r}, v{KACC + r}, v{P + 12 + r}")
    a(f"v_max3_f32 v63, abs(v{KACC}), abs(v{KACC+1}), abs(v{KACC+2})")
    for r in range(3, 11, 2):
        a(f"v_max3_f32 v63, v63, abs(v{KACC + r}), abs(v{KACC + r + 1})")
    a(f"v_max_f32_e64 v63, v63, abs(v{KACC + 11})")
    wave_max_u32_to_sgpr(a, 63, 92, 93)
    a(f"""s_lshr_b32 s92, s92, 23
    s_max_u32 s92, s92, 1
    s_min_u32 s92, s92, 252
    s_sub_u32 s93, 253, s92
    s_lshl_b32 s93, s93, 23             ; 1/sigma
    s_add_u32 s92, s92, 1
    s_lshl_b32 s92, s92, 23             ; sigma""")
    for r in range(12):
        a(f"v_mul_f32 v{KACC + r}, s93, v{KACC + r}")
    H = 64
    for i in range(6):
        a(f"v_cvt_pk_f16_f32 v{H + i}, v{KACC + 2 * i}, v{KACC + 2 * i + 1}")

    def w16(addr, r, tile, off):
        reg = H + 2 * tile + (r >> 1)
        a(f"ds_write_b16{'_d16_hi' if r & 1 else ''} v{addr}, v{reg} offset:{off}")
    for r in range(4):
        w16(b0, r, 0, T0E + 2 * (3 - r))
        w16(b0, r, 0, T0O - 2 + 2 * (3 - r))
        w16(a1 + r, r, 1, 0)
    a("s_mov_b32 exec_hi, 0")
    for r in range(1, 4):
        w16(b2, r, 2, 16 * r)
        w16(b2, r, 2, 16 * r + 158)
    a("s_mov_b32 exec_lo, 0xfffffffe\ns_mov_b32 exec_hi, 1")
    w16(b2, 0, 2, 0)
    w16(b2, 0, 2, 158)
    a("s_mov_b64 exec, 1")
    w16(62, 0, 1, T0E + 62); w16(62, 0, 1, T0O + 62); w16(62, 0, 1, T0O + 60); w16(62, 1, 1, T0O + 58)
    w16(62, 0, 2, TK1024)
    a(f"v_mov_b32 v63, s92\nds_write_b32 v62, v63 offset:{TSIG}")
    a("s_mov_b32 exec_lo, 0\ns_mov_b32 exec_hi, 1")
    w16(62, 0, 1, T1O + 246)
    a("s_mov_b64 exec, -1")
    for i in range(4):
        a(f"ds_read_b128 {v4(P + 4 * i)}, v{T+1} offset:{1024 * i}")
    a(f"s_mul_i32 s96, s{sCH}, {KT_BYTES}\ns_add_u32 s96, s96, {WS_KT}")
    for i in range(3):
        a(f"s_waitcnt lgkmcnt({3 - i})\nbuffer_store_dwordx4 {v4(P + 4 * i)}, v{T}, {s4(S_WS)}, s96 offen offset:{1024 * i}")
    a(f"s_waitcnt lgkmcnt(0)\ns_mov_b64 exec, 0xffff\nbuffer_store_dwordx4 {v4(P + 12)}, v{T}, {s4(S_WS)}, s96 offen offset:3072\ns_mov_b64 exec, -1")


def kernel1(a, parts):
    a.raw(".globl k1_kernel\n.p2align 8\n.type k1_kernel,@function\nk1_kernel:")
    a(f"""
    s_cmp_ge_u32 s2, 256
    s_cbranch_scc1 L_k1_end
    s_load_dwordx16 s[64:79], s[0:1], 0
    s_load_dwordx8 s[80:87], s[0:1], 64
    s_load_dwordx4 s[88:91], s[0:1], 96
    v_lshrrev_b32 v1, 6, v0
    v_and_b32 v0, 63, v0
    s_and_b32 s{sXCD}, s2, 7
    v_readfirstlane_b32 s{sWAVE}, v1
    s_lshr_b32 s{sIDX}, s2, 3
    s_mul_i32 s58, s{sIDX}, 52
    s_lshr_b32 s58, s58, 8              ; q = idx/5
    s_mul_i32 s59, s58, 5
    s_sub_u32 s59, s{sIDX}, s59         ; r
    s_and_b32 s60, s{sXCD}, 1
    s_mul_i32 s60, s60, 5
    s_add_u32 s{sMI}, s60, s59
    s_lshr_b32 s60, s{sXCD}, 1
    s_mul_i32 s60, s60, 6
    s_add_u32 s{sNI}, s60, s58
    s_mul_i32 s{sROW0}, s{sMI}, 208
    s_min_u32 s{sROW0}, s{sROW0}, 1840
    s_mul_i32 s{sGI}, s{sXCD}, 30
    s_add_u32 s{sGI}, s{sGI}, s{sIDX}
    """)
    code_prefetch(a, "k1_kernel", "L_k2_end", 7, sIDX, sWAVE, 9, 166, 96)
    a("s_waitcnt lgkmcnt(0)")
    srd(a, S_X, 64, 2048 * 1280)
    srd(a, S_WG, 80, 640 * 3072)
    srd(a, S_WU, 82, 640 * 3072)
    srd(a, S_WS, 90, 0x4000000 if PROF else WS_END)
    srd(a, S_DBG, 88, 256)
    srd(a, S_WD, 84, 1536 * 1280)
    if PROF:
        a(f"v_mov_b32 v{vSTAMP}, 0")
    stamp(a, 0, True)
    stamp(a, 1)
    srd(a, S_LA, 66, 640 * 384)
    srd(a, S_AI, 68, 640 * 384)
    srd(a, S_CR, 70, 640 * 384)
    srd(a, S_CI, 72, 640 * 384)
    srd(a, S_DT, 74, 1280)
    a(f"""
    s_cmp_ge_u32 s{sIDX}, 30
    s_cbranch_scc1 L_k1_spare
    s_cmp_ge_u32 s{sWAVE}, 2
    s_cbranch_scc1 L_k1_work
    """)
    k1_loader(a, parts)

    def signal():
        a(f"""
        s_and_b32 s58, s2, 63
        s_lshl_b32 s58, s58, 2
        v_mov_b32 v5, s58
        v_mov_b32 v6, 1
        s_mov_b64 exec, 1
        buffer_atomic_add v6, v5, {s4(S_DBG)}, 0 offen sc1
        s_mov_b64 exec, -1""")

    a.label("L_k1_spare")
    sCH, sRND, sKB = 58, 59, 60
    Ls1 = a.newlabel("sp"); Ls2 = a.newlabel("sp")
    a(f"s_cmp_lg_u32 s{sWAVE}, 8\ns_cbranch_scc1 {Ls1}")
    k1_stats(a, False)
    a("s_waitcnt vmcnt(0)")
    signal()
    a.label(Ls1)
    a(f"""
    s_lshl_b32 s{sCH}, s{sXCD}, 1
    s_add_u32 s{sCH}, s{sCH}, s{sIDX}
    s_sub_u32 s{sCH}, s{sCH}, 30
    s_mul_i32 s{sCH}, s{sCH}, 10
    s_add_u32 s{sCH}, s{sCH}, 480
    s_add_u32 s{sCH}, s{sCH}, s{sWAVE}
    s_lshl_b32 s{sKB}, s{sWAVE}, 12
    s_add_u32 s{sKB}, s{sKB}, {2 * SLOT}
    """)
    if "nokgen" not in EXP:
        for rnd in range(3):
            a(f"s_mov_b32 s{sRND}, {rnd}")
            kgen_loads(a, sCH, sRND, 146 + 5 * rnd)
        for r in range(134, 146):
            a(f"v_mov_b32 v{r}, 0")
        a(f"s_mov_b32 s{sRND}, 0\ns_waitcnt vmcnt(0)")
        a.label(Ls2)
        for i in range(5):
            a(f"v_mov_b32 v{73 + i}, v{146 + i}")
        for i in range(10):
            a(f"v_mov_b32 v{146 + i}, v{151 + i}")
        KACC = kgen_round(a, sKB, False)
        for r in range(12):
            a(f"v_add_f32 v{134 + r}, v{134 + r}, v{KACC + r}")
        a(f"s_add_u32 s{sRND}, s{sRND}, 1\ns_cmp_lt_u32 s{sRND}, 3\ns_cbranch_scc1 {Ls2}")
        for r in range(12):
            a(f"v_mov_b32 v{KACC + r}, v{134 + r}")
        kgen_final(a, sCH, sKB, False)
    stamp(a, 5)
    Ls3 = a.newlabel("sp")
    a(f"s_cmp_ge_u32 s{sWAVE}, 2\ns_cbranch_scc1 {Ls3}")
    parts["unit_pre"](a)
    parts["unit"](a)
    a.label(Ls3)
    stamp_end(a, 0, S_WS, sWAVE)

    a.label("L_k1_work")
    a(f"""
    s_cmp_eq_u32 s{sWAVE}, 8
    s_cbranch_scc1 L_k1_stats
    s_cmp_eq_u32 s{sWAVE}, 9
    s_cbranch_scc1 L_k1_colsum
    s_sub_u32 s{sRND}, s{sWAVE}, 2
    s_lshl_b32 s{sKB}, s{sRND}, 12
    s_add_u32 s{sKB}, s{sKB}, {K1_KG}
    s_cmp_ge_u32 s{sRND}, 3
    s_cselect_b32 s62, 1, 0             ; grp
    s_cselect_b32 s63, 3, 0
    s_sub_u32 s{sRND}, s{sRND}, s63
    s_lshl_b32 s{sCH}, s{sGI}, 1
    s_add_u32 s{sCH}, s{sCH}, s62
    """)
    if "nokgen" not in EXP:
        kgen_loads(a, sCH, sRND)
        a("s_barrier")
        KACC = kgen_round(a, sKB)
        a(f"v_lshlrev_b32 v80, 4, v0\nv_add_u32 v80, s{sKB}, v80")
        for t in range(3):
            a(f"ds_write_b128 v80, {v4(KACC + 4 * t)} offset:{1024 * t}")
        stamp(a, 9)
    else:
        a("s_barrier")
    a("s_branch L_k1_pdone")
    a.label("L_k1_stats")
    k1_stats(a, True)
    Lz = a.newlabel("noz")
    a(f"""s_cmp_lg_u32 s2, 0
    s_cbranch_scc1 {Lz}
    v_lshlrev_b32 v5, 4, v0
    v_mov_b32 v8, 0
    v_mov_b32 v9, 0
    v_mov_b32 v10, 0
    v_mov_b32 v11, 0
    s_mov_b32 s98, {WS_FLAG2}
    buffer_store_dwordx4 v[8:11], v5, {s4(S_WS)}, s98 offen""")
    a.label(Lz)
    a("s_branch L_k1_pdone")
    a.label("L_k1_colsum")
    k1_colsum(a)
    a.label("L_k1_pdone")
    a(f"s_cmp_ge_u32 s{sWAVE}, 6\ns_cbranch_scc1 L_k1_g1")
    k1_gemm(a, 1, None)
    a.label("L_k1_g1")
    k1_gemm(a, 0, signal)
    a.label("L_k1_end")
    a("s_endpgm")


def descriptor(name, vgpr, sgpr=102):
    acc = (vgpr + 3) // 4 * 4
    return f""".amdhsa_kernel {name}
  .amdhsa_next_free_vgpr {vgpr}
  .amdhsa_next_free_sgpr {sgpr}
  .amdhsa_accum_offset {acc}
  .amdhsa_group_segment_fixed_size 0
  .amdhsa_kernarg_size 112
  .amdhsa_user_sgpr_count 2
  .amdhsa_user_sgpr_kernarg_segment_ptr 1
  .amdhsa_system_sgpr_workgroup_id_x 1
.end_amdhsa_kernel
"""


HEADER = open("cdna_kernels/" + NAME + ".s.ref").read().split("; Override launch geometry")[0]


def build():
    a = Asm()
    try:
        import gen2
    except ImportError:
        gen2 = None
    parts = {"unit": (gen2.k1_unit if gen2 else (lambda a: None)), "unit_pre": (gen2.k1_unit_pre if gen2 else (lambda a: None))}
    kernel1(a, parts)
    if "nosc1" not in EXP:
        import re
        a.L = [re.sub(r"(buffer_store_dwordx[24] .* offen(?: offset:\d+)?)$", r"\1 sc1", l) for l in a.L]
    out = HEADER
    out += f"; @launch kernel=k1_kernel grid=(256,1,1) block=(640,1,1) lds={K1_LDS}\n"
    desc = descriptor("k1_kernel", 168)
    if gen2 is not None and hasattr(gen2, "kernel2"):
        info = gen2.kernel2(a)
        out += f"; @launch kernel=k2_kernel grid=(256,1,1) block=({info['block']},1,1) lds={info['lds']}\n"
        desc += ".p2align 6\n" + descriptor("k2_kernel", info["vgpr"])
    out += '.amdgcn_target "amdgcn-amd-amdhsa--gfx950"\n.text\n' + a.text()
    out += '.section .rodata,"a"\n.p2align 6\n' + desc
    return out


if __name__ == "__main__":
    sys.modules["gen"] = sys.modules["__main__"]
    path = sys.argv[1] if len(sys.argv) > 1 else "k.s"
    open(path, "w").write(build())
    print("wrote", path)
```

```python
from gen import *

USCR = SLOT
sU0, sU1, sU2, sUB = 61, 62, 63, 95
vUA = 100


def k1_unit_pre(a):
    Lw = a.newlabel("uwd"); Le = a.newlabel("upe")
    a(f"""
    s_mul_i32 s{sUB}, s{sWAVE}, 20480
    s_add_u32 s{sUB}, s{sUB}, {USCR}
    v_lshrrev_b32 v{vUA}, 3, v0
    v_and_b32 v{vUA+1}, 7, v0
    v_mul_u32_u24 v{vUA+2}, 1280, v{vUA}
    v_lshl_add_u32 v{vUA+2}, v{vUA+1}, 4, v{vUA+2}
    s_cmp_ge_u32 s{sIDX}, 20
    s_cbranch_scc1 {Lw}
    ; ---- x transpose unit: v = xn*20+idx ; rb = 8xm + v/10 ; cb = v%10
    s_lshr_b32 s96, s{sXCD}, 1
    s_mul_i32 s96, s96, 20
    s_add_u32 s96, s96, s{sIDX}
    s_mul_i32 s97, s96, 103
    s_lshr_b32 s97, s97, 10              ; v/10
    s_mul_i32 s98, s97, 10
    s_sub_u32 s{sU1}, s96, s98           ; cb
    s_and_b32 s96, s{sXCD}, 1
    s_lshl_b32 s96, s96, 3
    s_add_u32 s97, s97, s96              ; rb
    s_lshl_b32 s97, s97, 1
    s_add_u32 s97, s97, s{sWAVE}
    s_lshl_b32 s{sU0}, s97, 6
    s_mul_i32 s96, s{sU0}, 1280
    s_lshl_b32 s97, s{sU1}, 7
    s_add_u32 s96, s96, s97
    """)
    for p in range(8):
        a(f"s_add_u32 m0, s{sUB}, {1024 * p}\ns_add_u32 s97, s96, {p * 8 * 1280}\nbuffer_load_dwordx4 v{vUA+2}, {s4(S_X)}, s97 offen lds")
    a(f"s_branch {Le}")
    a.label(Lw)
    a(f"""
    s_mul_i32 s96, s{sXCD}, 12
    s_add_u32 s96, s96, s{sIDX}
    s_sub_u32 s96, s96, 20
    s_lshr_b32 s{sU0}, s96, 1            ; kappa
    s_and_b32 s96, s96, 1
    s_mul_i32 s96, s96, 5
    s_mul_i32 s97, s{sWAVE}, 3
    s_add_u32 s{sU1}, s96, s97
    s_mul_i32 s96, s{sU0}, {32 * 1280}
    s_lshl_b32 s97, s{sU1}, 7
    s_add_u32 s96, s96, s97
    """)
    for k in range(3):
        if k == 2:
            a(f"s_cmp_eq_u32 s{sWAVE}, 1\ns_cbranch_scc1 {Le}")
        for p in range(4):
            a(f"s_add_u32 m0, s{sUB}, {4096 * k + 1024 * p}\ns_add_u32 s97, s96, {p * 8 * 1280 + 128 * k}\nbuffer_load_dwordx4 v{vUA+2}, {s4(S_WD)}, s97 offen lds")
    a.label(Le)


def k1_unit(a):
    Lw = a.newlabel("uwd"); Le = a.newlabel("uend")
    R = 8
    a(f"""
    v_lshrrev_b32 v{vUA+3}, 2, v0
    v_and_b32 v{vUA+4}, 3, v0
    v_lshlrev_b32 v{vUA+3}, 7, v{vUA+3}
    v_lshl_add_u32 v{vUA+3}, v{vUA+4}, 3, v{vUA+3}
    v_add_u32 v{vUA+3}, s{sUB}, v{vUA+3}
    s_waitcnt vmcnt(0)
    s_cmp_ge_u32 s{sIDX}, 20
    s_cbranch_scc1 {Lw}
    v_and_b32 v{vUA+4}, 15, v0
    v_lshrrev_b32 v{vUA+5}, 4, v0
    v_mul_u32_u24 v{vUA+4}, 144, v{vUA+4}
    v_lshl_add_u32 v{vUA+4}, v{vUA+5}, 3, v{vUA+4}
    s_add_u32 s96, s{sUB}, 8192
    v_add_u32 v{vUA+4}, s96, v{vUA+4}
    v_mul_u32_u24 v{vUA+5}, 144, v{vUA}
    v_lshl_add_u32 v{vUA+5}, v{vUA+1}, 4, v{vUA+5}
    v_add_u32 v{vUA+5}, s96, v{vUA+5}
    v_lshlrev_b32 v{vUA+6}, 12, v{vUA}
    v_lshl_add_u32 v{vUA+6}, v{vUA+1}, 4, v{vUA+6}
    """)
    lq = LQ(a)
    for j in range(4):
        for g in range(4):
            i = 4 * j + g
            lq.issue(f"t{i}", f"ds_read_b64_tr_b16 {v2(R + 2 * i)}, v{vUA+3} offset:{g * 2048 + 32 * j}")
            if i >= 8:
                k = i - 8
                lq.wait(f"t{k}")
                lq.issue("w", f"ds_write_b64 v{vUA+4}, {v2(R + 2 * k)} offset:{(k >> 2) * 16 * 144 + 32 * (k & 3)}")
    for k in range(8, 16):
        lq.wait(f"t{k}")
        lq.issue("w", f"ds_write_b64 v{vUA+4}, {v2(R + 2 * k)} offset:{(k >> 2) * 16 * 144 + 32 * (k & 3)}")
    O = 48
    for i in range(8):
        lq.issue(f"o{i}", f"ds_read_b128 {v4(O + 4 * i)}, v{vUA+5} offset:{i * 8 * 144}")
    a(f"s_lshl_b32 s96, s{sU1}, 18\ns_lshl_b32 s97, s{sU0}, 1\ns_add_u32 s96, s96, s97\ns_add_u32 s96, s96, {WS_XT}")
    for i in range(8):
        lq.wait(f"o{i}")
        a(f"s_add_u32 s97, s96, {i * 8 * 4096}\nbuffer_store_dwordx4 {v4(O + 4 * i)}, v{vUA+6}, {s4(S_WS)}, s97 offen")
    a(f"s_branch {Le}")
    a.label(Lw)
    a(f"v_lshlrev_b32 v{vUA+6}, 4, v0\ns_mul_i32 s{sU2}, s{sU0}, 5120\ns_add_u32 s{sU2}, s{sU2}, {WS_WD}")
    for k in range(3):
        if k == 2:
            a(f"s_cmp_eq_u32 s{sWAVE}, 1\ns_cbranch_scc1 {Le}")
        lq = LQ(a)
        for j in range(4):
            for s in range(2):
                lq.issue(f"t{j}", f"ds_read_b64_tr_b16 {v2(R + 16 * k + 4 * j + 2 * s)}, v{vUA+3} offset:{4096 * k + 2048 * s + 32 * j}")
        for j in range(4):
            a(f"""s_lshl_b32 s96, s{sU1}, 2
            s_add_u32 s96, s96, {4 * k + j}
            s_mul_i32 s97, s96, 52
            s_lshr_b32 s97, s97, 8
            s_mul_i32 s98, s97, 5
            s_sub_u32 s96, s96, s98
            s_mul_i32 s97, s97, {48 * 5120}
            s_lshl_b32 s96, s96, 10
            s_add_u32 s96, s96, s97
            s_add_u32 s96, s96, s{sU2}""")
            lq.wait(f"t{j}")
            a(f"buffer_store_dwordx4 {v4(R + 16 * k + 4 * j)}, v{vUA+6}, {s4(S_WS)}, s96 offen")
    a.label(Le)


C_U = 640
C_U2 = C_U + 4096 + 64 + 64
C_B3 = C_U2 + 3584 + 64
C_B5 = C_B3 + 3584 + 64
C_B7 = C_B5 + 3072 + 64
C_B9 = C_B7 + 2048 + 64
C_KT = C_B9 + 2048
C_SZ = C_KT + 4096
C_SZ = (C_SZ + 255) // 256 * 256
K2_STAT = 5 * C_SZ
K2_BASE = K2_STAT + 16384
K2_CTL = K2_BASE + 10240
K2_LDS = K2_CTL + 64
assert K2_LDS <= 163840, K2_LDS
K2_RED = 0

Q_WS, Q_OUT, Q_D = 4, 8, 12
qWAVE, qMI, qNI = 3, 20, 21


def k2_gemm(a):
    ACC = 8
    F = [88, 124]
    vL = 2
    sH, sW, sK = 24, 25, 26
    a(f"""
    v_lshlrev_b32 v{vL}, 4, v0
    s_mul_i32 s{sH}, s{qMI}, {4 * 49152}
    s_mul_i32 s27, s{qWAVE}, {12 * 1024}
    s_add_u32 s{sH}, s{sH}, s27
    s_add_u32 s{sH}, s{sH}, {WS_H}
    s_mul_i32 s{sW}, s{qNI}, {48 * 5120}
    s_mul_i32 s27, s{qWAVE}, {12 * 5120}
    s_add_u32 s{sW}, s{sW}, s27
    s_add_u32 s{sW}, s{sW}, {WS_WD}
    s_add_u32 s28, s{sH}, 49152
    s_add_u32 s29, s{sH}, {2 * 49152}
    s_add_u32 s30, s{sH}, {3 * 49152}
    """)
    hs = [sH, 28, 29, 30]
    vq = LQ(a, cnt="vmcnt", cap=63)

    def ldA(k, dt):
        off = k * 5120 + dt * 1024
        hi, lo = divmod(off, 4096)
        if hi:
            a(f"s_add_u32 s31, s{sW}, {hi * 4096}")
        vq.issue(f"A{k}{dt}", f"buffer_load_dwordx4 {v4(F[k & 1] + 4 * dt)}, v{vL}, {s4(Q_WS)}, s{31 if hi else sW} offen offset:{lo}")

    def ldB(k, t):
        off = k * 1024
        hi, lo = divmod(off, 4096)
        if hi:
            a(f"s_add_u32 s31, s{hs[t]}, {hi * 4096}")
        vq.issue(f"B{k}{t}", f"buffer_load_dwordx4 {v4(F[k & 1] + 20 + 4 * t)}, v{vL}, {s4(Q_WS)}, s{31 if hi else hs[t]} offen offset:{lo}")

    for k in range(2):
        ldA(k, 0)
        for t in range(4):
            ldB(k, t)
        for dt in range(1, 5):
            ldA(k, dt)
    for r in range(ACC, ACC + 80, 2):
        a(f"v_mov_b64 {v2(r)}, 0")
    a("s_barrier")
    for k in range(12):
        for dt in range(5):
            for t in range(4):
                vq.wait(f"A{k}{dt}", f"B{k}{t}")
                a(f"v_mfma_f32_16x16x32_bf16 {v4(ACC + 20 * t + 4 * dt)}, {v4(F[k & 1] + 4 * dt)}, {v4(F[k & 1] + 20 + 4 * t)}, {v4(ACC + 20 * t + 4 * dt)}")
                if dt == 4 and k + 2 < 12:
                    ldB(k + 2, t)
            if k + 2 < 12:
                ldA(k + 2, dt)
        if k == 0:
            stamp(a, 2)
    stamp(a, 3)
    a("s_nop 7\ns_barrier")
    stamp(a, 4)
    Lend = a.newlabel("wr_end")
    for w in range(4):
        Ln = a.newlabel("wr")
        if w < 3:
            a(f"s_cmp_lg_u32 s{qWAVE}, {w}\ns_cbranch_scc1 {Ln}")
        for t in range(4):
            if t == w:
                continue
            idx = w if w < t else w - 1
            for dt in range(5):
                a(f"ds_write_b128 v{vL}, {v4(ACC + 20 * t + 4 * dt)} offset:{K2_RED + ((t * 3 + idx) * 5 + dt) * 1024}")
        if w != 0:
            for r in range(0, 20, 2):
                a(f"v_mov_b64 {v2(ACC + r)}, {v2(ACC + 20 * w + r)}")
        if w < 3:
            a(f"s_branch {Lend}")
            a.label(Ln)
    a.label(Lend)
    a(f"""
    s_mul_i32 s27, s{qWAVE}, {15 * 1024}
    v_add_u32 v3, s27, v{vL}
    s_mul_i32 s27, s{qWAVE}, {5 * 512}
    s_add_u32 s27, s27, {K2_BASE}
    v_lshlrev_b32 v4, 3, v0
    v_add_u32 v4, s27, v4
    s_waitcnt lgkmcnt(0)
    s_barrier
    """)
    P = 28
    BS = 88
    lq = LQ(a)
    for dt in range(5):
        for i in range(3):
            lq.issue(f"p{dt}", f"ds_read_b128 {v4(P + 12 * dt + 4 * i)}, v3 offset:{K2_RED + (i * 5 + dt) * 1024}")
        if dt == 2:
            for d2 in range(5):
                lq.issue(f"b{d2}", f"ds_read_b64 {v2(BS + 2 * d2)}, v4 offset:{512 * d2}")
    a(f"""
    v_and_b32 v5, 15, v0
    v_lshrrev_b32 v6, 4, v0
    v_mul_u32_u24 v5, 176, v5
    v_lshl_add_u32 v5, v6, 3, v5
    s_mul_i32 s27, s{qWAVE}, {15 * 1024}
    v_add_u32 v5, s27, v5
    """)
    O = 100
    for dt in range(5):
        lq.wait(f"p{dt}", "b4")
        for r in range(4):
            a(f"v_add_f32 v{ACC + 4 * dt + r}, v{ACC + 4 * dt + r}, v{P + 12 * dt + r}")
            a(f"v_add_f32 v{P + 12 * dt + 4 + r}, v{P + 12 * dt + 4 + r}, v{P + 12 * dt + 8 + r}")
        for r in range(4):
            a(f"v_add_f32 v{ACC + 4 * dt + r}, v{ACC + 4 * dt + r}, v{P + 12 * dt + 4 + r}")
        for h in range(2):
            c = ACC + 4 * dt + 2 * h
            t = P + 12 * dt + 2 * h
            a(f"""v_cvt_pk_bf16_f32 v{c}, v{c}, v{c+1}
            v_and_b32 v{t+1}, 0xffff0000, v{BS + 2 * dt + h}
            v_and_b32 v{c+1}, 0xffff0000, v{c}
            v_lshlrev_b32 v{c}, 16, v{c}
            v_lshlrev_b32 v{t}, 16, v{BS + 2 * dt + h}
            v_add_f32 v{c+1}, v{c+1}, v{t+1}
            v_add_f32 v{c}, v{c}, v{t}
            v_cvt_pk_bf16_f32 v{O + 2 * dt + h}, v{c}, v{c+1}""")
    for dt in range(5):
        a(f"ds_write_b64 v5, {v2(O + 2 * dt)} offset:{K2_RED + 32 * dt}")
    for i in range(3):
        a(f"""v_add_u32 v6, {64 * i}, v0
        v_mul_u32_u24 v7, 205, v6
        v_lshrrev_b32 v7, 11, v7                  ; row
        v_mul_u32_u24 v{110}, 10, v7
        v_sub_u32 v6, v6, v{110}                  ; k
        v_mul_u32_u24 v{110}, 176, v7
        v_lshl_add_u32 v{110}, v6, 4, v{110}
        v_add_u32 v{110}, s27, v{110}
        v_mul_u32_u24 v{112 + i}, 1280, v7
        v_lshl_add_u32 v{112 + i}, v6, 4, v{112 + i}
        ds_read_b128 {v4(P + 4 * i)}, v{110} offset:{K2_RED}""")
    a(f"""
    s_lshl_b32 s27, s{qMI}, 2
    s_add_u32 s27, s27, s{qWAVE}
    s_mul_i32 s27, s27, {16 * 1280}
    s_mul_i32 s28, s{qNI}, 160
    s_add_u32 s27, s27, s28
    s_waitcnt lgkmcnt(2)
    buffer_store_dwordx4 {v4(P)}, v112, {s4(Q_OUT)}, s27 offen
    s_waitcnt lgkmcnt(1)
    buffer_store_dwordx4 {v4(P + 4)}, v113, {s4(Q_OUT)}, s27 offen
    s_waitcnt lgkmcnt(0)
    s_mov_b32 exec_hi, 0
    buffer_store_dwordx4 {v4(P + 8)}, v114, {s4(Q_OUT)}, s27 offen
    s_mov_b64 exec, -1
    """)
    stamp(a, 5)
    stamp_end(a, 1, Q_WS, qWAVE)


NBLK1 = [0, 4, 8, 8, 8, 8, 8, 8]
NBLK2 = [0, 0, 2, 4, 6, 6, 6, 6]
NBLK3 = [0, 0, 0, 0, 1, 2, 3, 4]


def conv_mfma(a, tiles, regs):
    ACC, KF, DF = regs["ACC"], regs["KF"], regs["DF"]
    ND = regs["ND"]
    bU, bK0, bD, bK, PF = regs["bU"], regs["bK0"], regs["bD"], regs["bK"], regs["PF"]
    lq = LQ(a)

    def acc(t): return ACC + 4 * (t - tiles[0])

    def kload(seg, b, bank):
        r = KF + 36 * bank + 4 * b
        tag = f"K{seg}_{b}"
        if seg == 0:
            o = 16 * (8 - b)
            lq.issue(tag, f"ds_read2_b32 {v2(r)}, v{bK0} offset0:{o} offset1:{o + 1}")
            lq.issue(tag, f"ds_read2_b32 {v2(r + 2)}, v{bK0} offset0:{o + 2} offset1:{o + 3}")
        elif seg == 1:
            lq.issue(tag, f"ds_read_b64 {v2(r)}, v{bK[1]} offset:{32 * b}")
            lq.issue(tag, f"ds_read_b64 {v2(r + 2)}, v{bK[1]} offset:{32 * b + 8}")
        else:
            o = 8 * b
            lq.issue(tag, f"ds_read2_b32 {v2(r)}, v{bK[seg]} offset0:{o} offset1:{o + 1}")
            lq.issue(tag, f"ds_read2_b32 {v2(r + 2)}, v{bK[seg]} offset0:{o + 2} offset1:{o + 3}")

    work = []
    banks = {0: 0, 1: 1, 2: 0, 3: 1}
    for t in tiles:
        for k in range(9):
            if t == 0 and k == 8:
                continue
            work.append((("u", 512 * (t + 1) - 64 * k), [(t, 0, k)]))
    for seg, D, nb in ((1, 4, NBLK1), (2, 8, NBLK2), (3, 16, NBLK3)):
        es = {}
        for t in tiles:
            for b in range(nb[t]):
                es.setdefault((16 // D) * t - b, []).append((t, seg, b))
        for e in sorted(es):
            work.append((("tr", seg, D, e), es[e]))
    for t in tiles:
        if t >= 3:
            work.append((("u", 512 * (t + 1) - 2032), [(t, "p", 0)]))
    need = {s: sorted({b for _, us in work for (_, sg, b) in us if sg == s}) for s in range(4)}
    first = {}
    last = {}
    for i, (_, us) in enumerate(work):
        for (_, sg, b) in us:
            first.setdefault(sg, i)
            last[sg] = i
    kplan = {}
    for s in (1, 2, 3):
        if not need[s]:
            continue
        start = 0 if s == 1 else last[s - 2] + 1
        span = max(1, first[s] - start - 2)
        for j, b in enumerate(need[s]):
            kplan.setdefault(min(start + (j * span) // len(need[s]), first[s] - 1) if first[s] > start else start, []).append((s, b))

    def dload(i):
        spec = work[i][0]
        r = DF + 4 * (i % ND)
        if spec[0] == "u":
            lq.issue(f"D{i}", f"ds_read_b128 {v4(r)}, v{bU} offset:{spec[1]}")
        else:
            _, seg, D, e = spec
            for s in range(2):
                lq.issue(f"D{i}", f"ds_read_b64_tr_b16 {v2(r + 2 * s)}, v{bD[seg]} offset:{32 * D * e + (8 * D if s == 0 else 0)}")

    LA = ND - 1
    kload(0, need[0][0], 0)
    dload(0)
    for b in need[0][1:3]:
        kload(0, b, 0)
    for i in range(1, LA):
        dload(i)
    rest0 = need[0][3:]
    for i, (spec, us) in enumerate(work):
        for (s, b) in kplan.get(i, []):
            kload(s, b, banks[s])
        if rest0:
            kload(0, rest0.pop(0), 0)
        if i + LA < len(work):
            dload(i + LA)
        d = DF + 4 * (i % ND)
        for (t, sg, b) in us:
            if sg == "p":
                lq.wait(f"D{i}")
                a(f"v_mfma_f32_16x16x32_f16 {v4(acc(t))}, {v4(PF)}, {v4(d)}, {v4(acc(t))}")
                continue
            k = KF + 36 * banks[sg] + 4 * b
            lq.wait(f"D{i}", f"K{sg}_{b}")
            if sg == 0:
                a(f"v_mfma_f32_16x16x32_f16 {v4(acc(t))}, {v4(k)}, {v4(d)}, {v4(acc(t))}")
            else:
                a(f"v_mfma_f32_16x16x32_f16 {v4(acc(t))}, {v4(d)}, {v4(k)}, {v4(acc(t))}")


def k2_conv(a):
    sC, sCH, sHALF, sRB, sT, sT2 = 24, 25, 26, 27, 28, 29
    vL16, vCTL, vONE = 2, 3, 4
    a(f"""
    s_sub_u32 s{sC}, s{qWAVE}, 4
    s_mul_i32 s{sT}, s2, 5
    s_add_u32 s{sT}, s{sT}, s{sC}
    s_lshr_b32 s{sCH}, s{sT}, 1
    s_and_b32 s{sHALF}, s{sT}, 1
    s_mul_i32 s{sRB}, s{sC}, {C_SZ}
    v_lshlrev_b32 v{vL16}, 4, v0
    s_lshl_b32 s{sT}, s{sCH}, 12
    s_add_u32 s{sT}, s{sT}, {WS_XT}
    """)
    for r in range(4):
        a(f"buffer_load_dwordx4 {v4(8 + 4 * r)}, v{vL16}, {s4(Q_WS)}, s{sT} offen offset:{1024 * r}")
    a(f"s_lshl_b32 s{sT}, s{sC}, 10\ns_add_u32 s{sT2}, s{sT}, {WS_STATA}")
    for i in range(3):
        a(f"s_add_u32 m0, s{sT}, {K2_STAT + 5120 * i}\ns_add_u32 s30, s{sT2}, {5120 * i}\nbuffer_load_dwordx4 v{vL16}, {s4(Q_WS)}, s30 offen lds")
    L = a.newlabel("st15")
    a(f"s_cmp_lg_u32 s{sC}, 0\ns_cbranch_scc1 {L}\ns_mov_b32 m0, {K2_STAT + 15360}\ns_mov_b32 s30, {WS_STATA + 15360}\nbuffer_load_dwordx4 v{vL16}, {s4(Q_WS)}, s30 offen lds")
    a.label(L)
    a(f"s_mul_i32 s{sT}, s{sCH}, {KT_BYTES}\ns_add_u32 s{sT}, s{sT}, {WS_KT}\ns_add_u32 m0, s{sRB}, {C_KT}\ns_nop 0")
    for i in range(4):
        a(f"buffer_load_dwordx4 v{vL16}, {s4(Q_WS)}, s{sT} offen offset:{1024 * i} lds")
    a(f"""
    v_mov_b32 v24, 0
    v_mov_b32 v25, 0
    v_mov_b32 v26, 0
    v_mov_b32 v27, 0
    v_add_u32 v5, s{sRB}, v{vL16}
    v_mov_b32 v{vCTL}, {K2_CTL}
    v_mov_b32 v{vONE}, 1
    s_mov_b32 exec_hi, 0xff
    ds_write_b128 v5, v[24:27]
    s_mov_b64 exec, 0xff
    ds_write_b128 v5, v[24:27] offset:{C_U + 4096}
    s_mov_b64 exec, 0xf
    ds_write_b128 v5, v[24:27] offset:{C_B3 - 64}
    ds_write_b128 v5, v[24:27] offset:{C_B5 - 64}
    ds_write_b128 v5, v[24:27] offset:{C_B7 - 64}
    ds_write_b128 v5, v[24:27] offset:{C_B9 - 64}
    s_mov_b64 exec, 1
    ds_write_b128 v{vCTL}, v[24:27]
    s_mov_b64 exec, -1
    s_waitcnt lgkmcnt(0)
    s_barrier
    s_waitcnt vmcnt(0)
    s_mov_b64 exec, 1
    ds_add_u32 v{vCTL}, v{vONE}
    s_mov_b64 exec, -1
    """)
    stamp(a, 2)
    Lp = a.newlabel("cp")
    a.label(Lp)
    a(f"ds_read_b32 v6, v{vCTL}\ns_waitcnt lgkmcnt(0)\nv_readfirstlane_b32 s{sT}, v6\ns_cmp_ge_u32 s{sT}, 5\ns_cbranch_scc0 {Lp}")
    a(f"v_lshlrev_b32 v6, 6, v0\nv_add_u32 v6, {K2_STAT}, v6")
    S = 32
    X = 64
    lq = LQ(a)

    def ldst(r):
        for q in range(4):
            lq.issue(f"s{r}", f"ds_read_b128 {v4(S + 16 * (r & 1) + 4 * q)}, v6 offset:{4096 * r + 16 * q}")
    ldst(0)
    for r in range(4):
        if r < 3:
            ldst(r + 1)
        for i in range(4):
            a(f"v_lshlrev_b32 v{X + 2 * i}, 16, v{8 + 4 * r + i}\nv_and_b32 v{X + 2 * i + 1}, 0xffff0000, v{8 + 4 * r + i}")
        lq.wait(f"s{r}")
        sb = S + 16 * (r & 1)
        for i in range(8):
            a(f"v_fma_f32 v{X + i}, v{X + i}, v{sb + 2 * i}, v{sb + 2 * i + 1}")
        for i in range(4):
            a(f"v_cvt_pk_f16_f32 v{8 + 4 * r + i}, v{X + 2 * i}, v{X + 2 * i + 1}")
        lq.issue("w", f"ds_write_b128 v5, {v4(8 + 4 * r)} offset:{C_U + 1024 * r}")
    D = 32
    SS = 48
    OB = 56

    def ldw(r):
        b = D + 8 * (r & 1)
        lq.issue(f"d{r}", f"ds_read_b64 {v2(b)}, v5 offset:{C_U + 1024 * r - 24}")
        lq.issue(f"d{r}", f"ds_read_b128 {v4(b + 2)}, v5 offset:{C_U + 1024 * r - 16}")
        lq.issue(f"d{r}", f"ds_read_b64 {v2(b + 6)}, v5 offset:{C_U + 1024 * r}")
    ldw(0)
    Lbend = a.newlabel("bend")
    for r in range(4):
        if r == 3:
            pass
        if r < 3:
            ldw(r + 1)
        d = D + 8 * (r & 1)
        lq.wait(f"d{r}", "w")
        for i in range(7):
            a(f"v_alignbit_b32 v{SS + i}, v{d + i + 1}, v{d + i}, 16")
        for i in range(4):
            a(f"v_mov_b32 v{OB + i}, v{d + 1 + i}")
        for i in range(4):
            a(f"v_pk_add_f16 v{OB + 4 + i}, v{SS + i + 1}, v{SS + i + 2}")
        for i in range(4):
            a(f"v_pk_add_f16 v{OB + 4 + i}, v{OB + 4 + i}, v{d + i + 2}")
        if r == 3:
            a("s_mov_b32 exec_lo, -1\ns_mov_b32 exec_hi, 1")
        lq.issue("w", f"ds_write_b128 v5, {v4(OB)} offset:{C_U2 + 1024 * r - 16}")
        lq.issue("w", f"ds_write_b128 v5, {v4(OB + 4)} offset:{C_B3 + 1024 * r - 16}")
        if r == 3:
            a("s_mov_b64 exec, 1")
        for i in range(4):
            a(f"v_pk_add_f16 v{OB + 8 + i}, v{d + i + 1}, v{d + i + 3}")
        for i in range(4):
            a(f"v_pk_add_f16 v{OB + 8 + i}, v{OB + 8 + i}, v{OB + 4 + i}")
        lq.issue("w", f"ds_write_b128 v5, {v4(OB + 8)} offset:{C_B5 + 1024 * r - 16}")
        if r == 3:
            a("s_mov_b64 exec, -1")
        if r <= 2:
            if r == 2:
                a("s_mov_b64 exec, 1")
            for i in range(4):
                a(f"v_pk_add_f16 v{OB + 12 + i}, v{SS + i}, v{SS + i + 3}")
            for i in range(4):
                a(f"v_pk_add_f16 v{OB + 12 + i}, v{OB + 12 + i}, v{OB + 8 + i}")
            lq.issue("w", f"ds_write_b128 v5, {v4(OB + 12)} offset:{C_B7 + 1024 * r - 16}")
            for i in range(4):
                a(f"v_pk_add_f16 v{OB + 16 + i}, v{d + i}, v{d + i + 4}")
            for i in range(4):
                a(f"v_pk_add_f16 v{OB + 16 + i}, v{OB + 16 + i}, v{OB + 12 + i}")
            lq.issue("w", f"ds_write_b128 v5, {v4(OB + 16)} offset:{C_B9 + 1024 * r - 16}")
            if r == 2:
                a("s_mov_b64 exec, -1")
    a.label(Lbend)
    stamp(a, 3)
    regs = dict(ACC=8, KF=28, DF=100, ND=6, bU=124, bK0=125, bD={1: 126, 2: 127, 3: 128}, bK={1: 129, 2: 130, 3: 131}, PF=132)
    i16, hq, par, h8, rr, cc, T = 140, 141, 142, 143, 144, 145, 146
    a(f"""
    v_and_b32 v{i16}, 15, v0
    v_lshrrev_b32 v{hq}, 4, v0
    v_and_b32 v{par}, 1, v{hq}
    v_lshrrev_b32 v{h8}, 1, v{hq}
    v_bfe_u32 v{rr}, v0, 2, 2
    v_and_b32 v{cc}, 3, v0
    v_sub_u32 v{T}, v{i16}, v{h8}
    v_lshlrev_b32 v{T}, 5, v{T}
    v_lshl_add_u32 v{T}, v{par}, 4, v{T}
    s_add_u32 s{sT}, s{sRB}, {C_U - 512}
    v_add_u32 v{regs['bU']}, s{sT}, v{T}
    v_lshlrev_b32 v{T}, 3, v{par}
    v_sub_u32 v{T}, v{T}, v{i16}
    v_lshlrev_b32 v{T+1}, 4, v{h8}
    v_sub_u32 v{T}, v{T}, v{T+1}
    v_add_u32 v{T}, 32, v{T}
    v_lshlrev_b32 v{T}, 1, v{T}
    v_and_b32 v{T+2}, 1, v{i16}
    v_mul_u32_u24 v{T+1}, {T0O - T0E - 2}, v{T+2}
    v_add3_u32 v{T}, v{T}, v{T+1}, s{sRB}
    v_add_u32 v{regs['bK0']}, {C_KT + T0E}, v{T}
    """)
    segs = {1: (4, C_B3, 5, 0, C_U2, 5, 0, T1E, T1O), 2: (8, C_B5, 35, 0, C_B3, 34, 4, T2E, T2O), 3: (16, C_B9, 50, 0, C_B7, 49, 8, T3EE, T3OE)}
    for sg, (Dd, Ae, pe, oe, Ao, po, oo, Te, To) in segs.items():
        ce = Ae - 2 * Dd * (pe + 4) - 2 * oe
        co = Ao - 2 * Dd * (po + 4) - 2 * oo
        a(f"""
        v_lshl_add_u32 v{T}, v{h8}, 3, v{rr}                ; 8 h8 + r
        v_mul_u32_u24 v{T}, {2 * Dd}, v{T}
        v_lshlrev_b32 v{T+1}, 3, v{cc}
        v_sub_u32 v{T}, v{T+1}, v{T}
        v_mul_i32_i24 v{T+1}, {co - ce}, v{par}
        v_add3_u32 v{T}, v{T}, v{T+1}, s{sRB}
        v_add_u32 v{regs['bD'][sg]}, {ce}, v{T}
        v_mul_u32_u24 v{T}, {2 * 16 // Dd}, v{i16}
        v_lshl_add_u32 v{T}, v{h8}, 4, v{T}
        v_mul_u32_u24 v{T+1}, {To - Te}, v{par}
        v_add3_u32 v{T}, v{T}, v{T+1}, s{sRB}
        v_add_u32 v{regs['bK'][sg]}, {C_KT + Te}, v{T}
        """)
    a(f"v_mul_u32_u24 v{T+1}, 158, v{T+2}\nv_add_u32 v{regs['bK'][3]}, v{regs['bK'][3]}, v{T+1}")
    PF = regs["PF"]
    a(f"""
    s_add_u32 s{sT}, s{sRB}, {C_KT + TK1024}
    v_mov_b32 v{T+3}, s{sT}
    ds_read_b64 {v2(T + 4)}, v{T+3}
    v_lshlrev_b32 v{T}, 4, v{h8}
    v_lshlrev_b32 v{T+1}, 3, v{par}
    v_sub_u32 v{T}, v{T}, v{T+1}
    v_add3_u32 v{T}, v{T}, v{i16}, -6
    s_waitcnt lgkmcnt(0)
    v_and_b32 v{T+4}, 0xffff, v{T+4}
    v_lshlrev_b32 v{T+6}, 16, v{T+4}
    """)
    for p in range(4):
        a(f"""v_subrev_u32 v{T+1}, {2 * p}, v{T}
        v_subrev_u32 v{T+2}, {2 * p + 1}, v{T}
        v_cmp_gt_u32 vcc, 7, v{T+1}
        v_cmp_gt_u32 s[30:31], 7, v{T+2}
        s_nop 1
        v_cndmask_b32 v{T+1}, 0, v{T+4}, vcc
        v_cndmask_b32 v{T+2}, 0, v{T+6}, s[30:31]
        v_or_b32 v{PF + p}, v{T+1}, v{T+2}""")
    for r in range(8, 28, 2):
        a(f"v_mov_b64 {v2(r)}, 0")
    a(f"""v_lshlrev_b32 v{T+7}, 5, v{i16}
    v_lshl_add_u32 v{T+7}, v{hq}, 3, v{T+7}
    s_lshl_b32 s{sT2}, s{sCH}, 12
    s_add_u32 s{sT2}, s{sT2}, {WS_Y}""")
    LB = a.newlabel("halfB"); LJ = a.newlabel("cjoin")
    a(f"s_cmp_eq_u32 s{sHALF}, 1\ns_cbranch_scc1 {LB}")
    for tiles, lab in (([0, 1, 2, 3, 4], None), ([5, 6, 7], LB)):
        if lab:
            a.label(lab)
        conv_mfma(a, tiles, regs)
        a("s_nop 7")
        for i, t in enumerate(tiles):
            c = 8 + 4 * i
            for r in range(4):
                a(f"v_mul_f32 v{c + r}, v{c + r}, v{T+5}")
            a(f"v_cvt_pk_bf16_f32 v{c}, v{c}, v{c+1}\nv_cvt_pk_bf16_f32 v{c+1}, v{c+2}, v{c+3}")
            a(f"buffer_store_dwordx2 {v2(c)}, v{T+7}, {s4(Q_WS)}, s{sT2} offen offset:{512 * t} sc0 sc1")
        if not lab:
            a(f"s_branch {LJ}")
    a.label(LJ)
    stamp(a, 4)
    vTO = 100
    a(f"""
    v_lshrrev_b32 v{vTO}, 3, v0
    v_and_b32 v{vTO+1}, 7, v0
    v_lshlrev_b32 v{vTO}, 12, v{vTO}
    v_lshl_add_u32 v{vTO}, v{vTO+1}, 4, v{vTO}          ; ch8*4096 + 16k
    s_mul_i32 s30, s{qNI}, 80
    s_lshl_b32 s31, s{sC}, 4
    s_add_u32 s30, s30, s31
    s_lshl_b32 s31, s30, 12
    s_lshl_b32 s32, s{qMI}, 7
    s_add_u32 s31, s31, s32
    s_add_u32 s32, s31, {WS_XT}
    s_add_u32 s33, s32, {8 * 4096}
    s_mov_b32 m0, s{sRB}
    s_lshl_b32 s34, s{qMI}, 9
    buffer_load_dwordx4 v{vTO}, {s4(Q_WS)}, s32 offen lds
    s_add_u32 m0, s{sRB}, 1024
    s_add_u32 s34, s34, {WS_STATB}
    buffer_load_dwordx4 v{vTO}, {s4(Q_WS)}, s33 offen lds
    v_lshlrev_b32 v{vTO+2}, 3, v{i16}
    v_lshlrev_b32 v{vTO+3}, 3, v{hq}
    s_lshl_b32 s30, s30, 1
    """)
    SM = 104
    for t in range(4):
        a(f"buffer_load_dwordx2 {v2(SM + 2 * t)}, v{vTO+2}, {s4(Q_WS)}, s34 offen offset:{128 * t}")
    a(f"buffer_load_dwordx2 {v2(112)}, v{vTO+3}, {s4(Q_D)}, s30 offen")
    Lns = a.newlabel("nosig2")
    a(f"""
    s_waitcnt vmcnt(0)
    s_mov_b64 exec, 1
    ds_add_rtn_u32 v6, v{vCTL}, v{vONE} offset:4
    s_waitcnt lgkmcnt(0)
    v_readfirstlane_b32 s{sT}, v6
    s_cmp_lg_u32 s{sT}, 4
    s_cbranch_scc1 {Lns}
    s_lshl_b32 s{sT}, s2, 2
    s_add_u32 s{sT}, s{sT}, {WS_FLAG2}
    v_mov_b32 v6, 0
    buffer_store_dword v{vONE}, v6, {s4(Q_WS)}, s{sT} offen sc0 sc1
    """)
    a.label(Lns)
    a("s_mov_b64 exec, -1")
    stamp(a, 5)
    vTR = 114
    a(f"""
    v_lshrrev_b32 v{vTR}, 2, v0
    v_lshlrev_b32 v{vTR}, 7, v{vTR}
    v_lshl_add_u32 v{vTR}, v{cc}, 3, v{vTR}
    v_add_u32 v{vTR}, s{sRB}, v{vTR}
    """)
    XR = 8
    XF = 16
    T1 = 32
    DD = 48
    for t in range(4):
        a(f"ds_read_b64_tr_b16 {v2(XR + 2 * t)}, v{vTR} offset:{32 * t}")
    for h in range(2):
        a(f"v_lshlrev_b32 v{DD + 2 * h}, 16, v{112 + h}\nv_and_b32 v{DD + 2 * h + 1}, 0xffff0000, v{112 + h}")
    for t in range(4):
        a(f"v_rcp_f32 v{SM + 2 * t + 1}, v{SM + 2 * t + 1}")
    a("s_waitcnt lgkmcnt(0)")

    def unpack(d, s):
        a(f"v_and_b32 v{d + 1}, 0xffff0000, v{s}\nv_lshlrev_b32 v{d}, 16, v{s}")

    def rnd2(d):
        a(f"v_cvt_pk_bf16_f32 v{d}, v{d}, v{d+1}")
        unpack(d, d)
    for t in range(4):
        for h in range(2):
            x = XF + 4 * t + 2 * h
            y = T1 + 4 * t + 2 * h
            unpack(x, XR + 2 * t + h)
            a(f"v_sub_f32 v{y}, v{x}, v{SM + 2 * t}\nv_sub_f32 v{y+1}, v{x+1}, v{SM + 2 * t}")
            rnd2(y)
            a(f"v_mul_f32 v{y}, v{y}, v{SM + 2 * t + 1}\nv_mul_f32 v{y+1}, v{y+1}, v{SM + 2 * t + 1}")
            rnd2(y)
            a(f"v_mul_f32 v{y}, v{y}, v{DD + 2 * h}\nv_mul_f32 v{y+1}, v{y+1}, v{DD + 2 * h + 1}")
            rnd2(y)
    Lo = a.newlabel("oth"); Lg = a.newlabel("gp"); Lgd = a.newlabel("gpd"); Lr = a.newlabel("rdy")
    a(f"""
    s_cmp_lg_u32 s{sC}, 0
    s_cbranch_scc1 {Lo}
    v_and_b32 v6, 31, v0
    v_lshlrev_b32 v6, 2, v6
    s_lshl_b32 s{sT}, s{qNI}, 7
    s_add_u32 s{sT}, s{sT}, {WS_FLAG2}
    s_mov_b32 s35, 0
    """)
    a.label(Lg)
    a(f"""
    buffer_load_dword v7, v6, {s4(Q_WS)}, s{sT} offen sc0 sc1
    s_waitcnt vmcnt(0)
    v_cmp_eq_u32 vcc, 1, v7
    s_cmp_eq_u32 vcc_lo, -1
    s_cbranch_scc1 {Lgd}
    s_sleep 8
    s_add_u32 s35, s35, 1
    s_cmp_lt_u32 s35, 200000
    s_cbranch_scc1 {Lg}
    """)
    a.label(Lgd)
    a(f"ds_write_b32 v{vCTL}, v{vONE} offset:8\ns_branch {Lr}")
    a.label(Lo)
    a(f"ds_read_b32 v6, v{vCTL} offset:8\ns_sleep 1\ns_waitcnt lgkmcnt(0)\nv_readfirstlane_b32 s{sT}, v6\ns_cmp_ge_u32 s{sT}, 1\ns_cbranch_scc0 {Lo}")
    a.label(Lr)
    stamp(a, 8)
    a(f"""
    s_add_u32 s32, s31, {WS_Y}
    s_add_u32 s33, s32, {8 * 4096}
    s_add_u32 m0, s{sRB}, 2048
    s_nop 0
    buffer_load_dwordx4 v{vTO}, {s4(Q_WS)}, s32 offen sc0 sc1 lds
    s_add_u32 m0, s{sRB}, 3072
    s_nop 0
    buffer_load_dwordx4 v{vTO}, {s4(Q_WS)}, s33 offen sc0 sc1 lds
    s_lshl_b32 s{sT}, s{sC}, 9
    s_add_u32 s{sT}, s{sT}, {K2_BASE}
    v_lshlrev_b32 v6, 3, v0
    v_add_u32 v6, s{sT}, v6
    s_waitcnt vmcnt(0)
    """)
    for t in range(4):
        a(f"ds_read_b64_tr_b16 {v2(XR + 2 * t)}, v{vTR} offset:{2048 + 32 * t}")
    Y = 52
    for t in range(4):
        a(f"s_waitcnt lgkmcnt({3 - t + min(t, 1) * 0})" if t == 0 else f"s_waitcnt lgkmcnt({3 - t + t})")
        for h in range(2):
            y = Y + 2 * h
            unpack(y, XR + 2 * t + h)
            a(f"v_add_f32 v{y}, v{y}, v{T1 + 4 * t + 2 * h}\nv_add_f32 v{y+1}, v{y+1}, v{T1 + 4 * t + 2 * h + 1}")
            rnd2(y)
            a(f"v_add_f32 v{y}, v{y}, v{XF + 4 * t + 2 * h}\nv_add_f32 v{y+1}, v{y+1}, v{XF + 4 * t + 2 * h + 1}")
            a(f"v_cvt_pk_bf16_f32 v{56 + 2 * t + h}, v{y}, v{y+1}")
        a(f"ds_write_b64 v6, {v2(56 + 2 * t)} offset:{t * 2560}")
    a("s_waitcnt lgkmcnt(0)")
    stamp(a, 9)
    a("s_barrier")
    stamp_end(a, 1, Q_WS, qWAVE)


def kernel2(a):
    a.raw(".globl k2_kernel\n.p2align 8\n.type k2_kernel,@function\nk2_kernel:")
    a(f"""
    s_cmp_ge_u32 s2, 256
    s_cbranch_scc1 L_k2_end
    s_load_dwordx2 s[40:41], s[0:1], 48
    s_load_dwordx2 s[42:43], s[0:1], 88
    s_load_dwordx2 s[44:45], s[0:1], 104
    v_lshrrev_b32 v1, 6, v0
    v_and_b32 v0, 63, v0
    s_and_b32 s22, s2, 7
    v_readfirstlane_b32 s{qWAVE}, v1
    s_lshr_b32 s23, s2, 3
    s_and_b32 s{qMI}, s22, 3
    s_lshl_b32 s{qMI}, s{qMI}, 3
    s_and_b32 s24, s23, 7
    s_add_u32 s{qMI}, s{qMI}, s24
    s_lshr_b32 s{qNI}, s22, 2
    s_lshl_b32 s{qNI}, s{qNI}, 2
    s_lshr_b32 s24, s23, 3
    s_add_u32 s{qNI}, s{qNI}, s24
    """)
    code_prefetch(a, "k2_kernel", "L_k2_end", 2, 23, qWAVE, 8, 166, 96)
    a("s_waitcnt lgkmcnt(0)")
    srd(a, Q_WS, 44, 0x4000000 if PROF else WS_END + 4096)
    if "diag" in EXP:
        a("s_load_dwordx2 s[46:47], s[0:1], 96\ns_memrealtime s[100:101]\ns_waitcnt lgkmcnt(0)\nv_mov_b32 v165, s100")
        srd(a, 16, 46, 256)
    srd(a, Q_OUT, 42, 2048 * 1280)
    srd(a, Q_D, 40, 1280)
    if PROF:
        a(f"v_mov_b32 v{vSTAMP}, 0")
    stamp(a, 0, True)
    stamp(a, 1)
    a(f"s_cmp_ge_u32 s{qWAVE}, 4\ns_cbranch_scc1 L_k2_conv")
    k2_gemm(a)
    a.label("L_k2_conv")
    k2_conv(a)
    a.label("L_k2_end")
    a("s_endpgm")
    return dict(block=576, lds=K2_LDS, vgpr=168)
```

```python
import sys, os, struct

NAME = "parallel_sum__ssm_conv_s4d__glu_gated_glu__prompt"

WS_H = 0
WS_WD = WS_H + 128 * 48 * 1024
WS_XT = WS_WD + 8 * 48 * 5 * 1024
WS_Y = WS_XT + 640 * 4096
KT_BYTES = 3584
WS_KT = WS_Y + 640 * 4096
WS_STATA = WS_KT + 640 * KT_BYTES
WS_STATB = WS_STATA + 2048 * 8
WS_CS = WS_STATB + 2048 * 8
WS_FLAG2 = WS_CS + 5 * 3072 * 4
WS_END = WS_FLAG2 + 8 * 128

T0E, T0O, T1E, T1O, T2E, T2O = 0, 640, 1280, 1664, 2048, 2304
T3EE, T3EO, T3OE, T3OO = 2560, 2720, 2880, 3040
TK1024, TSIG = 3200, 3204

PROF = int(os.environ.get("PROF", "0"))
EXP = os.environ.get("EXP", "")
WS_PROF = 0x2000000
vSTAMP = 167


def f32(x):
    return "0x%08x" % struct.unpack("<I", struct.pack("<f", x))[0]


class Asm:
    def __init__(self):
        self.L = []
        self.uid = 0

    def __call__(self, s):
        for line in s.split("\n"):
            line = line.strip()
            if line:
                self.L.append("  " + line)

    def label(self, n):
        self.L.append(n + ":")

    def newlabel(self, base):
        self.uid += 1
        return f"L_{base}_{self.uid}"

    def raw(self, s):
        self.L.append(s)

    def text(self):
        return "\n".join(self.L) + "\n"


class LQ:
    def __init__(self, a, seed=(), cnt="lgkmcnt", cap=15):
        self.a = a
        self.q = list(seed)
        self.cnt = cnt
        self.cap = cap

    def issue(self, tag, s):
        self.a(s)
        self.q.append(tag)

    def wait(self, *tags):
        idx = -1
        for t in tags:
            for i, x in enumerate(self.q):
                if x == t:
                    idx = max(idx, i)
        if idx < 0:
            return
        n = len(self.q) - 1 - idx
        self.a(f"s_waitcnt {self.cnt}({min(n, self.cap)})")
        self.q = self.q[idx + 1:] if n <= self.cap else self.q[len(self.q) - self.cap:]

    def drain(self):
        self.a(f"s_waitcnt {self.cnt}(0)")
        self.q = []


def stamp(a, i, real=False):
    if PROF:
        a(f"s_waitcnt lgkmcnt(0)\n{'s_memrealtime' if real else 's_memtime'} s[100:101]\ns_waitcnt lgkmcnt(0)\nv_writelane_b32 v{vSTAMP}, s100, {i}")


def stamp_dyn(a, sidx, base, mul=1):
    if PROF:
        a(f"s_waitcnt lgkmcnt(0)\ns_memtime s[100:101]\ns_mul_i32 s99, s{sidx}, {mul}\ns_add_u32 m0, s99, {base}\ns_waitcnt lgkmcnt(0)\nv_writelane_b32 v{vSTAMP}, s100, m0")


def stamp_end(a, kern, S_WS_, swave):
    if "diag" in EXP:
        Ld = a.newlabel("diag")
        if kern == 0:
            a(f"""s_cmp_lg_u32 s{swave}, 9
            s_cbranch_scc1 {Ld}
            s_waitcnt vmcnt(0) lgkmcnt(0)
            s_memrealtime s[100:101]
            s_lshl_b32 s98, s2, 2
            s_add_u32 s98, s98, {WS_END + 1024}
            v_mov_b32 v5, 0
            s_waitcnt lgkmcnt(0)
            v_mov_b32 v6, s100
            s_mov_b64 exec, 1
            buffer_store_dword v6, v5, s[{S_WS_}:{S_WS_+3}], s98 offen""")
        else:
            a(f"""s_cmp_lg_u32 s{swave}, 0
            s_cbranch_scc1 {Ld}
            s_lshl_b32 s98, s2, 2
            s_add_u32 s98, s98, {WS_END}
            v_mov_b32 v5, 0
            s_mov_b64 exec, 1
            buffer_load_dword v7, v5, s[{S_WS_}:{S_WS_+3}], s98 offen
            buffer_load_dword v8, v5, s[{S_WS_}:{S_WS_+3}], s98 offen offset:1024
            s_waitcnt vmcnt(0) lgkmcnt(0)
            s_memrealtime s[100:101]
            s_waitcnt lgkmcnt(0)
            v_mov_b32 v6, s100
            v_and_b32 v6, 0xffffff, v6
            v_and_b32 v7, 0xffffff, v7
            v_and_b32 v8, 0xffffff, v8
            v_and_b32 v9, 0xffffff, v165
            v_sub_u32 v10, 0xffffff, v7
            v_sub_u32 v11, 0xffffff, v9
            buffer_atomic_umax v10, v5, s[16:19], 0 offen offset:0
            buffer_atomic_umax v7, v5, s[16:19], 0 offen offset:4
            buffer_atomic_umax v8, v5, s[16:19], 0 offen offset:8
            buffer_atomic_umax v11, v5, s[16:19], 0 offen offset:12
            buffer_atomic_umax v9, v5, s[16:19], 0 offen offset:16
            buffer_atomic_umax v6, v5, s[16:19], 0 offen offset:20""")
        a.label(Ld)
    if PROF:
        a("s_waitcnt vmcnt(0)")
        stamp(a, 6)
        stamp(a, 7, True)
        a(f"""s_lshl_b32 s100, s2, 4
        s_add_u32 s100, s100, s{swave}
        s_lshl_b32 s100, s100, 8
        s_add_u32 s100, s100, {WS_PROF + kern * 0x100000}
        v_lshlrev_b32 v1, 2, v0
        buffer_store_dword v{vSTAMP}, v1, s[{S_WS_}:{S_WS_+3}], s100 offen
        s_waitcnt vmcnt(0)""")
    a("s_endpgm")


def code_prefetch(a, first, last, nchunk, sidx, swave, wsel, vtmp, sp):
    if "nopf" in EXP:
        return
    L = a.newlabel("nopf"); H = a.newlabel("here")
    a(f"s_cmp_lg_u32 s{swave}, {wsel}\ns_cbranch_scc1 {L}\ns_cmp_ge_u32 s{sidx}, {nchunk}\ns_cbranch_scc1 {L}\ns_getpc_b64 s[{sp}:{sp+1}]")
    a.label(H)
    a(f"""s_sub_u32 s{sp}, s{sp}, {H}-{first}
    s_subb_u32 s{sp+1}, s{sp+1}, 0
    s_lshl_b32 s{sp+2}, s{sidx}, 13
    v_lshl_add_u32 v{vtmp}, v0, 7, s{sp+2}
    v_min_u32 v{vtmp}, {last}-{first}-4, v{vtmp}
    global_load_dword v{vtmp}, v{vtmp}, s[{sp}:{sp+1}]""")
    a.label(L)


def srd(a, d, lo, nbytes):
    a(f"s_mov_b32 s{d}, s{lo}\ns_mov_b32 s{d+1}, s{lo+1}\ns_mov_b32 s{d+2}, {nbytes}\ns_mov_b32 s{d+3}, 0x00020000")


def v4(r): return f"v[{r}:{r+3}]"
def v2(r): return f"v[{r}:{r+1}]"
def s4(r): return f"s[{r}:{r+3}]"


def dpp_row_allreduce(a, op, regs):
    for sh in (8, 4, 2, 1):
        if len(regs) < 3:
            a("s_nop 1")
        for r in regs:
            a(f"{op}_dpp v{r}, v{r}, v{r} row_ror:{sh} row_mask:0xf bank_mask:0xf")


def wave_max_u32_to_sgpr(a, v, sd, st):
    dpp_row_allreduce(a, "v_max_u32", [v])
    a(f"""s_nop 0
    v_readlane_b32 s{sd}, v{v}, 0
    v_readlane_b32 s{st}, v{v}, 16
    s_max_u32 s{sd}, s{sd}, s{st}
    v_readlane_b32 s{st}, v{v}, 32
    s_max_u32 s{sd}, s{sd}, s{st}
    v_readlane_b32 s{st}, v{v}, 48
    s_max_u32 s{sd}, s{sd}, s{st}""")


def round_bf16(a, d, s):
    a(f"v_cvt_pk_bf16_f32 v{d}, v{s}, v{s}\nv_lshlrev_b32 v{d}, 16, v{d}")


XSZ = 208 * 128
WSZ = 16384
SLOT = XSZ + WSZ
K1_STAT = 3 * SLOT
K1_CS = K1_STAT + 2048
K1_KG = K1_CS + 512
K1_SCR = K1_KG + 6 * 4096
K1_LDS = 163840
assert K1_SCR + 2048 <= K1_LDS

S_X, S_WG, S_WU, S_WD, S_WS, S_DBG = 4, 8, 12, 16, 20, 24
S_LA, S_AI, S_CR, S_CI, S_DT = 28, 32, 36, 40, 44
S_TMP = 48
sWAVE, sMI, sNI, sROW0, sGI, sIDX, sXCD = 3, 52, 53, 54, 55, 56, 57


def k1_loader(a, parts):
    vOX, vOW = 16, 20
    sT, sXO, sWO, sDSL, sPEND = 58, 59, 60, 61, 62
    a(f"""
    s_setprio 3
    v_lshrrev_b32 v8, 3, v0            ; rho
    v_and_b32 v9, 7, v0                ; c'
    v_xor_b32 v10, v9, v8
    v_mul_u32_u24 v{vOX}, 1280, v8
    v_lshl_add_u32 v{vOX}, v10, 4, v{vOX}
    v_bfe_u32 v10, v8, 1, 1
    v_lshrrev_b32 v11, 1, v9
    v_xor_b32 v11, v11, v10
    v_and_b32 v12, 1, v9
    v_lshl_add_u32 v11, v11, 1, v12
    v_mul_u32_u24 v{vOW}, 3072, v8
    v_lshl_add_u32 v{vOW}, v11, 4, v{vOW}
    v_xor_b32 v13, 64, v{vOW}
    v_add_u32 v{vOW + 1}, {8 * 3072 - 1024}, v13
    v_add_u32 v{vOW + 2}, {2 * (8 * 3072 - 1024)}, v{vOW}
    v_add_u32 v{vOW + 3}, {3 * (8 * 3072 - 1024)}, v13
    v_add_u32 v{vOX + 1}, {8 * 1280 - 1024}, v{vOX}
    v_add_u32 v{vOX + 2}, {2 * (8 * 1280 - 1024)}, v{vOX}
    v_add_u32 v{vOX + 3}, {3 * (8 * 1280 - 1024)}, v{vOX}
    s_mul_i32 s{sT}, s{sWAVE}, 104
    s_add_u32 s{sXO}, s{sROW0}, s{sT}
    s_mul_i32 s{sXO}, s{sXO}, 1280
    s_lshl_b32 s{sWO}, s{sNI}, 7
    s_cmp_eq_u32 s{sWAVE}, 0
    s_cselect_b32 s{S_TMP}, s{S_WG}, s{S_WU}
    s_cselect_b32 s{S_TMP+1}, s{S_WG+1}, s{S_WU+1}
    s_mov_b32 s{S_TMP+2}, {640 * 3072}
    s_mov_b32 s{S_TMP+3}, 0x00020000
    s_mul_i32 s92, s{sWAVE}, {13 * 1024}
    s_mul_i32 s93, s{sWAVE}, 8192
    s_add_u32 s93, s93, {XSZ}
    v_lshlrev_b32 v24, 2, v0
    v_lshlrev_b32 v25, 4, v0
    """)
    groups = [("w", 0, 4), ("x", 0, 4), ("x", 4, 4), ("x", 8, 4), ("x", 12, 1), ("w", 4, 4)]

    def issue(st):
        slot = (st % 3) * SLOT
        for (k, i0, n) in groups:
            if k == "x":
                a(f"s_add_u32 m0, s92, {slot + i0 * 1024}\ns_add_u32 s98, s{sXO}, {i0 * 8 * 1280 + st * 128}")
                for j in range(n):
                    a(f"buffer_load_dwordx4 v{vOX + j}, {s4(S_X)}, s98 offen offset:{1024 * j} lds")
            else:
                a(f"s_add_u32 m0, s93, {slot + i0 * 1024}\ns_add_u32 s98, s{sWO}, {(st * 64 + i0 * 8) * 3072}")
                for j in range(n):
                    a(f"buffer_load_dwordx4 v{vOW + j}, {s4(S_TMP)}, s98 offen offset:{1024 * j} lds")

    def stage_loads():
        a(f"""s_lshl_b32 s98, s{sROW0}, 3
        s_mov_b32 m0, {K1_STAT}
        s_add_u32 s98, s98, {WS_STATB}
        buffer_load_dwordx4 v25, {s4(S_WS)}, s98 offen sc0 sc1 lds
        buffer_load_dwordx4 v25, {s4(S_WS)}, s98 offen offset:1024 sc0 sc1 lds
        s_lshl_b32 s97, s{sNI}, 8
        s_add_u32 s97, s97, {WS_CS}""")
        for rc in range(5):
            a(f"s_add_u32 s98, s97, {rc * 12288}\nbuffer_load_dword v{32 + rc}, v24, {s4(S_WS)}, s98 offen sc0 sc1")
            a(f"s_add_u32 s98, s97, {rc * 12288 + 6144}\nbuffer_load_dword v{37 + rc}, v24, {s4(S_WS)}, s98 offen sc0 sc1")

    def flags_ok(Lno):
        a(f"v_cmp_le_u32 vcc, 4, v30\ns_and_b32 s{sT}, vcc_lo, vcc_hi\ns_cmp_eq_u32 s{sT}, -1\ns_cbranch_scc0 {Lno}")

    a("s_barrier")
    for st in range(3):
        issue(st)
    stamp(a, 2)
    a("s_waitcnt vmcnt(42)")
    stamp(a, 3)
    a("s_barrier")
    L1 = a.newlabel("ldr1")
    for s in range(5):
        a("s_waitcnt vmcnt(21)\ns_barrier")
        issue(s + 3)
    a(f"s_cmp_eq_u32 s{sWAVE}, 1\ns_cbranch_scc1 {L1}")
    for s in (5, 6):
        a("s_waitcnt vmcnt(21)\ns_barrier")
        issue(s + 3)
    a("s_waitcnt vmcnt(21)\ns_barrier\ns_waitcnt vmcnt(0)\ns_barrier")
    a("s_branch L_k1_tail")
    a.label(L1)
    a(f"buffer_load_dword v30, v24, {s4(S_DBG)}, 0 offen sc0 sc1")
    a("s_waitcnt vmcnt(22)\ns_barrier")
    issue(8)
    a("s_waitcnt vmcnt(21)\ns_barrier")
    Lno = a.newlabel("notyet"); Lj = a.newlabel("join"); Lsp = a.newlabel("spin"); Lsp2 = a.newlabel("spin2")
    flags_ok(Lno)
    stage_loads()
    issue(9)
    a("s_waitcnt vmcnt(33)\ns_barrier")
    a(f"s_branch {Lj}")
    a.label(Lno)
    issue(9)
    a("s_waitcnt vmcnt(21)\ns_barrier")
    a(f"s_mov_b32 s{sPEND}, 0")
    a.label(Lsp)
    a(f"buffer_load_dword v30, v24, {s4(S_DBG)}, 0 offen sc0 sc1\ns_waitcnt vmcnt(0)")
    flags_ok(Lsp2)
    a.label(Lsp + "_out")
    stage_loads()
    a(f"s_branch {Lj}")
    a.label(Lsp2)
    a(f"s_sleep 32\ns_add_u32 s{sPEND}, s{sPEND}, 1\ns_cmp_lt_u32 s{sPEND}, 100000\ns_cbranch_scc1 {Lsp}\ns_branch {Lsp}_out")
    a.label(Lj)
    a("s_waitcnt vmcnt(0)")
    for rc in range(1, 5):
        a(f"v_add_f32 v32, v32, v{32 + rc}\nv_add_f32 v37, v37, v{37 + rc}")
    a(f"""v_add_u32 v26, {K1_CS}, v24
    ds_write_b32 v26, v32
    ds_write_b32 v26, v37 offset:256
    s_waitcnt lgkmcnt(0)
    s_barrier""")
    a.label("L_k1_tail")
    a("s_setprio 0")
    stamp(a, 4)
    parts["unit_pre"](a)
    if "nokgen" not in EXP:
        a(f"s_lshl_b32 s58, s{sGI}, 1\ns_add_u32 s58, s58, s{sWAVE}\ns_mul_i32 s60, s{sWAVE}, {3 * 4096}\ns_add_u32 s60, s60, {K1_KG}")
        kgen_final(a, 58, 60, True)
    stamp(a, 5)
    parts["unit"](a)
    stamp_end(a, 0, S_WS, sWAVE)


def k1_gemm(a, extra, signal):
    NB = 3 + extra
    A = [8, 24]
    B = [40, 56]
    ACC = 72
    vA0B, vAWB, vA0, vA1, vAW, vAW1, vAX0, vAX1, vXE = 2, 3, 4, 5, 6, 7, 128, 129, 130
    sST, sSLOT, sT = 58, 60, 62
    sFP, sLQ = 95, 94
    T0 = 132

    a(f"s_sub_u32 s{sT}, s{sWAVE}, 2\ns_and_b32 s{sFP}, s{sT}, 1\ns_lshr_b32 s{sLQ}, s{sT}, 1")
    a(f"""
    v_and_b32 v{T0}, 15, v0
    v_lshrrev_b32 v{T0+1}, 4, v0
    v_and_b32 v{T0+2}, 7, v{T0}
    v_xor_b32 v{T0+2}, v{T0+2}, v{T0+1}
    v_lshlrev_b32 v{vXE}, 7, v{T0}
    v_lshl_add_u32 v{vXE}, v{T0+2}, 4, v{vXE}
    s_mul_i32 s{sT}, s{sLQ}, {3 * 2048}
    v_add_u32 v{vA0B}, s{sT}, v{vXE}
    v_add_u32 v{vXE}, {12 * 2048}, v{vXE}
    v_lshrrev_b32 v{T0+2}, 2, v{T0}           ; r
    v_and_b32 v{T0+3}, 3, v{T0}               ; c
    v_lshrrev_b32 v{T0+4}, 1, v{T0+2}
    v_and_b32 v{T0+5}, 1, v{T0+1}
    v_lshl_or_b32 v{T0+4}, v{T0+5}, 1, v{T0+4}
    s_lshl_b32 s{sT}, s{sFP}, 1
    v_xor_b32 v{T0+4}, s{sT}, v{T0+4}
    v_lshl_add_u32 v{T0+5}, v{T0+1}, 3, v{T0+2}     ; 8hq + r
    v_lshlrev_b32 v{vAWB}, 7, v{T0+5}
    v_lshl_add_u32 v{vAWB}, v{T0+4}, 5, v{vAWB}
    v_lshl_add_u32 v{vAWB}, v{T0+3}, 3, v{vAWB}
    v_add_u32 v{vAWB}, {XSZ}, v{vAWB}
    """)
    for r in range(ACC, ACC + 48 + 8 * extra, 2):
        a(f"v_mov_b64 {v2(r)}, 0")

    def set_addr():
        a(f"v_add_u32 v{vAW}, s{sSLOT}, v{vAWB}\nv_add_u32 v{vA0}, s{sSLOT}, v{vA0B}\nv_xor_b32 v{vAW1}, 32, v{vAW}\nv_xor_b32 v{vA1}, 64, v{vA0}")
        if extra:
            a(f"v_add_u32 v{vAX0}, s{sSLOT}, v{vXE}\nv_xor_b32 v{vAX1}, 64, v{vAX0}")

    def reads(kk):
        R = []

        def rA(fr):
            for s in range(2):
                R.append((f"A{kk}{fr}", f"ds_read_b64_tr_b16 {v2(A[kk] + 4 * fr + 2 * s)}, v{vAW1 if fr >= 2 else vAW} offset:{kk * 4096 + s * 512 + (8192 if fr & 1 else 0)}"))

        def rB(t):
            if t == 3:
                R.append((f"B{kk}{t}", f"ds_read_b128 {v4(B[kk] + 4 * t)}, v{vAX1 if kk else vAX0}"))
            else:
                R.append((f"B{kk}{t}", f"ds_read_b128 {v4(B[kk] + 4 * t)}, v{vA1 if kk else vA0} offset:{t * 2048}"))
        rA(0); rB(0); rA(1); rA(2); rA(3)
        for t in range(1, NB):
            rB(t)
        return R

    def mf(t, fr, kk):
        acc = ACC + 48 + 4 * (fr & 1) if t == 3 else ACC + 16 * t + 4 * fr
        a(f"v_mfma_f32_16x16x32_bf16 {v4(acc)}, {v4(A[kk] + 4 * fr)}, {v4(B[kk] + 4 * t)}, {v4(acc)}")

    def phase(lq, kk, R):
        R = list(R)
        for t in range(3):
            for fr in range(4):
                lq.wait(f"A{kk}{fr}", f"B{kk}{t}")
                mf(t, fr, kk)
                if R:
                    tg, ins = R.pop(0)
                    lq.issue(tg, ins)
        while R:
            tg, ins = R.pop(0)
            lq.issue(tg, ins)
        if extra:
            lq.wait(f"B{kk}3")
            L1 = a.newlabel("x1"); L2 = a.newlabel("x2")
            a(f"s_cmp_eq_u32 s{sLQ}, 1\ns_cbranch_scc1 {L1}")
            mf(3, 0, kk); mf(3, 1, kk)
            a(f"s_branch {L2}")
            a.label(L1)
            mf(3, 2, kk); mf(3, 3, kk)
            a.label(L2)

    stamp(a, 2)
    a("s_waitcnt vmcnt(0) lgkmcnt(0)\ns_setprio 2\ns_barrier")
    stamp(a, 3)
    if signal:
        Lns = a.newlabel("nosig")
        a(f"s_cmp_lg_u32 s{sWAVE}, 8\ns_cbranch_scc1 {Lns}")
        signal()
        a.label(Lns)
    a(f"s_mov_b32 s{sSLOT}, 0\ns_mov_b32 s{sST}, 0")
    set_addr()
    lq = LQ(a)
    for tg, ins in reads(0):
        lq.issue(tg, ins)
    seed = list(lq.q)

    def body(last):
        lq = LQ(a, seed)
        phase(lq, 0, reads(1))
        if not last:
            a(f"s_add_u32 s{sSLOT}, s{sSLOT}, {SLOT}\ns_cmp_eq_u32 s{sSLOT}, {3 * SLOT}\ns_cselect_b32 s{sSLOT}, 0, s{sSLOT}")
            lq.drain()
            set_addr()
            a("s_barrier")
            phase(lq, 1, reads(0))
        else:
            phase(lq, 1, [])

    Lloop = a.newlabel("gloop")
    a.label(Lloop)
    body(False)
    a(f"s_add_u32 s{sST}, s{sST}, 1\ns_cmp_lt_u32 s{sST}, 9\ns_cbranch_scc1 {Lloop}")
    body(True)

    a("s_setprio 0")
    stamp(a, 4)
    vSA, vCA, vHO = 2, 3, 4
    CS = 8
    ST = 24
    a(f"""
    v_and_b32 v{T0}, 15, v0
    v_lshrrev_b32 v{T0+1}, 4, v0
    s_mul_i32 s{sT}, s{sLQ}, {3 * 128}
    s_add_u32 s{sT}, s{sT}, {K1_STAT}
    v_lshl_add_u32 v{vSA}, v{T0}, 3, s{sT}
    v_lshlrev_b32 v5, 3, v{T0}
    v_add_u32 v5, {K1_STAT + 12 * 128}, v5
    s_lshl_b32 s{sT}, s{sFP}, 7
    s_add_u32 s{sT}, s{sT}, {K1_CS}
    v_lshl_add_u32 v{vCA}, v{T0+1}, 4, s{sT}
    ds_read_b128 {v4(CS)}, v{vCA}
    ds_read_b128 {v4(CS + 4)}, v{vCA} offset:256
    ds_read_b128 {v4(CS + 8)}, v{vCA} offset:64
    ds_read_b128 {v4(CS + 12)}, v{vCA} offset:320
    """)
    for t in range(3):
        a(f"ds_read_b64 {v2(ST + 2 * t)}, v{vSA} offset:{t * 128}")
    if extra:
        a(f"ds_read_b64 {v2(ST + 6)}, v5")
    a(f"""
    v_lshlrev_b32 v{vHO}, 4, v0
    s_lshr_b32 s96, s{sROW0}, 4
    s_mul_i32 s96, s96, 49152
    s_lshl_b32 s97, s{sNI}, 1
    s_add_u32 s97, s97, s{sFP}
    s_lshl_b32 s97, s97, 10
    s_add_u32 s96, s96, s97
    s_add_u32 s96, s96, {WS_H}
    s_mul_i32 s97, s{sLQ}, {3 * 49152}
    s_add_u32 s99, s96, s97
    s_mov_b32 s98, 0xbfb8aa3b           ; -log2e
    s_waitcnt lgkmcnt(0)
    """)
    TM = 40
    PK = 48
    c1 = 56

    def act(g, u, csg, csu, m, s, pk):
        for r in range(4):
            a(f"v_fma_f32 v{TM + r}, -v{m}, v{csg + r}, v{g + r}")
        for r in range(4):
            a(f"v_mul_f32 v{TM + r}, v{TM + r}, v{c1}")
        for r in range(4):
            a(f"v_exp_f32 v{TM + r}, v{TM + r}")
        for r in range(4):
            a(f"v_fma_f32 v{TM + 4 + r}, -v{m}, v{csu + r}, v{u + r}")
        for r in range(4):
            a(f"v_fma_f32 v{TM + r}, v{TM + r}, v{s}, v{s}")
        for r in range(4):
            a(f"v_rcp_f32 v{TM + r}, v{TM + r}")
        a("s_nop 0")
        for r in range(4):
            a(f"v_mul_f32 v{TM + 4 + r}, v{TM + 4 + r}, v{TM + r}")
        a(f"v_cvt_pk_bf16_f32 v{pk}, v{TM + 4}, v{TM + 5}\nv_cvt_pk_bf16_f32 v{pk + 1}, v{TM + 6}, v{TM + 7}")

    for t in range(3):
        m, s = ST + 2 * t, ST + 2 * t + 1
        a(f"v_rcp_f32 v{c1}, v{s}\ns_nop 0\nv_mul_f32 v{c1}, s98, v{c1}")
        b = PK + 4 * (t & 1)
        act(ACC + 16 * t, ACC + 16 * t + 4, CS, CS + 4, m, s, b)
        act(ACC + 16 * t + 8, ACC + 16 * t + 12, CS + 8, CS + 12, m, s, b + 2)
        a(f"s_add_u32 s97, s99, {t * 49152}")
        Lsk = None
        if extra and t < 2:
            Lsk = a.newlabel("skipst")
            a(f"s_lshl_b32 s{sT}, s{sLQ}, 4\ns_add_u32 s{sT}, s{sT}, s{sMI}\ns_cmp_eq_u32 s{sT}, 9\ns_cbranch_scc1 {Lsk}")
        a(f"buffer_store_dwordx4 {v4(b)}, v{vHO}, {s4(S_WS)}, s97 offen")
        if Lsk:
            a.label(Lsk)
    if extra:
        m, s = ST + 6, ST + 7
        a(f"v_rcp_f32 v{c1}, v{s}\ns_nop 0\nv_mul_f32 v{c1}, s98, v{c1}")
        L1 = a.newlabel("e1"); L2 = a.newlabel("e2")
        a(f"s_cmp_eq_u32 s{sLQ}, 1\ns_cbranch_scc1 {L1}")
        act(ACC + 48, ACC + 52, CS, CS + 4, m, s, PK + 4)
        a(f"s_branch {L2}")
        a.label(L1)
        act(ACC + 48, ACC + 52, CS + 8, CS + 12, m, s, PK + 4)
        a.label(L2)
        a(f"s_lshl_b32 s97, s{sLQ}, 3\ns_add_u32 s97, s97, s96\ns_add_u32 s97, s97, {12 * 49152}")
        a(f"buffer_store_dwordx2 {v2(PK + 4)}, v{vHO}, {s4(S_WS)}, s97 offen")
    stamp(a, 5)
    stamp_end(a, 0, S_WS, sWAVE)


def k1_stats(a, bar):
    RAW = 8
    UNP = 48
    a(f"""
    v_lshrrev_b32 v5, 4, v0
    v_and_b32 v6, 15, v0
    v_mul_u32_u24 v7, 1280, v5
    v_lshl_add_u32 v7, v6, 4, v7
    s_and_b32 s58, s{sXCD}, 1
    s_lshl_b32 s58, s58, 10
    s_lshr_b32 s59, s{sXCD}, 1
    s_lshl_b32 s59, s59, 8
    s_add_u32 s58, s58, s59
    s_lshl_b32 s59, s{sIDX}, 3
    s_add_u32 s58, s58, s59
    s_mul_i32 s59, s58, 1280
    s_add_u32 s60, s59, {4 * 1280}
    """)
    for p in range(2):
        for j in range(5):
            a(f"buffer_load_dwordx4 {v4(RAW + 20 * p + 4 * j)}, v7, {s4(S_X)}, s{59 + p} offen offset:{256 * j}")
    if bar:
        a("s_barrier")
    a("s_mov_b32 s61, 0x3acccccd\ns_mov_b32 s62, 0x3727c5ac")
    a(f"s_lshl_b32 s63, s58, 3\nv_lshl_add_u32 v88, v5, 3, s63")
    for p in range(2):
        a("s_waitcnt vmcnt(5)" if p == 0 else "s_waitcnt vmcnt(2)")
        for i in range(20):
            a(f"v_lshlrev_b32 v{UNP + 2 * i}, 16, v{RAW + 20 * p + i}\nv_and_b32 v{UNP + 2 * i + 1}, 0xffff0000, v{RAW + 20 * p + i}")
        for k in range(4):
            a(f"v_add_f32 v{90 + k}, v{UNP + k}, v{UNP + 4 + k}")
        for i in range(8, 40):
            a(f"v_add_f32 v{90 + i % 4}, v{90 + i % 4}, v{UNP + i}")
        a("v_add_f32 v90, v90, v91\nv_add_f32 v92, v92, v93\nv_add_f32 v90, v90, v92")
        dpp_row_allreduce(a, "v_add_f32", [90])
        a("v_mul_f32 v90, s61, v90")
        for i in range(40):
            a(f"v_sub_f32 v{UNP + i}, v{UNP + i}, v90")
        for k in range(4):
            a(f"v_mul_f32 v{91 + k}, v{UNP + k}, v{UNP + k}")
        for i in range(4, 40):
            a(f"v_fmac_f32 v{91 + i % 4}, v{UNP + i}, v{UNP + i}")
        a("v_add_f32 v91, v91, v92\nv_add_f32 v93, v93, v94\nv_add_f32 v91, v91, v93")
        dpp_row_allreduce(a, "v_add_f32", [91])
        a("v_mul_f32 v91, s61, v91")
        round_bf16(a, 96, 90)
        round_bf16(a, 91, 91)
        a("v_add_f32 v91, s62, v91")
        round_bf16(a, 91, 91)
        a("v_sqrt_f32 v91, v91\ns_nop 0")
        round_bf16(a, 97, 91)
        a("v_rcp_f32 v98, v97\ns_nop 0\nv_mul_f32_e64 v99, -v96, v98")
        a(f"""
        v_cmp_eq_u32 vcc, 0, v6
        s_and_saveexec_b64 s[96:97], vcc
        s_mov_b32 s98, {WS_STATB + 32 * p}
        s_mov_b32 s99, {WS_STATA + 32 * p}
        buffer_store_dwordx2 v[96:97], v88, {s4(S_WS)}, s98 offen sc0 sc1
        buffer_store_dwordx2 v[98:99], v88, {s4(S_WS)}, s99 offen sc0 sc1
        s_mov_b64 exec, -1
        """)


def k1_colsum(a):
    RAW = 8
    AC = 72
    a(f"""
    v_lshrrev_b32 v5, 3, v0
    v_and_b32 v6, 7, v0
    v_mul_u32_u24 v7, 3072, v5
    v_lshl_add_u32 v7, v6, 4, v7
    s_and_b32 s58, s{sXCD}, 1
    s_mul_i32 s58, s58, 30
    s_add_u32 s58, s58, s{sIDX}         ; u
    s_mul_i32 s59, s58, 43
    s_lshr_b32 s59, s59, 9              ; rc = u/12
    s_mul_i32 s60, s59, 12
    s_sub_u32 s60, s58, s60             ; cbl
    s_cmp_ge_u32 s60, 6
    s_cselect_b32 s{S_TMP}, s{S_WU}, s{S_WG}
    s_cselect_b32 s{S_TMP+1}, s{S_WU+1}, s{S_WG+1}
    s_cselect_b32 s61, 6, 0
    s_cselect_b32 s63, 24, 0
    s_mov_b32 s{S_TMP+2}, {640 * 3072}
    s_mov_b32 s{S_TMP+3}, 0x00020000
    s_sub_u32 s60, s60, s61
    s_lshr_b32 s61, s{sXCD}, 1
    s_mul_i32 s61, s61, 6
    s_add_u32 s60, s60, s61             ; n tile
    s_lshl_b32 s61, s60, 7
    s_mul_i32 s62, s59, {128 * 3072}
    s_add_u32 s61, s61, s62
    s_add_u32 s60, s60, s63
    """)
    for i in range(16):
        a(f"s_add_u32 s62, s61, {i * 8 * 3072}\nbuffer_load_dwordx4 {v4(RAW + 4 * i)}, v7, {s4(S_TMP)}, s62 offen")
    a("s_barrier")
    for i in range(16):
        a(f"s_waitcnt vmcnt({15 - i})")
        for k in range(4):
            r = RAW + 4 * i + k
            if i == 0:
                a(f"v_lshlrev_b32 v{AC + 2 * k}, 16, v{r}\nv_and_b32 v{AC + 2 * k + 1}, 0xffff0000, v{r}")
            else:
                a(f"v_lshlrev_b32 v80, 16, v{r}\nv_and_b32 v81, 0xffff0000, v{r}\nv_add_f32 v{AC + 2 * k}, v{AC + 2 * k}, v80\nv_add_f32 v{AC + 2 * k + 1}, v{AC + 2 * k + 1}, v81")
    a(f"""
    v_lshlrev_b32 v80, 5, v0
    v_add_u32 v80, {K1_SCR}, v80
    ds_write_b128 v80, {v4(AC)}
    ds_write_b128 v80, {v4(AC + 4)} offset:16
    v_lshlrev_b32 v81, 2, v0
    v_add_u32 v82, {K1_SCR}, v81
    """)
    for i in range(8):
        a(f"ds_read_b32 v{RAW + i}, v82 offset:{256 * i}")
    a("s_waitcnt lgkmcnt(0)")
    for i in range(1, 8):
        a(f"v_add_f32 v{RAW}, v{RAW}, v{RAW + i}")
    a(f"""
    s_mul_i32 s61, s59, {3072 * 4}
    s_lshl_b32 s62, s60, 8
    s_add_u32 s61, s61, s62
    s_add_u32 s61, s61, {WS_CS}
    buffer_store_dword v{RAW}, v81, {s4(S_WS)}, s61 offen sc0 sc1
    """)


def kgen_loads(a, sCH, sRND, D=73):
    a(f"""
    s_lshl_b32 s96, s{sRND}, 7
    v_lshl_add_u32 v80, v0, 1, s96
    s_mul_i32 s96, s{sCH}, 384
    s_lshl_b32 s97, s{sCH}, 1
    v_mov_b32 v81, 0
    buffer_load_ushort v{D+4}, v81, {s4(S_DT)}, s97 offen
    buffer_load_ushort v{D}, v80, {s4(S_LA)}, s96 offen
    buffer_load_ushort v{D+1}, v80, {s4(S_AI)}, s96 offen
    buffer_load_ushort v{D+2}, v80, {s4(S_CR)}, s96 offen
    buffer_load_ushort v{D+3}, v80, {s4(S_CI)}, s96 offen
    """)


def kgen_round(a, sKB, waits=True):
    KACC = 8
    RF = 20
    LF = 36
    PKR = 52
    WA = 68
    RA = 72
    vLA, vAI, vCR, vCI, vDT = 73, 74, 75, 76, 77
    lr, th = 78, 79
    T = 80
    nxt = [88]

    def creg():
        r = nxt[0]
        nxt[0] += 2
        assert r + 1 < 134
        return (r, r + 1)

    def preg():
        r = nxt[0]
        nxt[0] += 1
        assert r < 134
        return r

    a(f"""
    v_bfe_u32 v{T}, v0, 1, 2                 ; g = (n>>1)&3
    v_lshlrev_b32 v{T+1}, 6, v0
    v_add_u32 v{T+1}, s{sKB}, v{T+1}
    v_lshl_add_u32 v{WA}, v{T}, 4, v{T+1}
    v_xor_b32 v{WA+1}, 16, v{WA}
    v_xor_b32 v{WA+2}, 32, v{WA}
    v_xor_b32 v{WA+3}, 48, v{WA}
    v_lshrrev_b32 v{T}, 4, v0                ; hq
    v_bfe_u32 v{T+1}, v0, 2, 2               ; r
    v_and_b32 v{T+2}, 3, v0                  ; c
    v_lshrrev_b32 v{T+3}, 1, v{T+1}          ; r>>1
    v_lshl_add_u32 v{T+3}, v{T}, 1, v{T+3}   ; 2hq + (r>>1)
    v_lshlrev_b32 v{RA}, 6, v{T+3}
    v_and_b32 v{T+1}, 1, v{T+1}              ; part
    v_lshrrev_b32 v{T+3}, 1, v{T+2}
    v_lshl_add_u32 v{T+1}, v{T+1}, 1, v{T+3} ; q
    v_xor_b32 v{T+1}, v{T+1}, v{T}
    v_lshl_add_u32 v{RA}, v{T+1}, 4, v{RA}
    v_and_b32 v{T+2}, 1, v{T+2}
    v_lshl_add_u32 v{RA}, v{T+2}, 3, v{RA}
    v_add_u32 v{RA}, s{sKB}, v{RA}
    """)
    for r in range(KACC, KACC + 12):
        a(f"v_mov_b32 v{r}, 0")
    a("s_mov_b32 s96, 0x3fb8aa3b\ns_mov_b32 s97, 0x32a57060\ns_mov_b32 s98, 0x3f317218")

    def expbf(d, x):
        a(f"""v_mul_f32 v{T}, s96, v{x}
        v_fma_f32 v{T+1}, v{x}, s96, -v{T}
        v_exp_f32 v{T}, v{T}
        v_fma_f32 v{T+1}, v{x}, s97, v{T+1}
        v_mul_f32 v{T+1}, s98, v{T+1}
        v_fma_f32 v{T}, v{T}, v{T+1}, v{T}""")
        round_bf16(a, d, T)

    if waits:
        a("s_waitcnt vmcnt(3)")
    stamp(a, 8)
    a(f"v_lshlrev_b32 v{vDT}, 16, v{vDT}\nv_lshlrev_b32 v{vLA}, 16, v{vLA}")
    expbf(vDT, vDT)
    expbf(vLA, vLA)
    a(f"""v_mul_f32 v{lr}, v{vLA}, v{vDT}
    v_mul_f32_e64 v{lr}, -v{lr}, s96
    {"s_waitcnt vmcnt(0)" if waits else ""}
    v_lshlrev_b32 v{vAI}, 16, v{vAI}
    v_lshlrev_b32 v{vCR}, 16, v{vCR}
    v_lshlrev_b32 v{vCI}, 16, v{vCI}
    v_mul_f32 v{th}, v{vAI}, v{vDT}
    v_mul_f32 v{th}, 0.15915494, v{th}
    v_and_b32 v{T+2}, 0x7fffffff, v{vCR}
    v_and_b32 v{T+3}, 0x7fffffff, v{vCI}
    v_max_u32 v{T+2}, v{T+2}, v{T+3}""")
    wave_max_u32_to_sgpr(a, T + 2, 92, 93)
    a(f"""s_lshr_b32 s92, s92, 23
    s_max_u32 s92, s92, 1
    s_min_u32 s92, s92, 252
    s_sub_u32 s93, 253, s92
    s_lshl_b32 s93, s93, 23             ; sc
    s_add_u32 s92, s92, 2
    s_lshl_b32 s92, s92, 23             ; 2/sc
    v_mul_f32 v{vCR}, s93, v{vCR}
    v_mul_f32 v{vCI}, s93, v{vCI}
    v_mul_f32 v{vDT}, s92, v{vDT}""")

    def anchor(e, conj=False):
        d = creg()
        a(f"""v_mul_f32 v{T}, {f32(e)}, v{lr}
        v_mul_f32 v{T+1}, {f32(e)}, v{th}
        v_exp_f32 v{T}, v{T}
        v_fract_f32 v{T+1}, v{T+1}
        v_cos_f32 v{T+2}, v{T+1}
        v_sin_f32 v{T+3}, v{T+1}
        s_nop 0
        v_mul_f32 v{d[0]}, v{T}, v{T+2}
        v_mul_f32_e64 v{d[1]}, {'-' if conj else ''}v{T}, v{T+3}""")
        return d

    def cmul(x, y, d=None):
        d = d or creg()
        a(f"""v_mul_f32 v{T+4}, v{x[1]}, v{y[1]}
        v_mul_f32 v{T+5}, v{x[0]}, v{y[1]}
        v_fma_f32 v{d[0]}, v{x[0]}, v{y[0]}, -v{T+4}
        v_fma_f32 v{d[1]}, v{x[1]}, v{y[0]}, v{T+5}""")
        return d

    def packm(x):
        d = preg()
        a(f"v_cvt_pk_f16_f32 v{d}, v{x[0]}, v{x[1]}")
        return d

    def packpair(x, y, dre, dim):
        a(f"v_cvt_pk_f16_f32 v{dre}, {x[0]}, {y[0]}\nv_cvt_pk_f16_f32 v{dim}, {x[1]}, {y[1]}")

    def V(x): return (f"v{x[0]}", f"v{x[1]}")

    def pmul(sre, sim, m, dre, dim):
        a(f"""v_pk_mul_f16 v{T+6}, v{sre}, v{m} op_sel:[0,0] op_sel_hi:[1,0]
        v_pk_mul_f16 v{T+7}, v{sre}, v{m} op_sel:[0,1] op_sel_hi:[1,1]
        v_pk_fma_f16 v{dre}, v{sim}, v{m}, v{T+6} op_sel:[0,1,0] op_sel_hi:[1,1,1] neg_lo:[0,1,0] neg_hi:[0,1,0]
        v_pk_fma_f16 v{dim}, v{sim}, v{m}, v{T+7} op_sel:[0,0,0] op_sel_hi:[1,0,1]""")

    def RE(i): return PKR + i
    def IM(i): return PKR + 8 + i

    lq = LQ(a)

    def flush(F, tag):
        for q in range(4):
            lq.issue("w", f"ds_write_b128 v{WA + q}, {v4(PKR + 4 * q)}")
        for k in range(4):
            for s in range(2):
                lq.issue(f"{tag}{k}", f"ds_read_b64_tr_b16 {v2(F + 4 * k + 2 * s)}, v{RA} offset:{1024 * k + 512 * s}")

    def mfmas(tile):
        for k in range(4):
            lq.wait(f"L{tile}{k}", f"R{k}")
            a(f"v_mfma_f32_16x16x32_f16 {v4(KACC + 4 * tile)}, {v4(LF + 4 * k)}, {v4(RF + 4 * k)}, {v4(KACC + 4 * tile)}")

    mark = nxt[0]
    z8 = anchor(8.0, True); z32 = anchor(32.0, True)
    z16 = cmul(z8, z8); z24 = cmul(z16, z8); z64 = cmul(z32, z32); z96 = cmul(z64, z32)
    packpair(("1.0", "0"), V(z8), RE(0), IM(0))
    packpair(V(z16), V(z24), RE(1), IM(1))
    for i, X in enumerate((z32, z64, z96)):
        m = packm(X)
        for b in range(2):
            pmul(RE(b), IM(b), m, RE(2 + 2 * i + b), IM(2 + 2 * i + b))
    flush(RF, "R")
    nxt[0] = mark
    z1 = anchor(1.0); z128 = anchor(128.0); z1024 = anchor(1024.0)
    c = [(vCR, vCI)]
    for i in range(7):
        c.append(cmul(c[-1], z1))
    m128 = packm(z128)
    lq.wait("w")
    for i in range(4):
        packpair(V(c[2 * i]), V(c[2 * i + 1]), RE(i), IM(i))
    for i in range(4):
        pmul(RE(i), IM(i), m128, RE(4 + i), IM(4 + i))
    flush(LF, "L0")
    p02 = creg(); p46 = creg(); p04 = creg()
    packpair(V(c[0]), V(c[2]), *p02); packpair(V(c[4]), V(c[6]), *p46); packpair(V(c[0]), V(c[4]), *p04)
    z256 = cmul(z128, z128, c[1]); z384 = cmul(z256, z128, c[2]); z512 = cmul(z256, z256, c[3])
    z640 = cmul(z512, z128, c[4]); z768 = cmul(z384, z384, c[5]); z896 = cmul(z768, z128, c[6])
    M = {k: packm(v) for k, v in (("256", z256), ("384", z384), ("512", z512), ("640", z640), ("768", z768), ("896", z896))}
    b0 = cmul(c[0], z1024, c[7]); b1 = cmul(b0, z128, z1); c2048 = cmul(b0, z1024, z256)
    mfmas(0)
    for i, k in enumerate(("256", "384")):
        pmul(p02[0], p02[1], M[k], RE(2 * i), IM(2 * i))
        pmul(p46[0], p46[1], M[k], RE(2 * i + 1), IM(2 * i + 1))
    for i, k in enumerate(("512", "640", "768", "896")):
        pmul(p04[0], p04[1], M[k], RE(4 + i), IM(4 + i))
    flush(LF, "L1")
    pb = creg()
    packpair(V(b0), V(b1), *pb)
    mfmas(1)
    a(f"v_mov_b32 v{RE(0)}, v{pb[0]}\nv_mov_b32 v{IM(0)}, v{pb[1]}")
    for i, k in enumerate(("256", "512", "768")):
        pmul(pb[0], pb[1], M[k], RE(1 + i), IM(1 + i))
    packpair(V(c2048), ("0", "0"), RE(4), IM(4))
    for i in range(5, 8):
        a(f"v_mov_b32 v{RE(i)}, 0\nv_mov_b32 v{IM(i)}, 0")
    flush(LF, "L2")
    mfmas(2)
    a("s_nop 7")
    for r in range(KACC, KACC + 12):
        a(f"v_mul_f32 v{r}, v{r}, v{vDT}")
    return KACC


def kgen_final(a, sCH, sKB, from_lds):
    KACC = 8
    P = 20
    T = 80
    a(f"v_lshlrev_b32 v{T}, 4, v0\nv_add_u32 v{T+1}, s{sKB}, v{T}")
    if from_lds:
        for w in range(3):
            for t in range(3):
                a(f"ds_read_b128 {v4(KACC + 12 * w + 4 * t)}, v{T+1} offset:{4096 * w + 1024 * t}")
    a(f"v_mov_b32 v48, 0\nv_mov_b32 v49, 0\nv_mov_b32 v50, 0\nv_mov_b32 v51, 0")
    for i in range(4):
        a(f"ds_write_b128 v{T+1}, v[48:51] offset:{1024 * i}")
    j, hq = T + 2, T + 3
    b0, b2 = 52, 53
    a1 = 54
    a(f"""
    v_and_b32 v{j}, 15, v0
    v_lshrrev_b32 v{hq}, 4, v0
    v_lshrrev_b32 v{T+4}, 1, v{hq}
    v_and_b32 v{T+5}, 1, v{hq}
    v_lshlrev_b32 v{T+6}, 7, v{T+4}
    v_lshl_add_u32 v{T+6}, v{T+5}, 2, v{T+6}
    v_lshl_add_u32 v{T+6}, v{j}, 3, v{T+6}
    v_sub_u32 v{T+6}, 285, v{T+6}
    v_lshl_add_u32 v{b0}, v{T+6}, 1, s{sKB}
    v_lshlrev_b32 v{T+6}, 6, v{T+5}                 ; 64*(hq&1)
    v_add_u32 v{T+6}, s{sKB}, v{T+6}
    v_lshl_add_u32 v{T+7}, v{j}, 2, v{T+6}
    v_lshl_add_u32 v{T+6}, v{j}, 1, v{T+6}
    v_cmp_gt_u32 vcc, 2, v{hq}
    """)
    for r in range(4):
        lo = (T1O if r & 1 else T1E) + 2 * (59 + (r >> 1))
        hi = (T2O + 60 if r & 1 else T2E + 58) + 32 * (r >> 1)
        a(f"v_add_u32 v60, {lo}, v{T+7}\nv_add_u32 v61, {hi}, v{T+6}\nv_cndmask_b32 v{a1 + r}, v61, v60, vcc")
    a(f"""
    s_add_u32 s96, s{sKB}, {T0E + 64}
    v_writelane_b32 v{a1}, s96, 0
    s_add_u32 s96, s{sKB}, {T0E + 60}
    v_writelane_b32 v{a1 + 1}, s96, 0
    s_add_u32 s96, s{sKB}, {T1E + 246}
    v_writelane_b32 v{a1}, s96, 32
    v_and_b32 v60, 1, v{j}
    v_mul_u32_u24 v60, {T3OE + 30 - (T3EE + 28)}, v60
    v_lshrrev_b32 v61, 1, v{j}
    v_lshl_add_u32 v61, v{hq}, 5, v61
    v_lshl_add_u32 v{b2}, v61, 1, v60
    s_add_u32 s96, s{sKB}, {T3EE + 28}
    v_add_u32 v{b2}, s96, v{b2}
    v_mov_b32 v62, s{sKB}
    s_waitcnt lgkmcnt(4)
    """)
    if from_lds:
        for r in range(12):
            a(f"v_add_f32 v{KACC + r}, v{KACC + r}, v{P + r}")
        for r in range(12):
            a(f"v_add_f32 v{KACC + r}, v{KACC + r}, v{P + 12 + r}")
    a(f"v_max3_f32 v63, abs(v{KACC}), abs(v{KACC+1}), abs(v{KACC+2})")
    for r in range(3, 11, 2):
        a(f"v_max3_f32 v63, v63, abs(v{KACC + r}), abs(v{KACC + r + 1})")
    a(f"v_max_f32_e64 v63, v63, abs(v{KACC + 11})")
    wave_max_u32_to_sgpr(a, 63, 92, 93)
    a(f"""s_lshr_b32 s92, s92, 23
    s_max_u32 s92, s92, 1
    s_min_u32 s92, s92, 252
    s_sub_u32 s93, 253, s92
    s_lshl_b32 s93, s93, 23             ; 1/sigma
    s_add_u32 s92, s92, 1
    s_lshl_b32 s92, s92, 23             ; sigma""")
    for r in range(12):
        a(f"v_mul_f32 v{KACC + r}, s93, v{KACC + r}")
    H = 64
    for i in range(6):
        a(f"v_cvt_pk_f16_f32 v{H + i}, v{KACC + 2 * i}, v{KACC + 2 * i + 1}")

    def w16(addr, r, tile, off):
        reg = H + 2 * tile + (r >> 1)
        a(f"ds_write_b16{'_d16_hi' if r & 1 else ''} v{addr}, v{reg} offset:{off}")
    for r in range(4):
        w16(b0, r, 0, T0E + 2 * (3 - r))
        w16(b0, r, 0, T0O - 2 + 2 * (3 - r))
        w16(a1 + r, r, 1, 0)
    a("s_mov_b32 exec_hi, 0")
    for r in range(1, 4):
        w16(b2, r, 2, 16 * r)
        w16(b2, r, 2, 16 * r + 158)
    a("s_mov_b32 exec_lo, 0xfffffffe\ns_mov_b32 exec_hi, 1")
    w16(b2, 0, 2, 0)
    w16(b2, 0, 2, 158)
    a("s_mov_b64 exec, 1")
    w16(62, 0, 1, T0E + 62); w16(62, 0, 1, T0O + 62); w16(62, 0, 1, T0O + 60); w16(62, 1, 1, T0O + 58)
    w16(62, 0, 2, TK1024)
    a(f"v_mov_b32 v63, s92\nds_write_b32 v62, v63 offset:{TSIG}")
    a("s_mov_b32 exec_lo, 0\ns_mov_b32 exec_hi, 1")
    w16(62, 0, 1, T1O + 246)
    a("s_mov_b64 exec, -1")
    for i in range(4):
        a(f"ds_read_b128 {v4(P + 4 * i)}, v{T+1} offset:{1024 * i}")
    a(f"s_mul_i32 s96, s{sCH}, {KT_BYTES}\ns_add_u32 s96, s96, {WS_KT}")
    for i in range(3):
        a(f"s_waitcnt lgkmcnt({3 - i})\nbuffer_store_dwordx4 {v4(P + 4 * i)}, v{T}, {s4(S_WS)}, s96 offen offset:{1024 * i}")
    a(f"s_waitcnt lgkmcnt(0)\ns_mov_b64 exec, 0xffff\nbuffer_store_dwordx4 {v4(P + 12)}, v{T}, {s4(S_WS)}, s96 offen offset:3072\ns_mov_b64 exec, -1")


def kernel1(a, parts):
    a.raw(".globl k1_kernel\n.p2align 8\n.type k1_kernel,@function\nk1_kernel:")
    a(f"""
    s_cmp_ge_u32 s2, 256
    s_cbranch_scc1 L_k1_end
    s_load_dwordx16 s[64:79], s[0:1], 0
    s_load_dwordx8 s[80:87], s[0:1], 64
    s_load_dwordx4 s[88:91], s[0:1], 96
    v_lshrrev_b32 v1, 6, v0
    v_and_b32 v0, 63, v0
    s_and_b32 s{sXCD}, s2, 7
    v_readfirstlane_b32 s{sWAVE}, v1
    s_lshr_b32 s{sIDX}, s2, 3
    s_mul_i32 s58, s{sIDX}, 52
    s_lshr_b32 s58, s58, 8              ; q = idx/5
    s_mul_i32 s59, s58, 5
    s_sub_u32 s59, s{sIDX}, s59         ; r
    s_and_b32 s60, s{sXCD}, 1
    s_mul_i32 s60, s60, 5
    s_add_u32 s{sMI}, s60, s59
    s_lshr_b32 s60, s{sXCD}, 1
    s_mul_i32 s60, s60, 6
    s_add_u32 s{sNI}, s60, s58
    s_mul_i32 s{sROW0}, s{sMI}, 208
    s_min_u32 s{sROW0}, s{sROW0}, 1840
    s_mul_i32 s{sGI}, s{sXCD}, 30
    s_add_u32 s{sGI}, s{sGI}, s{sIDX}
    """)
    code_prefetch(a, "k1_kernel", "L_k2_end", 7, sIDX, sWAVE, 9, 166, 96)
    a("s_waitcnt lgkmcnt(0)")
    srd(a, S_X, 64, 2048 * 1280)
    srd(a, S_WG, 80, 640 * 3072)
    srd(a, S_WU, 82, 640 * 3072)
    srd(a, S_WS, 90, 0x4000000 if PROF else WS_END + 4096)
    srd(a, S_DBG, 88, 256)
    srd(a, S_WD, 84, 1536 * 1280)
    if PROF:
        a(f"v_mov_b32 v{vSTAMP}, 0")
    stamp(a, 0, True)
    stamp(a, 1)
    if "diag" in EXP:
        Ld = a.newlabel("diag")
        a(f"""s_cmp_lg_u32 s{sWAVE}, 8
        s_cbranch_scc1 {Ld}
        s_memrealtime s[100:101]
        s_lshl_b32 s98, s2, 2
        s_add_u32 s98, s98, {WS_END}
        v_mov_b32 v5, 0
        s_waitcnt lgkmcnt(0)
        v_mov_b32 v6, s100
        s_mov_b64 exec, 1
        buffer_store_dword v6, v5, {s4(S_WS)}, s98 offen
        s_mov_b64 exec, -1""")
        a.label(Ld)
    srd(a, S_LA, 66, 640 * 384)
    srd(a, S_AI, 68, 640 * 384)
    srd(a, S_CR, 70, 640 * 384)
    srd(a, S_CI, 72, 640 * 384)
    srd(a, S_DT, 74, 1280)
    a(f"""
    s_cmp_ge_u32 s{sIDX}, 30
    s_cbranch_scc1 L_k1_spare
    s_cmp_ge_u32 s{sWAVE}, 2
    s_cbranch_scc1 L_k1_work
    """)
    k1_loader(a, parts)

    def signal():
        a(f"""
        s_and_b32 s58, s2, 63
        s_lshl_b32 s58, s58, 2
        v_mov_b32 v5, s58
        v_mov_b32 v6, 1
        s_mov_b64 exec, 1
        buffer_atomic_add v6, v5, {s4(S_DBG)}, 0 offen sc1
        s_mov_b64 exec, -1""")

    a.label("L_k1_spare")
    sCH, sRND, sKB = 58, 59, 60
    Ls1 = a.newlabel("sp"); Ls2 = a.newlabel("sp")
    a(f"s_cmp_lg_u32 s{sWAVE}, 8\ns_cbranch_scc1 {Ls1}")
    k1_stats(a, False)
    a("s_waitcnt vmcnt(0)")
    signal()
    a.label(Ls1)
    a(f"""
    s_lshl_b32 s{sCH}, s{sXCD}, 1
    s_add_u32 s{sCH}, s{sCH}, s{sIDX}
    s_sub_u32 s{sCH}, s{sCH}, 30
    s_mul_i32 s{sCH}, s{sCH}, 10
    s_add_u32 s{sCH}, s{sCH}, 480
    s_add_u32 s{sCH}, s{sCH}, s{sWAVE}
    s_lshl_b32 s{sKB}, s{sWAVE}, 12
    s_add_u32 s{sKB}, s{sKB}, {2 * SLOT}
    """)
    if "nokgen" not in EXP:
        for rnd in range(3):
            a(f"s_mov_b32 s{sRND}, {rnd}")
            kgen_loads(a, sCH, sRND, 146 + 5 * rnd)
        for r in range(134, 146):
            a(f"v_mov_b32 v{r}, 0")
        a(f"s_mov_b32 s{sRND}, 0\ns_waitcnt vmcnt(0)")
        a.label(Ls2)
        for i in range(5):
            a(f"v_mov_b32 v{73 + i}, v{146 + i}")
        for i in range(10):
            a(f"v_mov_b32 v{146 + i}, v{151 + i}")
        KACC = kgen_round(a, sKB, False)
        for r in range(12):
            a(f"v_add_f32 v{134 + r}, v{134 + r}, v{KACC + r}")
        a(f"s_add_u32 s{sRND}, s{sRND}, 1\ns_cmp_lt_u32 s{sRND}, 3\ns_cbranch_scc1 {Ls2}")
        for r in range(12):
            a(f"v_mov_b32 v{KACC + r}, v{134 + r}")
        kgen_final(a, sCH, sKB, False)
    stamp(a, 5)
    Ls3 = a.newlabel("sp")
    a(f"s_cmp_ge_u32 s{sWAVE}, 2\ns_cbranch_scc1 {Ls3}")
    parts["unit_pre"](a)
    parts["unit"](a)
    a.label(Ls3)
    stamp_end(a, 0, S_WS, sWAVE)

    a.label("L_k1_work")
    a(f"""
    s_cmp_eq_u32 s{sWAVE}, 8
    s_cbranch_scc1 L_k1_stats
    s_cmp_eq_u32 s{sWAVE}, 9
    s_cbranch_scc1 L_k1_colsum
    s_sub_u32 s{sRND}, s{sWAVE}, 2
    s_lshl_b32 s{sKB}, s{sRND}, 12
    s_add_u32 s{sKB}, s{sKB}, {K1_KG}
    s_cmp_ge_u32 s{sRND}, 3
    s_cselect_b32 s62, 1, 0             ; grp
    s_cselect_b32 s63, 3, 0
    s_sub_u32 s{sRND}, s{sRND}, s63
    s_lshl_b32 s{sCH}, s{sGI}, 1
    s_add_u32 s{sCH}, s{sCH}, s62
    """)
    if "nokgen" not in EXP:
        kgen_loads(a, sCH, sRND)
        a("s_barrier")
        KACC = kgen_round(a, sKB)
        a(f"v_lshlrev_b32 v80, 4, v0\nv_add_u32 v80, s{sKB}, v80")
        for t in range(3):
            a(f"ds_write_b128 v80, {v4(KACC + 4 * t)} offset:{1024 * t}")
        stamp(a, 9)
    else:
        a("s_barrier")
    a("s_branch L_k1_pdone")
    a.label("L_k1_stats")
    k1_stats(a, True)
    Lz = a.newlabel("noz")
    a(f"""s_cmp_lg_u32 s2, 0
    s_cbranch_scc1 {Lz}
    v_lshlrev_b32 v5, 4, v0
    v_mov_b32 v8, 0
    v_mov_b32 v9, 0
    v_mov_b32 v10, 0
    v_mov_b32 v11, 0
    s_mov_b32 s98, {WS_FLAG2}
    buffer_store_dwordx4 v[8:11], v5, {s4(S_WS)}, s98 offen""")
    a.label(Lz)
    a("s_branch L_k1_pdone")
    a.label("L_k1_colsum")
    k1_colsum(a)
    a.label("L_k1_pdone")
    a(f"s_cmp_ge_u32 s{sWAVE}, 6\ns_cbranch_scc1 L_k1_g1")
    k1_gemm(a, 1, None)
    a.label("L_k1_g1")
    k1_gemm(a, 0, signal)
    a.label("L_k1_end")
    a("s_endpgm")


def descriptor(name, vgpr, sgpr=102):
    acc = (vgpr + 3) // 4 * 4
    return f""".amdhsa_kernel {name}
  .amdhsa_next_free_vgpr {vgpr}
  .amdhsa_next_free_sgpr {sgpr}
  .amdhsa_accum_offset {acc}
  .amdhsa_group_segment_fixed_size 0
  .amdhsa_kernarg_size 112
  .amdhsa_user_sgpr_count 2
  .amdhsa_user_sgpr_kernarg_segment_ptr 1
  .amdhsa_system_sgpr_workgroup_id_x 1
.end_amdhsa_kernel
"""


HEADER = open("cdna_kernels/" + NAME + ".s.ref").read().split("; Override launch geometry")[0]


def build():
    a = Asm()
    try:
        import gen2
    except ImportError:
        gen2 = None
    parts = {"unit": (gen2.k1_unit if gen2 else (lambda a: None)), "unit_pre": (gen2.k1_unit_pre if gen2 else (lambda a: None))}
    kernel1(a, parts)
    if "nosc1" not in EXP:
        import re
        a.L = [re.sub(r"(buffer_store_dwordx[24] .* offen(?: offset:\d+)?)$", r"\1 sc1", l) for l in a.L]
    out = HEADER
    out += f"; @launch kernel=k1_kernel grid=(256,1,1) block=(640,1,1) lds={K1_LDS}\n"
    desc = descriptor("k1_kernel", 168)
    if gen2 is not None and hasattr(gen2, "kernel2"):
        info = gen2.kernel2(a)
        out += f"; @launch kernel=k2_kernel grid=(256,1,1) block=({info['block']},1,1) lds={info['lds']}\n"
        desc += ".p2align 6\n" + descriptor("k2_kernel", info["vgpr"])
    out += '.amdgcn_target "amdgcn-amd-amdhsa--gfx950"\n.text\n' + a.text()
    out += '.section .rodata,"a"\n.p2align 6\n' + desc
    return out


if __name__ == "__main__":
    sys.modules["gen"] = sys.modules["__main__"]
    path = sys.argv[1] if len(sys.argv) > 1 else "k.s"
    open(path, "w").write(build())
    print("wrote", path)
```

```python
from gen import *

USCR = 2 * SLOT
sSUB = 94
sU0, sU1, sU2, sUB = 61, 62, 63, 95
vUA = 100


def k1_unit_pre(a):
    Lw = a.newlabel("uwd"); Le = a.newlabel("upe")
    a(f"""
    s_mul_i32 s96, s{sSUB}, 12288
    s_add_u32 s{sUB}, s{sUB}, s96
    v_lshrrev_b32 v{vUA}, 3, v0
    v_and_b32 v{vUA+1}, 7, v0
    v_mul_u32_u24 v{vUA+2}, 1280, v{vUA}
    v_lshl_add_u32 v{vUA+2}, v{vUA+1}, 4, v{vUA+2}
    s_cmp_ge_u32 s{sIDX}, 20
    s_cbranch_scc1 {Lw}
    ; ---- x transpose unit: v = xn*20+idx ; rb = 8xm + v/10 ; cb = v%10
    s_lshr_b32 s96, s{sXCD}, 1
    s_mul_i32 s96, s96, 20
    s_add_u32 s96, s96, s{sIDX}
    s_mul_i32 s97, s96, 103
    s_lshr_b32 s97, s97, 10              ; v/10
    s_mul_i32 s98, s97, 10
    s_sub_u32 s{sU1}, s96, s98           ; cb
    s_and_b32 s96, s{sXCD}, 1
    s_lshl_b32 s96, s96, 3
    s_add_u32 s97, s97, s96              ; rb
    s_lshl_b32 s97, s97, 1
    s_add_u32 s97, s97, s{sSUB}
    s_lshl_b32 s{sU0}, s97, 6
    s_mul_i32 s96, s{sU0}, 1280
    s_lshl_b32 s97, s{sU1}, 7
    s_add_u32 s96, s96, s97
    """)
    for p in range(8):
        a(f"s_add_u32 m0, s{sUB}, {1024 * p}\ns_add_u32 s97, s96, {p * 8 * 1280}\nbuffer_load_dwordx4 v{vUA+2}, {s4(S_X)}, s97 offen lds")
    a(f"s_branch {Le}")
    a.label(Lw)
    a(f"""
    s_mul_i32 s96, s{sXCD}, 12
    s_add_u32 s96, s96, s{sIDX}
    s_sub_u32 s96, s96, 20
    s_lshr_b32 s{sU0}, s96, 1            ; kappa
    s_and_b32 s96, s96, 1
    s_mul_i32 s96, s96, 5
    s_mul_i32 s97, s{sSUB}, 3
    s_add_u32 s{sU1}, s96, s97
    s_mul_i32 s96, s{sU0}, {32 * 1280}
    s_lshl_b32 s97, s{sU1}, 7
    s_add_u32 s96, s96, s97
    """)
    for k in range(3):
        if k == 2:
            a(f"s_cmp_eq_u32 s{sSUB}, 1\ns_cbranch_scc1 {Le}")
        for p in range(4):
            a(f"s_add_u32 m0, s{sUB}, {4096 * k + 1024 * p}\ns_add_u32 s97, s96, {p * 8 * 1280 + 128 * k}\nbuffer_load_dwordx4 v{vUA+2}, {s4(S_WD)}, s97 offen lds")
    a.label(Le)


def k1_unit(a):
    Lw = a.newlabel("uwd"); Le = a.newlabel("uend")
    R = 8
    a(f"""
    v_lshrrev_b32 v{vUA+3}, 2, v0
    v_and_b32 v{vUA+4}, 3, v0
    v_lshlrev_b32 v{vUA+3}, 7, v{vUA+3}
    v_lshl_add_u32 v{vUA+3}, v{vUA+4}, 3, v{vUA+3}
    v_add_u32 v{vUA+3}, s{sUB}, v{vUA+3}
    s_waitcnt vmcnt(0)
    s_cmp_ge_u32 s{sIDX}, 20
    s_cbranch_scc1 {Lw}
    v_and_b32 v{vUA+4}, 15, v0
    v_lshrrev_b32 v{vUA+5}, 4, v0
    v_mul_u32_u24 v{vUA+4}, 144, v{vUA+4}
    v_lshl_add_u32 v{vUA+4}, v{vUA+5}, 3, v{vUA+4}
    s_mov_b32 s96, s{sUB}
    v_add_u32 v{vUA+4}, s96, v{vUA+4}
    v_mul_u32_u24 v{vUA+5}, 144, v{vUA}
    v_lshl_add_u32 v{vUA+5}, v{vUA+1}, 4, v{vUA+5}
    v_add_u32 v{vUA+5}, s96, v{vUA+5}
    v_lshlrev_b32 v{vUA+6}, 12, v{vUA}
    v_lshl_add_u32 v{vUA+6}, v{vUA+1}, 4, v{vUA+6}
    """)
    lq = LQ(a)
    for j in range(4):
        for g in range(4):
            i = 4 * j + g
            lq.issue(f"t{i}", f"ds_read_b64_tr_b16 {v2(R + 2 * i)}, v{vUA+3} offset:{g * 2048 + 32 * j}")
    for k in range(16):
        lq.wait(f"t{k}")
        lq.issue("w", f"ds_write_b64 v{vUA+4}, {v2(R + 2 * k)} offset:{(k >> 2) * 16 * 144 + 32 * (k & 3)}")
    O = 48
    for i in range(8):
        lq.issue(f"o{i}", f"ds_read_b128 {v4(O + 4 * i)}, v{vUA+5} offset:{i * 8 * 144}")
    a(f"s_lshl_b32 s96, s{sU1}, 18\ns_lshl_b32 s97, s{sU0}, 1\ns_add_u32 s96, s96, s97\ns_add_u32 s96, s96, {WS_XT}")
    for i in range(8):
        lq.wait(f"o{i}")
        a(f"s_add_u32 s97, s96, {i * 8 * 4096}\nbuffer_store_dwordx4 {v4(O + 4 * i)}, v{vUA+6}, {s4(S_WS)}, s97 offen")
    a(f"s_branch {Le}")
    a.label(Lw)
    a(f"v_lshlrev_b32 v{vUA+6}, 4, v0\ns_mul_i32 s{sU2}, s{sU0}, 5120\ns_add_u32 s{sU2}, s{sU2}, {WS_WD}")
    for k in range(3):
        if k == 2:
            a(f"s_cmp_eq_u32 s{sSUB}, 1\ns_cbranch_scc1 {Le}")
        lq = LQ(a)
        for j in range(4):
            for s in range(2):
                lq.issue(f"t{j}", f"ds_read_b64_tr_b16 {v2(R + 16 * k + 4 * j + 2 * s)}, v{vUA+3} offset:{4096 * k + 2048 * s + 32 * j}")
        for j in range(4):
            a(f"""s_lshl_b32 s96, s{sU1}, 2
            s_add_u32 s96, s96, {4 * k + j}
            s_mul_i32 s97, s96, 52
            s_lshr_b32 s97, s97, 8
            s_mul_i32 s98, s97, 5
            s_sub_u32 s96, s96, s98
            s_mul_i32 s97, s97, {48 * 5120}
            s_lshl_b32 s96, s96, 10
            s_add_u32 s96, s96, s97
            s_add_u32 s96, s96, s{sU2}""")
            lq.wait(f"t{j}")
            a(f"buffer_store_dwordx4 {v4(R + 16 * k + 4 * j)}, v{vUA+6}, {s4(S_WS)}, s96 offen")
    a.label(Le)


C_U = 640
C_U2 = C_U + 4096 + 64 + 64
C_B3 = C_U2 + 3584 + 64
C_B5 = C_B3 + 3584 + 64 + 64
C_B7 = C_B5 + 3072 + 64
C_B9 = C_B7 + 2048 + 64 + 80
C_SZ = C_B9 + 2048

NBLK1 = [0, 4, 8, 8, 8, 8, 8, 8]
NBLK2 = [0, 0, 2, 4, 6, 6, 6, 6]
NBLK3 = [0, 0, 0, 0, 1, 2, 3, 4]


def conv_mfma(a, tiles, regs):
    ACC, KF, DF = regs["ACC"], regs["KF"], regs["DF"]
    ND = regs["ND"]
    bU, bK0, bD, bK, PF = regs["bU"], regs["bK0"], regs["bD"], regs["bK"], regs["PF"]
    lq = LQ(a)

    def acc(t): return ACC + 4 * (t - tiles[0])

    def kload(seg, b, bank):
        r = KF + 36 * bank + 4 * b
        tag = f"K{seg}_{b}"
        if seg == 0:
            o = 16 * (8 - b)
            lq.issue(tag, f"ds_read2_b32 {v2(r)}, v{bK0} offset0:{o} offset1:{o + 1}")
            lq.issue(tag, f"ds_read2_b32 {v2(r + 2)}, v{bK0} offset0:{o + 2} offset1:{o + 3}")
        elif seg == 1:
            lq.issue(tag, f"ds_read_b64 {v2(r)}, v{bK[1]} offset:{32 * b}")
            lq.issue(tag, f"ds_read_b64 {v2(r + 2)}, v{bK[1]} offset:{32 * b + 8}")
        else:
            o = 8 * b
            lq.issue(tag, f"ds_read2_b32 {v2(r)}, v{bK[seg]} offset0:{o} offset1:{o + 1}")
            lq.issue(tag, f"ds_read2_b32 {v2(r + 2)}, v{bK[seg]} offset0:{o + 2} offset1:{o + 3}")

    work = []
    banks = {0: 0, 1: 1, 2: 0, 3: 1}
    for t in tiles:
        for k in range(9):
            if t == 0 and k == 8:
                continue
            work.append((("u", 512 * (t + 1) - 64 * k), [(t, 0, k)]))
    for seg, D, nb in ((1, 4, NBLK1), (2, 8, NBLK2), (3, 16, NBLK3)):
        es = {}
        for t in tiles:
            for b in range(nb[t]):
                es.setdefault((16 // D) * t - b, []).append((t, seg, b))
        for e in sorted(es):
            work.append((("tr", seg, D, e), es[e]))
    for t in tiles:
        if t >= 3:
            work.append((("u", 512 * (t + 1) - 2032), [(t, "p", 0)]))
    need = {s: sorted({b for _, us in work for (_, sg, b) in us if sg == s}) for s in range(4)}
    first = {}
    last = {}
    for i, (_, us) in enumerate(work):
        for (_, sg, b) in us:
            first.setdefault(sg, i)
            last[sg] = i
    kplan = {}
    for s in (1, 2, 3):
        if not need[s]:
            continue
        start = 0 if s == 1 else last[s - 2] + 1
        span = max(1, first[s] - start - 2)
        for j, b in enumerate(need[s]):
            kplan.setdefault(min(start + (j * span) // len(need[s]), first[s] - 1) if first[s] > start else start, []).append((s, b))

    def dload(i):
        spec = work[i][0]
        r = DF + 4 * (i % ND)
        if spec[0] == "u":
            lq.issue(f"D{i}", f"ds_read_b128 {v4(r)}, v{bU} offset:{spec[1]}")
        else:
            _, seg, D, e = spec
            for s in range(2):
                lq.issue(f"D{i}", f"ds_read_b64_tr_b16 {v2(r + 2 * s)}, v{bD[seg]} offset:{32 * D * e + (8 * D if s == 0 else 0)}")

    LA = ND - 1
    kload(0, need[0][0], 0)
    dload(0)
    for b in need[0][1:3]:
        kload(0, b, 0)
    for i in range(1, LA):
        dload(i)
    rest0 = need[0][3:]
    for i, (spec, us) in enumerate(work):
        for (s, b) in kplan.get(i, []):
            kload(s, b, banks[s])
        if rest0:
            kload(0, rest0.pop(0), 0)
        if i + LA < len(work):
            dload(i + LA)
        d = DF + 4 * (i % ND)
        for (t, sg, b) in us:
            if sg == "p":
                lq.wait(f"D{i}")
                a(f"v_mfma_f32_16x16x32_f16 {v4(acc(t))}, {v4(PF)}, {v4(d)}, {v4(acc(t))}")
                continue
            k = KF + 36 * banks[sg] + 4 * b
            lq.wait(f"D{i}", f"K{sg}_{b}")
            if sg == 0:
                a(f"v_mfma_f32_16x16x32_f16 {v4(acc(t))}, {v4(k)}, {v4(d)}, {v4(acc(t))}")
            else:
                a(f"v_mfma_f32_16x16x32_f16 {v4(acc(t))}, {v4(d)}, {v4(k)}, {v4(acc(t))}")


def conv_xload(a, sCH, X=100):
    a(f"v_lshlrev_b32 v2, 4, v0\ns_lshl_b32 s96, s{sCH}, 12\ns_add_u32 s96, s96, {WS_XT}")
    for r in range(4):
        a(f"buffer_load_dwordx4 {v4(X + 4 * r)}, v2, {s4(S_WS)}, s96 offen offset:{1024 * r} sc0 sc1")


def conv_prep(a, sRB, sSTA, XR=100):
    a(f"""
    v_lshlrev_b32 v2, 4, v0
    v_add_u32 v5, s{sRB}, v2
    v_add_u32 v6, s{sSTA}, v2
    v_mov_b64 v[24:25], 0
    v_mov_b64 v[26:27], 0
    """)
    S = 32
    X = 64
    lq = LQ(a)

    def ldst(r):
        for q in range(4):
            lq.issue(f"s{r}", f"ds_read_b128 {v4(S + 16 * (r & 1) + 4 * q)}, v6 offset:{4096 * q + 1024 * r}")
    ldst(0)
    a(f"""
    s_mov_b32 exec_hi, 0xff
    ds_write_b128 v5, v[24:27]
    s_mov_b64 exec, 0xff
    ds_write_b128 v5, v[24:27] offset:{C_U + 4096}
    s_mov_b64 exec, 0xf
    ds_write_b128 v5, v[24:27] offset:{C_B3 - 64}
    ds_write_b128 v5, v[24:27] offset:{C_B5 - 64}
    ds_write_b128 v5, v[24:27] offset:{C_B7 - 64}
    ds_write_b128 v5, v[24:27] offset:{C_B9 - 64}
    s_mov_b64 exec, -1
    """)
    lq.q += ["z"] * 6
    for r in range(4):
        if r < 3:
            ldst(r + 1)
        for i in range(4):
            a(f"v_lshlrev_b32 v{X + 2 * i}, 16, v{XR + 4 * r + i}\nv_and_b32 v{X + 2 * i + 1}, 0xffff0000, v{XR + 4 * r + i}")
        lq.wait(f"s{r}")
        sb = S + 16 * (r & 1)
        for i in range(8):
            a(f"v_fma_f32 v{X + i}, v{X + i}, v{sb + 2 * i}, v{sb + 2 * i + 1}")
        for i in range(4):
            a(f"v_cvt_pk_f16_f32 v{8 + 4 * r + i}, v{X + 2 * i}, v{X + 2 * i + 1}")
        lq.issue("w", f"ds_write_b128 v5, {v4(8 + 4 * r)} offset:{C_U + 1024 * r}")
    D = 32
    SS = 48
    OBS = [56, 76]

    def ldw(r):
        b = D + 8 * (r & 1)
        lq.issue(f"d{r}", f"ds_read_b64 {v2(b)}, v5 offset:{C_U + 1024 * r - 24}")
        lq.issue(f"d{r}", f"ds_read_b128 {v4(b + 2)}, v5 offset:{C_U + 1024 * r - 16}")
        lq.issue(f"d{r}", f"ds_read_b64 {v2(b + 6)}, v5 offset:{C_U + 1024 * r}")
    ldw(0)
    for r in range(4):
        OB = OBS[r & 1]
        d = D + 8 * (r & 1)
        lq.wait(f"d{r}", f"w{r - 2}")
        if r < 3:
            ldw(r + 1)
        w = f"w{r}"
        for i in range(7):
            a(f"v_alignbit_b32 v{SS + i}, v{d + i + 1}, v{d + i}, 16")
        for i in range(4):
            a(f"v_mov_b32 v{OB + i}, v{d + 1 + i}")
        for i in range(4):
            a(f"v_pk_add_f16 v{OB + 4 + i}, v{SS + i + 1}, v{SS + i + 2}")
        for i in range(4):
            a(f"v_pk_add_f16 v{OB + 4 + i}, v{OB + 4 + i}, v{d + i + 2}")
        if r == 3:
            a("s_mov_b32 exec_hi, 1")
        lq.issue(w, f"ds_write_b128 v5, {v4(OB)} offset:{C_U2 + 1024 * r - 16}")
        lq.issue(w, f"ds_write_b128 v5, {v4(OB + 4)} offset:{C_B3 + 1024 * r - 16}")
        if r == 3:
            a("s_mov_b64 exec, 1")
        for i in range(4):
            a(f"v_pk_add_f16 v{OB + 8 + i}, v{d + i + 1}, v{d + i + 3}")
        for i in range(4):
            a(f"v_pk_add_f16 v{OB + 8 + i}, v{OB + 8 + i}, v{OB + 4 + i}")
        lq.issue(w, f"ds_write_b128 v5, {v4(OB + 8)} offset:{C_B5 + 1024 * r - 16}")
        if r == 3:
            a("s_mov_b64 exec, -1")
        if r <= 2:
            if r == 2:
                a("s_mov_b64 exec, 1")
            for i in range(4):
                a(f"v_pk_add_f16 v{OB + 12 + i}, v{SS + i}, v{SS + i + 3}")
            for i in range(4):
                a(f"v_pk_add_f16 v{OB + 12 + i}, v{OB + 12 + i}, v{OB + 8 + i}")
            lq.issue(w, f"ds_write_b128 v5, {v4(OB + 12)} offset:{C_B7 + 1024 * r - 16}")
            for i in range(4):
                a(f"v_pk_add_f16 v{OB + 16 + i}, v{d + i}, v{d + i + 4}")
            for i in range(4):
                a(f"v_pk_add_f16 v{OB + 16 + i}, v{OB + 16 + i}, v{OB + 12 + i}")
            lq.issue(w, f"ds_write_b128 v5, {v4(OB + 16)} offset:{C_B9 + 1024 * r - 16}")
            if r == 2:
                a("s_mov_b64 exec, -1")
    a("s_waitcnt lgkmcnt(0)")


CREGS = dict(ACC=8, KF=28, DF=96, ND=4, bU=116, bK0=117, bD={1: 118, 2: 119, 3: 120}, bK={1: 121, 2: 122, 3: 123}, PF=112)


def conv_setup(a, sRB, sKT, sCH):
    regs = CREGS
    i16, hq, par, h8, rr, cc, T = 96, 97, 98, 99, 100, 101, 102
    a(f"""
    v_and_b32 v{i16}, 15, v0
    v_lshrrev_b32 v{hq}, 4, v0
    v_and_b32 v{par}, 1, v{hq}
    v_lshrrev_b32 v{h8}, 1, v{hq}
    v_bfe_u32 v{rr}, v0, 2, 2
    v_and_b32 v{cc}, 3, v0
    v_sub_u32 v{T}, v{i16}, v{h8}
    v_lshlrev_b32 v{T}, 5, v{T}
    v_lshl_add_u32 v{T}, v{par}, 4, v{T}
    s_add_u32 s96, s{sRB}, {C_U - 512}
    v_add_u32 v{regs['bU']}, s96, v{T}
    v_lshlrev_b32 v{T}, 3, v{par}
    v_sub_u32 v{T}, v{T}, v{i16}
    v_lshlrev_b32 v{T+1}, 4, v{h8}
    v_sub_u32 v{T}, v{T}, v{T+1}
    v_add_u32 v{T}, 32, v{T}
    v_lshlrev_b32 v{T}, 1, v{T}
    v_and_b32 v{T+2}, 1, v{i16}
    v_mul_u32_u24 v{T+1}, {T0O - T0E - 2}, v{T+2}
    v_add3_u32 v{regs['bK0']}, v{T}, v{T+1}, s{sKT}
    """)
    segs = {1: (4, C_B3, 5, 0, C_U2, 5, 0, T1E, T1O), 2: (8, C_B5, 35, 0, C_B3, 34, 4, T2E, T2O), 3: (16, C_B9, 50, 0, C_B7, 49, 8, T3EE, T3OE)}
    for sg, (Dd, Ae, pe, oe, Ao, po, oo, Te, To) in segs.items():
        ce = Ae - 2 * Dd * (pe + 4) - 2 * oe
        co = Ao - 2 * Dd * (po + 4) - 2 * oo
        a(f"""
        v_lshl_add_u32 v{T}, v{h8}, 3, v{rr}
        v_mul_u32_u24 v{T}, {2 * Dd}, v{T}
        v_lshlrev_b32 v{T+1}, 3, v{cc}
        v_sub_u32 v{T}, v{T+1}, v{T}
        v_mul_i32_i24 v{T+1}, {co - ce}, v{par}
        v_add3_u32 v{T}, v{T}, v{T+1}, s{sRB}
        v_add_u32 v{regs['bD'][sg]}, {ce}, v{T}
        v_mul_u32_u24 v{T}, {2 * 16 // Dd}, v{i16}
        v_lshl_add_u32 v{T}, v{h8}, 4, v{T}
        v_mul_u32_u24 v{T+1}, {To - Te}, v{par}
        v_add3_u32 v{T}, v{T}, v{T+1}, s{sKT}
        v_add_u32 v{regs['bK'][sg]}, {Te}, v{T}
        """)
    a(f"v_mul_u32_u24 v{T+1}, 158, v{T+2}\nv_add_u32 v{regs['bK'][3]}, v{regs['bK'][3]}, v{T+1}")
    PF = regs["PF"]
    a(f"""
    v_lshlrev_b32 v{T}, 4, v{h8}
    v_lshlrev_b32 v{T+1}, 3, v{par}
    v_sub_u32 v{T}, v{T}, v{T+1}
    v_add3_u32 v{T}, v{T}, v{i16}, -6
    v_mov_b32 v{T+3}, 0xffff
    v_mov_b32 v{cc}, 0xffff0000
    """)
    for p in range(4):
        a(f"""v_subrev_u32 v{T+1}, {2 * p}, v{T}
        v_subrev_u32 v{T+2}, {2 * p + 1}, v{T}
        v_cmp_gt_u32 vcc, 7, v{T+1}
        v_cmp_gt_u32 s[96:97], 7, v{T+2}
        s_nop 1
        v_cndmask_b32 v{T+1}, 0, v{T+3}, vcc
        v_cndmask_b32 v{T+2}, 0, v{cc}, s[96:97]
        v_or_b32 v{PF + p}, v{T+1}, v{T+2}""")
    for r in range(8, 28, 2):
        a(f"v_mov_b64 {v2(r)}, 0")
    a(f"""v_lshlrev_b32 v5, 5, v{i16}
    v_lshl_add_u32 v5, v{hq}, 3, v5
    s_add_u32 s96, s{sKT}, {TK1024}
    v_mov_b32 v6, s96
    s_lshl_b32 s93, s{sCH}, 12
    s_add_u32 s93, s93, {WS_Y}""")


def conv_run(a, sHALF):
    regs = CREGS
    PF = regs["PF"]
    a(f"ds_read_b64 v[124:125], v6\ns_waitcnt lgkmcnt(0)\nv_and_b32 v124, 0xffff, v124\nv_lshl_or_b32 v124, v124, 16, v124")
    for p in range(4):
        a(f"v_and_b32 v{PF + p}, v{PF + p}, v124")
    LB = a.newlabel("halfB"); LJ = a.newlabel("cjoin")
    a(f"s_cmp_eq_u32 s{sHALF}, 1\ns_cbranch_scc1 {LB}")
    for tiles, lab in (([0, 1, 2, 3, 4], None), ([5, 6, 7], LB)):
        if lab:
            a.label(lab)
        conv_mfma(a, tiles, regs)
        a("s_nop 7")
        for i, t in enumerate(tiles):
            c = 8 + 4 * i
            for r in range(4):
                a(f"v_mul_f32 v{c + r}, v{c + r}, v125")
            a(f"v_cvt_pk_bf16_f32 v{c}, v{c}, v{c+1}\nv_cvt_pk_bf16_f32 v{c+1}, v{c+2}, v{c+3}")
            a(f"buffer_store_dwordx2 {v2(c)}, v5, {s4(S_WS)}, s93 offen offset:{512 * t} sc1")
        if not lab:
            a(f"s_branch {LJ}")
    a.label(LJ)


NR = 7
ST2 = 18 * 1024
K2_XY = NR * ST2
K2_LDS = K2_XY + 20480
Q_WS, Q_OUT, Q_D = 4, 8, 12
qWAVE, qMI, qNI = 3, 20, 21


def k2_loader(a):
    vL, vT = 2, 3
    sW, sH = 24, 25
    a(f"""
    s_setprio 3
    v_lshlrev_b32 v{vL}, 4, v0
    v_lshrrev_b32 v{vT}, 3, v0
    v_and_b32 v4, 7, v0
    v_lshlrev_b32 v{vT}, 12, v{vT}
    v_lshl_add_u32 v{vT}, v4, 4, v{vT}          ; ch8*4096 + 16k
    s_mul_i32 s{sH}, s{qMI}, {4 * 49152}
    s_add_u32 s{sH}, s{sH}, {WS_H}
    s_mul_i32 s{sW}, s{qNI}, {48 * 5120}
    s_add_u32 s{sW}, s{sW}, {WS_WD}
    s_mul_i32 s26, s{qNI}, {80 * 4096}
    s_lshl_b32 s27, s{qMI}, 7
    s_add_u32 s26, s26, s27
    """)
    L1 = a.newlabel("k2l1")
    a(f"s_cmp_eq_u32 s{qWAVE}, 5\ns_cbranch_scc1 {L1}")
    for w in range(2):
        if w:
            a.label(L1)
        a(f"s_add_u32 s26, s26, {WS_Y if w else WS_XT}")
        for p in range(10):
            a(f"s_mov_b32 m0, {K2_XY + 10240 * w + 1024 * p}\ns_add_u32 s27, s26, {p * 8 * 4096}\nbuffer_load_dwordx4 v{vT}, {s4(Q_WS)}, s27 offen lds")

        def issue(s):
            slot = (s % NR) * ST2
            if w == 0:
                for g, n in ((0, 4), (4, 4), (8, 1)):
                    a(f"s_mov_b32 m0, {slot + g * 1024}\ns_add_u32 s27, s{sW}, {s * 10240 + g * 1024}")
                    for j in range(n):
                        a(f"buffer_load_dwordx4 v{vL}, {s4(Q_WS)}, s27 offen offset:{1024 * j} lds")
            else:
                for t in range(4):
                    a(f"s_mov_b32 m0, {slot + 10240 + t * 2048}\ns_add_u32 s27, s{sH}, {t * 49152 + s * 2048}")
                    for j in range(2):
                        a(f"buffer_load_dwordx4 v{vL}, {s4(Q_WS)}, s27 offen offset:{1024 * j} lds")
                a(f"s_mov_b32 m0, {slot + 9216}\ns_add_u32 s27, s{sW}, {s * 10240 + 9216}\nbuffer_load_dwordx4 v{vL}, {s4(Q_WS)}, s27 offen lds")
        for s in range(5):
            issue(s)
        a("s_waitcnt vmcnt(45)\ns_barrier")
        issue(5)
        issue(6)
        a('s_waitcnt vmcnt(54)\ns_barrier')
        for s in range(23):
            infl = min(s + NR - 1, 23) - (s + 1)
            a(f"s_waitcnt vmcnt({9 * infl})\ns_barrier")
            if s + NR < 24:
                issue(s + NR)
        stamp_end(a, 1, Q_WS, qWAVE)


def k2_gemm(a):
    ACC = 8
    BS = 28
    F = [40, 88]
    vW, vH = 2, 3
    sSL = 24
    a(f"""
    v_and_b32 v4, 15, v0
    v_lshrrev_b32 v5, 4, v0
    v_lshlrev_b32 v6, 3, v4
    v_lshlrev_b32 v7, 3, v5
    s_lshl_b32 s26, s{qMI}, 2
    s_add_u32 s26, s26, s{qWAVE}
    s_lshl_b32 s27, s26, 7
    s_add_u32 s27, s27, {WS_STATB}
    s_mul_i32 s28, s{qNI}, 160
    buffer_load_dwordx2 v[136:137], v6, {s4(Q_WS)}, s27 offen
    """)
    for dt in range(5):
        a(f"buffer_load_dwordx2 {v2(138 + 2 * dt)}, v7, {s4(Q_D)}, s28 offen offset:{32 * dt}")
    a(f"""
    v_lshrrev_b32 v148, 2, v0
    v_and_b32 v149, 3, v0
    v_lshlrev_b32 v148, 7, v148
    v_lshl_add_u32 v148, v149, 3, v148
    s_lshl_b32 s27, s{qWAVE}, 5
    s_add_u32 s27, s27, {K2_XY}
    v_add_u32 v148, s27, v148
    v_lshlrev_b32 v{vW}, 4, v0
    s_lshl_b32 s27, s{qWAVE}, 11
    s_add_u32 s27, s27, 10240
    v_add_u32 v{vH}, s27, v{vW}
    s_mov_b32 s{sSL}, 0
    """)
    for r in range(ACC, ACC + 20, 2):
        a(f"v_mov_b64 {v2(r)}, 0")
    a("s_barrier")
    stamp(a, 2)
    XR, YR = 40, 50
    for dt in range(5):
        a(f"ds_read_b64_tr_b16 {v2(XR + 2 * dt)}, v148 offset:{2048 * dt}")
    for dt in range(5):
        a(f"ds_read_b64_tr_b16 {v2(YR + 2 * dt)}, v148 offset:{10240 + 2048 * dt}")
    a("s_waitcnt vmcnt(0)\nv_rcp_f32 v137, v137\ns_waitcnt lgkmcnt(0)")

    def unpack(d, s):
        a(f"v_and_b32 v{d + 1}, 0xffff0000, v{s}\nv_lshlrev_b32 v{d}, 16, v{s}")
    for dt in range(5):
        X, T, Y, Dd = (60, 64), (68, 72), (76, 80), (84, 86)
        for h in range(2):
            unpack(60 + 2 * h, XR + 2 * dt + h)
        for h in range(2):
            unpack(64 + 2 * h, 138 + 2 * dt + h)
        for i in range(4):
            a(f"v_sub_f32 v{68 + i}, v{60 + i}, v136")

        def rnd():
            for h in range(2):
                a(f"v_cvt_pk_bf16_f32 v{68 + 2 * h}, v{68 + 2 * h}, v{69 + 2 * h}")
            for h in range(2):
                unpack(68 + 2 * h, 68 + 2 * h)
        rnd()
        for i in range(4):
            a(f"v_mul_f32 v{68 + i}, v{68 + i}, v137")
        rnd()
        for i in range(4):
            a(f"v_mul_f32 v{68 + i}, v{68 + i}, v{64 + i}")
        for h in range(2):
            unpack(72 + 2 * h, YR + 2 * dt + h)
        rnd()
        for i in range(4):
            a(f"v_add_f32 v{68 + i}, v{68 + i}, v{72 + i}")
        rnd()
        for i in range(4):
            a(f"v_add_f32 v{68 + i}, v{68 + i}, v{60 + i}")
        for h in range(2):
            a(f"v_cvt_pk_bf16_f32 v{BS + 2 * dt + h}, v{68 + 2 * h}, v{69 + 2 * h}")
    stamp(a, 3)
    a("s_barrier")

    def reads(b):
        for k in range(2):
            a(f"ds_read_b128 {v4(F[b] + 40 + 4 * k)}, v150 offset:{1024 * k}")
            for dt in range(5):
                a(f"ds_read_b128 {v4(F[b] + 20 * k + 4 * dt)}, v151 offset:{5120 * k + 1024 * dt}")

    def addr():
        a(f"v_add_u32 v150, s{sSL}, v{vH}\nv_add_u32 v151, s{sSL}, v{vW}\ns_add_u32 s{sSL}, s{sSL}, {ST2}\ns_cmp_eq_u32 s{sSL}, {NR * ST2}\ns_cselect_b32 s{sSL}, 0, s{sSL}")

    def mfmas(b):
        for k in range(2):
            for dt in range(5):
                a(f"v_mfma_f32_16x16x32_bf16 {v4(ACC + 4 * dt)}, {v4(F[b] + 20 * k + 4 * dt)}, {v4(F[b] + 40 + 4 * k)}, {v4(ACC + 4 * dt)}")
    addr()
    reads(0)
    a("s_mov_b32 s25, 0")
    L = a.newlabel("g2")
    a.label(L)
    for b in range(2):
        addr()
        if b == 1:
            Lx = a.newlabel("g2x")
            a(f"s_cmp_eq_u32 s25, 11\ns_cbranch_scc1 {Lx}")
        a("s_waitcnt lgkmcnt(0)\ns_barrier")
        reads(1 - b)
        mfmas(b)
    a(f"s_add_u32 s25, s25, 1\ns_branch {L}")
    a.label(Lx)
    a("s_waitcnt lgkmcnt(0)")
    mfmas(1)
    stamp(a, 4)
    a(f"""
    v_mul_u32_u24 v4, 176, v4
    v_lshl_add_u32 v4, v5, 3, v4
    s_mul_i32 s27, s{qWAVE}, 2816
    s_add_u32 s27, s27, {K2_XY}
    v_add_u32 v4, s27, v4
    """)
    for i in range(3):
        a(f"""v_add_u32 v6, {64 * i}, v0
        v_mul_u32_u24 v7, 205, v6
        v_lshrrev_b32 v7, 11, v7
        v_mul_u32_u24 v{60 + i}, 10, v7
        v_sub_u32 v6, v6, v{60 + i}
        v_mul_u32_u24 v{60 + i}, 176, v7
        v_lshl_add_u32 v{60 + i}, v6, 4, v{60 + i}
        v_add_u32 v{60 + i}, s27, v{60 + i}
        v_mul_u32_u24 v{64 + i}, 1280, v7
        v_lshl_add_u32 v{64 + i}, v6, 4, v{64 + i}""")
    O = 40
    for dt in range(5):
        for h in range(2):
            c = ACC + 4 * dt + 2 * h
            t = 70 + 2 * h
            a(f"""v_cvt_pk_bf16_f32 v{c}, v{c}, v{c+1}
            v_and_b32 v{t+1}, 0xffff0000, v{BS + 2 * dt + h}
            v_and_b32 v{c+1}, 0xffff0000, v{c}
            v_lshlrev_b32 v{c}, 16, v{c}
            v_lshlrev_b32 v{t}, 16, v{BS + 2 * dt + h}
            v_add_f32 v{c+1}, v{c+1}, v{t+1}
            v_add_f32 v{c}, v{c}, v{t}
            v_cvt_pk_bf16_f32 v{O + 2 * dt + h}, v{c}, v{c+1}""")
        a(f"ds_write_b64 v4, {v2(O + 2 * dt)} offset:{32 * dt}")
    for i in range(3):
        a(f"ds_read_b128 {v4(76 + 4 * i)}, v{60 + i}")
    a(f"""
    s_mul_i32 s27, s26, {16 * 1280}
    s_add_u32 s27, s27, s28
    s_waitcnt lgkmcnt(2)
    buffer_store_dwordx4 v[76:79], v64, {s4(Q_OUT)}, s27 offen
    s_waitcnt lgkmcnt(1)
    buffer_store_dwordx4 v[80:83], v65, {s4(Q_OUT)}, s27 offen
    s_waitcnt lgkmcnt(0)
    s_mov_b32 exec_hi, 0
    buffer_store_dwordx4 v[84:87], v66, {s4(Q_OUT)}, s27 offen
    s_mov_b64 exec, -1
    """)
    stamp(a, 5)
    stamp_end(a, 1, Q_WS, qWAVE)


def kernel2(a):
    vSTAMP.r = 167
    a.raw(".globl k2_kernel\n.p2align 8\n.type k2_kernel,@function\nk2_kernel:")
    a(f"""
    s_cmp_ge_u32 s2, 256
    s_cbranch_scc1 L_k2_end
    s_load_dwordx2 s[40:41], s[0:1], 48
    s_load_dwordx2 s[42:43], s[0:1], 88
    s_load_dwordx2 s[44:45], s[0:1], 104
    v_lshrrev_b32 v1, 6, v0
    v_and_b32 v0, 63, v0
    s_and_b32 s22, s2, 7
    v_readfirstlane_b32 s{qWAVE}, v1
    s_lshr_b32 s23, s2, 3
    s_and_b32 s{qMI}, s22, 3
    s_lshl_b32 s{qMI}, s{qMI}, 3
    s_and_b32 s24, s23, 7
    s_add_u32 s{qMI}, s{qMI}, s24
    s_lshr_b32 s{qNI}, s22, 2
    s_lshl_b32 s{qNI}, s{qNI}, 2
    s_lshr_b32 s24, s23, 3
    s_add_u32 s{qNI}, s{qNI}, s24
    """)
    a("s_waitcnt lgkmcnt(0)")
    srd(a, Q_WS, 44, 0x4000000 if PROF else WS_END + 4096)
    if "diag" in EXP:
        a("s_load_dwordx2 s[46:47], s[0:1], 96\ns_memrealtime s[100:101]\ns_waitcnt lgkmcnt(0)\nv_mov_b32 v165, s100")
        srd(a, 16, 46, 256)
    srd(a, Q_OUT, 42, 2048 * 1280)
    srd(a, Q_D, 40, 1280)
    if PROF:
        a(f"v_mov_b32 v{vSTAMP}, 0")
    stamp(a, 0, True)
    stamp(a, 1)
    a(f"s_cmp_ge_u32 s{qWAVE}, 4\ns_cbranch_scc1 L_k2_ld")
    k2_gemm(a)
    a.label("L_k2_ld")
    k2_loader(a)
    a.label("L_k2_end")
    a("s_endpgm")
    return dict(block=384, lds=K2_LDS, vgpr=168)
```

```python
import sys, os, struct

NAME = "parallel_sum__ssm_conv_s4d__glu_gated_glu__prompt"

WS_H = 0
WS_WD = WS_H + 128 * 48 * 1024
WS_XT = WS_WD + 8 * 48 * 5 * 1024
WS_Y = WS_XT + 640 * 4096
KT_BYTES = 3584
WS_KT = WS_Y + 640 * 4096
WS_STATA = WS_KT + 640 * KT_BYTES
WS_STATB = WS_STATA + 2048 * 8
WS_CS = WS_STATB + 2048 * 8
WS_FLAG2 = WS_CS + 5 * 3072 * 4
WS_END = WS_FLAG2 + 8 * 128

T0E, T0O, T1E, T1O, T2E, T2O = 0, 640, 1280, 1664, 2048, 2304
T3EE, T3EO, T3OE, T3OO = 2560, 2720, 2880, 3040
TK1024, TSIG = 3200, 3204

PROF = int(os.environ.get("PROF", "0"))
EXP = os.environ.get("EXP", "")
CSTAMP = int(os.environ.get("CSTAMP", "0"))
WS_PROF = 0x2000000
class _St:
    r = 127
    def __format__(self, spec): return str(self.r)


vSTAMP = _St()


def f32(x):
    return "0x%08x" % struct.unpack("<I", struct.pack("<f", x))[0]


class Asm:
    def __init__(self):
        self.L = []
        self.uid = 0

    def __call__(self, s):
        for line in s.split("\n"):
            line = line.strip()
            if line:
                self.L.append("  " + line)

    def label(self, n):
        self.L.append(n + ":")

    def newlabel(self, base):
        self.uid += 1
        return f"L_{base}_{self.uid}"

    def raw(self, s):
        self.L.append(s)

    def text(self):
        return "\n".join(self.L) + "\n"


class LQ:
    def __init__(self, a, seed=(), cnt="lgkmcnt", cap=15):
        self.a = a
        self.q = list(seed)
        self.cnt = cnt
        self.cap = cap

    def issue(self, tag, s):
        self.a(s)
        self.q.append(tag)

    def wait(self, *tags):
        idx = -1
        for t in tags:
            for i, x in enumerate(self.q):
                if x == t:
                    idx = max(idx, i)
        if idx < 0:
            return
        n = len(self.q) - 1 - idx
        self.a(f"s_waitcnt {self.cnt}({min(n, self.cap)})")
        self.q = self.q[idx + 1:] if n <= self.cap else self.q[len(self.q) - self.cap:]

    def drain(self):
        self.a(f"s_waitcnt {self.cnt}(0)")
        self.q = []


def stamp(a, i, real=False):
    if PROF:
        a(f"s_waitcnt lgkmcnt(0)\n{'s_memrealtime' if real else 's_memtime'} s[100:101]\ns_waitcnt lgkmcnt(0)\nv_writelane_b32 v{vSTAMP}, s100, {i}")


def stamp_dyn(a, sidx, base, mul=1):
    if PROF:
        a(f"s_waitcnt lgkmcnt(0)\ns_memtime s[100:101]\ns_mul_i32 s99, s{sidx}, {mul}\ns_add_u32 m0, s99, {base}\ns_waitcnt lgkmcnt(0)\nv_writelane_b32 v{vSTAMP}, s100, m0")


def stamp_end(a, kern, S_WS_, swave):
    if "diag" in EXP:
        Ld = a.newlabel("diag")
        if kern == 0:
            a(f"""s_cmp_lg_u32 s{swave}, 9
            s_cbranch_scc1 {Ld}
            s_waitcnt vmcnt(0) lgkmcnt(0)
            s_memrealtime s[100:101]
            s_lshl_b32 s98, s2, 2
            s_add_u32 s98, s98, {WS_END + 1024}
            v_mov_b32 v5, 0
            s_waitcnt lgkmcnt(0)
            v_mov_b32 v6, s100
            s_mov_b64 exec, 1
            buffer_store_dword v6, v5, s[{S_WS_}:{S_WS_+3}], s98 offen""")
        else:
            a(f"""s_cmp_lg_u32 s{swave}, 0
            s_cbranch_scc1 {Ld}
            s_lshl_b32 s98, s2, 2
            s_add_u32 s98, s98, {WS_END}
            v_mov_b32 v5, 0
            s_mov_b64 exec, 1
            buffer_load_dword v7, v5, s[{S_WS_}:{S_WS_+3}], s98 offen
            buffer_load_dword v8, v5, s[{S_WS_}:{S_WS_+3}], s98 offen offset:1024
            s_waitcnt vmcnt(0) lgkmcnt(0)
            s_memrealtime s[100:101]
            s_waitcnt lgkmcnt(0)
            v_mov_b32 v6, s100
            v_and_b32 v6, 0xffffff, v6
            v_and_b32 v7, 0xffffff, v7
            v_and_b32 v8, 0xffffff, v8
            v_and_b32 v9, 0xffffff, v165
            v_sub_u32 v10, 0xffffff, v7
            v_sub_u32 v11, 0xffffff, v9
            buffer_atomic_umax v10, v5, s[16:19], 0 offen offset:0
            buffer_atomic_umax v7, v5, s[16:19], 0 offen offset:4
            buffer_atomic_umax v8, v5, s[16:19], 0 offen offset:8
            buffer_atomic_umax v11, v5, s[16:19], 0 offen offset:12
            buffer_atomic_umax v9, v5, s[16:19], 0 offen offset:16
            buffer_atomic_umax v6, v5, s[16:19], 0 offen offset:20""")
        a.label(Ld)
    if PROF:
        a("s_waitcnt vmcnt(0)")
        stamp(a, 6)
        stamp(a, 7, True)
        a(f"""s_lshl_b32 s100, s2, 4
        s_add_u32 s100, s100, s{swave}
        s_lshl_b32 s100, s100, 8
        s_add_u32 s100, s100, {WS_PROF + kern * 0x100000}
        v_lshlrev_b32 v1, 2, v0
        buffer_store_dword v{vSTAMP}, v1, s[{S_WS_}:{S_WS_+3}], s100 offen
        s_waitcnt vmcnt(0)""")
    a("s_endpgm")


def code_prefetch(a, first, last, nchunk, sidx, swave, wsel, vtmp, sp):
    if "nopf" in EXP:
        return
    L = a.newlabel("nopf"); H = a.newlabel("here")
    a(f"s_cmp_lg_u32 s{swave}, {wsel}\ns_cbranch_scc1 {L}\ns_cmp_ge_u32 s{sidx}, {nchunk}\ns_cbranch_scc1 {L}\ns_getpc_b64 s[{sp}:{sp+1}]")
    a.label(H)
    a(f"""s_sub_u32 s{sp}, s{sp}, {H}-{first}
    s_subb_u32 s{sp+1}, s{sp+1}, 0
    s_lshl_b32 s{sp+2}, s{sidx}, 13
    v_lshl_add_u32 v{vtmp}, v0, 7, s{sp+2}
    v_min_u32 v{vtmp}, {last}-{first}-4, v{vtmp}
    global_load_dword v{vtmp}, v{vtmp}, s[{sp}:{sp+1}]""")
    a.label(L)


def srd(a, d, lo, nbytes):
    a(f"s_mov_b32 s{d}, s{lo}\ns_mov_b32 s{d+1}, s{lo+1}\ns_mov_b32 s{d+2}, {nbytes}\ns_mov_b32 s{d+3}, 0x00020000")


def v4(r): return f"v[{r}:{r+3}]"
def v2(r): return f"v[{r}:{r+1}]"
def s4(r): return f"s[{r}:{r+3}]"


def dpp_row_allreduce(a, op, regs):
    for sh in (8, 4, 2, 1):
        if len(regs) < 3:
            a("s_nop 1")
        for r in regs:
            a(f"{op}_dpp v{r}, v{r}, v{r} row_ror:{sh} row_mask:0xf bank_mask:0xf")


def wave_max_u32_to_sgpr(a, v, sd, st):
    dpp_row_allreduce(a, "v_max_u32", [v])
    a(f"""s_nop 0
    v_readlane_b32 s{sd}, v{v}, 0
    v_readlane_b32 s{st}, v{v}, 16
    s_max_u32 s{sd}, s{sd}, s{st}
    v_readlane_b32 s{st}, v{v}, 32
    s_max_u32 s{sd}, s{sd}, s{st}
    v_readlane_b32 s{st}, v{v}, 48
    s_max_u32 s{sd}, s{sd}, s{st}""")


def round_bf16(a, d, s):
    a(f"v_cvt_pk_bf16_f32 v{d}, v{s}, v{s}\nv_lshlrev_b32 v{d}, 16, v{d}")


XSZ = 208 * 128
WSZ = 16384
SLOT = XSZ + WSZ
K1_STAT = 3 * SLOT
K1_CS = K1_STAT + 2048
K1_KG = K1_CS + 512
K1_SCR = K1_KG + 6 * 4096
K1_CTL = K1_SCR + 2048
K1_LDS = 163840
assert K1_CTL + 64 <= K1_LDS

S_X, S_WG, S_WU, S_WD, S_WS, S_DBG = 4, 8, 12, 16, 20, 24
S_LA, S_AI, S_CR, S_CI, S_DT = 28, 32, 36, 40, 44
S_TMP = 48
sWAVE, sMI, sNI, sROW0, sGI, sIDX, sXCD = 3, 52, 53, 54, 55, 56, 57
sMODE = 64


def k1_loader(a, parts):
    vOX, vOW = 16, 20
    sT, sXO, sWO, sDSL, sPEND = 58, 59, 60, 61, 62
    a(f"""
    s_setprio 3
    v_lshrrev_b32 v8, 3, v0            ; rho
    v_and_b32 v9, 7, v0                ; c'
    v_xor_b32 v10, v9, v8
    v_mul_u32_u24 v{vOX}, 1280, v8
    v_lshl_add_u32 v{vOX}, v10, 4, v{vOX}
    v_bfe_u32 v10, v8, 1, 1
    v_lshrrev_b32 v11, 1, v9
    v_xor_b32 v11, v11, v10
    v_and_b32 v12, 1, v9
    v_lshl_add_u32 v11, v11, 1, v12
    v_mul_u32_u24 v{vOW}, 3072, v8
    v_lshl_add_u32 v{vOW}, v11, 4, v{vOW}
    v_xor_b32 v13, 64, v{vOW}
    v_add_u32 v{vOW + 1}, {8 * 3072 - 1024}, v13
    v_add_u32 v{vOW + 2}, {2 * (8 * 3072 - 1024)}, v{vOW}
    v_add_u32 v{vOW + 3}, {3 * (8 * 3072 - 1024)}, v13
    v_add_u32 v{vOX + 1}, {8 * 1280 - 1024}, v{vOX}
    v_add_u32 v{vOX + 2}, {2 * (8 * 1280 - 1024)}, v{vOX}
    v_add_u32 v{vOX + 3}, {3 * (8 * 1280 - 1024)}, v{vOX}
    s_mul_i32 s{sT}, s{sWAVE}, 104
    s_add_u32 s{sXO}, s{sROW0}, s{sT}
    s_mul_i32 s{sXO}, s{sXO}, 1280
    s_lshl_b32 s{sWO}, s{sNI}, 7
    s_cmp_eq_u32 s{sWAVE}, 0
    s_cselect_b32 s{S_TMP}, s{S_WG}, s{S_WU}
    s_cselect_b32 s{S_TMP+1}, s{S_WG+1}, s{S_WU+1}
    s_mov_b32 s{S_TMP+2}, {640 * 3072}
    s_mov_b32 s{S_TMP+3}, 0x00020000
    s_mul_i32 s92, s{sWAVE}, {13 * 1024}
    s_mul_i32 s93, s{sWAVE}, 8192
    s_add_u32 s93, s93, {XSZ}
    v_lshlrev_b32 v24, 2, v0
    v_lshlrev_b32 v25, 4, v0
    """)
    groups = [("w", 0, 4), ("x", 0, 4), ("x", 4, 4), ("x", 8, 4), ("x", 12, 1), ("w", 4, 4)]

    def issue(st):
        slot = (st % 3) * SLOT
        Lsk = a.newlabel("noiss")
        a(f"s_cmp_ge_u32 s{sIDX}, 30\ns_cbranch_scc1 {Lsk}")
        for (k, i0, n) in groups:
            if k == "x":
                a(f"s_add_u32 m0, s92, {slot + i0 * 1024}\ns_add_u32 s98, s{sXO}, {i0 * 8 * 1280 + st * 128}")
                for j in range(n):
                    a(f"buffer_load_dwordx4 v{vOX + j}, {s4(S_X)}, s98 offen offset:{1024 * j} lds")
            else:
                a(f"s_add_u32 m0, s93, {slot + i0 * 1024}\ns_add_u32 s98, s{sWO}, {(st * 64 + i0 * 8) * 3072}")
                for j in range(n):
                    a(f"buffer_load_dwordx4 v{vOW + j}, {s4(S_TMP)}, s98 offen offset:{1024 * j} lds")
        a.label(Lsk)

    def stage_loads():
        a(f"""s_lshl_b32 s98, s{sROW0}, 3
        s_mov_b32 m0, {K1_STAT}
        s_add_u32 s98, s98, {WS_STATB}
        buffer_load_dwordx4 v25, {s4(S_WS)}, s98 offen sc0 sc1 lds
        buffer_load_dwordx4 v25, {s4(S_WS)}, s98 offen offset:1024 sc0 sc1 lds
        s_lshl_b32 s97, s{sNI}, 8
        s_add_u32 s97, s97, {WS_CS}""")
        for rc in range(5):
            a(f"s_add_u32 s98, s97, {rc * 12288}\nbuffer_load_dword v{32 + rc}, v24, {s4(S_WS)}, s98 offen sc0 sc1")
            a(f"s_add_u32 s98, s97, {rc * 12288 + 6144}\nbuffer_load_dword v{37 + rc}, v24, {s4(S_WS)}, s98 offen sc0 sc1")

    def flags_ok(Lno):
        a(f"v_cmp_le_u32 vcc, 4, v30\ns_and_b32 s{sT}, vcc_lo, vcc_hi\ns_cmp_eq_u32 s{sT}, -1\ns_cbranch_scc0 {Lno}")

    issue(0)
    a("s_setprio 0")
    issue(1)
    stamp(a, 2)
    a("s_barrier")
    a("s_waitcnt vmcnt(21)\ns_setprio 3")
    stamp(a, 3)
    a("s_barrier")
    issue(2)
    L1 = a.newlabel("ldr1")
    for s in range(5):
        a("s_waitcnt vmcnt(21)\ns_barrier")
        issue(s + 3)
    a(f"s_cmp_eq_u32 s{sWAVE}, 1\ns_cbranch_scc1 {L1}")
    for s in (5, 6):
        a("s_waitcnt vmcnt(21)\ns_barrier")
        issue(s + 3)
    a("s_waitcnt vmcnt(21)")
    a("s_branch L_k1_b7")
    a.label(L1)
    Lb = a.newlabel("bk")
    a(f"s_cmp_lt_u32 s{sIDX}, 30\ns_cbranch_scc1 {Lb}\ns_sleep 100")
    a.label(Lb)
    a(f"buffer_load_dword v30, v24, {s4(S_DBG)}, 0 offen sc0 sc1")
    a("s_waitcnt vmcnt(22)\ns_barrier")
    issue(8)
    Lv = a.newlabel("v")
    a(f"s_waitcnt vmcnt(21)\ns_cmp_lt_u32 s{sIDX}, 30\ns_cbranch_scc1 {Lv}\ns_waitcnt vmcnt(0)")
    a.label(Lv)
    a("s_barrier")
    Lok = a.newlabel("fok"); Lsp = a.newlabel("spin"); Lchk = a.newlabel("chk")
    a(f"s_mov_b32 s{sPEND}, 0")
    a.label(Lchk)
    flags_ok(Lsp)
    a.label(Lok)
    stage_loads()
    issue(9)
    a("s_waitcnt vmcnt(33)")
    a("s_branch L_k1_b7")
    a.label(Lsp)
    a(f"""s_sleep 40
    buffer_load_dword v30, v24, {s4(S_DBG)}, 0 offen sc0 sc1
    s_add_u32 s{sPEND}, s{sPEND}, 1
    s_waitcnt vmcnt(0)
    s_cmp_lt_u32 s{sPEND}, 200000
    s_cbranch_scc1 {Lchk}
    s_branch {Lok}""")
    a.label("L_k1_b7")
    a("s_barrier")
    a(f"s_lshl_b32 s{sT}, s{sWAVE}, 13\ns_add_u32 s98, s{sT}, {WS_STATA}")
    for g in range(2):
        a(f"s_add_u32 m0, s{sT}, {SLOT + 4096 * g}\ns_add_u32 s97, s98, {4096 * g}")
        for j in range(4):
            a(f"buffer_load_dwordx4 v25, {s4(S_WS)}, s97 offen offset:{1024 * j} sc0 sc1 lds")
    Ln = a.newlabel("nocs")
    a(f"s_waitcnt vmcnt(8)\ns_cmp_eq_u32 s{sWAVE}, 0\ns_cbranch_scc1 {Ln}")
    for rc in range(1, 5):
        a(f"v_add_f32 v32, v32, v{32 + rc}\nv_add_f32 v37, v37, v{37 + rc}")
    a(f"""v_add_u32 v26, {K1_CS}, v24
    ds_write_b32 v26, v32
    ds_write_b32 v26, v37 offset:256
    s_waitcnt lgkmcnt(0)""")
    a.label(Ln)
    a("s_barrier")
    stamp(a, 4)
    a(f"""s_waitcnt vmcnt(0)
    v_mov_b32 v3, {K1_CTL}
    v_mov_b32 v4, 1
    s_mov_b64 exec, 1
    ds_add_u32 v3, v4 offset:12
    s_mov_b64 exec, -1
    s_waitcnt lgkmcnt(0)""")
    stamp_end(a, 0, S_WS, sWAVE)


def k1_gemm(a, var):
    extra = 1 if var < 2 else 0
    NB = 3 + extra
    A = [6, 22]
    B = [38, 54]
    ACC = 70
    vA0, vA1, vAW, vAW1 = 2, 3, 4, 5
    sST, sSLOT, sT = 58, 60, 62
    sFP, sLQ = 95, 94
    T0 = 38

    a(f"s_sub_u32 s{sT}, s{sWAVE}, 2\ns_and_b32 s{sFP}, s{sT}, 1\ns_lshr_b32 s{sLQ}, s{sT}, 1")
    a(f"""
    v_and_b32 v{T0}, 15, v0
    v_lshrrev_b32 v{T0+1}, 4, v0
    v_and_b32 v{T0+2}, 7, v{T0}
    v_xor_b32 v{T0+2}, v{T0+2}, v{T0+1}
    v_lshlrev_b32 v{vA0}, 7, v{T0}
    v_lshl_add_u32 v{vA0}, v{T0+2}, 4, v{vA0}
    s_mul_i32 s{sT}, s{sLQ}, {3 * 2048}
    v_add_u32 v{vA0}, s{sT}, v{vA0}
    v_xor_b32 v{vA1}, 64, v{vA0}
    v_lshrrev_b32 v{T0+2}, 2, v{T0}           ; r
    v_and_b32 v{T0+3}, 3, v{T0}               ; c
    v_lshrrev_b32 v{T0+4}, 1, v{T0+2}
    v_and_b32 v{T0+5}, 1, v{T0+1}
    v_lshl_or_b32 v{T0+4}, v{T0+5}, 1, v{T0+4}
    s_lshl_b32 s{sT}, s{sFP}, 1
    v_xor_b32 v{T0+4}, s{sT}, v{T0+4}
    v_lshl_add_u32 v{T0+5}, v{T0+1}, 3, v{T0+2}     ; 8hq + r
    v_lshlrev_b32 v{vAW}, 7, v{T0+5}
    v_lshl_add_u32 v{vAW}, v{T0+4}, 5, v{vAW}
    v_lshl_add_u32 v{vAW}, v{T0+3}, 3, v{vAW}
    v_add_u32 v{vAW}, {XSZ}, v{vAW}
    v_xor_b32 v{vAW1}, 32, v{vAW}
    """)
    for r in range(ACC, ACC + 48 + 8 * extra, 2):
        a(f"v_mov_b64 {v2(r)}, 0")

    def next_addr():
        a(f"""s_add_u32 s{sSLOT}, s{sSLOT}, 1
        s_cmp_eq_u32 s{sSLOT}, 3
        s_cselect_b32 s{sT}, s63, {SLOT}
        s_cselect_b32 s{sSLOT}, 0, s{sSLOT}""")

    def set_addr():
        for r in (vAW, vA0, vAW1, vA1):
            a(f"v_add_u32 v{r}, s{sT}, v{r}")

    def reads(kk):
        R = []

        def rA(fr):
            for s in range(2):
                R.append((f"A{kk}{fr}", f"ds_read_b64_tr_b16 {v2(A[kk] + 4 * fr + 2 * s)}, v{vAW1 if fr >= 2 else vAW} offset:{kk * 4096 + s * 512 + (8192 if fr & 1 else 0)}"))

        def rB(t):
            off = (12 - 3 * var) * 2048 if t == 3 else t * 2048
            R.append((f"B{kk}{t}", f"ds_read_b128 {v4(B[kk] + 4 * t)}, v{vA1 if kk else vA0} offset:{off}"))
        rA(0); rB(0); rA(1); rA(2); rA(3)
        for t in range(1, NB):
            rB(t)
        return R

    def mf(t, fr, kk):
        acc = ACC + 48 + 4 * (fr & 1) if t == 3 else ACC + 16 * t + 4 * fr
        a(f"v_mfma_f32_16x16x32_bf16 {v4(acc)}, {v4(A[kk] + 4 * fr)}, {v4(B[kk] + 4 * t)}, {v4(acc)}")

    def phase(lq, kk, R):
        R = list(R)
        for t in range(3):
            for fr in range(4):
                lq.wait(f"A{kk}{fr}", f"B{kk}{t}")
                mf(t, fr, kk)
                if R:
                    tg, ins = R.pop(0)
                    lq.issue(tg, ins)
        while R:
            tg, ins = R.pop(0)
            lq.issue(tg, ins)
        if extra:
            lq.wait(f"B{kk}3")
            mf(3, 2 * var, kk); mf(3, 2 * var + 1, kk)

    stamp(a, 2)
    a(f"s_mov_b32 s{sSLOT}, 0\ns_mov_b32 s{sST}, 0\ns_mov_b32 s63, {(-2 * SLOT) & 0xffffffff}\ns_setprio 2\ns_waitcnt lgkmcnt(0)\ns_barrier")
    stamp(a, 3)
    lq = LQ(a)
    for tg, ins in reads(0):
        lq.issue(tg, ins)
    seed = list(lq.q)

    def body(last):
        lq = LQ(a, seed)
        phase(lq, 0, reads(1))
        if not last:
            next_addr()
            lq.drain()
            a("s_waitcnt vmcnt(0)")
            set_addr()
            if CSTAMP:
                stamp_dyn(a, sST, 8, 2)
            a("s_barrier")
            if CSTAMP:
                stamp_dyn(a, sST, 9, 2)
            phase(lq, 1, reads(0))
        else:
            phase(lq, 1, [])

    Lloop = a.newlabel("gloop")
    a.label(Lloop)
    body(False)
    a(f"s_add_u32 s{sST}, s{sST}, 1\ns_cmp_lt_u32 s{sST}, 9\ns_cbranch_scc1 {Lloop}")
    body(True)

    a("s_setprio 1")
    stamp(a, 4)
    vSA, vCA, vHO = 2, 3, 4
    CS = 8
    ST = 24
    a(f"""
    v_and_b32 v{T0}, 15, v0
    v_lshrrev_b32 v{T0+1}, 4, v0
    s_mul_i32 s{sT}, s{sLQ}, {3 * 128}
    s_add_u32 s{sT}, s{sT}, {K1_STAT}
    v_lshl_add_u32 v{vSA}, v{T0}, 3, s{sT}
    s_lshl_b32 s{sT}, s{sFP}, 7
    s_add_u32 s{sT}, s{sT}, {K1_CS}
    v_lshl_add_u32 v{vCA}, v{T0+1}, 4, s{sT}
    ds_read_b128 {v4(CS)}, v{vCA}
    ds_read_b128 {v4(CS + 4)}, v{vCA} offset:256
    ds_read_b128 {v4(CS + 8)}, v{vCA} offset:64
    ds_read_b128 {v4(CS + 12)}, v{vCA} offset:320
    """)
    for t in range(3):
        a(f"ds_read_b64 {v2(ST + 2 * t)}, v{vSA} offset:{t * 128}")
    if extra:
        a(f"ds_read_b64 {v2(ST + 6)}, v{vSA} offset:{(12 - 3 * var) * 128}")
    a(f"""
    v_lshlrev_b32 v{vHO}, 4, v0
    s_lshr_b32 s96, s{sROW0}, 4
    s_mul_i32 s96, s96, 49152
    s_lshl_b32 s97, s{sNI}, 1
    s_add_u32 s97, s97, s{sFP}
    s_lshl_b32 s97, s97, 10
    s_add_u32 s96, s96, s97
    s_add_u32 s96, s96, {WS_H}
    s_mul_i32 s97, s{sLQ}, {3 * 49152}
    s_add_u32 s99, s96, s97
    s_mov_b32 s98, 0xbfb8aa3b           ; -log2e
    s_waitcnt lgkmcnt(0)
    """)
    TM = 40
    PK = 48
    c1 = 56

    def act(g, u, csg, csu, m, s, pk):
        for r in range(4):
            a(f"v_fma_f32 v{TM + r}, -v{m}, v{csg + r}, v{g + r}")
        for r in range(4):
            a(f"v_mul_f32 v{TM + r}, v{TM + r}, v{c1}")
        for r in range(4):
            a(f"v_exp_f32 v{TM + r}, v{TM + r}")
        for r in range(4):
            a(f"v_fma_f32 v{TM + 4 + r}, -v{m}, v{csu + r}, v{u + r}")
        for r in range(4):
            a(f"v_fma_f32 v{TM + r}, v{TM + r}, v{s}, v{s}")
        for r in range(4):
            a(f"v_rcp_f32 v{TM + r}, v{TM + r}")
        a("s_nop 0")
        for r in range(4):
            a(f"v_mul_f32 v{TM + 4 + r}, v{TM + 4 + r}, v{TM + r}")
        a(f"v_cvt_pk_bf16_f32 v{pk}, v{TM + 4}, v{TM + 5}\nv_cvt_pk_bf16_f32 v{pk + 1}, v{TM + 6}, v{TM + 7}")

    for t in range(3):
        m, s = ST + 2 * t, ST + 2 * t + 1
        Lsk = None
        if var == 0 and t < 2:
            Lsk = a.newlabel("skipst")
            a(f"s_cmp_eq_u32 s{sMI}, 9\ns_cbranch_scc1 {Lsk}")
        a(f"v_rcp_f32 v{c1}, v{s}\ns_nop 0\nv_mul_f32 v{c1}, s98, v{c1}")
        b = PK + 4 * (t & 1)
        act(ACC + 16 * t, ACC + 16 * t + 4, CS, CS + 4, m, s, b)
        act(ACC + 16 * t + 8, ACC + 16 * t + 12, CS + 8, CS + 12, m, s, b + 2)
        a(f"s_add_u32 s97, s99, {t * 49152}")
        a(f"buffer_store_dwordx4 {v4(b)}, v{vHO}, {s4(S_WS)}, s97 offen")
        if Lsk:
            a.label(Lsk)
    if extra:
        m, s = ST + 6, ST + 7
        a(f"v_rcp_f32 v{c1}, v{s}\ns_nop 0\nv_mul_f32 v{c1}, s98, v{c1}")
        act(ACC + 48, ACC + 52, CS + 8 * var, CS + 4 + 8 * var, m, s, PK + 4)
        a(f"s_add_u32 s97, s96, {12 * 49152 + 8 * var}")
        a(f"buffer_store_dwordx2 {v2(PK + 4)}, v{vHO}, {s4(S_WS)}, s97 offen")
    stamp(a, 5)
    stamp_end(a, 0, S_WS, sWAVE)


def sliced(a, fn, nbar):
    b = Asm()
    b.uid = a.uid + 1000
    fn(b)
    a.uid = b.uid
    n = len(b.L)
    cuts = {(n * (i + 1)) // nbar for i in range(nbar)}
    assert len(cuts) == nbar
    for i, l in enumerate(b.L):
        a.L.append(l)
        if i + 1 in cuts:
            a("s_barrier")


def k1_stats_loads(a):
    a(f"""
    v_lshrrev_b32 v5, 4, v0
    v_and_b32 v6, 15, v0
    v_mul_u32_u24 v7, 1280, v5
    v_lshl_add_u32 v7, v6, 4, v7
    s_and_b32 s58, s{sXCD}, 1
    s_lshl_b32 s58, s58, 10
    s_lshr_b32 s59, s{sXCD}, 1
    s_lshl_b32 s59, s59, 8
    s_add_u32 s58, s58, s59
    s_lshl_b32 s59, s{sIDX}, 3
    s_add_u32 s58, s58, s59
    s_mul_i32 s59, s58, 1280
    s_add_u32 s60, s59, {4 * 1280}
    """)
    for p in range(2):
        for j in range(5):
            a(f"buffer_load_dwordx4 {v4(8 + 20 * p + 4 * j)}, v7, {s4(S_X)}, s{59 + p} offen offset:{256 * j}")


def k1_stats(a, nlater):
    RAW = 8
    AC = 48
    D = 56
    a(f"""
    v_mov_b32 v72, 0x3f803f80
    s_mov_b32 s92, 0x9999999a
    s_mov_b32 s93, 0x3f599999           ; 1/640 (f64)
    s_mov_b32 s94, 0x3727c5ac           ; 1e-5
    s_lshl_b32 s59, s58, 3
    v_lshl_add_u32 v73, v5, 3, s59
    v_lshrrev_b32 v74, 1, v5
    v_lshlrev_b32 v74, 12, v74
    v_and_b32 v75, 1, v5
    v_lshl_add_u32 v74, v75, 3, v74
    s_lshl_b32 s59, s58, 1
    v_add_u32 v74, s59, v74
    """)
    for r in range(AC, AC + 8, 2):
        a(f"v_mov_b64 {v2(r)}, 0")
    for p in range(2):
        a(f"s_waitcnt vmcnt({nlater + 5 - 5 * p})")
        for i in range(20):
            x = RAW + 20 * p + i
            a(f"v_dot2c_f32_bf16 v{AC + 4 * p + (i & 1)}, v{x}, v72\nv_dot2c_f32_bf16 v{AC + 4 * p + 2 + (i & 1)}, v{x}, v{x}")
    a("s_nop 2")
    for c in range(4):
        a(f"v_cvt_f64_f32 {v2(D + 2 * c)}, v{AC + 2 * c}\nv_cvt_f64_f32 {v2(D + 8 + 2 * c)}, v{AC + 2 * c + 1}")
    for c in range(4):
        a(f"v_add_f64 {v2(D + 2 * c)}, {v2(D + 2 * c)}, {v2(D + 8 + 2 * c)}")
    for sh in (8, 4, 2, 1):
        for c in range(4):
            for h in range(2):
                a(f"v_mov_b32_dpp v{D + 8 + 2 * c + h}, v{D + 2 * c + h} row_ror:{sh} row_mask:0xf bank_mask:0xf")
        for c in range(4):
            a(f"v_add_f64 {v2(D + 2 * c)}, {v2(D + 2 * c)}, {v2(D + 8 + 2 * c)}")
    for p in range(2):
        m, v = D + 4 * p, D + 4 * p + 2
        a(f"""v_mul_f64 {v2(m)}, {v2(m)}, s[92:93]
        v_mul_f64 {v2(v)}, {v2(v)}, s[92:93]
        v_fma_f64 {v2(v)}, -{v2(m)}, {v2(m)}, {v2(v)}
        v_cvt_f32_f64 v76, {v2(m)}
        v_cvt_f32_f64 v77, {v2(v)}
        v_max_f32 v77, 0, v77""")
        round_bf16(a, 78, 76)
        round_bf16(a, 77, 77)
        a("v_add_f32 v77, s94, v77")
        round_bf16(a, 77, 77)
        a("v_sqrt_f32 v77, v77\ns_nop 0")
        round_bf16(a, 79, 77)
        a("v_rcp_f32 v80, v79\ns_nop 0\nv_mul_f32_e64 v81, -v78, v80")
        a(f"""
        v_cmp_eq_u32 vcc, 0, v6
        s_and_saveexec_b64 s[96:97], vcc
        s_mov_b32 s98, {WS_STATB + 32 * p}
        s_mov_b32 s99, {WS_STATA + 8192 * p}
        buffer_store_dwordx2 v[78:79], v73, {s4(S_WS)}, s98 offen sc0 sc1
        buffer_store_dwordx2 v[80:81], v74, {s4(S_WS)}, s99 offen sc0 sc1
        s_mov_b64 exec, -1
        """)


def k1_colsum_loads(a):
    a(f"""
    v_lshrrev_b32 v5, 3, v0
    v_and_b32 v6, 7, v0
    v_mul_u32_u24 v7, 3072, v5
    v_lshl_add_u32 v7, v6, 4, v7
    s_and_b32 s58, s{sXCD}, 1
    s_mul_i32 s58, s58, 30
    s_add_u32 s58, s58, s{sIDX}         ; u
    s_mul_i32 s59, s58, 43
    s_lshr_b32 s59, s59, 9              ; rc = u/12
    s_mul_i32 s60, s59, 12
    s_sub_u32 s60, s58, s60             ; cbl
    s_cmp_ge_u32 s60, 6
    s_cselect_b32 s{S_TMP}, s{S_WU}, s{S_WG}
    s_cselect_b32 s{S_TMP+1}, s{S_WU+1}, s{S_WG+1}
    s_cselect_b32 s96, 6, 0
    s_cselect_b32 s97, 24, 0
    s_mov_b32 s{S_TMP+2}, {640 * 3072}
    s_mov_b32 s{S_TMP+3}, 0x00020000
    s_sub_u32 s60, s60, s96
    s_lshr_b32 s96, s{sXCD}, 1
    s_mul_i32 s96, s96, 6
    s_add_u32 s60, s60, s96             ; n tile
    s_lshl_b32 s96, s60, 7
    s_mul_i32 s98, s59, {128 * 3072}
    s_add_u32 s96, s96, s98
    s_add_u32 s60, s60, s97
    """)
    for i in range(16):
        a(f"s_add_u32 s98, s96, {i * 8 * 3072}\nbuffer_load_dwordx4 {v4(8 + 4 * i)}, v7, {s4(S_TMP)}, s98 offen")


def k1_colsum(a, nlater):
    RAW = 8
    AC = 72
    a("v_mov_b32 v80, 0x00003f80\nv_mov_b32 v81, 0x3f800000")
    for r in range(AC, AC + 8, 2):
        a(f"v_mov_b64 {v2(r)}, 0")
    for i in range(16):
        if i % 4 == 0:
            a(f"s_waitcnt vmcnt({nlater + 12 - i})")
        for k in range(4):
            r = RAW + 4 * i + k
            a(f"v_dot2c_f32_bf16 v{AC + 2 * k}, v{r}, v80\nv_dot2c_f32_bf16 v{AC + 2 * k + 1}, v{r}, v81")
    a(f"""
    v_lshlrev_b32 v80, 5, v0
    v_add_u32 v80, {K1_SCR}, v80
    v_lshlrev_b32 v81, 2, v0
    v_add_u32 v82, {K1_SCR}, v81
    ds_write_b128 v80, {v4(AC)}
    ds_write_b128 v80, {v4(AC + 4)} offset:16
    """)
    for i in range(8):
        a(f"ds_read_b32 v{RAW + i}, v82 offset:{256 * i}")
    a("s_waitcnt lgkmcnt(0)")
    for i in range(1, 8):
        a(f"v_add_f32 v{RAW}, v{RAW}, v{RAW + i}")
    a(f"""
    s_mul_i32 s96, s59, {3072 * 4}
    s_lshl_b32 s97, s60, 8
    s_add_u32 s96, s96, s97
    s_add_u32 s96, s96, {WS_CS}
    buffer_store_dword v{RAW}, v81, {s4(S_WS)}, s96 offen sc0 sc1
    """)


KG_P = 8
KG_TILE = 60
KG_ACC = 16


def kgen_loads(a, sCH, sRND, D=KG_P):
    a(f"""
    s_lshl_b32 s96, s{sRND}, 7
    v_lshl_add_u32 v2, v0, 1, s96
    s_mul_i32 s96, s{sCH}, 384
    s_lshl_b32 s97, s{sCH}, 1
    v_mov_b32 v3, 0
    buffer_load_ushort v{D+4}, v3, {s4(S_DT)}, s97 offen
    buffer_load_ushort v{D}, v2, {s4(S_LA)}, s96 offen
    buffer_load_ushort v{D+1}, v2, {s4(S_AI)}, s96 offen
    buffer_load_ushort v{D+2}, v2, {s4(S_CR)}, s96 offen
    buffer_load_ushort v{D+3}, v2, {s4(S_CI)}, s96 offen
    """)


def kgen_valu(a):
    vLA, vAI, vCR, vCI, vDT = KG_P, KG_P + 1, KG_P + 2, KG_P + 3, KG_P + 4
    lr, th = 13, 14
    T = 16
    nxt = [24]

    def creg():
        r = nxt[0]
        nxt[0] += 2
        assert r + 1 < KG_TILE
        return (r, r + 1)

    def preg():
        r = nxt[0]
        nxt[0] += 1
        assert r < KG_TILE
        return r

    a("s_mov_b32 s88, 0x3fb8aa3b\ns_mov_b32 s89, 0x32a57060\ns_mov_b32 s90, 0x3f317218")

    def expbf(d, x, t):
        a(f"""v_mul_f32 v{t}, s88, v{x}
        v_fma_f32 v{t+1}, v{x}, s88, -v{t}
        v_exp_f32 v{t}, v{t}
        v_fma_f32 v{t+1}, v{x}, s89, v{t+1}
        v_mul_f32 v{t+1}, s90, v{t+1}
        v_fma_f32 v{t}, v{t}, v{t+1}, v{t}""")
        round_bf16(a, d, t)

    for r in range(5):
        a(f"v_lshlrev_b32 v{KG_P + r}, 16, v{KG_P + r}")
    a(f"""v_and_b32 v{T+2}, 0x7fffffff, v{vCR}
    v_and_b32 v{T+3}, 0x7fffffff, v{vCI}
    v_max_u32 v{T+2}, v{T+2}, v{T+3}""")
    expbf(vDT, vDT, T)
    expbf(vLA, vLA, T)
    a(f"""v_mul_f32 v{lr}, v{vLA}, v{vDT}
    v_mul_f32 v{th}, v{vAI}, v{vDT}
    v_mul_f32_e64 v{lr}, -v{lr}, s88
    v_mul_f32 v{th}, 0.15915494, v{th}""")
    wave_max_u32_to_sgpr(a, T + 2, 92, 93)
    a(f"""s_lshr_b32 s92, s92, 23
    s_max_u32 s92, s92, 1
    s_min_u32 s92, s92, 252
    s_sub_u32 s93, 253, s92
    s_lshl_b32 s93, s93, 23             ; sc
    s_add_u32 s92, s92, 2
    s_lshl_b32 s92, s92, 23             ; 2/sc
    v_mul_f32 v{vCR}, s93, v{vCR}
    v_mul_f32 v{vCI}, s93, v{vCI}
    v_mul_f32 v{vDT}, s92, v{vDT}""")

    def anchors(specs):
        ds = [creg() for _ in specs]
        for d, (e, cj) in zip(ds, specs):
            a(f"v_mul_f32 v{d[0]}, {f32(e)}, v{lr}\nv_mul_f32 v{d[1]}, {f32(e)}, v{th}")
        for d in ds:
            a(f"v_exp_f32 v{d[0]}, v{d[0]}\nv_fract_f32 v{d[1]}, v{d[1]}")
        for i, d in enumerate(ds):
            a(f"v_cos_f32 v{T + 2 * i}, v{d[1]}\nv_sin_f32 v{T + 2 * i + 1}, v{d[1]}")
        for i, (d, (e, cj)) in enumerate(zip(ds, specs)):
            a(f"v_mul_f32_e64 v{d[1]}, {'-' if cj else ''}v{d[0]}, v{T + 2 * i + 1}\nv_mul_f32 v{d[0]}, v{d[0]}, v{T + 2 * i}")
        return ds

    tsel = [0]

    def cmul(x, y, d=None):
        d = d or creg()
        t = T + 2 * (tsel[0] & 1)
        tsel[0] += 1
        a(f"""v_mul_f32 v{t}, v{x[1]}, v{y[1]}
        v_mul_f32 v{t+1}, v{x[0]}, v{y[1]}
        v_fma_f32 v{d[0]}, v{x[0]}, v{y[0]}, -v{t}
        v_fma_f32 v{d[1]}, v{x[1]}, v{y[0]}, v{t+1}""")
        return d

    def packm(x):
        d = preg()
        a(f"v_cvt_pk_f16_f32 v{d}, v{x[0]}, v{x[1]}")
        return d

    def packpair(x, y, dre, dim):
        a(f"v_cvt_pk_f16_f32 v{dre}, {x[0]}, {y[0]}\nv_cvt_pk_f16_f32 v{dim}, {x[1]}, {y[1]}")

    def V(x): return (f"v{x[0]}", f"v{x[1]}")

    def pmul(sre, sim, m, dre, dim):
        a(f"""v_pk_mul_f16 v{dre}, v{sre}, v{m} op_sel:[0,0] op_sel_hi:[1,0]
        v_pk_mul_f16 v{dim}, v{sre}, v{m} op_sel:[0,1] op_sel_hi:[1,1]
        v_pk_fma_f16 v{dre}, v{sim}, v{m}, v{dre} op_sel:[0,1,0] op_sel_hi:[1,1,1] neg_lo:[0,1,0] neg_hi:[0,1,0]
        v_pk_fma_f16 v{dim}, v{sim}, v{m}, v{dim} op_sel:[0,0,0] op_sel_hi:[1,0,1]""")

    def RE(t, i): return KG_TILE + 16 * t + i
    def IM(t, i): return KG_TILE + 16 * t + 8 + i

    mark = nxt[0]
    z8, z32 = anchors([(8.0, True), (32.0, True)])
    a("s_nop 0")
    z16 = cmul(z8, z8); z64 = cmul(z32, z32); z24 = cmul(z16, z8); z96 = cmul(z64, z32)
    packpair(("1.0", "0"), V(z8), RE(0, 0), IM(0, 0))
    packpair(V(z16), V(z24), RE(0, 1), IM(0, 1))
    ms = [packm(X) for X in (z32, z64, z96)]
    for i, m in enumerate(ms):
        for b in range(2):
            pmul(RE(0, b), IM(0, b), m, RE(0, 2 + 2 * i + b), IM(0, 2 + 2 * i + b))
    nxt[0] = mark
    z1, z128, z1024 = anchors([(1.0, False), (128.0, False), (1024.0, False)])
    c = [(vCR, vCI)]
    for i in range(7):
        c.append(cmul(c[-1], z1))
    m128 = packm(z128)
    for i in range(4):
        packpair(V(c[2 * i]), V(c[2 * i + 1]), RE(1, i), IM(1, i))
    for i in range(4):
        pmul(RE(1, i), IM(1, i), m128, RE(1, 4 + i), IM(1, 4 + i))
    p02 = creg(); p46 = creg(); p04 = creg()
    packpair(V(c[0]), V(c[2]), *p02); packpair(V(c[4]), V(c[6]), *p46); packpair(V(c[0]), V(c[4]), *p04)
    z256 = cmul(z128, z128, c[1]); b0 = cmul(c[0], z1024, c[7]); z384 = cmul(z256, z128, c[2]); z512 = cmul(z256, z256, c[3])
    b1 = cmul(b0, z128, z1); z640 = cmul(z512, z128, c[4]); z768 = cmul(z384, z384, c[5]); z896 = cmul(z768, z128, c[6])
    M = {k: packm(v) for k, v in (("256", z256), ("384", z384), ("512", z512), ("640", z640), ("768", z768), ("896", z896))}
    c2048 = cmul(b0, z1024, z256)
    for i, k in enumerate(("256", "384")):
        pmul(p02[0], p02[1], M[k], RE(2, 2 * i), IM(2, 2 * i))
        pmul(p46[0], p46[1], M[k], RE(2, 2 * i + 1), IM(2, 2 * i + 1))
    for i, k in enumerate(("512", "640", "768", "896")):
        pmul(p04[0], p04[1], M[k], RE(2, 4 + i), IM(2, 4 + i))
    packpair(V(b0), V(b1), RE(3, 0), IM(3, 0))
    for i, k in enumerate(("256", "512", "768")):
        pmul(RE(3, 0), IM(3, 0), M[k], RE(3, 1 + i), IM(3, 1 + i))
    packpair(V(c2048), ("0", "0"), RE(3, 4), IM(3, 4))
    a(f"v_mov_b32 v{RE(3, 5)}, 0\nv_mov_b32 v{IM(3, 5)}, 0\nv_mov_b64 {v2(RE(3, 6))}, 0\nv_mov_b64 {v2(IM(3, 6))}, 0")


def kgen_addr(a, sKB):
    T = 16
    a(f"""
    v_bfe_u32 v{T}, v0, 1, 2
    v_lshlrev_b32 v{T+1}, 6, v0
    v_add_u32 v{T+1}, s{sKB}, v{T+1}
    v_lshl_add_u32 v2, v{T}, 4, v{T+1}
    v_xor_b32 v3, 16, v2
    v_xor_b32 v4, 32, v2
    v_xor_b32 v5, 48, v2
    v_lshrrev_b32 v{T}, 4, v0                ; hq
    v_bfe_u32 v{T+1}, v0, 2, 2               ; r
    v_and_b32 v{T+2}, 3, v0                  ; c
    v_lshrrev_b32 v{T+3}, 1, v{T+1}
    v_lshl_add_u32 v{T+3}, v{T}, 1, v{T+3}
    v_lshlrev_b32 v6, 6, v{T+3}
    v_and_b32 v{T+1}, 1, v{T+1}
    v_lshrrev_b32 v{T+3}, 1, v{T+2}
    v_lshl_add_u32 v{T+1}, v{T+1}, 1, v{T+3}
    v_xor_b32 v{T+1}, v{T+1}, v{T}
    v_lshl_add_u32 v6, v{T+1}, 4, v6
    v_and_b32 v{T+2}, 1, v{T+2}
    v_lshl_add_u32 v6, v{T+2}, 3, v6
    v_add_u32 v6, s{sKB}, v6
    """)
    for r in range(KG_ACC, KG_ACC + 12, 2):
        a(f"v_mov_b64 {v2(r)}, 0")


def kgen_flush(a):
    lq = LQ(a)
    for t in range(4):
        for q in range(4):
            lq.issue(f"w{t}", f"ds_write_b128 v{2 + q}, {v4(KG_TILE + 16 * t + 4 * q)}")
        for k in range(4):
            for s in range(2):
                lq.issue(f"f{t}{k}", f"ds_read_b64_tr_b16 {v2(KG_TILE + 16 * t + 4 * k + 2 * s)}, v6 offset:{1024 * k + 512 * s}")
        if t >= 2:
            for k in range(4):
                lq.wait(f"f{t-1}{k}")
                a(f"v_mfma_f32_16x16x32_f16 {v4(KG_ACC + 4 * (t - 2))}, {v4(KG_TILE + 16 * (t - 1) + 4 * k)}, {v4(KG_TILE + 4 * k)}, {v4(KG_ACC + 4 * (t - 2))}")
    for k in range(4):
        lq.wait(f"f3{k}")
        a(f"v_mfma_f32_16x16x32_f16 {v4(KG_ACC + 8)}, {v4(KG_TILE + 48 + 4 * k)}, {v4(KG_TILE + 4 * k)}, {v4(KG_ACC + 8)}")
    a("s_nop 7")
    for r in range(KG_ACC, KG_ACC + 12):
        a(f"v_mul_f32 v{r}, v{r}, v{KG_P + 4}")


def kgen_final(a, sCH, sKB, sPB, store):
    from_lds = True
    KACC = KG_ACC
    P = 88
    T = 80
    a(f"v_lshlrev_b32 v{T}, 4, v0\nv_add_u32 v{T+1}, s{sKB}, v{T}\nv_add_u32 v{T+2}, s{sPB}, v{T}")
    for w in range(2):
        for t in range(3):
            a(f"ds_read_b128 {v4(P + 12 * w + 4 * t)}, v{T+2} offset:{4096 * w + 1024 * t}")
    a(f"v_mov_b32 v48, 0\nv_mov_b32 v49, 0\nv_mov_b32 v50, 0\nv_mov_b32 v51, 0")
    for i in range(4):
        a(f"ds_write_b128 v{T+1}, v[48:51] offset:{1024 * i}")
    j, hq = T + 2, T + 3
    b0, b2 = 52, 53
    a1 = 54
    a(f"""
    v_and_b32 v{j}, 15, v0
    v_lshrrev_b32 v{hq}, 4, v0
    v_lshrrev_b32 v{T+4}, 1, v{hq}
    v_and_b32 v{T+5}, 1, v{hq}
    v_lshlrev_b32 v{T+6}, 7, v{T+4}
    v_lshl_add_u32 v{T+6}, v{T+5}, 2, v{T+6}
    v_lshl_add_u32 v{T+6}, v{j}, 3, v{T+6}
    v_sub_u32 v{T+6}, 285, v{T+6}
    v_lshl_add_u32 v{b0}, v{T+6}, 1, s{sKB}
    v_lshlrev_b32 v{T+6}, 6, v{T+5}                 ; 64*(hq&1)
    v_add_u32 v{T+6}, s{sKB}, v{T+6}
    v_lshl_add_u32 v{T+7}, v{j}, 2, v{T+6}
    v_lshl_add_u32 v{T+6}, v{j}, 1, v{T+6}
    v_cmp_gt_u32 vcc, 2, v{hq}
    """)
    for r in range(4):
        lo = (T1O if r & 1 else T1E) + 2 * (59 + (r >> 1))
        hi = (T2O + 60 if r & 1 else T2E + 58) + 32 * (r >> 1)
        a(f"v_add_u32 v60, {lo}, v{T+7}\nv_add_u32 v61, {hi}, v{T+6}\nv_cndmask_b32 v{a1 + r}, v61, v60, vcc")
    a(f"""
    s_add_u32 s96, s{sKB}, {T0E + 64}
    v_writelane_b32 v{a1}, s96, 0
    s_add_u32 s96, s{sKB}, {T0E + 60}
    v_writelane_b32 v{a1 + 1}, s96, 0
    s_add_u32 s96, s{sKB}, {T1E + 246}
    v_writelane_b32 v{a1}, s96, 32
    v_and_b32 v60, 1, v{j}
    v_mul_u32_u24 v60, {T3OE + 30 - (T3EE + 28)}, v60
    v_lshrrev_b32 v61, 1, v{j}
    v_lshl_add_u32 v61, v{hq}, 5, v61
    v_lshl_add_u32 v{b2}, v61, 1, v60
    s_add_u32 s96, s{sKB}, {T3EE + 28}
    v_add_u32 v{b2}, s96, v{b2}
    v_mov_b32 v62, s{sKB}
    s_waitcnt lgkmcnt(4)
    """)
    if from_lds:
        for r in range(12):
            a(f"v_add_f32 v{KACC + r}, v{KACC + r}, v{P + r}")
        for r in range(12):
            a(f"v_add_f32 v{KACC + r}, v{KACC + r}, v{P + 12 + r}")
    a(f"v_max3_f32 v63, abs(v{KACC}), abs(v{KACC+1}), abs(v{KACC+2})")
    for r in range(3, 11, 2):
        a(f"v_max3_f32 v63, v63, abs(v{KACC + r}), abs(v{KACC + r + 1})")
    a(f"v_max_f32_e64 v63, v63, abs(v{KACC + 11})")
    wave_max_u32_to_sgpr(a, 63, 92, 93)
    a(f"""s_lshr_b32 s92, s92, 23
    s_max_u32 s92, s92, 1
    s_min_u32 s92, s92, 252
    s_sub_u32 s93, 253, s92
    s_lshl_b32 s93, s93, 23             ; 1/sigma
    s_add_u32 s92, s92, 1
    s_lshl_b32 s92, s92, 23             ; sigma""")
    for r in range(12):
        a(f"v_mul_f32 v{KACC + r}, s93, v{KACC + r}")
    H = 64
    for i in range(6):
        a(f"v_cvt_pk_f16_f32 v{H + i}, v{KACC + 2 * i}, v{KACC + 2 * i + 1}")

    def w16(addr, r, tile, off):
        reg = H + 2 * tile + (r >> 1)
        a(f"ds_write_b16{'_d16_hi' if r & 1 else ''} v{addr}, v{reg} offset:{off}")
    for r in range(4):
        w16(b0, r, 0, T0E + 2 * (3 - r))
        w16(b0, r, 0, T0O - 2 + 2 * (3 - r))
        w16(a1 + r, r, 1, 0)
    a("s_mov_b32 exec_hi, 0")
    for r in range(1, 4):
        w16(b2, r, 2, 16 * r)
        w16(b2, r, 2, 16 * r + 158)
    a("s_mov_b32 exec_lo, 0xfffffffe\ns_mov_b32 exec_hi, 1")
    w16(b2, 0, 2, 0)
    w16(b2, 0, 2, 158)
    a("s_mov_b64 exec, 1")
    w16(62, 0, 1, T0E + 62); w16(62, 0, 1, T0O + 62); w16(62, 0, 1, T0O + 60); w16(62, 1, 1, T0O + 58)
    w16(62, 0, 2, TK1024)
    a(f"v_mov_b32 v63, s92\nds_write_b32 v62, v63 offset:{TSIG}")
    a("s_mov_b32 exec_lo, 0\ns_mov_b32 exec_hi, 1")
    w16(62, 0, 1, T1O + 246)
    a("s_mov_b64 exec, -1")
    if True:
        Lsk = store()
        for i in range(4):
            a(f"ds_read_b128 {v4(P + 4 * i)}, v{T+1} offset:{1024 * i}")
        a(f"s_mul_i32 s96, s{sCH}, {KT_BYTES}\ns_add_u32 s96, s96, {WS_KT}")
        for i in range(3):
            a(f"s_waitcnt lgkmcnt({3 - i})\nbuffer_store_dwordx4 {v4(P + 4 * i)}, v{T}, {s4(S_WS)}, s96 offen offset:{1024 * i}")
        a(f"s_waitcnt lgkmcnt(0)\ns_mov_b64 exec, 0xffff\nbuffer_store_dwordx4 {v4(P + 12)}, v{T}, {s4(S_WS)}, s96 offen offset:3072\ns_mov_b64 exec, -1")
        a.label(Lsk)


def kernel1(a, parts):
    a.raw(".globl k1_kernel\n.p2align 8\n.type k1_kernel,@function\nk1_kernel:")
    a(f"""
    s_cmp_ge_u32 s2, 256
    s_cbranch_scc1 L_k1_end
    s_load_dwordx16 s[64:79], s[0:1], 0
    s_load_dwordx8 s[80:87], s[0:1], 64
    s_load_dwordx4 s[88:91], s[0:1], 96
    v_lshrrev_b32 v1, 6, v0
    v_and_b32 v0, 63, v0
    s_and_b32 s{sXCD}, s2, 7
    v_readfirstlane_b32 s{sWAVE}, v1
    s_lshr_b32 s{sIDX}, s2, 3
    s_mul_i32 s58, s{sIDX}, 52
    s_lshr_b32 s58, s58, 8              ; q = idx/5
    s_mul_i32 s59, s58, 5
    s_sub_u32 s59, s{sIDX}, s59         ; r
    s_and_b32 s60, s{sXCD}, 1
    s_mul_i32 s60, s60, 5
    s_add_u32 s{sMI}, s60, s59
    s_lshr_b32 s60, s{sXCD}, 1
    s_mul_i32 s60, s60, 6
    s_add_u32 s{sNI}, s60, s58
    s_mul_i32 s{sROW0}, s{sMI}, 208
    s_min_u32 s{sROW0}, s{sROW0}, 1840
    s_mul_i32 s{sGI}, s{sXCD}, 30
    s_add_u32 s{sGI}, s{sGI}, s{sIDX}
    """)
    a("s_waitcnt lgkmcnt(0)")
    srd(a, S_X, 64, 2048 * 1280)
    srd(a, S_WG, 80, 640 * 3072)
    srd(a, S_WU, 82, 640 * 3072)
    srd(a, S_WS, 90, 0x4000000 if PROF else WS_END + 4096)
    srd(a, S_DBG, 88, 256)
    srd(a, S_WD, 84, 1536 * 1280)
    if PROF:
        a(f"v_mov_b32 v{vSTAMP}, 0")
    stamp(a, 0, True)
    stamp(a, 1)
    if "diag" in EXP:
        Ld = a.newlabel("diag")
        a(f"""s_cmp_lg_u32 s{sWAVE}, 8
        s_cbranch_scc1 {Ld}
        s_memrealtime s[100:101]
        s_lshl_b32 s98, s2, 2
        s_add_u32 s98, s98, {WS_END}
        v_mov_b32 v5, 0
        s_waitcnt lgkmcnt(0)
        v_mov_b32 v6, s100
        s_mov_b64 exec, 1
        buffer_store_dword v6, v5, {s4(S_WS)}, s98 offen
        s_mov_b64 exec, -1""")
        a.label(Ld)
    srd(a, S_LA, 66, 640 * 384)
    srd(a, S_AI, 68, 640 * 384)
    srd(a, S_CR, 70, 640 * 384)
    srd(a, S_CI, 72, 640 * 384)
    srd(a, S_DT, 74, 1280)
    import gen2
    sCH, sRND, sKB, sGRP, sGP = 65, 66, 67, 68, 69
    a(f"""
    s_lshl_b32 s{sGP}, s{sXCD}, 5
    s_add_u32 s{sGP}, s{sGP}, s{sIDX}          ; g'
    s_cmp_ge_u32 s{sWAVE}, 2
    s_cbranch_scc1 L_k1_w
    """)
    k1_loader(a, parts)

    def chan(sd, sg):
        a(f"""s_lshl_b32 s{sd}, s{sGP}, 1
        s_add_u32 s{sd}, s{sd}, s{sg}
        s_lshr_b32 s96, s{sGP}, 1
        s_add_u32 s96, s96, 512
        s_cmp_eq_u32 s{sg}, 2
        s_cselect_b32 s{sd}, s96, s{sd}""")

    a.label("L_k1_w")
    a(f"""
    s_setprio 2
    s_cmp_ge_u32 s{sWAVE}, 11
    s_cbranch_scc1 L_k1_side
    ; K-gen round rho = w-2 : grp = rho/3, rnd = rho%3 ; grp 2 only in even g'
    s_sub_u32 s{sRND}, s{sWAVE}, 2
    s_mul_i32 s{sGRP}, s{sRND}, 86
    s_lshr_b32 s{sGRP}, s{sGRP}, 8
    s_mul_i32 s96, s{sGRP}, 3
    s_sub_u32 s{sRND}, s{sRND}, s96
    s_and_b32 s96, s{sGP}, 1
    s_lshl_b32 s96, s96, 1
    s_and_b32 s96, s96, s{sGRP}
    s_cmp_lg_u32 s96, 0
    s_cbranch_scc1 L_k1_idle
    s_lshl_b32 s{sKB}, s{sGRP}, 12
    s_add_u32 s{sKB}, s{sKB}, {K1_KG}
    s_lshl_b32 s70, s{sGRP}, 13
    s_add_u32 s70, s70, {2 * SLOT + 24576 - 8192}
    s_cmp_eq_u32 s{sGRP}, 0
    s_cselect_b32 s70, {K1_KG + 12288}, s70      ; PB
    s_lshl_b32 s96, s{sRND}, 12
    s_add_u32 s96, s96, s70
    s_sub_u32 s96, s96, 4096
    s_cmp_eq_u32 s{sRND}, 0
    s_cselect_b32 s{sKB}, s{sKB}, s96
    """)
    chan(sCH, sGRP)
    kgen_loads(a, sCH, sRND)
    a("s_setprio 0\ns_waitcnt vmcnt(0)")
    stamp(a, 8)
    kgen_valu(a)
    kgen_addr(a, sKB)
    stamp(a, 9)
    kgen_flush(a)
    stamp(a, 10)
    Lf = a.newlabel("kfin")
    a(f"s_cmp_eq_u32 s{sRND}, 0\ns_cbranch_scc1 {Lf}\nv_lshlrev_b32 v5, 4, v0\nv_add_u32 v5, s{sKB}, v5")
    for t in range(3):
        a(f"ds_write_b128 v5, {v4(KG_ACC + 4 * t)} offset:{1024 * t}")
    a("s_waitcnt lgkmcnt(0)")
    a.label("L_k1_idle")
    a("s_barrier\ns_branch L_k1_pdone")
    a.label(Lf)
    a("s_barrier")

    def store():
        L = a.newlabel("nost")
        a(f"s_cmp_lg_u32 s{sGRP}, 2\ns_cbranch_scc1 {L}")
        return L
    kgen_final(a, sCH, sKB, 70, store)
    stamp(a, 11)
    a("s_branch L_k1_pdone")

    a.label("L_k1_side")
    a(f"""
    s_cmp_eq_u32 s{sWAVE}, 11
    s_cbranch_scc1 L_k1_xs
    s_cmp_eq_u32 s{sWAVE}, 12
    s_cbranch_scc1 L_k1_xc
    s_cmp_lt_u32 s{sWAVE}, 15
    s_cbranch_scc1 L_k1_xu
    v_mov_b32 v3, {K1_CTL}
    v_mov_b64 v[4:5], 0
    v_mov_b64 v[6:7], 0
    s_mov_b64 exec, 1
    ds_write_b128 v3, v[4:7]
    s_mov_b64 exec, -1
    s_branch L_k1_idle
    """)
    a.label("L_k1_xs")
    k1_stats_loads(a)
    a("s_setprio 0")
    k1_stats(a, 0)
    stamp(a, 8)
    a("s_branch L_k1_idle")
    a.label("L_k1_xc")
    a(f"s_cmp_ge_u32 s{sIDX}, 30\ns_cbranch_scc1 L_k1_idle")
    k1_colsum_loads(a)
    a("s_setprio 0")
    k1_colsum(a, 0)
    stamp(a, 8)
    a("s_branch L_k1_idle")
    a.label("L_k1_xu")
    a(f"s_sub_u32 s{gen2.sSUB}, s{sWAVE}, 13\ns_mov_b32 s{gen2.sUB}, {2 * SLOT}")
    gen2.k1_unit_pre(a)
    a("s_setprio 0")
    gen2.k1_unit(a)
    stamp(a, 8)
    a("s_barrier")
    a.label("L_k1_pdone")
    a(f"""
    s_cmp_ge_u32 s{sWAVE}, 10
    s_cbranch_scc1 L_k1_x
    s_cmp_ge_u32 s{sIDX}, 30
    s_cbranch_scc1 L_k1_gsp
    s_cmp_ge_u32 s{sWAVE}, 6
    s_cbranch_scc1 L_k1_g2
    s_cmp_ge_u32 s{sWAVE}, 4
    s_cbranch_scc1 L_k1_g1
    """)
    for v in range(3):
        a.label(f"L_k1_g{v}")
        k1_gemm(a, v)
    a.label("L_k1_gsp")
    a("s_waitcnt vmcnt(0) lgkmcnt(0)\ns_barrier\ns_barrier\ns_endpgm")

    a.label("L_k1_x")
    a(f"""
    s_setprio 0
    s_waitcnt lgkmcnt(0)
    s_barrier                           ; B_init
    s_waitcnt vmcnt(0)
    s_barrier
    s_cmp_lg_u32 s{sWAVE}, 15
    s_cbranch_scc1 L_k1_x2
    s_and_b32 s96, s2, 63
    s_lshl_b32 s96, s96, 2
    v_mov_b32 v5, s96
    v_mov_b32 v6, 1
    s_mov_b64 exec, 1
    buffer_atomic_add v6, v5, {s4(S_DBG)}, 0 offen sc1
    s_endpgm
    """)
    a.label("L_k1_x2")
    a(f"""
    s_sub_u32 s96, s{sWAVE}, 10
    s_lshr_b32 s{sGRP}, s96, 1
    s_and_b32 s59, s96, 1
    s_mov_b32 s70, s59
    s_and_b32 s97, s{sGP}, 1
    s_mul_i32 s61, s{sGRP}, {gen2.C_SZ}
    s_add_u32 s61, s61, {2 * SLOT}
    s_cmp_eq_u32 s{sGRP}, 2
    s_cselect_b32 s59, s97, s59         ; half
    s_cselect_b32 s61, {SLOT + 16384}, s61      ; region
    s_lshl_b32 s60, s{sGRP}, 12
    s_add_u32 s60, s60, {K1_KG}         ; tables
    s_mov_b32 s62, {SLOT}
    """)
    chan(58, sGRP)
    a("s_barrier\n" * 7)
    Lnp = a.newlabel("noprep"); Lnt = a.newlabel("notab")
    a(f"""s_lshl_b32 s96, s{sGRP}, 2
    s_add_u32 s96, s96, {K1_CTL}
    v_mov_b32 v3, s96
    v_mov_b32 v4, 1
    s_cmp_lg_u32 s70, 0
    s_cbranch_scc1 {Lnp}""")
    gen2.conv_xload(a, 58)
    a(f"""s_lshl_b32 s96, s97, 1
    s_and_b32 s96, s96, s{sGRP}
    s_cmp_eq_u32 s96, 0
    s_cbranch_scc1 {Lnt}
    s_mov_b32 m0, s60
    s_mul_i32 s96, s58, {KT_BYTES}
    s_add_u32 s96, s96, {WS_KT}""")
    for i in range(4):
        a(f"buffer_load_dwordx4 v2, {s4(S_WS)}, s96 offen offset:{1024 * i} sc0 sc1 lds")
    a.label(Lnt)
    a("s_barrier")
    stamp(a, 2)
    Lw = a.newlabel("wst")
    a(f"v_mov_b32 v5, {K1_CTL}")
    a.label(Lw)
    a(f"ds_read_b32 v7, v5 offset:12\ns_waitcnt lgkmcnt(0)\nv_readfirstlane_b32 s96, v7\ns_cmp_ge_u32 s96, 2\ns_cbranch_scc0 {Lw}")
    a("s_waitcnt vmcnt(0)")
    stamp(a, 3)
    gen2.conv_prep(a, 61, 62)
    a("ds_write_b32 v3, v4")
    stamp(a, 4)
    gen2.conv_setup(a, 61, 60, 58)
    a("s_branch L_k1_cgo")
    a.label(Lnp)
    gen2.conv_setup(a, 61, 60, 58)
    a("s_barrier")
    Lw2 = a.newlabel("wprep")
    a.label(Lw2)
    a(f"ds_read_b32 v7, v3\ns_sleep 1\ns_waitcnt lgkmcnt(0)\nv_readfirstlane_b32 s96, v7\ns_cmp_ge_u32 s96, 1\ns_cbranch_scc0 {Lw2}")
    a.label("L_k1_cgo")
    a("s_setprio 2")
    stamp(a, 5)
    gen2.conv_run(a, 59)
    stamp(a, 12)
    stamp_end(a, 0, S_WS, sWAVE)
    a.label("L_k1_end")
    a("s_endpgm")


def descriptor(name, vgpr, sgpr=102):
    acc = (vgpr + 3) // 4 * 4
    return f""".amdhsa_kernel {name}
  .amdhsa_next_free_vgpr {vgpr}
  .amdhsa_next_free_sgpr {sgpr}
  .amdhsa_accum_offset {acc}
  .amdhsa_group_segment_fixed_size 0
  .amdhsa_kernarg_size 112
  .amdhsa_user_sgpr_count 2
  .amdhsa_user_sgpr_kernarg_segment_ptr 1
  .amdhsa_system_sgpr_workgroup_id_x 1
.end_amdhsa_kernel
"""


HEADER = open("cdna_kernels/" + NAME + ".s.ref").read().split("; Override launch geometry")[0]


def build():
    a = Asm()
    try:
        import gen2
    except ImportError:
        gen2 = None
    parts = {}
    kernel1(a, parts)
    if "nosc1" not in EXP:
        import re
        a.L = [re.sub(r"(buffer_store_dwordx[24] .* offen(?: offset:\d+)?)$", r"\1 sc1", l) for l in a.L]
    out = HEADER
    out += f"; @launch kernel=k1_kernel grid=(256,1,1) block=(1024,1,1) lds={K1_LDS}\n"
    desc = descriptor("k1_kernel", 128)
    if gen2 is not None and hasattr(gen2, "kernel2"):
        info = gen2.kernel2(a)
        out += f"; @launch kernel=k2_kernel grid=(256,1,1) block=({info['block']},1,1) lds={info['lds']}\n"
        desc += ".p2align 6\n" + descriptor("k2_kernel", info["vgpr"])
    out += '.amdgcn_target "amdgcn-amd-amdhsa--gfx950"\n.text\n' + a.text()
    out += '.section .rodata,"a"\n.p2align 6\n' + desc
    return out


if __name__ == "__main__":
    sys.modules["gen"] = sys.modules["__main__"]
    path = sys.argv[1] if len(sys.argv) > 1 else "k.s"
    open(path, "w").write(build())
    print("wrote", path)
```

```python
from gen import *

USCR = 2 * SLOT
sSUB = 94
sU0, sU1, sU2, sUB = 61, 62, 63, 95
vUA = 100


def k1_unit_pre(a):
    Lw = a.newlabel("uwd"); Le = a.newlabel("upe")
    a(f"""
    s_mul_i32 s96, s{sSUB}, 12288
    s_add_u32 s{sUB}, s{sUB}, s96
    v_lshrrev_b32 v{vUA}, 3, v0
    v_and_b32 v{vUA+1}, 7, v0
    v_mul_u32_u24 v{vUA+2}, 1280, v{vUA}
    v_lshl_add_u32 v{vUA+2}, v{vUA+1}, 4, v{vUA+2}
    s_cmp_ge_u32 s{sIDX}, 20
    s_cbranch_scc1 {Lw}
    ; ---- x transpose unit: v = xn*20+idx ; rb = 8xm + v/10 ; cb = v%10
    s_lshr_b32 s96, s{sXCD}, 1
    s_mul_i32 s96, s96, 20
    s_add_u32 s96, s96, s{sIDX}
    s_mul_i32 s97, s96, 103
    s_lshr_b32 s97, s97, 10              ; v/10
    s_mul_i32 s98, s97, 10
    s_sub_u32 s{sU1}, s96, s98           ; cb
    s_and_b32 s96, s{sXCD}, 1
    s_lshl_b32 s96, s96, 3
    s_add_u32 s97, s97, s96              ; rb
    s_lshl_b32 s97, s97, 1
    s_add_u32 s97, s97, s{sSUB}
    s_lshl_b32 s{sU0}, s97, 6
    s_mul_i32 s96, s{sU0}, 1280
    s_lshl_b32 s97, s{sU1}, 7
    s_add_u32 s96, s96, s97
    """)
    for p in range(8):
        a(f"s_add_u32 m0, s{sUB}, {1024 * p}\ns_add_u32 s97, s96, {p * 8 * 1280}\nbuffer_load_dwordx4 v{vUA+2}, {s4(S_X)}, s97 offen lds")
    a(f"s_branch {Le}")
    a.label(Lw)
    a(f"""
    s_mul_i32 s96, s{sXCD}, 12
    s_add_u32 s96, s96, s{sIDX}
    s_sub_u32 s96, s96, 20
    s_lshr_b32 s{sU0}, s96, 1            ; kappa
    s_and_b32 s96, s96, 1
    s_mul_i32 s96, s96, 5
    s_mul_i32 s97, s{sSUB}, 3
    s_add_u32 s{sU1}, s96, s97
    s_mul_i32 s96, s{sU0}, {32 * 1280}
    s_lshl_b32 s97, s{sU1}, 7
    s_add_u32 s96, s96, s97
    """)
    for k in range(3):
        if k == 2:
            a(f"s_cmp_eq_u32 s{sSUB}, 1\ns_cbranch_scc1 {Le}")
        for p in range(4):
            a(f"s_add_u32 m0, s{sUB}, {4096 * k + 1024 * p}\ns_add_u32 s97, s96, {p * 8 * 1280 + 128 * k}\nbuffer_load_dwordx4 v{vUA+2}, {s4(S_WD)}, s97 offen lds")
    a.label(Le)


def k1_unit(a):
    Lw = a.newlabel("uwd"); Le = a.newlabel("uend")
    R = 8
    a(f"""
    v_lshrrev_b32 v{vUA+3}, 2, v0
    v_and_b32 v{vUA+4}, 3, v0
    v_lshlrev_b32 v{vUA+3}, 7, v{vUA+3}
    v_lshl_add_u32 v{vUA+3}, v{vUA+4}, 3, v{vUA+3}
    v_add_u32 v{vUA+3}, s{sUB}, v{vUA+3}
    s_waitcnt vmcnt(0)
    s_cmp_ge_u32 s{sIDX}, 20
    s_cbranch_scc1 {Lw}
    v_and_b32 v{vUA+4}, 15, v0
    v_lshrrev_b32 v{vUA+5}, 4, v0
    v_mul_u32_u24 v{vUA+4}, 144, v{vUA+4}
    v_lshl_add_u32 v{vUA+4}, v{vUA+5}, 3, v{vUA+4}
    s_mov_b32 s96, s{sUB}
    v_add_u32 v{vUA+4}, s96, v{vUA+4}
    v_mul_u32_u24 v{vUA+5}, 144, v{vUA}
    v_lshl_add_u32 v{vUA+5}, v{vUA+1}, 4, v{vUA+5}
    v_add_u32 v{vUA+5}, s96, v{vUA+5}
    v_lshlrev_b32 v{vUA+6}, 12, v{vUA}
    v_lshl_add_u32 v{vUA+6}, v{vUA+1}, 4, v{vUA+6}
    """)
    lq = LQ(a)
    for j in range(4):
        for g in range(4):
            i = 4 * j + g
            lq.issue(f"t{i}", f"ds_read_b64_tr_b16 {v2(R + 2 * i)}, v{vUA+3} offset:{g * 2048 + 32 * j}")
    for k in range(16):
        lq.wait(f"t{k}")
        lq.issue("w", f"ds_write_b64 v{vUA+4}, {v2(R + 2 * k)} offset:{(k >> 2) * 16 * 144 + 32 * (k & 3)}")
    O = 48
    for i in range(8):
        lq.issue(f"o{i}", f"ds_read_b128 {v4(O + 4 * i)}, v{vUA+5} offset:{i * 8 * 144}")
    a(f"s_lshl_b32 s96, s{sU1}, 18\ns_lshl_b32 s97, s{sU0}, 1\ns_add_u32 s96, s96, s97\ns_add_u32 s96, s96, {WS_XT}")
    for i in range(8):
        lq.wait(f"o{i}")
        a(f"s_add_u32 s97, s96, {i * 8 * 4096}\nbuffer_store_dwordx4 {v4(O + 4 * i)}, v{vUA+6}, {s4(S_WS)}, s97 offen")
    a(f"s_branch {Le}")
    a.label(Lw)
    a(f"v_lshlrev_b32 v{vUA+6}, 4, v0\ns_mul_i32 s{sU2}, s{sU0}, 5120\ns_add_u32 s{sU2}, s{sU2}, {WS_WD}")
    for k in range(3):
        if k == 2:
            a(f"s_cmp_eq_u32 s{sSUB}, 1\ns_cbranch_scc1 {Le}")
        lq = LQ(a)
        for j in range(4):
            for s in range(2):
                lq.issue(f"t{j}", f"ds_read_b64_tr_b16 {v2(R + 16 * k + 4 * j + 2 * s)}, v{vUA+3} offset:{4096 * k + 2048 * s + 32 * j}")
        for j in range(4):
            a(f"""s_lshl_b32 s96, s{sU1}, 2
            s_add_u32 s96, s96, {4 * k + j}
            s_mul_i32 s97, s96, 52
            s_lshr_b32 s97, s97, 8
            s_mul_i32 s98, s97, 5
            s_sub_u32 s96, s96, s98
            s_mul_i32 s97, s97, {48 * 5120}
            s_lshl_b32 s96, s96, 10
            s_add_u32 s96, s96, s97
            s_add_u32 s96, s96, s{sU2}""")
            lq.wait(f"t{j}")
            a(f"buffer_store_dwordx4 {v4(R + 16 * k + 4 * j)}, v{vUA+6}, {s4(S_WS)}, s96 offen")
    a.label(Le)


C_U = 640
C_U2 = C_U + 4096 + 64 + 64
C_B3 = C_U2 + 3584 + 64
C_B5 = C_B3 + 3584 + 64 + 64
C_B7 = C_B5 + 3072 + 64
C_B9 = C_B7 + 2048 + 64 + 80
C_SZ = C_B9 + 2048

NBLK1 = [0, 4, 8, 8, 8, 8, 8, 8]
NBLK2 = [0, 0, 2, 4, 6, 6, 6, 6]
NBLK3 = [0, 0, 0, 0, 1, 2, 3, 4]


def conv_mfma(a, tiles, regs):
    ACC, KF, DF = regs["ACC"], regs["KF"], regs["DF"]
    ND = regs["ND"]
    bU, bK0, bD, bK, PF = regs["bU"], regs["bK0"], regs["bD"], regs["bK"], regs["PF"]
    lq = LQ(a)

    def acc(t): return ACC + 4 * (t - tiles[0])

    def kload(seg, b, bank):
        r = KF + 36 * bank + 4 * b
        tag = f"K{seg}_{b}"
        if seg == 0:
            o = 16 * (8 - b)
            lq.issue(tag, f"ds_read2_b32 {v2(r)}, v{bK0} offset0:{o} offset1:{o + 1}")
            lq.issue(tag, f"ds_read2_b32 {v2(r + 2)}, v{bK0} offset0:{o + 2} offset1:{o + 3}")
        elif seg == 1:
            lq.issue(tag, f"ds_read_b64 {v2(r)}, v{bK[1]} offset:{32 * b}")
            lq.issue(tag, f"ds_read_b64 {v2(r + 2)}, v{bK[1]} offset:{32 * b + 8}")
        else:
            o = 8 * b
            lq.issue(tag, f"ds_read2_b32 {v2(r)}, v{bK[seg]} offset0:{o} offset1:{o + 1}")
            lq.issue(tag, f"ds_read2_b32 {v2(r + 2)}, v{bK[seg]} offset0:{o + 2} offset1:{o + 3}")

    work = []
    banks = {0: 0, 1: 1, 2: 0, 3: 1}
    for t in tiles:
        for k in range(9):
            if t == 0 and k == 8:
                continue
            work.append((("u", 512 * (t + 1) - 64 * k), [(t, 0, k)]))
    for seg, D, nb in ((1, 4, NBLK1), (2, 8, NBLK2), (3, 16, NBLK3)):
        es = {}
        for t in tiles:
            for b in range(nb[t]):
                es.setdefault((16 // D) * t - b, []).append((t, seg, b))
        for e in sorted(es):
            work.append((("tr", seg, D, e), es[e]))
    for t in tiles:
        if t >= 3:
            work.append((("u", 512 * (t + 1) - 2032), [(t, "p", 0)]))
    need = {s: sorted({b for _, us in work for (_, sg, b) in us if sg == s}) for s in range(4)}
    first = {}
    last = {}
    for i, (_, us) in enumerate(work):
        for (_, sg, b) in us:
            first.setdefault(sg, i)
            last[sg] = i
    kplan = {}
    for s in (1, 2, 3):
        if not need[s]:
            continue
        start = 0 if s == 1 else last[s - 2] + 1
        span = max(1, first[s] - start - 2)
        for j, b in enumerate(need[s]):
            kplan.setdefault(min(start + (j * span) // len(need[s]), first[s] - 1) if first[s] > start else start, []).append((s, b))

    def dload(i):
        spec = work[i][0]
        r = DF + 4 * (i % ND)
        if spec[0] == "u":
            lq.issue(f"D{i}", f"ds_read_b128 {v4(r)}, v{bU} offset:{spec[1]}")
        else:
            _, seg, D, e = spec
            for s in range(2):
                lq.issue(f"D{i}", f"ds_read_b64_tr_b16 {v2(r + 2 * s)}, v{bD[seg]} offset:{32 * D * e + (8 * D if s == 0 else 0)}")

    LA = ND - 1
    kload(0, need[0][0], 0)
    dload(0)
    for b in need[0][1:3]:
        kload(0, b, 0)
    for i in range(1, LA):
        dload(i)
    rest0 = need[0][3:]
    for i, (spec, us) in enumerate(work):
        for (s, b) in kplan.get(i, []):
            kload(s, b, banks[s])
        if rest0:
            kload(0, rest0.pop(0), 0)
        if i + LA < len(work):
            dload(i + LA)
        d = DF + 4 * (i % ND)
        for (t, sg, b) in us:
            if sg == "p":
                lq.wait(f"D{i}")
                a(f"v_mfma_f32_16x16x32_f16 {v4(acc(t))}, {v4(PF)}, {v4(d)}, {v4(acc(t))}")
                continue
            k = KF + 36 * banks[sg] + 4 * b
            lq.wait(f"D{i}", f"K{sg}_{b}")
            if sg == 0:
                a(f"v_mfma_f32_16x16x32_f16 {v4(acc(t))}, {v4(k)}, {v4(d)}, {v4(acc(t))}")
            else:
                a(f"v_mfma_f32_16x16x32_f16 {v4(acc(t))}, {v4(d)}, {v4(k)}, {v4(acc(t))}")


def conv_xload(a, sCH, X=100):
    a(f"v_lshlrev_b32 v2, 4, v0\ns_lshl_b32 s96, s{sCH}, 12\ns_add_u32 s96, s96, {WS_XT}")
    for r in range(4):
        a(f"buffer_load_dwordx4 {v4(X + 4 * r)}, v2, {s4(S_WS)}, s96 offen offset:{1024 * r} sc0 sc1")


PREP_CUTS = [int(x) for x in os.environ.get("PREP_CUTS", "85,170,255").split(",")]


def conv_prep2(a, sRB, sSTA):
    U, W, B3, B5, B7, B9, SS = 8, 25, 50, 66, 78, 86, 94
    b = Asm()
    b(f"v_lshlrev_b32 v2, 4, v0\nv_add_u32 v6, s{sSTA}, v2")
    S = 50
    X = 94
    lq = LQ(b)

    def ldst(r):
        for q in range(4):
            lq.issue(f"s{r}", f"ds_read_b128 {v4(S + 16 * (r & 1) + 4 * q)}, v6 offset:{4096 * q + 1024 * r}")
    ldst(0)
    for r in range(4):
        if r < 3:
            ldst(r + 1)
        for i in range(4):
            b(f"v_lshlrev_b32 v{X + 2 * i}, 16, v{U + 4 * r + i}\nv_and_b32 v{X + 2 * i + 1}, 0xffff0000, v{U + 4 * r + i}")
        lq.wait(f"s{r}")
        sb = S + 16 * (r & 1)
        for i in range(8):
            b(f"v_fma_f32 v{X + i}, v{X + i}, v{sb + 2 * i}, v{sb + 2 * i + 1}")
        for i in range(4):
            b(f"v_cvt_pk_f16_f32 v{U + 4 * r + i}, v{X + 2 * i}, v{X + 2 * i + 1}")
    dpp = "row_mask:0xf bank_mask:0xf"
    done = []

    def rdy(txt):
        done.append((len(b.L), txt))
    for r in range(4):
        rdy(f"ds_write_b128 v5, {v4(U + 4 * r)} offset:{C_U + 1024 * r}")
    for r in range(4):
        w = W + 6 * r
        d = [w, w + 1, w + 2, w + 3, w + 4, w + 5, U + 4 * r, U + 4 * r + 1]
        for i in range(4):
            if r == 0:
                b(f"v_mov_b32 v{d[2 + i]}, 0")
            else:
                b(f"v_mov_b32_dpp v{d[2 + i]}, v{U + 4 * (r - 1) + i} wave_ror:1 {dpp}")
        for i in range(2):
            if r == 0:
                b(f"v_mov_b32 v{d[i]}, 0")
            else:
                b(f"v_mov_b32_dpp v{d[i]}, v{W + 6 * (r - 1) + 4 + i} wave_ror:1 {dpp}")
        for i in (2, 3, 0, 1):
            b(f"v_mov_b32_dpp v{d[2 + i]}, v{U + 4 * r + i} wave_shr:1 {dpp}")
        for i in range(2):
            b(f"v_mov_b32_dpp v{d[i]}, v{d[4 + i]} wave_shr:1 {dpp}")
        lo = 0 if r < 2 else 1
        for i in range(lo, 7 - lo):
            b(f"v_alignbit_b32 v{SS + i}, v{d[i + 1]}, v{d[i]}, 16")
        m3 = "M" if r == 3 else ""
        rdy(f"{m3}ds_write_b128 v5, {v4(w + 1)} offset:{C_U2 + 1024 * r - 16}")
        for i in range(4):
            b(f"v_pk_add_f16 v{B3 + 4 * r + i}, v{SS + i + 1}, v{SS + i + 2}")
        for i in range(4):
            b(f"v_pk_add_f16 v{B3 + 4 * r + i}, v{B3 + 4 * r + i}, v{d[i + 2]}")
        rdy(f"{m3}ds_write_b128 v5, {v4(B3 + 4 * r)} offset:{C_B3 + 1024 * r - 16}")
        if r < 3:
            for i in range(4):
                b(f"v_pk_add_f16 v{B5 + 4 * r + i}, v{d[i + 1]}, v{d[i + 3]}")
            for i in range(4):
                b(f"v_pk_add_f16 v{B5 + 4 * r + i}, v{B5 + 4 * r + i}, v{B3 + 4 * r + i}")
            rdy(f"ds_write_b128 v5, {v4(B5 + 4 * r)} offset:{C_B5 + 1024 * r - 16}")
        if r < 2:
            for i in range(4):
                b(f"v_pk_add_f16 v{B7 + 4 * r + i}, v{SS + i}, v{SS + i + 3}")
            for i in range(4):
                b(f"v_pk_add_f16 v{B7 + 4 * r + i}, v{B7 + 4 * r + i}, v{B5 + 4 * r + i}")
            rdy(f"ds_write_b128 v5, {v4(B7 + 4 * r)} offset:{C_B7 + 1024 * r - 16}")
            for i in range(4):
                b(f"v_pk_add_f16 v{B9 + 4 * r + i}, v{d[i]}, v{d[i + 4]}")
            for i in range(4):
                b(f"v_pk_add_f16 v{B9 + 4 * r + i}, v{B9 + 4 * r + i}, v{B7 + 4 * r + i}")
            rdy(f"ds_write_b128 v5, {v4(B9 + 4 * r)} offset:{C_B9 + 1024 * r - 16}")
    n = len(b.L)
    c0, c1, c2 = [min(c, n) for c in PREP_CUTS]

    def wr(txt):
        if txt.startswith("M"):
            a(f"s_mov_b32 exec_hi, 1\n{txt[1:]}\ns_mov_b32 exec_hi, -1")
        else:
            a(txt)
    pend = list(done)
    for i, l in enumerate(b.L):
        a.L.append(l)
        if i + 1 == c1 or i + 1 == c0:
            a("s_barrier")
        if i + 1 == c2:
            Lg = a.newlabel("g28")
            a(f"s_barrier\ns_setprio 3\nv_mov_b32 v5, {K1_CTL}\ns_cmp_ge_u32 s{sIDX}, 30\ns_cselect_b32 s97, 0, 8")
            a.label(Lg)
            a(f"ds_read_b32 v7, v5 offset:28\ns_sleep 1\ns_waitcnt lgkmcnt(0)\nv_readfirstlane_b32 s96, v7\ns_cmp_ge_u32 s96, s97\ns_cbranch_scc0 {Lg}")
            stamp(a, 3)
            a(f"""v_add_u32 v5, s{sRB}, v2
            v_mov_b64 v[104:105], 0
            v_mov_b64 v[106:107], 0
            s_mov_b32 exec_hi, 0xff
            ds_write_b128 v5, v[104:107]
            s_mov_b64 exec, 7
            ds_write_b128 v5, v[104:107] offset:{C_U2 - 64}
            ds_write_b128 v5, v[104:107] offset:{C_B3 - 64}
            ds_write_b128 v5, v[104:107] offset:{C_B5 - 64}
            ds_write_b128 v5, v[104:107] offset:{C_B7 - 64}
            ds_write_b128 v5, v[104:107] offset:{C_B9 - 64}
            s_mov_b64 exec, -1""")
        if i + 1 >= c2 and pend and pend[0][0] <= i + 1 :
            wr(pend.pop(0)[1])
    for _, txt in pend:
        wr(txt)
    a("s_waitcnt lgkmcnt(0)")


CREGS = dict(ACC=8, KF=28, DF=96, ND=4, bU=116, bK0=117, bD={1: 118, 2: 119, 3: 120}, bK={1: 121, 2: 122, 3: 123}, PF=112)


def conv_setup(a, sRB, sKT, sCH):
    regs = CREGS
    i16, hq, par, h8, rr, cc, T = 96, 97, 98, 99, 100, 101, 102
    a(f"""
    v_and_b32 v{i16}, 15, v0
    v_lshrrev_b32 v{hq}, 4, v0
    v_and_b32 v{par}, 1, v{hq}
    v_lshrrev_b32 v{h8}, 1, v{hq}
    v_bfe_u32 v{rr}, v0, 2, 2
    v_and_b32 v{cc}, 3, v0
    v_sub_u32 v{T}, v{i16}, v{h8}
    v_lshlrev_b32 v{T}, 5, v{T}
    v_lshl_add_u32 v{T}, v{par}, 4, v{T}
    s_add_u32 s96, s{sRB}, {C_U - 512}
    v_add_u32 v{regs['bU']}, s96, v{T}
    v_lshlrev_b32 v{T}, 3, v{par}
    v_sub_u32 v{T}, v{T}, v{i16}
    v_lshlrev_b32 v{T+1}, 4, v{h8}
    v_sub_u32 v{T}, v{T}, v{T+1}
    v_add_u32 v{T}, 32, v{T}
    v_lshlrev_b32 v{T}, 1, v{T}
    v_and_b32 v{T+2}, 1, v{i16}
    v_mul_u32_u24 v{T+1}, {T0O - T0E - 2}, v{T+2}
    v_add3_u32 v{regs['bK0']}, v{T}, v{T+1}, s{sKT}
    """)
    segs = {1: (4, C_B3, 5, 0, C_U2, 5, 0, T1E, T1O), 2: (8, C_B5, 35, 0, C_B3, 34, 4, T2E, T2O), 3: (16, C_B9, 50, 0, C_B7, 49, 8, T3EE, T3OE)}
    for sg, (Dd, Ae, pe, oe, Ao, po, oo, Te, To) in segs.items():
        ce = Ae - 2 * Dd * (pe + 4) - 2 * oe
        co = Ao - 2 * Dd * (po + 4) - 2 * oo
        a(f"""
        v_lshl_add_u32 v{T}, v{h8}, 3, v{rr}
        v_mul_u32_u24 v{T}, {2 * Dd}, v{T}
        v_lshlrev_b32 v{T+1}, 3, v{cc}
        v_sub_u32 v{T}, v{T+1}, v{T}
        v_mul_i32_i24 v{T+1}, {co - ce}, v{par}
        v_add3_u32 v{T}, v{T}, v{T+1}, s{sRB}
        v_add_u32 v{regs['bD'][sg]}, {ce}, v{T}
        v_mul_u32_u24 v{T}, {2 * 16 // Dd}, v{i16}
        v_lshl_add_u32 v{T}, v{h8}, 4, v{T}
        v_mul_u32_u24 v{T+1}, {To - Te}, v{par}
        v_add3_u32 v{T}, v{T}, v{T+1}, s{sKT}
        v_add_u32 v{regs['bK'][sg]}, {Te}, v{T}
        """)
    a(f"v_mul_u32_u24 v{T+1}, 158, v{T+2}\nv_add_u32 v{regs['bK'][3]}, v{regs['bK'][3]}, v{T+1}")
    PF = regs["PF"]
    a(f"""
    v_lshlrev_b32 v{T}, 4, v{h8}
    v_lshlrev_b32 v{T+1}, 3, v{par}
    v_sub_u32 v{T}, v{T}, v{T+1}
    v_add3_u32 v{T}, v{T}, v{i16}, -6
    v_mov_b32 v{T+3}, 0xffff
    v_mov_b32 v{cc}, 0xffff0000
    """)
    for p in range(4):
        a(f"""v_subrev_u32 v{T+1}, {2 * p}, v{T}
        v_subrev_u32 v{T+2}, {2 * p + 1}, v{T}
        v_cmp_gt_u32 vcc, 7, v{T+1}
        v_cmp_gt_u32 s[96:97], 7, v{T+2}
        s_nop 1
        v_cndmask_b32 v{T+1}, 0, v{T+3}, vcc
        v_cndmask_b32 v{T+2}, 0, v{cc}, s[96:97]
        v_or_b32 v{PF + p}, v{T+1}, v{T+2}""")
    a(f"""v_lshlrev_b32 v126, 5, v{i16}
    v_lshl_add_u32 v126, v{hq}, 3, v126
    s_add_u32 s96, s{sKT}, {TK1024}
    v_mov_b32 v124, s96
    s_lshl_b32 s93, s{sCH}, 12
    s_add_u32 s93, s93, {WS_Y}""")


def conv_run(a, sHALF):
    regs = CREGS
    PF = regs["PF"]
    a("ds_read_b64 v[124:125], v124")
    for r in range(8, 28, 2):
        a(f"v_mov_b64 {v2(r)}, 0")
    a(f"s_waitcnt lgkmcnt(0)\nv_and_b32 v124, 0xffff, v124\nv_lshl_or_b32 v124, v124, 16, v124")
    for p in range(4):
        a(f"v_and_b32 v{PF + p}, v{PF + p}, v124")
    LB = a.newlabel("halfB"); LJ = a.newlabel("cjoin")
    a(f"s_cmp_eq_u32 s{sHALF}, 1\ns_cbranch_scc1 {LB}")
    for tiles, lab in (([0, 1, 2, 3, 4], None), ([5, 6, 7], LB)):
        if lab:
            a.label(lab)
        conv_mfma(a, tiles, regs)
        a("s_nop 7")
        for i, t in enumerate(tiles):
            c = 8 + 4 * i
            for r in range(4):
                a(f"v_mul_f32 v{c + r}, v{c + r}, v125")
            a(f"v_cvt_pk_bf16_f32 v{c}, v{c}, v{c+1}\nv_cvt_pk_bf16_f32 v{c+1}, v{c+2}, v{c+3}")
            a(f"buffer_store_dwordx2 {v2(c)}, v126, {s4(S_WS)}, s93 offen offset:{512 * t} sc1")
        if not lab:
            a(f"s_branch {LJ}")
    a.label(LJ)


NR2 = 8
NEARLY = 6
ROT2 = 7
P2_H = NR2 * 10240
P2_X = 149504
P2_Y = P2_X
assert NEARLY * 10240 <= 2 * SLOT - C_SZ and P2_H + NR2 * 8192 <= P2_X and K1_STA <= P2_X and P2_X + 11264 <= K1_CTL + 2048
YSTAGE = 11


def p2_loader(a):
    vL, vT = 2, 3
    sW = 58
    a(f"""
    v_lshlrev_b32 v{vL}, 4, v0
    s_mul_i32 s{sW}, s{sNI2}, {48 * 5120}
    s_add_u32 s{sW}, s{sW}, {WS_WD}
    v_mov_b32 v5, {K1_CTL}
    v_mov_b32 v6, 1
    s_and_b32 s65, s{sIDX}, 7
    s_mul_i32 s65, s65, 3
    s_lshr_b32 s96, s{sIDX}, 3
    s_mul_i32 s96, s96, {ROT2}
    s_add_u32 s65, s65, s96
    s_cmp_ge_u32 s65, 24
    s_cselect_b32 s96, 24, 0
    s_sub_u32 s65, s65, s96
    {"s_mov_b32 s65, 0" if "rot" not in EXP else ""}
    s_mov_b32 s66, s65
    s_cmp_ge_u32 s{sIDX}, 30
    s_cselect_b32 s98, 0, 8
    """)

    def adv(r):
        a(f"s_add_u32 s{r}, s{r}, 1\ns_cmp_eq_u32 s{r}, 24\ns_cselect_b32 s{r}, 0, s{r}")
    Lq = a.newlabel("pq")
    a.label(Lq)
    a(f"""ds_read_b128 v[8:11], v5
    ds_read_b32 v12, v5 offset:28
    s_sleep 1
    s_waitcnt lgkmcnt(0)
    v_and_b32 v8, v8, v9
    v_and_b32 v8, v8, v10
    v_readfirstlane_b32 s97, v12
    v_readfirstlane_b32 s96, v8
    s_cmp_ge_u32 s97, s98
    s_cbranch_scc0 {Lq}
    s_cmp_eq_u32 s96, 1
    s_cbranch_scc0 {Lq}""")
    L1 = a.newlabel("p2l1")
    a(f"s_cmp_eq_u32 s{sWAVE}, 1\ns_cbranch_scc1 {L1}")

    def issw(s):
        slot = (s % NR2) * 10240
        a(f"s_mul_i32 s67, s65, 10240\ns_add_u32 s67, s67, s{sW}")
        adv(65)
        for g, n in ((0, 4), (4, 4), (8, 1)):
            a(f"s_mov_b32 m0, {slot + 1024 * g}\ns_add_u32 s97, s67, {1024 * g}")
            for j in range(n):
                a(f"buffer_load_dwordx4 v{vL}, {s4(S_WS)}, s97 offen offset:{1024 * j} sc1 lds")
    for s in range(NEARLY):
        issw(s)
    a("s_waitcnt vmcnt(45)\ns_barrier")
    issw(6)
    issw(7)
    a("s_barrier")
    for s in range(23):
        infl = min(s + NR2 - 1, 23) - (s + 1)
        a(f"s_waitcnt vmcnt({9 * infl})\ns_barrier")
        if CSTAMP:
            stamp(a, 16 + s)
        if s + NR2 < 24:
            issw(s + NR2)
    stamp_end(a, 0, S_WS, sWAVE)

    a.label(L1)
    a(f"""
    v_lshrrev_b32 v{vT}, 3, v0
    v_and_b32 v4, 7, v0
    v_lshlrev_b32 v{vT}, 12, v{vT}
    v_lshl_add_u32 v{vT}, v4, 4, v{vT}          ; ch8*4096 + 16k
    s_mul_i32 s60, s{sNI2}, {80 * 4096}
    s_lshl_b32 s96, s{sMI2}, 7
    s_add_u32 s60, s60, s96
    s_mul_i32 s59, s{sMI2}, {4 * 49152}
    s_add_u32 s59, s59, {WS_H}
    s_add_u32 s68, s{sW}, 9216
    """)

    def tile(src, dst):
        a(f"s_add_u32 s96, s60, {src}")
        for p in range(10):
            a(f"s_mov_b32 m0, {dst + 1024 * p}\ns_add_u32 s97, s96, {p * 8 * 4096}\nbuffer_load_dwordx4 v{vT}, {s4(S_WS)}, s97 offen sc1 lds")

    def issw9(s):
        a(f"s_mul_i32 s97, s65, 10240\ns_mov_b32 m0, {(s % NR2) * 10240 + 9216}\ns_add_u32 s97, s97, s68\nbuffer_load_dwordx4 v{vL}, {s4(S_WS)}, s97 offen sc1 lds")
        adv(65)

    def issh(s):
        slot = P2_H + (s % NR2) * 8192
        a(f"s_lshl_b32 s67, s66, 11\ns_add_u32 s67, s67, s59")
        adv(66)
        for t_ in range(4):
            a(f"s_mov_b32 m0, {slot + t_ * 2048}\ns_add_u32 s97, s67, {t_ * 49152}")
            for j in range(2):
                a(f"buffer_load_dwordx4 v{vL}, {s4(S_WS)}, s97 offen offset:{1024 * j} sc1 lds")
        if s >= NEARLY:
            issw9(s)
        return 8 + (s >= NEARLY)
    tile(WS_XT, P2_X)
    for s in range(NEARLY):
        issw9(s)
    Lw = a.newlabel("own"); Lp = a.newlabel("hp"); Lgo = a.newlabel("hgo")
    a(f"""s_lshl_b32 s96, s{sMI2}, 6
    s_mul_i32 s97, s96, 5042
    s_lshr_b32 s97, s97, 20                     ; row/208
    s_add_u32 s96, s96, 63
    s_mul_i32 s96, s96, 5042
    s_lshr_b32 s96, s96, 20
    s_lshl_b32 s97, s97, 7
    s_lshl_b32 s96, s96, 7
    v_mov_b32 v7, s97
    v_mov_b32 v8, s96
    v_cmp_gt_u32 vcc, 32, v0
    v_and_b32 v9, 31, v0
    v_min_u32 v9, 23, v9
    v_cndmask_b32 v7, v8, v7, vcc
    v_lshl_add_u32 v7, v9, 2, v7
    s_mov_b32 s61, {WS_FH}
    s_mov_b32 s62, 0
    s_cmp_ge_u32 s{sIDX}, 30
    s_cselect_b32 s63, 20, 16
    s_cselect_b32 s98, 5, 8
    v_add_u32 v10, s63, v5
    s_waitcnt vmcnt(0)
    ds_write_b32 v5, v6 offset:24""")
    a.label(Lw)
    a(f"ds_read_b32 v11, v10\ns_sleep 2\ns_waitcnt lgkmcnt(0)\nv_readfirstlane_b32 s96, v11\ns_cmp_ge_u32 s96, s98\ns_cbranch_scc0 {Lw}")
    stamp(a, 8)
    a.label(Lp)
    a(f"""s_sleep 8
    buffer_load_dword v11, v7, {s4(S_WS)}, s61 offen sc0 sc1
    s_add_u32 s62, s62, 1
    s_waitcnt vmcnt(0)
    v_cmp_eq_u32 vcc, 1, v11
    s_and_b32 s96, vcc_lo, vcc_hi
    s_cmp_eq_u32 s96, -1
    s_cbranch_scc1 {Lgo}
    s_cmp_lt_u32 s62, 200000
    s_cbranch_scc1 {Lp}""")
    a.label(Lgo)
    stamp(a, 9)
    a("s_barrier")
    stamp(a, 10)
    vq = LQ(a, cnt="vmcnt", cap=63)

    def trk(tag, n):
        vq.q += [tag] * n
    for s in range(NR2 - 1):
        trk(f"h{s}", issh(s))
    a(f"v_lshlrev_b32 v8, 2, v0\ns_mov_b32 s61, {WS_FY}")
    vq.wait("h0")
    a("s_barrier")
    trk(f"h{NR2 - 1}", issh(NR2 - 1))
    stamp(a, 11)

    def ypoll():
        for q in range(4):
            a(f"buffer_load_dword v{12 + q}, v8, {s4(S_WS)}, s61 offen offset:{256 * q} sc0 sc1")
    for s in range(23):
        tags = [f"h{s + 1}"]
        if s == YSTAGE + 8:
            tags.append("yt")
        vq.wait(*tags)
        a("s_barrier")
        if s == YSTAGE:
            ypoll(); trk("yp", 4)
        if s + NR2 < 24:
            trk(f"h{s + NR2}", issh(s + NR2))
        if s == YSTAGE + 4:
            Lyo = a.newlabel("yok"); Lc = a.newlabel("yc")
            vq.wait("yp")
            a("s_mov_b32 s62, 0")
            a.label(Lc)
            a(f"""v_and_b32 v12, v12, v13
            v_and_b32 v14, v14, v15
            v_and_b32 v12, v12, v14
            v_cmp_eq_u32 vcc, 1, v12
            s_and_b32 s96, vcc_lo, vcc_hi
            s_cmp_eq_u32 s96, -1
            s_cbranch_scc1 {Lyo}
            s_sleep 16""")
            ypoll()
            a(f"""s_add_u32 s62, s62, 1
            s_waitcnt vmcnt(0)
            s_cmp_lt_u32 s62, 200000
            s_cbranch_scc1 {Lc}""")
            a.label(Lyo)
            tile(WS_Y, P2_Y); trk("yt", 10)
    stamp_end(a, 0, S_WS, sWAVE)


P2_BASE = 0


def p2_base(a):
    XB, TB, DD = 8, 18, 28
    vTR = 2
    sW4 = 60
    a(f"""
    s_setprio 0
    s_sub_u32 s{sW4}, s{sWAVE}, 6
    v_and_b32 v4, 15, v0
    v_lshrrev_b32 v5, 4, v0
    v_lshlrev_b32 v6, 3, v4
    v_lshlrev_b32 v7, 3, v5
    s_lshl_b32 s61, s{sMI2}, 2
    s_add_u32 s61, s61, s{sW4}              ; l tile
    s_lshl_b32 s96, s61, 7
    s_add_u32 s96, s96, {WS_STATB}
    s_mul_i32 s62, s{sNI2}, 160
    buffer_load_dwordx2 v[38:39], v6, {s4(S_WS)}, s96 offen sc0 sc1
    """)
    for dt in range(5):
        a(f"buffer_load_dwordx2 {v2(DD + 2 * dt)}, v7, {s4(S_DSK)}, s62 offen offset:{32 * dt}")
    a(f"""
    v_lshrrev_b32 v{vTR}, 2, v0
    v_and_b32 v3, 3, v0
    v_lshlrev_b32 v{vTR}, 7, v{vTR}
    v_lshl_add_u32 v{vTR}, v3, 3, v{vTR}
    s_lshl_b32 s96, s{sW4}, 5
    s_add_u32 s96, s96, {P2_X}
    v_add_u32 v{vTR}, s96, v{vTR}
    v_mov_b32 v3, {K1_CTL}
    """)
    Lx = a.newlabel("xw")
    a.label(Lx)
    a(f"ds_read_b32 v6, v3 offset:24\ns_sleep 1\ns_waitcnt lgkmcnt(0)\nv_readfirstlane_b32 s96, v6\ns_cmp_ge_u32 s96, 1\ns_cbranch_scc0 {Lx}")
    for dt in range(5):
        a(f"ds_read_b64_tr_b16 {v2(XB + 2 * dt)}, v{vTR} offset:{2048 * dt}")
    a("s_waitcnt vmcnt(0)\nv_rcp_f32 v39, v39\ns_waitcnt lgkmcnt(0)\ns_barrier\ns_barrier")

    def unpack(b, d, s):
        b(f"v_and_b32 v{d + 1}, 0xffff0000, v{s}\nv_lshlrev_b32 v{d}, 16, v{s}")
    T = 40

    def part1(b):
        def rnd():
            for h in range(2):
                b(f"v_cvt_pk_bf16_f32 v{T + 2 * h}, v{T + 2 * h}, v{T + 1 + 2 * h}")
            for h in range(2):
                unpack(b, T + 2 * h, T + 2 * h)
        for dt in range(5):
            for h in range(2):
                unpack(b, T + 2 * h, XB + 2 * dt + h)
            for h in range(2):
                unpack(b, T + 4 + 2 * h, DD + 2 * dt + h)
            for i in range(4):
                b(f"v_sub_f32 v{T + i}, v{T + i}, v38")
            rnd()
            for i in range(4):
                b(f"v_mul_f32 v{T + i}, v{T + i}, v39")
            rnd()
            for i in range(4):
                b(f"v_mul_f32 v{T + i}, v{T + i}, v{T + 4 + i}")
            for h in range(2):
                b(f"v_cvt_pk_bf16_f32 v{TB + 2 * dt + h}, v{T + 2 * h}, v{T + 1 + 2 * h}")
    sliced(a, part1, 8)
    a("s_barrier\n" * (YSTAGE + 9 - 8))
    Y = 28

    def part2(b):
        for dt in range(5):
            b(f"ds_read_b64_tr_b16 {v2(Y + 2 * dt)}, v{vTR} offset:{2048 * dt}")
        b(f"s_mul_i32 s96, s{sW4}, 2560\ns_add_u32 s96, s96, {P2_BASE}\nv_lshlrev_b32 v3, 3, v0\nv_add_u32 v3, s96, v3\ns_waitcnt lgkmcnt(0)")
        for dt in range(5):
            for h in range(2):
                unpack(b, T + 2 * h, Y + 2 * dt + h)
                unpack(b, T + 4 + 2 * h, TB + 2 * dt + h)
            for i in range(4):
                b(f"v_add_f32 v{T + i}, v{T + i}, v{T + 4 + i}")
            for h in range(2):
                b(f"v_cvt_pk_bf16_f32 v{T + 2 * h}, v{T + 2 * h}, v{T + 1 + 2 * h}")
                unpack(b, T + 4 + 2 * h, XB + 2 * dt + h)
            for h in range(2):
                unpack(b, T + 2 * h, T + 2 * h)
            for i in range(4):
                b(f"v_add_f32 v{T + i}, v{T + i}, v{T + 4 + i}")
            for h in range(2):
                b(f"v_cvt_pk_bf16_f32 v{XB + 2 * dt + h}, v{T + 2 * h}, v{T + 1 + 2 * h}")
            b(f"ds_write_b64 v3, {v2(XB + 2 * dt)} offset:{512 * dt}")
        b("s_waitcnt lgkmcnt(0)")
    sliced(a, part2, 23 - (YSTAGE + 9))
    stamp_end(a, 0, S_WS, sWAVE)


def p2_gemm(a):
    ACC = 8
    F = [28, 52, 76, 100]
    vW, vL, vW2 = 2, 3, 124
    sW4 = 60
    a(f"""
    s_setprio 1
    s_sub_u32 s{sW4}, s{sWAVE}, 2
    s_lshl_b32 s61, s{sMI2}, 2
    s_add_u32 s61, s61, s{sW4}              ; l tile
    s_mul_i32 s62, s{sNI2}, 160
    v_lshlrev_b32 v{vW}, 4, v0
    s_lshl_b32 s96, s{sW4}, 11
    s_add_u32 s96, s96, {P2_H}
    v_add_u32 v{vL}, s96, v{vW}
    v_add_u32 v{vW2}, 0x10000, v{vW}
    v_and_b32 v4, 15, v0
    v_lshrrev_b32 v5, 4, v0
    v_mul_u32_u24 v4, 176, v4
    v_lshl_add_u32 v4, v5, 3, v4
    s_mul_i32 s63, s{sW4}, 2816
    s_add_u32 s63, s63, {P2_X}
    v_add_u32 v4, s63, v4
    s_mul_i32 s96, s{sW4}, 2560
    s_add_u32 s96, s96, {P2_BASE}
    v_lshlrev_b32 v5, 3, v0
    v_add_u32 v5, s96, v5
    """)
    for r in range(ACC, ACC + 20, 2):
        a(f"v_mov_b64 {v2(r)}, 0")
    a("s_barrier\ns_barrier")
    stamp(a, 8)

    def rdw(lq, k):
        s, kk = divmod(k, 2)
        f = F[k % 4]
        lq.issue(f"w{k}", f"ds_read_b128 {v4(f + 20)}, v{vL} offset:{(s % NR2) * 8192 + kk * 1024}")
        for dt in range(5):
            off = (s % NR2) * 10240 + kk * 5120 + 1024 * dt
            lq.issue(f"w{k}", f"ds_read_b128 {v4(f + 4 * dt)}, v{vW if off < 65536 else vW2} offset:{off % 65536}")

    def mf(k):
        f = F[k % 4]
        for dt in range(5):
            a(f"v_mfma_f32_16x16x32_bf16 {v4(ACC + 4 * dt)}, {v4(f + 4 * dt)}, {v4(f + 20)}, {v4(ACC + 4 * dt)}")
    lq = LQ(a)
    rdw(lq, 0)
    rdw(lq, 1)
    for s in range(24):
        lq.drain()
        if s < 23:
            a("s_barrier")
            n0 = len(a.L)
            rdw(lq, 2 * s + 2)
            rdw(lq, 2 * s + 3)
            R = a.L[n0:]; del a.L[n0:]
            mf(2 * s)
            mf(2 * s + 1)
            M = a.L[n0:]; del a.L[n0:]
            a.L += R[:3]
            R = R[3:]
            for m in M:
                a.L.append(m)
                if R:
                    a.L.append(R.pop(0))
        else:
            XB = 28
            for dt in range(5):
                lq.issue("b", f"ds_read_b64 {v2(XB + 2 * dt)}, v5 offset:{512 * dt}")
            mf(2 * s)
            mf(2 * s + 1)
    stamp(a, 9)
    for i in range(3):
        a(f"""v_add_u32 v6, {64 * i}, v0
        v_mul_u32_u24 v7, 205, v6
        v_lshrrev_b32 v7, 11, v7
        v_mul_u32_u24 v{60 + i}, 10, v7
        v_sub_u32 v6, v6, v{60 + i}
        v_mul_u32_u24 v{60 + i}, 176, v7
        v_lshl_add_u32 v{60 + i}, v6, 4, v{60 + i}
        v_add_u32 v{60 + i}, s63, v{60 + i}
        v_mul_u32_u24 v{64 + i}, 1280, v7
        v_lshl_add_u32 v{64 + i}, v6, 4, v{64 + i}""")
    a("s_waitcnt lgkmcnt(0)")
    O = 40
    for dt in range(5):
        for h in range(2):
            c = ACC + 4 * dt + 2 * h
            t = 52 + 2 * h
            a(f"""v_cvt_pk_bf16_f32 v{c}, v{c}, v{c+1}
            v_and_b32 v{t+1}, 0xffff0000, v{XB + 2 * dt + h}
            v_and_b32 v{c+1}, 0xffff0000, v{c}
            v_lshlrev_b32 v{c}, 16, v{c}
            v_lshlrev_b32 v{t}, 16, v{XB + 2 * dt + h}
            v_add_f32 v{c+1}, v{c+1}, v{t+1}
            v_add_f32 v{c}, v{c}, v{t}
            v_cvt_pk_bf16_f32 v{O + 2 * dt + h}, v{c}, v{c+1}""")
        a(f"ds_write_b64 v4, {v2(O + 2 * dt)} offset:{32 * dt}")
    for i in range(3):
        a(f"ds_read_b128 {v4(76 + 4 * i)}, v{60 + i}")
    a(f"""
    s_mul_i32 s96, s61, {16 * 1280}
    s_add_u32 s96, s96, s62
    s_waitcnt lgkmcnt(2)
    buffer_store_dwordx4 v[76:79], v64, {s4(S_OUT)}, s96 offen
    s_waitcnt lgkmcnt(1)
    buffer_store_dwordx4 v[80:83], v65, {s4(S_OUT)}, s96 offen
    s_waitcnt lgkmcnt(0)
    s_mov_b32 exec_hi, 0
    buffer_store_dwordx4 v[84:87], v66, {s4(S_OUT)}, s96 offen
    s_mov_b64 exec, -1
    """)
    stamp(a, 10)
    stamp_end(a, 0, S_WS, sWAVE)
```

```python
import sys, os, struct

NAME = "parallel_sum__ssm_conv_s4d__glu_gated_glu__prompt"

WS_H = 0
WS_WD = WS_H + 128 * 48 * 1024
WS_XT = WS_WD + 8 * 48 * 5 * 1024
WS_Y = WS_XT + 640 * 4096
KT_BYTES = 3584
WS_KT = WS_Y + 640 * 4096
WS_STATA = WS_KT + 640 * KT_BYTES
WS_STATB = WS_STATA + 2048 * 8
WS_CS = WS_STATB + 2048 * 8
WS_FH = WS_CS + 5 * 3072 * 4
WS_FY = WS_FH + 16 * 128
WS_END = WS_FY + 8 * 128

T0E, T0O, T1E, T1O, T2E, T2O = 0, 640, 1280, 1664, 2048, 2304
T3EE, T3EO, T3OE, T3OO = 2560, 2720, 2880, 3040
TK1024, TSIG = 3200, 3204

PROF = int(os.environ.get("PROF", "0"))
EXP = os.environ.get("EXP", "")
CSTAMP = int(os.environ.get("CSTAMP", "0"))
TOUCH_AT = int(os.environ.get("TOUCH_AT", "3"))
WS_PROF = 0x2000000
class _St:
    r = 127
    def __format__(self, spec): return str(self.r)


vSTAMP = _St()


def f32(x):
    return "0x%08x" % struct.unpack("<I", struct.pack("<f", x))[0]


class Asm:
    def __init__(self):
        self.L = []
        self.uid = 0

    def __call__(self, s):
        for line in s.split("\n"):
            line = line.strip()
            if line:
                self.L.append("  " + line)

    def label(self, n):
        self.L.append(n + ":")

    def newlabel(self, base):
        self.uid += 1
        return f"L_{base}_{self.uid}"

    def raw(self, s):
        self.L.append(s)

    def text(self):
        return "\n".join(self.L) + "\n"


class LQ:
    def __init__(self, a, seed=(), cnt="lgkmcnt", cap=15):
        self.a = a
        self.q = list(seed)
        self.cnt = cnt
        self.cap = cap

    def issue(self, tag, s):
        self.a(s)
        self.q.append(tag)

    def wait(self, *tags):
        idx = -1
        for t in tags:
            for i, x in enumerate(self.q):
                if x == t:
                    idx = max(idx, i)
        if idx < 0:
            return
        n = len(self.q) - 1 - idx
        self.a(f"s_waitcnt {self.cnt}({min(n, self.cap)})")
        self.q = self.q[idx + 1:] if n <= self.cap else self.q[len(self.q) - self.cap:]

    def drain(self):
        self.a(f"s_waitcnt {self.cnt}(0)")
        self.q = []


def stamp(a, i, real=False):
    if PROF:
        a(f"s_waitcnt lgkmcnt(0)\n{'s_memrealtime' if real else 's_memtime'} s[100:101]\ns_waitcnt lgkmcnt(0)\nv_writelane_b32 v{vSTAMP}, s100, {i}")


def stamp_dyn(a, sidx, base, mul=1):
    if PROF:
        a(f"s_waitcnt lgkmcnt(0)\ns_memtime s[100:101]\ns_mul_i32 s99, s{sidx}, {mul}\ns_add_u32 m0, s99, {base}\ns_waitcnt lgkmcnt(0)\nv_writelane_b32 v{vSTAMP}, s100, m0")


def stamp_end(a, kern, S_WS_, swave):
    if "diag" in EXP:
        Ld = a.newlabel("diag")
        if kern == 0:
            a(f"""s_cmp_lg_u32 s{swave}, 9
            s_cbranch_scc1 {Ld}
            s_waitcnt vmcnt(0) lgkmcnt(0)
            s_memrealtime s[100:101]
            s_lshl_b32 s98, s2, 2
            s_add_u32 s98, s98, {WS_END + 1024}
            v_mov_b32 v5, 0
            s_waitcnt lgkmcnt(0)
            v_mov_b32 v6, s100
            s_mov_b64 exec, 1
            buffer_store_dword v6, v5, s[{S_WS_}:{S_WS_+3}], s98 offen""")
        else:
            a(f"""s_cmp_lg_u32 s{swave}, 0
            s_cbranch_scc1 {Ld}
            s_lshl_b32 s98, s2, 2
            s_add_u32 s98, s98, {WS_END}
            v_mov_b32 v5, 0
            s_mov_b64 exec, 1
            buffer_load_dword v7, v5, s[{S_WS_}:{S_WS_+3}], s98 offen
            buffer_load_dword v8, v5, s[{S_WS_}:{S_WS_+3}], s98 offen offset:1024
            s_waitcnt vmcnt(0) lgkmcnt(0)
            s_memrealtime s[100:101]
            s_waitcnt lgkmcnt(0)
            v_mov_b32 v6, s100
            v_and_b32 v6, 0xffffff, v6
            v_and_b32 v7, 0xffffff, v7
            v_and_b32 v8, 0xffffff, v8
            v_and_b32 v9, 0xffffff, v165
            v_sub_u32 v10, 0xffffff, v7
            v_sub_u32 v11, 0xffffff, v9
            buffer_atomic_umax v10, v5, s[16:19], 0 offen offset:0
            buffer_atomic_umax v7, v5, s[16:19], 0 offen offset:4
            buffer_atomic_umax v8, v5, s[16:19], 0 offen offset:8
            buffer_atomic_umax v11, v5, s[16:19], 0 offen offset:12
            buffer_atomic_umax v9, v5, s[16:19], 0 offen offset:16
            buffer_atomic_umax v6, v5, s[16:19], 0 offen offset:20""")
        a.label(Ld)
    if PROF:
        a("s_waitcnt vmcnt(0)")
        stamp(a, 6)
        stamp(a, 7, True)
        a(f"""s_lshl_b32 s100, s2, 4
        s_add_u32 s100, s100, s{swave}
        s_lshl_b32 s100, s100, 8
        s_add_u32 s100, s100, {WS_PROF + kern * 0x100000}
        v_lshlrev_b32 v1, 2, v0
        buffer_store_dword v{vSTAMP}, v1, s[{S_WS_}:{S_WS_+3}], s100 offen
        s_waitcnt vmcnt(0)""")
    a("s_endpgm")


def code_prefetch(a, first, last, nchunk, sidx, swave, wsel, vtmp, sp):
    if "nopf" in EXP:
        return
    L = a.newlabel("nopf"); H = a.newlabel("here")
    a(f"s_cmp_lg_u32 s{swave}, {wsel}\ns_cbranch_scc1 {L}\ns_cmp_ge_u32 s{sidx}, {nchunk}\ns_cbranch_scc1 {L}\ns_getpc_b64 s[{sp}:{sp+1}]")
    a.label(H)
    a(f"""s_sub_u32 s{sp}, s{sp}, {H}-{first}
    s_subb_u32 s{sp+1}, s{sp+1}, 0
    s_lshl_b32 s{sp+2}, s{sidx}, 13
    v_lshl_add_u32 v{vtmp}, v0, 7, s{sp+2}
    v_min_u32 v{vtmp}, {last}-{first}-4, v{vtmp}
    global_load_dword v{vtmp}, v{vtmp}, s[{sp}:{sp+1}]""")
    a.label(L)


def srd(a, d, lo, nbytes):
    a(f"s_mov_b32 s{d}, s{lo}\ns_mov_b32 s{d+1}, s{lo+1}\ns_mov_b32 s{d+2}, {nbytes}\ns_mov_b32 s{d+3}, 0x00020000")


def v4(r): return f"v[{r}:{r+3}]"
def v2(r): return f"v[{r}:{r+1}]"
def s4(r): return f"s[{r}:{r+3}]"


def dpp_row_allreduce(a, op, regs):
    for sh in (8, 4, 2, 1):
        if len(regs) < 3:
            a("s_nop 1")
        for r in regs:
            a(f"{op}_dpp v{r}, v{r}, v{r} row_ror:{sh} row_mask:0xf bank_mask:0xf")


def wave_max_u32_to_sgpr(a, v, sd, st):
    dpp_row_allreduce(a, "v_max_u32", [v])
    a(f"""s_nop 0
    v_readlane_b32 s{sd}, v{v}, 0
    v_readlane_b32 s{st}, v{v}, 16
    s_max_u32 s{sd}, s{sd}, s{st}
    v_readlane_b32 s{st}, v{v}, 32
    s_max_u32 s{sd}, s{sd}, s{st}
    v_readlane_b32 s{st}, v{v}, 48
    s_max_u32 s{sd}, s{sd}, s{st}""")


def round_bf16(a, d, s):
    a(f"v_cvt_pk_bf16_f32 v{d}, v{s}, v{s}\nv_lshlrev_b32 v{d}, 16, v{d}")


XSZ = 208 * 128
WSZ = 16384
SLOT = XSZ + WSZ
K1_STAT = 3 * SLOT
K1_CS = K1_STAT + 2048
K1_KG = K1_CS + 512
K1_STA = K1_KG + 3 * 4096
K1_SCR = K1_STA + 8192
K1_CTL = K1_STA + 16384
K1_LDS = 163840
assert K1_CTL + 64 <= K1_LDS

S_X, S_WG, S_WU, S_WD, S_WS, S_DBG = 4, 8, 12, 16, 20, 24
S_LA, S_AI, S_CR, S_CI, S_DT = 28, 32, 36, 40, 44
S_TMP = 48
S_OUT, S_DSK = 72, 76
sMI2, sNI2 = 80, 81
sWAVE, sMI, sNI, sROW0, sGI, sIDX, sXCD = 3, 52, 53, 54, 55, 56, 57
sMODE = 64


def k1_loader(a, parts):
    vOX, vOW = 16, 20
    sT, sXO, sWO, sDSL, sPEND = 58, 59, 60, 61, 62
    a(f"""
    s_setprio 3
    v_lshrrev_b32 v8, 3, v0            ; rho
    v_and_b32 v9, 7, v0                ; c'
    v_xor_b32 v10, v9, v8
    v_mul_u32_u24 v{vOX}, 1280, v8
    v_lshl_add_u32 v{vOX}, v10, 4, v{vOX}
    v_bfe_u32 v10, v8, 1, 1
    v_lshrrev_b32 v11, 1, v9
    v_xor_b32 v11, v11, v10
    v_and_b32 v12, 1, v9
    v_lshl_add_u32 v11, v11, 1, v12
    v_mul_u32_u24 v{vOW}, 3072, v8
    v_lshl_add_u32 v{vOW}, v11, 4, v{vOW}
    v_xor_b32 v13, 64, v{vOW}
    v_add_u32 v{vOW + 1}, {8 * 3072 - 1024}, v13
    v_add_u32 v{vOW + 2}, {2 * (8 * 3072 - 1024)}, v{vOW}
    v_add_u32 v{vOW + 3}, {3 * (8 * 3072 - 1024)}, v13
    v_add_u32 v{vOX + 1}, {8 * 1280 - 1024}, v{vOX}
    v_add_u32 v{vOX + 2}, {2 * (8 * 1280 - 1024)}, v{vOX}
    v_add_u32 v{vOX + 3}, {3 * (8 * 1280 - 1024)}, v{vOX}
    s_mul_i32 s{sT}, s{sWAVE}, 104
    s_add_u32 s{sXO}, s{sROW0}, s{sT}
    s_mul_i32 s{sXO}, s{sXO}, 1280
    s_lshl_b32 s{sWO}, s{sNI}, 7
    s_cmp_eq_u32 s{sWAVE}, 0
    s_cselect_b32 s{S_TMP}, s{S_WG}, s{S_WU}
    s_cselect_b32 s{S_TMP+1}, s{S_WG+1}, s{S_WU+1}
    s_mov_b32 s{S_TMP+2}, {640 * 3072}
    s_mov_b32 s{S_TMP+3}, 0x00020000
    s_mul_i32 s92, s{sWAVE}, {13 * 1024}
    s_mul_i32 s93, s{sWAVE}, 8192
    s_add_u32 s93, s93, {XSZ}
    v_lshlrev_b32 v24, 2, v0
    v_lshlrev_b32 v25, 4, v0
    """)
    groups = [("w", 0, 4), ("x", 0, 4), ("x", 4, 4), ("x", 8, 4), ("x", 12, 1), ("w", 4, 4)]

    def issue(st):
        slot = (st % 3) * SLOT
        Lsk = a.newlabel("noiss")
        a(f"s_cmp_ge_u32 s{sIDX}, 30\ns_cbranch_scc1 {Lsk}")
        for (k, i0, n) in groups:
            if k == "x":
                a(f"s_add_u32 m0, s92, {slot + i0 * 1024}\ns_add_u32 s98, s{sXO}, {i0 * 8 * 1280 + st * 128}")
                for j in range(n):
                    a(f"buffer_load_dwordx4 v{vOX + j}, {s4(S_X)}, s98 offen offset:{1024 * j} lds")
            else:
                a(f"s_add_u32 m0, s93, {slot + i0 * 1024}\ns_add_u32 s98, s{sWO}, {(st * 64 + i0 * 8) * 3072}")
                for j in range(n):
                    a(f"buffer_load_dwordx4 v{vOW + j}, {s4(S_TMP)}, s98 offen offset:{1024 * j} lds")
        a.label(Lsk)

    def stage_loads():
        a(f"""s_lshl_b32 s98, s{sROW0}, 3
        s_mov_b32 m0, {K1_STAT}
        s_add_u32 s98, s98, {WS_STATB}
        buffer_load_dwordx4 v25, {s4(S_WS)}, s98 offen sc0 sc1 lds
        buffer_load_dwordx4 v25, {s4(S_WS)}, s98 offen offset:1024 sc0 sc1 lds
        s_lshl_b32 s97, s{sNI}, 8
        s_add_u32 s97, s97, {WS_CS}""")
        for rc in range(5):
            a(f"s_add_u32 s98, s97, {rc * 12288}\nbuffer_load_dword v{32 + rc}, v24, {s4(S_WS)}, s98 offen sc0 sc1")
            a(f"s_add_u32 s98, s97, {rc * 12288 + 6144}\nbuffer_load_dword v{37 + rc}, v24, {s4(S_WS)}, s98 offen sc0 sc1")

    def flags_ok(Lno):
        a(f"v_cmp_le_u32 vcc, 4, v30\ns_and_b32 s{sT}, vcc_lo, vcc_hi\ns_cmp_eq_u32 s{sT}, -1\ns_cbranch_scc0 {Lno}")

    issue(0)
    a("s_setprio 0")
    issue(1)
    stamp(a, 2)
    a("s_barrier")
    a("s_waitcnt vmcnt(21)\ns_setprio 3")
    stamp(a, 3)
    a("s_barrier")
    issue(2)
    L1 = a.newlabel("ldr1"); L4 = a.newlabel("b4")
    for s in range(3):
        a("s_waitcnt vmcnt(21)\ns_barrier")
        issue(s + 3)
    a("s_waitcnt vmcnt(21)\ns_barrier")
    a(f"s_cmp_eq_u32 s{sWAVE}, 1\ns_cbranch_scc1 {L1}")
    issue(6)
    a(f"s_waitcnt vmcnt(21)\ns_branch {L4}")
    a.label(L1)
    Lb = a.newlabel("bk")
    a(f"s_cmp_lt_u32 s{sIDX}, 30\ns_cbranch_scc1 {Lb}\ns_sleep 100")
    a.label(Lb)
    a(f"buffer_load_dword v30, v24, {s4(S_DBG)}, 0 offen sc0 sc1")
    issue(6)
    Lv = a.newlabel("v")
    a(f"s_waitcnt vmcnt(21)\ns_cmp_lt_u32 s{sIDX}, 30\ns_cbranch_scc1 {Lv}\ns_waitcnt vmcnt(0)")
    a.label(Lv)
    Lsp = a.newlabel("spin"); Lchk = a.newlabel("chk")
    a(f"s_mov_b32 s{sPEND}, 0")
    a.label(Lchk)
    flags_ok(Lsp)
    a(f"s_branch {L4}")
    a.label(Lsp)
    a(f"""s_sleep 20
    buffer_load_dword v30, v24, {s4(S_DBG)}, 0 offen sc0 sc1
    s_add_u32 s{sPEND}, s{sPEND}, 1
    s_waitcnt vmcnt(0)
    s_cmp_lt_u32 s{sPEND}, 200000
    s_cbranch_scc1 {Lchk}""")
    a.label(L4)
    a("s_barrier")
    stamp(a, 5)
    a(f"s_lshl_b32 s{sT}, s{sWAVE}, 13\ns_add_u32 s98, s{sT}, {WS_STATA}")
    for g in range(2):
        a(f"s_add_u32 m0, s{sT}, {K1_STA + 4096 * g}\ns_add_u32 s97, s98, {4096 * g}")
        for j in range(4):
            a(f"buffer_load_dwordx4 v25, {s4(S_WS)}, s97 offen offset:{1024 * j} sc0 sc1 lds")
    issue(7)
    Lv2 = a.newlabel("v")
    a(f"s_waitcnt vmcnt(21)\ns_cmp_lt_u32 s{sIDX}, 30\ns_cbranch_scc1 {Lv2}\ns_waitcnt vmcnt(0)")
    a.label(Lv2)
    a("s_barrier")
    issue(8)
    a("s_waitcnt vmcnt(21)\ns_barrier")
    Ln = a.newlabel("nocs"); Ln2 = a.newlabel("nocs")
    a(f"s_cmp_eq_u32 s{sWAVE}, 0\ns_cbranch_scc1 {Ln}")
    stage_loads()
    issue(9)
    a("s_waitcnt vmcnt(33)\ns_barrier\ns_waitcnt vmcnt(0)")
    for rc in range(1, 5):
        a(f"v_add_f32 v32, v32, v{32 + rc}\nv_add_f32 v37, v37, v{37 + rc}")
    a(f"""v_add_u32 v26, {K1_CS}, v24
    ds_write_b32 v26, v32
    ds_write_b32 v26, v37 offset:256
    s_waitcnt lgkmcnt(0)
    s_branch {Ln2}""")
    a.label(Ln)
    issue(9)
    a("s_waitcnt vmcnt(21)\ns_barrier\ns_waitcnt vmcnt(0)")
    a.label(Ln2)
    a("s_barrier")
    stamp(a, 4)
    import gen2
    gen2.p2_loader(a)


def k1_gemm(a, var):
    extra = 1 if var < 2 else 0
    NB = 3 + extra
    A = [6, 22]
    B = [38, 54]
    ACC = 70
    vA0, vA1, vAW, vAW1 = 2, 3, 4, 5
    sST, sSLOT, sT = 58, 60, 62
    sFP, sLQ = 95, 94
    T0 = 38

    a(f"s_sub_u32 s{sT}, s{sWAVE}, 2\ns_and_b32 s{sFP}, s{sT}, 1\ns_lshr_b32 s{sLQ}, s{sT}, 1")
    a(f"""
    v_and_b32 v{T0}, 15, v0
    v_lshrrev_b32 v{T0+1}, 4, v0
    v_and_b32 v{T0+2}, 7, v{T0}
    v_xor_b32 v{T0+2}, v{T0+2}, v{T0+1}
    v_lshlrev_b32 v{vA0}, 7, v{T0}
    v_lshl_add_u32 v{vA0}, v{T0+2}, 4, v{vA0}
    s_mul_i32 s{sT}, s{sLQ}, {3 * 2048}
    v_add_u32 v{vA0}, s{sT}, v{vA0}
    v_xor_b32 v{vA1}, 64, v{vA0}
    v_lshrrev_b32 v{T0+2}, 2, v{T0}           ; r
    v_and_b32 v{T0+3}, 3, v{T0}               ; c
    v_lshrrev_b32 v{T0+4}, 1, v{T0+2}
    v_and_b32 v{T0+5}, 1, v{T0+1}
    v_lshl_or_b32 v{T0+4}, v{T0+5}, 1, v{T0+4}
    s_lshl_b32 s{sT}, s{sFP}, 1
    v_xor_b32 v{T0+4}, s{sT}, v{T0+4}
    v_lshl_add_u32 v{T0+5}, v{T0+1}, 3, v{T0+2}     ; 8hq + r
    v_lshlrev_b32 v{vAW}, 7, v{T0+5}
    v_lshl_add_u32 v{vAW}, v{T0+4}, 5, v{vAW}
    v_lshl_add_u32 v{vAW}, v{T0+3}, 3, v{vAW}
    v_add_u32 v{vAW}, {XSZ}, v{vAW}
    v_xor_b32 v{vAW1}, 32, v{vAW}
    """)
    for r in range(ACC, ACC + 48 + 8 * extra, 2):
        a(f"v_mov_b64 {v2(r)}, 0")

    def next_addr():
        a(f"""s_add_u32 s{sSLOT}, s{sSLOT}, 1
        s_cmp_eq_u32 s{sSLOT}, 3
        s_cselect_b32 s{sT}, s63, {SLOT}
        s_cselect_b32 s{sSLOT}, 0, s{sSLOT}""")

    def set_addr():
        for r in (vAW, vA0, vAW1, vA1):
            a(f"v_add_u32 v{r}, s{sT}, v{r}")

    def reads(kk):
        R = []

        def rA(fr):
            for s in range(2):
                R.append((f"A{kk}{fr}", f"ds_read_b64_tr_b16 {v2(A[kk] + 4 * fr + 2 * s)}, v{vAW1 if fr >= 2 else vAW} offset:{kk * 4096 + s * 512 + (8192 if fr & 1 else 0)}"))

        def rB(t):
            off = (12 - 3 * var) * 2048 if t == 3 else t * 2048
            R.append((f"B{kk}{t}", f"ds_read_b128 {v4(B[kk] + 4 * t)}, v{vA1 if kk else vA0} offset:{off}"))
        rA(0); rB(0); rA(1); rA(2); rA(3)
        for t in range(1, NB):
            rB(t)
        return R

    def mf(t, fr, kk):
        acc = ACC + 48 + 4 * (fr & 1) if t == 3 else ACC + 16 * t + 4 * fr
        a(f"v_mfma_f32_16x16x32_bf16 {v4(acc)}, {v4(A[kk] + 4 * fr)}, {v4(B[kk] + 4 * t)}, {v4(acc)}")

    def phase(lq, kk, R):
        R = list(R)
        for t in range(3):
            for fr in range(4):
                lq.wait(f"A{kk}{fr}", f"B{kk}{t}")
                mf(t, fr, kk)
                if R:
                    tg, ins = R.pop(0)
                    lq.issue(tg, ins)
        while R:
            tg, ins = R.pop(0)
            lq.issue(tg, ins)
        if extra:
            lq.wait(f"B{kk}3")
            mf(3, 2 * var, kk); mf(3, 2 * var + 1, kk)

    stamp(a, 2)
    a(f"s_mov_b32 s{sSLOT}, 0\ns_mov_b32 s{sST}, 0\ns_mov_b32 s63, {(-2 * SLOT) & 0xffffffff}\ns_setprio 2\ns_waitcnt lgkmcnt(0)\ns_barrier")
    stamp(a, 3)
    lq = LQ(a)
    for tg, ins in reads(0):
        lq.issue(tg, ins)
    seed = list(lq.q)

    def body(last):
        lq = LQ(a, seed)
        phase(lq, 0, reads(1))
        if not last:
            next_addr()
            lq.drain()
            a("s_waitcnt vmcnt(0)")
            set_addr()
            if CSTAMP == 1:
                stamp_dyn(a, sST, 8, 2)
            a("s_barrier")
            if CSTAMP == 1:
                stamp_dyn(a, sST, 9, 2)
            phase(lq, 1, reads(0))
        else:
            lq.drain()
            a(f"v_mov_b32 v{vA0}, {K1_CTL}\nv_mov_b32 v{vA1}, 1\ns_mov_b64 exec, 1\nds_add_u32 v{vA0}, v{vA1} offset:28\ns_mov_b64 exec, -1")
            phase(lq, 1, [])

    Lloop = a.newlabel("gloop")
    a.label(Lloop)
    body(False)
    a(f"s_add_u32 s{sST}, s{sST}, 1\ns_cmp_lt_u32 s{sST}, 9\ns_cbranch_scc1 {Lloop}")
    body(True)

    stamp(a, 4)
    vSA, vCA, vHO = 2, 3, 4
    CS = 8
    ST = 24
    a(f"""
    v_and_b32 v{T0}, 15, v0
    v_lshrrev_b32 v{T0+1}, 4, v0
    s_mul_i32 s{sT}, s{sLQ}, {3 * 128}
    s_add_u32 s{sT}, s{sT}, {K1_STAT}
    v_lshl_add_u32 v{vSA}, v{T0}, 3, s{sT}
    s_lshl_b32 s{sT}, s{sFP}, 7
    s_add_u32 s{sT}, s{sT}, {K1_CS}
    v_lshl_add_u32 v{vCA}, v{T0+1}, 4, s{sT}
    ds_read_b128 {v4(CS)}, v{vCA}
    ds_read_b128 {v4(CS + 4)}, v{vCA} offset:256
    ds_read_b128 {v4(CS + 8)}, v{vCA} offset:64
    ds_read_b128 {v4(CS + 12)}, v{vCA} offset:320
    """)
    for t in range(3):
        a(f"ds_read_b64 {v2(ST + 2 * t)}, v{vSA} offset:{t * 128}")
    if extra:
        a(f"ds_read_b64 {v2(ST + 6)}, v{vSA} offset:{(12 - 3 * var) * 128}")
    a(f"""
    v_lshlrev_b32 v{vHO}, 4, v0
    s_lshr_b32 s96, s{sROW0}, 4
    s_mul_i32 s96, s96, 49152
    s_lshl_b32 s97, s{sNI}, 1
    s_add_u32 s97, s97, s{sFP}
    s_lshl_b32 s97, s97, 10
    s_add_u32 s96, s96, s97
    s_add_u32 s96, s96, {WS_H}
    s_mul_i32 s97, s{sLQ}, {3 * 49152}
    s_add_u32 s99, s96, s97
    s_mov_b32 s98, 0xbfb8aa3b           ; -log2e
    s_waitcnt lgkmcnt(0)
    """)
    TM = 40
    PK = 48
    c1 = 56

    def act(g, u, csg, csu, m, s, pk):
        for r in range(4):
            a(f"v_fma_f32 v{TM + r}, -v{m}, v{csg + r}, v{g + r}")
        for r in range(4):
            a(f"v_mul_f32 v{TM + r}, v{TM + r}, v{c1}")
        for r in range(4):
            a(f"v_exp_f32 v{TM + r}, v{TM + r}")
        for r in range(4):
            a(f"v_fma_f32 v{TM + 4 + r}, -v{m}, v{csu + r}, v{u + r}")
        for r in range(4):
            a(f"v_fma_f32 v{TM + r}, v{TM + r}, v{s}, v{s}")
        for r in range(4):
            a(f"v_rcp_f32 v{TM + r}, v{TM + r}")
        a("s_nop 0")
        for r in range(4):
            a(f"v_mul_f32 v{TM + 4 + r}, v{TM + 4 + r}, v{TM + r}")
        a(f"v_cvt_pk_bf16_f32 v{pk}, v{TM + 4}, v{TM + 5}\nv_cvt_pk_bf16_f32 v{pk + 1}, v{TM + 6}, v{TM + 7}")

    for t in range(3):
        m, s = ST + 2 * t, ST + 2 * t + 1
        Lsk = None
        if var == 0 and t < 2:
            Lsk = a.newlabel("skipst")
            a(f"s_cmp_eq_u32 s{sMI}, 9\ns_cbranch_scc1 {Lsk}")
        a(f"v_rcp_f32 v{c1}, v{s}\ns_nop 0\nv_mul_f32 v{c1}, s98, v{c1}")
        b = PK + 4 * (t & 1)
        act(ACC + 16 * t, ACC + 16 * t + 4, CS, CS + 4, m, s, b)
        act(ACC + 16 * t + 8, ACC + 16 * t + 12, CS + 8, CS + 12, m, s, b + 2)
        a(f"s_add_u32 s97, s99, {t * 49152}")
        a(f"buffer_store_dwordx4 {v4(b)}, v{vHO}, {s4(S_WS)}, s97 offen")
        if Lsk:
            a.label(Lsk)
    if extra:
        m, s = ST + 6, ST + 7
        a(f"v_rcp_f32 v{c1}, v{s}\ns_nop 0\nv_mul_f32 v{c1}, s98, v{c1}")
        act(ACC + 48, ACC + 52, CS + 8 * var, CS + 4 + 8 * var, m, s, PK + 4)
        a(f"s_add_u32 s97, s96, {12 * 49152 + 8 * var}")
        a(f"buffer_store_dwordx2 {v2(PK + 4)}, v{vHO}, {s4(S_WS)}, s97 offen")
    stamp(a, 5)
    a("s_branch L_k1_hsig")


def sliced(a, fn, nbar):
    b = Asm()
    b.uid = a.uid + 1000
    fn(b)
    a.uid = b.uid
    n = len(b.L)
    cuts = {(n * (i + 1)) // nbar for i in range(nbar)}
    assert len(cuts) == nbar
    for i, l in enumerate(b.L):
        a.L.append(l)
        if i + 1 in cuts:
            a("s_barrier")


def k1_stats_loads(a):
    a(f"""
    v_lshrrev_b32 v5, 4, v0
    v_and_b32 v6, 15, v0
    v_mul_u32_u24 v7, 1280, v5
    v_lshl_add_u32 v7, v6, 4, v7
    s_and_b32 s58, s{sXCD}, 1
    s_lshl_b32 s58, s58, 10
    s_lshr_b32 s59, s{sXCD}, 1
    s_lshl_b32 s59, s59, 8
    s_add_u32 s58, s58, s59
    s_lshl_b32 s59, s{sIDX}, 3
    s_add_u32 s58, s58, s59
    s_mul_i32 s59, s58, 1280
    s_add_u32 s60, s59, {4 * 1280}
    """)
    for p in range(2):
        for j in range(5):
            a(f"buffer_load_dwordx4 {v4(8 + 20 * p + 4 * j)}, v7, {s4(S_X)}, s{59 + p} offen offset:{256 * j}")


def k1_stats(a, nlater):
    RAW = 8
    AC = 48
    D = 56
    a(f"""
    v_mov_b32 v72, 0x3f803f80
    s_mov_b32 s92, 0x9999999a
    s_mov_b32 s93, 0x3f599999           ; 1/640 (f64)
    s_mov_b32 s94, 0x3727c5ac           ; 1e-5
    s_lshl_b32 s59, s58, 3
    v_lshl_add_u32 v73, v5, 3, s59
    v_lshrrev_b32 v74, 1, v5
    v_lshlrev_b32 v74, 12, v74
    v_and_b32 v75, 1, v5
    v_lshl_add_u32 v74, v75, 3, v74
    s_lshl_b32 s59, s58, 1
    v_add_u32 v74, s59, v74
    """)
    for r in range(AC, AC + 8, 2):
        a(f"v_mov_b64 {v2(r)}, 0")
    for p in range(2):
        a(f"s_waitcnt vmcnt({nlater + 5 - 5 * p})")
        for i in range(20):
            x = RAW + 20 * p + i
            a(f"v_dot2c_f32_bf16 v{AC + 4 * p + (i & 1)}, v{x}, v72\nv_dot2c_f32_bf16 v{AC + 4 * p + 2 + (i & 1)}, v{x}, v{x}")
    a("s_nop 2")
    for c in range(4):
        a(f"v_cvt_f64_f32 {v2(D + 2 * c)}, v{AC + 2 * c}\nv_cvt_f64_f32 {v2(D + 8 + 2 * c)}, v{AC + 2 * c + 1}")
    for c in range(4):
        a(f"v_add_f64 {v2(D + 2 * c)}, {v2(D + 2 * c)}, {v2(D + 8 + 2 * c)}")
    for sh in (8, 4, 2, 1):
        for c in range(4):
            for h in range(2):
                a(f"v_mov_b32_dpp v{D + 8 + 2 * c + h}, v{D + 2 * c + h} row_ror:{sh} row_mask:0xf bank_mask:0xf")
        for c in range(4):
            a(f"v_add_f64 {v2(D + 2 * c)}, {v2(D + 2 * c)}, {v2(D + 8 + 2 * c)}")
    for p in range(2):
        m, v = D + 4 * p, D + 4 * p + 2
        a(f"""v_mul_f64 {v2(m)}, {v2(m)}, s[92:93]
        v_mul_f64 {v2(v)}, {v2(v)}, s[92:93]
        v_fma_f64 {v2(v)}, -{v2(m)}, {v2(m)}, {v2(v)}
        v_cvt_f32_f64 v76, {v2(m)}
        v_cvt_f32_f64 v77, {v2(v)}
        v_max_f32 v77, 0, v77""")
        round_bf16(a, 78, 76)
        round_bf16(a, 77, 77)
        a("v_add_f32 v77, s94, v77")
        round_bf16(a, 77, 77)
        a("v_sqrt_f32 v77, v77\ns_nop 0")
        round_bf16(a, 79, 77)
        a("v_rcp_f32 v80, v79\ns_nop 0\nv_mul_f32_e64 v81, -v78, v80")
        a(f"""
        v_cmp_eq_u32 vcc, 0, v6
        s_and_saveexec_b64 s[96:97], vcc
        s_mov_b32 s98, {WS_STATB + 32 * p}
        s_mov_b32 s99, {WS_STATA + 8192 * p}
        buffer_store_dwordx2 v[78:79], v73, {s4(S_WS)}, s98 offen sc0 sc1
        buffer_store_dwordx2 v[80:81], v74, {s4(S_WS)}, s99 offen sc0 sc1
        s_mov_b64 exec, -1
        """)


def k1_colsum_loads(a):
    a(f"""
    v_lshrrev_b32 v5, 3, v0
    v_and_b32 v6, 7, v0
    v_mul_u32_u24 v7, 3072, v5
    v_lshl_add_u32 v7, v6, 4, v7
    s_and_b32 s58, s{sXCD}, 1
    s_mul_i32 s58, s58, 30
    s_add_u32 s58, s58, s{sIDX}         ; u
    s_mul_i32 s59, s58, 43
    s_lshr_b32 s59, s59, 9              ; rc = u/12
    s_mul_i32 s60, s59, 12
    s_sub_u32 s60, s58, s60             ; cbl
    s_cmp_ge_u32 s60, 6
    s_cselect_b32 s{S_TMP}, s{S_WU}, s{S_WG}
    s_cselect_b32 s{S_TMP+1}, s{S_WU+1}, s{S_WG+1}
    s_cselect_b32 s96, 6, 0
    s_cselect_b32 s97, 24, 0
    s_mov_b32 s{S_TMP+2}, {640 * 3072}
    s_mov_b32 s{S_TMP+3}, 0x00020000
    s_sub_u32 s60, s60, s96
    s_lshr_b32 s96, s{sXCD}, 1
    s_mul_i32 s96, s96, 6
    s_add_u32 s60, s60, s96             ; n tile
    s_lshl_b32 s96, s60, 7
    s_mul_i32 s98, s59, {128 * 3072}
    s_add_u32 s96, s96, s98
    s_add_u32 s60, s60, s97
    """)
    for i in range(16):
        a(f"s_add_u32 s98, s96, {i * 8 * 3072}\nbuffer_load_dwordx4 {v4(8 + 4 * i)}, v7, {s4(S_TMP)}, s98 offen")


def k1_colsum(a, nlater):
    RAW = 8
    AC = 72
    a("v_mov_b32 v80, 0x00003f80\nv_mov_b32 v81, 0x3f800000")
    for r in range(AC, AC + 8, 2):
        a(f"v_mov_b64 {v2(r)}, 0")
    for i in range(16):
        if i % 4 == 0:
            a(f"s_waitcnt vmcnt({nlater + 12 - i})")
        for k in range(4):
            r = RAW + 4 * i + k
            a(f"v_dot2c_f32_bf16 v{AC + 2 * k}, v{r}, v80\nv_dot2c_f32_bf16 v{AC + 2 * k + 1}, v{r}, v81")
    a(f"""
    v_lshlrev_b32 v80, 5, v0
    v_add_u32 v80, {K1_SCR}, v80
    v_lshlrev_b32 v81, 2, v0
    v_add_u32 v82, {K1_SCR}, v81
    ds_write_b128 v80, {v4(AC)}
    ds_write_b128 v80, {v4(AC + 4)} offset:16
    """)
    for i in range(8):
        a(f"ds_read_b32 v{RAW + i}, v82 offset:{256 * i}")
    a("s_waitcnt lgkmcnt(0)")
    for i in range(1, 8):
        a(f"v_add_f32 v{RAW}, v{RAW}, v{RAW + i}")
    a(f"""
    s_mul_i32 s96, s59, {3072 * 4}
    s_lshl_b32 s97, s60, 8
    s_add_u32 s96, s96, s97
    s_add_u32 s96, s96, {WS_CS}
    buffer_store_dword v{RAW}, v81, {s4(S_WS)}, s96 offen sc0 sc1
    """)


KG_P = 8
KG_TILE = 60
KG_ACC = 16


def kgen_loads(a, sCH, sRND, D=KG_P):
    a(f"""
    s_lshl_b32 s96, s{sRND}, 7
    v_lshl_add_u32 v2, v0, 1, s96
    s_mul_i32 s96, s{sCH}, 384
    s_lshl_b32 s97, s{sCH}, 1
    v_mov_b32 v3, 0
    buffer_load_ushort v{D+4}, v3, {s4(S_DT)}, s97 offen
    buffer_load_ushort v{D}, v2, {s4(S_LA)}, s96 offen
    buffer_load_ushort v{D+1}, v2, {s4(S_AI)}, s96 offen
    buffer_load_ushort v{D+2}, v2, {s4(S_CR)}, s96 offen
    buffer_load_ushort v{D+3}, v2, {s4(S_CI)}, s96 offen
    """)


def kgen_valu(a):
    vLA, vAI, vCR, vCI, vDT = KG_P, KG_P + 1, KG_P + 2, KG_P + 3, KG_P + 4
    lr, th = 13, 14
    T = 16
    nxt = [24]

    def creg():
        r = nxt[0]
        nxt[0] += 2
        assert r + 1 < KG_TILE
        return (r, r + 1)

    def preg():
        r = nxt[0]
        nxt[0] += 1
        assert r < KG_TILE
        return r

    a("s_mov_b32 s88, 0x3fb8aa3b\ns_mov_b32 s89, 0x32a57060\ns_mov_b32 s90, 0x3f317218")

    def expbf(d, x, t):
        a(f"""v_mul_f32 v{t}, s88, v{x}
        v_fma_f32 v{t+1}, v{x}, s88, -v{t}
        v_exp_f32 v{t}, v{t}
        v_fma_f32 v{t+1}, v{x}, s89, v{t+1}
        v_mul_f32 v{t+1}, s90, v{t+1}
        v_fma_f32 v{t}, v{t}, v{t+1}, v{t}""")
        round_bf16(a, d, t)

    for r in range(5):
        a(f"v_lshlrev_b32 v{KG_P + r}, 16, v{KG_P + r}")
    a(f"""v_and_b32 v{T+2}, 0x7fffffff, v{vCR}
    v_and_b32 v{T+3}, 0x7fffffff, v{vCI}
    v_max_u32 v{T+2}, v{T+2}, v{T+3}""")
    expbf(vDT, vDT, T)
    expbf(vLA, vLA, T)
    a(f"""v_mul_f32 v{lr}, v{vLA}, v{vDT}
    v_mul_f32 v{th}, v{vAI}, v{vDT}
    v_mul_f32_e64 v{lr}, -v{lr}, s88
    v_mul_f32 v{th}, 0.15915494, v{th}""")
    wave_max_u32_to_sgpr(a, T + 2, 92, 93)
    a(f"""s_lshr_b32 s92, s92, 23
    s_max_u32 s92, s92, 1
    s_min_u32 s92, s92, 252
    s_sub_u32 s93, 253, s92
    s_lshl_b32 s93, s93, 23             ; sc
    s_add_u32 s92, s92, 2
    s_lshl_b32 s92, s92, 23             ; 2/sc
    v_mul_f32 v{vCR}, s93, v{vCR}
    v_mul_f32 v{vCI}, s93, v{vCI}
    v_mul_f32 v{vDT}, s92, v{vDT}""")

    def anchors(specs):
        ds = [creg() for _ in specs]
        for d, (e, cj) in zip(ds, specs):
            a(f"v_mul_f32 v{d[0]}, {f32(e)}, v{lr}\nv_mul_f32 v{d[1]}, {f32(e)}, v{th}")
        for d in ds:
            a(f"v_exp_f32 v{d[0]}, v{d[0]}\nv_fract_f32 v{d[1]}, v{d[1]}")
        for i, d in enumerate(ds):
            a(f"v_cos_f32 v{T + 2 * i}, v{d[1]}\nv_sin_f32 v{T + 2 * i + 1}, v{d[1]}")
        for i, (d, (e, cj)) in enumerate(zip(ds, specs)):
            a(f"v_mul_f32_e64 v{d[1]}, {'-' if cj else ''}v{d[0]}, v{T + 2 * i + 1}\nv_mul_f32 v{d[0]}, v{d[0]}, v{T + 2 * i}")
        return ds

    tsel = [0]

    def cmul(x, y, d=None):
        d = d or creg()
        t = T + 2 * (tsel[0] & 1)
        tsel[0] += 1
        a(f"""v_mul_f32 v{t}, v{x[1]}, v{y[1]}
        v_mul_f32 v{t+1}, v{x[0]}, v{y[1]}
        v_fma_f32 v{d[0]}, v{x[0]}, v{y[0]}, -v{t}
        v_fma_f32 v{d[1]}, v{x[1]}, v{y[0]}, v{t+1}""")
        return d

    def packm(x):
        d = preg()
        a(f"v_cvt_pk_f16_f32 v{d}, v{x[0]}, v{x[1]}")
        return d

    def packpair(x, y, dre, dim):
        a(f"v_cvt_pk_f16_f32 v{dre}, {x[0]}, {y[0]}\nv_cvt_pk_f16_f32 v{dim}, {x[1]}, {y[1]}")

    def V(x): return (f"v{x[0]}", f"v{x[1]}")

    def pmul(sre, sim, m, dre, dim):
        a(f"""v_pk_mul_f16 v{dre}, v{sre}, v{m} op_sel:[0,0] op_sel_hi:[1,0]
        v_pk_mul_f16 v{dim}, v{sre}, v{m} op_sel:[0,1] op_sel_hi:[1,1]
        v_pk_fma_f16 v{dre}, v{sim}, v{m}, v{dre} op_sel:[0,1,0] op_sel_hi:[1,1,1] neg_lo:[0,1,0] neg_hi:[0,1,0]
        v_pk_fma_f16 v{dim}, v{sim}, v{m}, v{dim} op_sel:[0,0,0] op_sel_hi:[1,0,1]""")

    def RE(t, i): return KG_TILE + 16 * t + i
    def IM(t, i): return KG_TILE + 16 * t + 8 + i

    mark = nxt[0]
    z8, z32 = anchors([(8.0, True), (32.0, True)])
    a("s_nop 0")
    z16 = cmul(z8, z8); z64 = cmul(z32, z32); z24 = cmul(z16, z8); z96 = cmul(z64, z32)
    packpair(("1.0", "0"), V(z8), RE(0, 0), IM(0, 0))
    packpair(V(z16), V(z24), RE(0, 1), IM(0, 1))
    ms = [packm(X) for X in (z32, z64, z96)]
    for i, m in enumerate(ms):
        for b in range(2):
            pmul(RE(0, b), IM(0, b), m, RE(0, 2 + 2 * i + b), IM(0, 2 + 2 * i + b))
    nxt[0] = mark
    z1, z128, z1024 = anchors([(1.0, False), (128.0, False), (1024.0, False)])
    c = [(vCR, vCI)]
    for i in range(7):
        c.append(cmul(c[-1], z1))
    m128 = packm(z128)
    for i in range(4):
        packpair(V(c[2 * i]), V(c[2 * i + 1]), RE(1, i), IM(1, i))
    for i in range(4):
        pmul(RE(1, i), IM(1, i), m128, RE(1, 4 + i), IM(1, 4 + i))
    p02 = creg(); p46 = creg(); p04 = creg()
    packpair(V(c[0]), V(c[2]), *p02); packpair(V(c[4]), V(c[6]), *p46); packpair(V(c[0]), V(c[4]), *p04)
    z256 = cmul(z128, z128, c[1]); b0 = cmul(c[0], z1024, c[7]); z384 = cmul(z256, z128, c[2]); z512 = cmul(z256, z256, c[3])
    b1 = cmul(b0, z128, z1); z640 = cmul(z512, z128, c[4]); z768 = cmul(z384, z384, c[5]); z896 = cmul(z768, z128, c[6])
    M = {k: packm(v) for k, v in (("256", z256), ("384", z384), ("512", z512), ("640", z640), ("768", z768), ("896", z896))}
    c2048 = cmul(b0, z1024, z256)
    for i, k in enumerate(("256", "384")):
        pmul(p02[0], p02[1], M[k], RE(2, 2 * i), IM(2, 2 * i))
        pmul(p46[0], p46[1], M[k], RE(2, 2 * i + 1), IM(2, 2 * i + 1))
    for i, k in enumerate(("512", "640", "768", "896")):
        pmul(p04[0], p04[1], M[k], RE(2, 4 + i), IM(2, 4 + i))
    packpair(V(b0), V(b1), RE(3, 0), IM(3, 0))
    for i, k in enumerate(("256", "512", "768")):
        pmul(RE(3, 0), IM(3, 0), M[k], RE(3, 1 + i), IM(3, 1 + i))
    packpair(V(c2048), ("0", "0"), RE(3, 4), IM(3, 4))
    a(f"v_mov_b32 v{RE(3, 5)}, 0\nv_mov_b32 v{IM(3, 5)}, 0\nv_mov_b64 {v2(RE(3, 6))}, 0\nv_mov_b64 {v2(IM(3, 6))}, 0")


def kgen_addr(a, sKB):
    T = 16
    a(f"""
    v_bfe_u32 v{T}, v0, 1, 2
    v_lshlrev_b32 v{T+1}, 6, v0
    v_add_u32 v{T+1}, s{sKB}, v{T+1}
    v_lshl_add_u32 v2, v{T}, 4, v{T+1}
    v_xor_b32 v3, 16, v2
    v_xor_b32 v4, 32, v2
    v_xor_b32 v5, 48, v2
    v_lshrrev_b32 v{T}, 4, v0                ; hq
    v_bfe_u32 v{T+1}, v0, 2, 2               ; r
    v_and_b32 v{T+2}, 3, v0                  ; c
    v_lshrrev_b32 v{T+3}, 1, v{T+1}
    v_lshl_add_u32 v{T+3}, v{T}, 1, v{T+3}
    v_lshlrev_b32 v6, 6, v{T+3}
    v_and_b32 v{T+1}, 1, v{T+1}
    v_lshrrev_b32 v{T+3}, 1, v{T+2}
    v_lshl_add_u32 v{T+1}, v{T+1}, 1, v{T+3}
    v_xor_b32 v{T+1}, v{T+1}, v{T}
    v_lshl_add_u32 v6, v{T+1}, 4, v6
    v_and_b32 v{T+2}, 1, v{T+2}
    v_lshl_add_u32 v6, v{T+2}, 3, v6
    v_add_u32 v6, s{sKB}, v6
    """)
    for r in range(KG_ACC, KG_ACC + 12, 2):
        a(f"v_mov_b64 {v2(r)}, 0")


def kgen_flush(a):
    lq = LQ(a)
    for t in range(4):
        for q in range(4):
            lq.issue(f"w{t}", f"ds_write_b128 v{2 + q}, {v4(KG_TILE + 16 * t + 4 * q)}")
        for k in range(4):
            for s in range(2):
                lq.issue(f"f{t}{k}", f"ds_read_b64_tr_b16 {v2(KG_TILE + 16 * t + 4 * k + 2 * s)}, v6 offset:{1024 * k + 512 * s}")
        if t >= 2:
            for k in range(4):
                lq.wait(f"f{t-1}{k}")
                a(f"v_mfma_f32_16x16x32_f16 {v4(KG_ACC + 4 * (t - 2))}, {v4(KG_TILE + 16 * (t - 1) + 4 * k)}, {v4(KG_TILE + 4 * k)}, {v4(KG_ACC + 4 * (t - 2))}")
    for k in range(4):
        lq.wait(f"f3{k}")
        a(f"v_mfma_f32_16x16x32_f16 {v4(KG_ACC + 8)}, {v4(KG_TILE + 48 + 4 * k)}, {v4(KG_TILE + 4 * k)}, {v4(KG_ACC + 8)}")
    a("s_nop 7")
    for r in range(KG_ACC, KG_ACC + 12):
        a(f"v_mul_f32 v{r}, v{r}, v{KG_P + 4}")


def kgen_final(a, sCH, sKB, sPB, store):
    from_lds = True
    KACC = KG_ACC
    P = 88
    T = 80
    a(f"v_lshlrev_b32 v{T}, 4, v0\nv_add_u32 v{T+1}, s{sKB}, v{T}\nv_add_u32 v{T+2}, s{sPB}, v{T}")
    for w in range(2):
        for t in range(3):
            a(f"ds_read_b128 {v4(P + 12 * w + 4 * t)}, v{T+2} offset:{4096 * w + 1024 * t}")
    a(f"v_mov_b32 v48, 0\nv_mov_b32 v49, 0\nv_mov_b32 v50, 0\nv_mov_b32 v51, 0")
    for i in range(4):
        a(f"ds_write_b128 v{T+1}, v[48:51] offset:{1024 * i}")
    j, hq = T + 2, T + 3
    b0, b2 = 52, 53
    a1 = 54
    a(f"""
    v_and_b32 v{j}, 15, v0
    v_lshrrev_b32 v{hq}, 4, v0
    v_lshrrev_b32 v{T+4}, 1, v{hq}
    v_and_b32 v{T+5}, 1, v{hq}
    v_lshlrev_b32 v{T+6}, 7, v{T+4}
    v_lshl_add_u32 v{T+6}, v{T+5}, 2, v{T+6}
    v_lshl_add_u32 v{T+6}, v{j}, 3, v{T+6}
    v_sub_u32 v{T+6}, 285, v{T+6}
    v_lshl_add_u32 v{b0}, v{T+6}, 1, s{sKB}
    v_lshlrev_b32 v{T+6}, 6, v{T+5}                 ; 64*(hq&1)
    v_add_u32 v{T+6}, s{sKB}, v{T+6}
    v_lshl_add_u32 v{T+7}, v{j}, 2, v{T+6}
    v_lshl_add_u32 v{T+6}, v{j}, 1, v{T+6}
    v_cmp_gt_u32 vcc, 2, v{hq}
    """)
    for r in range(4):
        lo = (T1O if r & 1 else T1E) + 2 * (59 + (r >> 1))
        hi = (T2O + 60 if r & 1 else T2E + 58) + 32 * (r >> 1)
        a(f"v_add_u32 v60, {lo}, v{T+7}\nv_add_u32 v61, {hi}, v{T+6}\nv_cndmask_b32 v{a1 + r}, v61, v60, vcc")
    a(f"""
    s_add_u32 s96, s{sKB}, {T0E + 64}
    v_writelane_b32 v{a1}, s96, 0
    s_add_u32 s96, s{sKB}, {T0E + 60}
    v_writelane_b32 v{a1 + 1}, s96, 0
    s_add_u32 s96, s{sKB}, {T1E + 246}
    v_writelane_b32 v{a1}, s96, 32
    v_and_b32 v60, 1, v{j}
    v_mul_u32_u24 v60, {T3OE + 30 - (T3EE + 28)}, v60
    v_lshrrev_b32 v61, 1, v{j}
    v_lshl_add_u32 v61, v{hq}, 5, v61
    v_lshl_add_u32 v{b2}, v61, 1, v60
    s_add_u32 s96, s{sKB}, {T3EE + 28}
    v_add_u32 v{b2}, s96, v{b2}
    v_mov_b32 v62, s{sKB}
    s_waitcnt lgkmcnt(4)
    """)
    if from_lds:
        for r in range(12):
            a(f"v_add_f32 v{KACC + r}, v{KACC + r}, v{P + r}")
        for r in range(12):
            a(f"v_add_f32 v{KACC + r}, v{KACC + r}, v{P + 12 + r}")
    a(f"v_max3_f32 v63, abs(v{KACC}), abs(v{KACC+1}), abs(v{KACC+2})")
    for r in range(3, 11, 2):
        a(f"v_max3_f32 v63, v63, abs(v{KACC + r}), abs(v{KACC + r + 1})")
    a(f"v_max_f32_e64 v63, v63, abs(v{KACC + 11})")
    wave_max_u32_to_sgpr(a, 63, 92, 93)
    a(f"""s_lshr_b32 s92, s92, 23
    s_max_u32 s92, s92, 1
    s_min_u32 s92, s92, 252
    s_sub_u32 s93, 253, s92
    s_lshl_b32 s93, s93, 23             ; 1/sigma
    s_add_u32 s92, s92, 1
    s_lshl_b32 s92, s92, 23             ; sigma""")
    for r in range(12):
        a(f"v_mul_f32 v{KACC + r}, s93, v{KACC + r}")
    H = 64
    for i in range(6):
        a(f"v_cvt_pk_f16_f32 v{H + i}, v{KACC + 2 * i}, v{KACC + 2 * i + 1}")

    def w16(addr, r, tile, off):
        reg = H + 2 * tile + (r >> 1)
        a(f"ds_write_b16{'_d16_hi' if r & 1 else ''} v{addr}, v{reg} offset:{off}")
    for r in range(4):
        w16(b0, r, 0, T0E + 2 * (3 - r))
        w16(b0, r, 0, T0O - 2 + 2 * (3 - r))
        w16(a1 + r, r, 1, 0)
    a("s_mov_b32 exec_hi, 0")
    for r in range(1, 4):
        w16(b2, r, 2, 16 * r)
        w16(b2, r, 2, 16 * r + 158)
    a("s_mov_b32 exec_lo, 0xfffffffe\ns_mov_b32 exec_hi, 1")
    w16(b2, 0, 2, 0)
    w16(b2, 0, 2, 158)
    a("s_mov_b64 exec, 1")
    w16(62, 0, 1, T0E + 62); w16(62, 0, 1, T0O + 62); w16(62, 0, 1, T0O + 60); w16(62, 1, 1, T0O + 58)
    w16(62, 0, 2, TK1024)
    a(f"v_mov_b32 v63, s92\nds_write_b32 v62, v63 offset:{TSIG}")
    a("s_mov_b32 exec_lo, 0\ns_mov_b32 exec_hi, 1")
    w16(62, 0, 1, T1O + 246)
    a("s_mov_b64 exec, -1")
    if True:
        Lsk = store()
        for i in range(4):
            a(f"ds_read_b128 {v4(P + 4 * i)}, v{T+1} offset:{1024 * i}")
        a(f"s_mul_i32 s96, s{sCH}, {KT_BYTES}\ns_add_u32 s96, s96, {WS_KT}")
        for i in range(3):
            a(f"s_waitcnt lgkmcnt({3 - i})\nbuffer_store_dwordx4 {v4(P + 4 * i)}, v{T}, {s4(S_WS)}, s96 offen offset:{1024 * i}")
        a(f"s_waitcnt lgkmcnt(0)\ns_mov_b64 exec, 0xffff\nbuffer_store_dwordx4 {v4(P + 12)}, v{T}, {s4(S_WS)}, s96 offen offset:3072\ns_mov_b64 exec, -1")
        a.label(Lsk)


def kernel1(a, parts):
    a.raw(".globl k1_kernel\n.p2align 8\n.type k1_kernel,@function\nk1_kernel:")
    a(f"""
    s_cmp_ge_u32 s2, 256
    s_cbranch_scc1 L_k1_end
    s_load_dwordx16 s[64:79], s[0:1], 0
    s_load_dwordx8 s[80:87], s[0:1], 64
    s_load_dwordx4 s[88:91], s[0:1], 96
    v_lshrrev_b32 v1, 6, v0
    v_and_b32 v0, 63, v0
    s_and_b32 s{sXCD}, s2, 7
    v_readfirstlane_b32 s{sWAVE}, v1
    s_lshr_b32 s{sIDX}, s2, 3
    s_mul_i32 s58, s{sIDX}, 52
    s_lshr_b32 s58, s58, 8              ; q = idx/5
    s_mul_i32 s59, s58, 5
    s_sub_u32 s59, s{sIDX}, s59         ; r
    s_and_b32 s60, s{sXCD}, 1
    s_mul_i32 s60, s60, 5
    s_add_u32 s{sMI}, s60, s59
    s_lshr_b32 s60, s{sXCD}, 1
    s_mul_i32 s60, s60, 6
    s_add_u32 s{sNI}, s60, s58
    s_mul_i32 s{sROW0}, s{sMI}, 208
    s_min_u32 s{sROW0}, s{sROW0}, 1840
    s_mul_i32 s{sGI}, s{sXCD}, 30
    s_add_u32 s{sGI}, s{sGI}, s{sIDX}
    """)
    a("s_waitcnt lgkmcnt(0)")
    srd(a, S_X, 64, 2048 * 1280)
    srd(a, S_WG, 80, 640 * 3072)
    srd(a, S_WU, 82, 640 * 3072)
    srd(a, S_WS, 90, 0x4000000 if PROF else WS_END + 4096)
    srd(a, S_DBG, 88, 256)
    srd(a, S_WD, 84, 1536 * 1280)
    if PROF:
        a(f"v_mov_b32 v{vSTAMP}, 0")
    stamp(a, 0, True)
    stamp(a, 1)
    if "diag" in EXP:
        Ld = a.newlabel("diag")
        a(f"""s_cmp_lg_u32 s{sWAVE}, 8
        s_cbranch_scc1 {Ld}
        s_memrealtime s[100:101]
        s_lshl_b32 s98, s2, 2
        s_add_u32 s98, s98, {WS_END}
        v_mov_b32 v5, 0
        s_waitcnt lgkmcnt(0)
        v_mov_b32 v6, s100
        s_mov_b64 exec, 1
        buffer_store_dword v6, v5, {s4(S_WS)}, s98 offen
        s_mov_b64 exec, -1""")
        a.label(Ld)
    srd(a, S_LA, 66, 640 * 384)
    srd(a, S_AI, 68, 640 * 384)
    srd(a, S_CR, 70, 640 * 384)
    srd(a, S_CI, 72, 640 * 384)
    srd(a, S_DT, 74, 1280)
    a("s_mov_b32 s96, s76\ns_mov_b32 s97, s77")
    srd(a, S_OUT, 86, 2048 * 1280)
    srd(a, S_DSK, 96, 1280)
    a(f"""
    s_lshl_b32 s{sMI2}, s{sXCD}, 2
    s_and_b32 s96, s{sIDX}, 3
    s_add_u32 s{sMI2}, s{sMI2}, s96
    s_lshr_b32 s{sNI2}, s{sIDX}, 2
    """)
    import gen2
    sCH, sRND, sKB, sGRP, sGP = 65, 66, 67, 68, 69
    a(f"""
    s_lshl_b32 s{sGP}, s{sXCD}, 5
    s_add_u32 s{sGP}, s{sGP}, s{sIDX}          ; g'
    s_cmp_ge_u32 s{sWAVE}, 2
    s_cbranch_scc1 L_k1_w
    """)
    k1_loader(a, parts)

    def chan(sd, sg):
        a(f"""s_lshl_b32 s{sd}, s{sGP}, 1
        s_add_u32 s{sd}, s{sd}, s{sg}
        s_lshr_b32 s96, s{sGP}, 1
        s_add_u32 s96, s96, 512
        s_cmp_eq_u32 s{sg}, 2
        s_cselect_b32 s{sd}, s96, s{sd}""")

    a.label("L_k1_w")
    a(f"""
    s_setprio 2
    s_cmp_ge_u32 s{sWAVE}, 11
    s_cbranch_scc1 L_k1_side
    ; K-gen round rho = w-2 : grp = rho/3, rnd = rho%3 ; grp 2 only in even g'
    s_sub_u32 s{sRND}, s{sWAVE}, 2
    s_mul_i32 s{sGRP}, s{sRND}, 86
    s_lshr_b32 s{sGRP}, s{sGRP}, 8
    s_mul_i32 s96, s{sGRP}, 3
    s_sub_u32 s{sRND}, s{sRND}, s96
    s_and_b32 s96, s{sGP}, 1
    s_lshl_b32 s96, s96, 1
    s_and_b32 s96, s96, s{sGRP}
    s_cmp_lg_u32 s96, 0
    s_cbranch_scc1 L_k1_idle
    s_lshl_b32 s{sKB}, s{sGRP}, 12
    s_add_u32 s{sKB}, s{sKB}, {K1_KG}
    s_lshl_b32 s70, s{sGRP}, 13
    s_add_u32 s70, s70, {2 * SLOT + 24576 - 8192}
    s_cmp_eq_u32 s{sGRP}, 0
    s_cselect_b32 s70, {K1_STA}, s70      ; PB
    s_lshl_b32 s96, s{sRND}, 12
    s_add_u32 s96, s96, s70
    s_sub_u32 s96, s96, 4096
    s_cmp_eq_u32 s{sRND}, 0
    s_cselect_b32 s{sKB}, s{sKB}, s96
    """)
    chan(sCH, sGRP)
    kgen_loads(a, sCH, sRND)
    a("s_setprio 0\ns_waitcnt vmcnt(0)")
    stamp(a, 8)
    kgen_valu(a)
    kgen_addr(a, sKB)
    stamp(a, 9)
    kgen_flush(a)
    stamp(a, 10)
    Lf = a.newlabel("kfin")
    a(f"s_cmp_eq_u32 s{sRND}, 0\ns_cbranch_scc1 {Lf}\nv_lshlrev_b32 v5, 4, v0\nv_add_u32 v5, s{sKB}, v5")
    for t in range(3):
        a(f"ds_write_b128 v5, {v4(KG_ACC + 4 * t)} offset:{1024 * t}")
    a("s_waitcnt lgkmcnt(0)")
    a.label("L_k1_idle")
    a("s_barrier\ns_branch L_k1_pdone")
    a.label(Lf)
    a("s_barrier")

    def store():
        L = a.newlabel("nost")
        a(f"s_cmp_lg_u32 s{sGRP}, 2\ns_cbranch_scc1 {L}")
        return L
    kgen_final(a, sCH, sKB, 70, store)
    stamp(a, 11)
    a("s_branch L_k1_pdone")

    a.label("L_k1_side")
    a(f"""
    s_cmp_eq_u32 s{sWAVE}, 11
    s_cbranch_scc1 L_k1_xs
    s_cmp_eq_u32 s{sWAVE}, 12
    s_cbranch_scc1 L_k1_xc
    s_cmp_lt_u32 s{sWAVE}, 15
    s_cbranch_scc1 L_k1_xu
    v_mov_b32 v3, {K1_CTL}
    v_mov_b64 v[4:5], 0
    v_mov_b64 v[6:7], 0
    s_mov_b64 exec, 1
    ds_write_b128 v3, v[4:7]
    ds_write_b128 v3, v[4:7] offset:16
    s_lshl_b32 s96, s{sGP}, 2
    s_add_u32 s96, s96, {WS_FY}
    buffer_store_dword v4, v4, {s4(S_WS)}, s96 offen sc0 sc1
    s_lshl_b32 s96, s{sMI}, 7
    s_lshl_b32 s97, s{sNI}, 2
    s_add_u32 s96, s96, s97
    s_add_u32 s96, s96, {WS_FH}
    s_cmp_ge_u32 s{sIDX}, 30
    s_cselect_b32 s96, {WS_FH + 15 * 128}, s96
    buffer_store_dword v4, v4, {s4(S_WS)}, s96 offen sc0 sc1
    s_mov_b64 exec, -1
    s_branch L_k1_idle
    """)
    a.label("L_k1_xs")
    k1_stats_loads(a)
    a("s_setprio 0")
    k1_stats(a, 0)
    stamp(a, 8)
    a("s_branch L_k1_idle")
    a.label("L_k1_xc")
    a(f"s_cmp_ge_u32 s{sIDX}, 30\ns_cbranch_scc1 L_k1_idle")
    k1_colsum_loads(a)
    a("s_setprio 0")
    k1_colsum(a, 0)
    stamp(a, 8)
    a("s_branch L_k1_idle")
    a.label("L_k1_xu")
    a(f"s_sub_u32 s{gen2.sSUB}, s{sWAVE}, 13\ns_mov_b32 s{gen2.sUB}, {2 * SLOT}")
    gen2.k1_unit_pre(a)
    a("s_setprio 0")
    gen2.k1_unit(a)
    stamp(a, 8)
    a("s_barrier")
    a.label("L_k1_pdone")
    a(f"""
    s_cmp_ge_u32 s{sWAVE}, 10
    s_cbranch_scc1 L_k1_x
    s_cmp_ge_u32 s{sIDX}, 30
    s_cbranch_scc1 L_k1_gsp
    s_cmp_ge_u32 s{sWAVE}, 6
    s_cbranch_scc1 L_k1_g2
    s_cmp_ge_u32 s{sWAVE}, 4
    s_cbranch_scc1 L_k1_g1
    """)
    for v in range(3):
        a.label(f"L_k1_g{v}")
        k1_gemm(a, v)
    a.label("L_k1_gsp")
    a(f"s_waitcnt vmcnt(0) lgkmcnt(0)")
    a("s_barrier\n" * 10)
    a("s_branch L_k1_p2")
    a.label("L_k1_hsig")
    Lh = a.newlabel("hs")
    a(f"""s_waitcnt vmcnt(0)
    v_mov_b32 v3, {K1_CTL}
    v_mov_b32 v4, 1
    v_mov_b32 v5, 0
    s_mov_b64 exec, 1
    ds_add_rtn_u32 v6, v3, v4 offset:16
    s_waitcnt lgkmcnt(0)
    v_readfirstlane_b32 s96, v6
    s_cmp_lg_u32 s96, 7
    s_cbranch_scc1 {Lh}
    s_lshl_b32 s96, s{sMI}, 7
    s_lshl_b32 s97, s{sNI}, 2
    s_add_u32 s96, s96, s97
    s_add_u32 s96, s96, {WS_FH}
    buffer_store_dword v4, v5, {s4(S_WS)}, s96 offen sc0 sc1""")
    a.label(Lh)
    a("s_mov_b64 exec, -1")
    stamp(a, 12)
    a.label("L_k1_p2")
    a(f"s_cmp_ge_u32 s{sWAVE}, 6\ns_cbranch_scc1 L_k1_p2b")
    gen2.p2_gemm(a)
    a.label("L_k1_p2b")
    gen2.p2_base(a)

    a.label("L_k1_x")
    a(f"""
    s_setprio 0
    s_waitcnt lgkmcnt(0)
    s_barrier                           ; B_init
    s_waitcnt vmcnt(0)
    s_barrier
    s_cmp_lg_u32 s{sWAVE}, 15
    s_cbranch_scc1 L_k1_x2
    s_and_b32 s96, s2, 63
    s_lshl_b32 s96, s96, 2
    v_mov_b32 v5, s96
    v_mov_b32 v6, 1
    s_mov_b64 exec, 1
    buffer_atomic_add v6, v5, {s4(S_DBG)}, 0 offen sc1
    s_endpgm
    """)
    a.label("L_k1_x2")
    a(f"""
    s_sub_u32 s{sGRP}, s{sWAVE}, 10
    s_cmp_ge_u32 s{sGRP}, 3
    s_cselect_b32 s59, 1, 0
    s_cselect_b32 s96, 3, 0
    s_mov_b32 s70, s59
    s_sub_u32 s{sGRP}, s{sGRP}, s96
    s_and_b32 s97, s{sGP}, 1
    s_mul_i32 s61, s{sGRP}, {gen2.C_SZ}
    s_add_u32 s61, s61, {2 * SLOT}
    s_cmp_eq_u32 s{sGRP}, 2
    s_cselect_b32 s59, s97, s59         ; half
    s_cselect_b32 s61, {2 * SLOT - gen2.C_SZ}, s61      ; region
    s_lshl_b32 s60, s{sGRP}, 12
    s_add_u32 s60, s60, {K1_KG}         ; tables
    s_mov_b32 s62, {K1_STA}
    """)
    chan(58, sGRP)
    sliced(a, lambda b: gen2.conv_setup(b, 61, 60, 58), 3)
    a("s_barrier")
    Lnp = a.newlabel("noprep"); Lnt = a.newlabel("notab")
    a(f"""s_lshl_b32 s96, s{sGRP}, 2
    s_add_u32 s96, s96, {K1_CTL}
    v_mov_b32 v3, s96
    v_mov_b32 v4, 1
    s_cmp_lg_u32 s70, 0
    s_cbranch_scc1 {Lnp}""")
    gen2.conv_xload(a, 58, 8)
    a(f"""s_and_b32 s96, s{sGP}, 1
    s_lshl_b32 s96, s96, 1
    s_and_b32 s96, s96, s{sGRP}
    s_cmp_eq_u32 s96, 0
    s_cbranch_scc1 {Lnt}
    s_mov_b32 m0, s60
    s_mul_i32 s96, s58, {KT_BYTES}
    s_add_u32 s96, s96, {WS_KT}""")
    for i in range(4):
        a(f"buffer_load_dwordx4 v2, {s4(S_WS)}, s96 offen offset:{1024 * i} sc0 sc1 lds")
    a.label(Lnt)
    a("s_barrier\ns_waitcnt vmcnt(0)")
    stamp(a, 2)
    gen2.conv_prep2(a, 61, 62)
    a("ds_write_b32 v3, v4\ns_setprio 0")
    stamp(a, 4)
    a("s_branch L_k1_cgo")
    a.label(Lnp)
    a(f"""v_lshlrev_b32 v8, 7, v0
    s_lshl_b32 s96, s{sIDX}, 1
    s_add_u32 s96, s96, s{sGRP}
    s_mul_i32 s96, s96, 30720
    s_add_u32 s96, s96, {WS_WD}""")
    for i in range(4):
        if TOUCH_AT <= i:
            pass
        if i >= TOUCH_AT or True:
            if "notouch" not in EXP and i >= TOUCH_AT:
                for j in range(4 // (4 - TOUCH_AT) if TOUCH_AT else 1):
                    a(f"buffer_load_dword v2, v8, {s4(S_WS)}, s96 offen sc1\ns_add_u32 s96, s96, 7680")
        a("s_barrier")
    Lw2 = a.newlabel("wprep")
    a.label(Lw2)
    a(f"ds_read_b32 v7, v3\ns_sleep 1\ns_waitcnt lgkmcnt(0)\nv_readfirstlane_b32 s96, v7\ns_cmp_ge_u32 s96, 1\ns_cbranch_scc0 {Lw2}")
    a.label("L_k1_cgo")
    a("s_setprio 1")
    stamp(a, 5)
    gen2.conv_run(a, 59)
    stamp(a, 12)
    Ly = a.newlabel("ys")
    a(f"""s_waitcnt vmcnt(0)
    v_mov_b32 v3, {K1_CTL}
    v_mov_b32 v5, 0
    s_mov_b64 exec, 1
    ds_add_rtn_u32 v6, v3, v4 offset:20
    s_waitcnt lgkmcnt(0)
    v_readfirstlane_b32 s96, v6
    s_cmp_lg_u32 s96, 4
    s_cbranch_scc1 {Ly}
    s_lshl_b32 s96, s{sGP}, 2
    s_add_u32 s96, s96, {WS_FY}
    buffer_store_dword v4, v5, {s4(S_WS)}, s96 offen sc0 sc1""")
    a.label(Ly)
    a("s_mov_b64 exec, -1")
    stamp_end(a, 0, S_WS, sWAVE)
    a.label("L_k1_end")
    a("s_endpgm")


def descriptor(name, vgpr, sgpr=102):
    acc = (vgpr + 3) // 4 * 4
    return f""".amdhsa_kernel {name}
  .amdhsa_next_free_vgpr {vgpr}
  .amdhsa_next_free_sgpr {sgpr}
  .amdhsa_accum_offset {acc}
  .amdhsa_group_segment_fixed_size 0
  .amdhsa_kernarg_size 112
  .amdhsa_user_sgpr_count 2
  .amdhsa_user_sgpr_kernarg_segment_ptr 1
  .amdhsa_system_sgpr_workgroup_id_x 1
.end_amdhsa_kernel
"""


HEADER = open("cdna_kernels/" + NAME + ".s.ref").read().split("; Override launch geometry")[0]


def build():
    a = Asm()
    kernel1(a, {})
    import re
    a.L = [re.sub(r"(buffer_store_dwordx[24] .* s\[20:23\], .* offen(?: offset:\d+)?)$", r"\1 sc1", l) for l in a.L]
    out = HEADER
    out += f"; @launch kernel=k1_kernel grid=(256,1,1) block=(1024,1,1) lds={K1_LDS}\n"
    desc = descriptor("k1_kernel", 128)
    out += '.amdgcn_target "amdgcn-amd-amdhsa--gfx950"\n.text\n' + a.text()
    out += '.section .rodata,"a"\n.p2align 6\n' + desc
    return out


if __name__ == "__main__":
    sys.modules["gen"] = sys.modules["__main__"]
    path = sys.argv[1] if len(sys.argv) > 1 else "k.s"
    open(path, "w").write(build())
    print("wrote", path)
```

```python
from gen import *

USCR = 2 * SLOT
sSUB = 94
sU0, sU1, sU2, sUB = 61, 62, 63, 95
vUA = 100


def k1_unit_pre(a):
    Lw = a.newlabel("uwd"); Le = a.newlabel("upe")
    a(f"""
    s_cmp_ge_u32 s{sIDX}, 20
    s_cselect_b32 s96, 12, 9
    s_lshl_b32 s96, s96, 10
    s_mul_i32 s96, s96, s{sSUB}
    s_add_u32 s{sUB}, s{sUB}, s96
    v_lshrrev_b32 v{vUA}, 3, v0
    v_and_b32 v{vUA+1}, 7, v0
    v_mul_u32_u24 v{vUA+2}, 1280, v{vUA}
    v_lshl_add_u32 v{vUA+2}, v{vUA+1}, 4, v{vUA+2}
    s_cmp_ge_u32 s{sIDX}, 20
    s_cbranch_scc1 {Lw}
    ; ---- x transpose unit: v = xn*20+idx ; rb = 8xm + v/10 ; cb = v%10
    s_lshr_b32 s96, s{sXCD}, 1
    s_mul_i32 s96, s96, 20
    s_add_u32 s96, s96, s{sIDX}
    s_mul_i32 s97, s96, 103
    s_lshr_b32 s97, s97, 10              ; v/10
    s_mul_i32 s98, s97, 10
    s_sub_u32 s{sU1}, s96, s98           ; cb
    s_and_b32 s96, s{sXCD}, 1
    s_lshl_b32 s96, s96, 3
    s_add_u32 s97, s97, s96              ; rb
    s_lshl_b32 s97, s97, 1
    s_add_u32 s97, s97, s{sSUB}
    s_lshl_b32 s{sU0}, s97, 6
    s_mul_i32 s96, s{sU0}, 1280
    s_lshl_b32 s97, s{sU1}, 7
    s_add_u32 s96, s96, s97
    """)
    for p in range(8):
        a(f"s_add_u32 m0, s{sUB}, {1024 * p}\ns_add_u32 s97, s96, {p * 8 * 1280}\nbuffer_load_dwordx4 v{vUA+2}, {s4(S_X)}, s97 offen lds")
    a(f"s_branch {Le}")
    a.label(Lw)
    a(f"""
    s_mul_i32 s96, s{sXCD}, 12
    s_add_u32 s96, s96, s{sIDX}
    s_sub_u32 s96, s96, 20
    s_lshr_b32 s{sU0}, s96, 1            ; kappa
    s_and_b32 s96, s96, 1
    s_mul_i32 s96, s96, 5
    s_mul_i32 s97, s{sSUB}, 3
    s_add_u32 s{sU1}, s96, s97
    s_mul_i32 s96, s{sU0}, {32 * 1280}
    s_lshl_b32 s97, s{sU1}, 7
    s_add_u32 s96, s96, s97
    """)
    for k in range(3):
        if k == 2:
            a(f"s_cmp_eq_u32 s{sSUB}, 1\ns_cbranch_scc1 {Le}")
        for p in range(4):
            a(f"s_add_u32 m0, s{sUB}, {4096 * k + 1024 * p}\ns_add_u32 s97, s96, {p * 8 * 1280 + 128 * k}\nbuffer_load_dwordx4 v{vUA+2}, {s4(S_WD)}, s97 offen lds")
    a.label(Le)


def k1_unit(a):
    Lw = a.newlabel("uwd"); Le = a.newlabel("uend")
    R = 8
    a(f"""
    v_lshrrev_b32 v{vUA+3}, 2, v0
    v_and_b32 v{vUA+4}, 3, v0
    v_lshlrev_b32 v{vUA+3}, 7, v{vUA+3}
    v_lshl_add_u32 v{vUA+3}, v{vUA+4}, 3, v{vUA+3}
    v_add_u32 v{vUA+3}, s{sUB}, v{vUA+3}
    s_waitcnt vmcnt(0)
    s_cmp_ge_u32 s{sIDX}, 20
    s_cbranch_scc1 {Lw}
    v_and_b32 v{vUA+4}, 15, v0
    v_lshrrev_b32 v{vUA+5}, 4, v0
    v_mul_u32_u24 v{vUA+4}, 144, v{vUA+4}
    v_lshl_add_u32 v{vUA+4}, v{vUA+5}, 3, v{vUA+4}
    s_mov_b32 s96, s{sUB}
    v_add_u32 v{vUA+4}, s96, v{vUA+4}
    v_mul_u32_u24 v{vUA+5}, 144, v{vUA}
    v_lshl_add_u32 v{vUA+5}, v{vUA+1}, 4, v{vUA+5}
    v_add_u32 v{vUA+5}, s96, v{vUA+5}
    v_lshlrev_b32 v{vUA+6}, 12, v{vUA}
    v_lshl_add_u32 v{vUA+6}, v{vUA+1}, 4, v{vUA+6}
    """)
    lq = LQ(a)
    for j in range(4):
        for g in range(4):
            i = 4 * j + g
            lq.issue(f"t{i}", f"ds_read_b64_tr_b16 {v2(R + 2 * i)}, v{vUA+3} offset:{g * 2048 + 32 * j}")
    for k in range(16):
        lq.wait(f"t{k}")
        lq.issue("w", f"ds_write_b64 v{vUA+4}, {v2(R + 2 * k)} offset:{(k >> 2) * 16 * 144 + 32 * (k & 3)}")
    O = 48
    for i in range(8):
        lq.issue(f"o{i}", f"ds_read_b128 {v4(O + 4 * i)}, v{vUA+5} offset:{i * 8 * 144}")
    a(f"s_lshl_b32 s96, s{sU1}, 18\ns_lshl_b32 s97, s{sU0}, 1\ns_add_u32 s96, s96, s97\ns_add_u32 s96, s96, {WS_XT}")
    for i in range(8):
        lq.wait(f"o{i}")
        a(f"s_add_u32 s97, s96, {i * 8 * 4096}\nbuffer_store_dwordx4 {v4(O + 4 * i)}, v{vUA+6}, {s4(S_WS)}, s97 offen")
    a(f"s_branch {Le}")
    a.label(Lw)
    a(f"v_lshlrev_b32 v{vUA+6}, 4, v0\ns_mul_i32 s{sU2}, s{sU0}, 5120\ns_add_u32 s{sU2}, s{sU2}, {WS_WD}")
    for k in range(3):
        if k == 2:
            a(f"s_cmp_eq_u32 s{sSUB}, 1\ns_cbranch_scc1 {Le}")
        lq = LQ(a)
        for j in range(4):
            for s in range(2):
                lq.issue(f"t{j}", f"ds_read_b64_tr_b16 {v2(R + 16 * k + 4 * j + 2 * s)}, v{vUA+3} offset:{4096 * k + 2048 * s + 32 * j}")
        for j in range(4):
            a(f"""s_lshl_b32 s96, s{sU1}, 2
            s_add_u32 s96, s96, {4 * k + j}
            s_mul_i32 s97, s96, 52
            s_lshr_b32 s97, s97, 8
            s_mul_i32 s98, s97, 5
            s_sub_u32 s96, s96, s98
            s_mul_i32 s97, s97, {48 * 5120}
            s_lshl_b32 s96, s96, 10
            s_add_u32 s96, s96, s97
            s_add_u32 s96, s96, s{sU2}""")
            lq.wait(f"t{j}")
            a(f"buffer_store_dwordx4 {v4(R + 16 * k + 4 * j)}, v{vUA+6}, {s4(S_WS)}, s96 offen")
    a.label(Le)


C_U = 640
C_U2 = C_U + 4096 + 64 + 64
C_B3 = C_U2 + 3584 + 64
C_B5 = C_B3 + 3584 + 64 + 64
C_B7 = C_B5 + 3072 + 64
C_B9 = C_B7 + 2048 + 64 + 80
C_SZ = C_B9 + 2048

NBLK1 = [0, 4, 8, 8, 8, 8, 8, 8]
NBLK2 = [0, 0, 2, 4, 6, 6, 6, 6]
NBLK3 = [0, 0, 0, 0, 1, 2, 3, 4]


def conv_mfma(a, tiles, regs):
    ACC, KF, DF = regs["ACC"], regs["KF"], regs["DF"]
    ND = regs["ND"]
    bU, bK0, bD, bK, PF = regs["bU"], regs["bK0"], regs["bD"], regs["bK"], regs["PF"]
    lq = LQ(a)

    def acc(t): return ACC + 4 * (t - tiles[0])

    def kload(seg, b, bank):
        r = KF + 36 * bank + 4 * b
        tag = f"K{seg}_{b}"
        if seg == 0:
            o = 16 * (8 - b)
            lq.issue(tag, f"ds_read2_b32 {v2(r)}, v{bK0} offset0:{o} offset1:{o + 1}")
            lq.issue(tag, f"ds_read2_b32 {v2(r + 2)}, v{bK0} offset0:{o + 2} offset1:{o + 3}")
        elif seg == 1:
            lq.issue(tag, f"ds_read_b64 {v2(r)}, v{bK[1]} offset:{32 * b}")
            lq.issue(tag, f"ds_read_b64 {v2(r + 2)}, v{bK[1]} offset:{32 * b + 8}")
        else:
            o = 8 * b
            lq.issue(tag, f"ds_read2_b32 {v2(r)}, v{bK[seg]} offset0:{o} offset1:{o + 1}")
            lq.issue(tag, f"ds_read2_b32 {v2(r + 2)}, v{bK[seg]} offset0:{o + 2} offset1:{o + 3}")

    work = []
    banks = {0: 0, 1: 1, 2: 0, 3: 1}
    for t in tiles:
        for k in range(9):
            if t == 0 and k == 8:
                continue
            work.append((("u", 512 * (t + 1) - 64 * k), [(t, 0, k)]))
    for seg, D, nb in ((1, 4, NBLK1), (2, 8, NBLK2), (3, 16, NBLK3)):
        es = {}
        for t in tiles:
            for b in range(nb[t]):
                es.setdefault((16 // D) * t - b, []).append((t, seg, b))
        for e in sorted(es):
            work.append((("tr", seg, D, e), es[e]))
    for t in tiles:
        if t >= 3:
            work.append((("u", 512 * (t + 1) - 2032), [(t, "p", 0)]))
    need = {s: sorted({b for _, us in work for (_, sg, b) in us if sg == s}) for s in range(4)}
    first = {}
    last = {}
    for i, (_, us) in enumerate(work):
        for (_, sg, b) in us:
            first.setdefault(sg, i)
            last[sg] = i
    kplan = {}
    for s in (1, 2, 3):
        if not need[s]:
            continue
        start = 0 if s == 1 else last[s - 2] + 1
        span = max(1, first[s] - start - 2)
        for j, b in enumerate(need[s]):
            kplan.setdefault(min(start + (j * span) // len(need[s]), first[s] - 1) if first[s] > start else start, []).append((s, b))

    def dload(i):
        spec = work[i][0]
        r = DF + 4 * (i % ND)
        if spec[0] == "u":
            lq.issue(f"D{i}", f"ds_read_b128 {v4(r)}, v{bU} offset:{spec[1]}")
        else:
            _, seg, D, e = spec
            for s in range(2):
                lq.issue(f"D{i}", f"ds_read_b64_tr_b16 {v2(r + 2 * s)}, v{bD[seg]} offset:{32 * D * e + (8 * D if s == 0 else 0)}")

    LA = ND - 1
    kload(0, need[0][0], 0)
    dload(0)
    for b in need[0][1:3]:
        kload(0, b, 0)
    for i in range(1, LA):
        dload(i)
    rest0 = need[0][3:]
    for i, (spec, us) in enumerate(work):
        for (s, b) in kplan.get(i, []):
            kload(s, b, banks[s])
        if rest0:
            kload(0, rest0.pop(0), 0)
        if i + LA < len(work):
            dload(i + LA)
        d = DF + 4 * (i % ND)
        for (t, sg, b) in us:
            if sg == "p":
                lq.wait(f"D{i}")
                a(f"v_mfma_f32_16x16x32_f16 {v4(acc(t))}, {v4(PF)}, {v4(d)}, {v4(acc(t))}")
                continue
            k = KF + 36 * banks[sg] + 4 * b
            lq.wait(f"D{i}", f"K{sg}_{b}")
            if sg == 0:
                a(f"v_mfma_f32_16x16x32_f16 {v4(acc(t))}, {v4(k)}, {v4(d)}, {v4(acc(t))}")
            else:
                a(f"v_mfma_f32_16x16x32_f16 {v4(acc(t))}, {v4(d)}, {v4(k)}, {v4(acc(t))}")


def conv_xload(a, sCH, X=100):
    a(f"v_lshlrev_b32 v2, 4, v0\ns_lshl_b32 s96, s{sCH}, 12\ns_add_u32 s96, s96, {WS_XT}")
    for r in range(4):
        a(f"buffer_load_dwordx4 {v4(X + 4 * r)}, v2, {s4(S_WS)}, s96 offen offset:{1024 * r} sc0 sc1")


PREP_CUTS = [int(x) for x in os.environ.get("PREP_CUTS", "0,0,100").split(",")]


def conv_prep2(a, sRB, sSTA):
    U, W, B3, B5, B7, B9, SS = 8, 25, 50, 66, 78, 86, 94
    b = Asm()
    b(f"v_lshlrev_b32 v2, 4, v0\nv_add_u32 v6, s{sSTA}, v2")
    S = 50
    X = 94
    lq = LQ(b)

    def ldst(r):
        for q in range(4):
            lq.issue(f"s{r}", f"ds_read_b128 {v4(S + 16 * (r & 1) + 4 * q)}, v6 offset:{4096 * q + 1024 * r}")
    ldst(0)
    for r in range(4):
        if r < 3:
            ldst(r + 1)
        for i in range(4):
            b(f"v_lshlrev_b32 v{X + 2 * i}, 16, v{U + 4 * r + i}\nv_and_b32 v{X + 2 * i + 1}, 0xffff0000, v{U + 4 * r + i}")
        lq.wait(f"s{r}")
        sb = S + 16 * (r & 1)
        for i in range(8):
            b(f"v_fma_f32 v{X + i}, v{X + i}, v{sb + 2 * i}, v{sb + 2 * i + 1}")
        for i in range(4):
            b(f"v_cvt_pk_f16_f32 v{U + 4 * r + i}, v{X + 2 * i}, v{X + 2 * i + 1}")
    dpp = "row_mask:0xf bank_mask:0xf"
    done = []

    def rdy(txt):
        done.append((len(b.L), txt))
    for r in range(4):
        rdy(f"ds_write_b128 v5, {v4(U + 4 * r)} offset:{C_U + 1024 * r}")
    for r in range(4):
        w = W + 6 * r
        d = [w, w + 1, w + 2, w + 3, w + 4, w + 5, U + 4 * r, U + 4 * r + 1]
        for i in range(4):
            if r == 0:
                b(f"v_mov_b32 v{d[2 + i]}, 0")
            else:
                b(f"v_mov_b32_dpp v{d[2 + i]}, v{U + 4 * (r - 1) + i} wave_ror:1 {dpp}")
        for i in range(2):
            if r == 0:
                b(f"v_mov_b32 v{d[i]}, 0")
            else:
                b(f"v_mov_b32_dpp v{d[i]}, v{W + 6 * (r - 1) + 4 + i} wave_ror:1 {dpp}")
        for i in (2, 3, 0, 1):
            b(f"v_mov_b32_dpp v{d[2 + i]}, v{U + 4 * r + i} wave_shr:1 {dpp}")
        for i in range(2):
            b(f"v_mov_b32_dpp v{d[i]}, v{d[4 + i]} wave_shr:1 {dpp}")
        lo = 0 if r < 2 else 1
        for i in range(lo, 7 - lo):
            b(f"v_alignbit_b32 v{SS + i}, v{d[i + 1]}, v{d[i]}, 16")
        m3 = "M" if r == 3 else ""
        rdy(f"{m3}ds_write_b128 v5, {v4(w + 1)} offset:{C_U2 + 1024 * r - 16}")
        for i in range(4):
            b(f"v_pk_add_f16 v{B3 + 4 * r + i}, v{SS + i + 1}, v{SS + i + 2}")
        for i in range(4):
            b(f"v_pk_add_f16 v{B3 + 4 * r + i}, v{B3 + 4 * r + i}, v{d[i + 2]}")
        rdy(f"{m3}ds_write_b128 v5, {v4(B3 + 4 * r)} offset:{C_B3 + 1024 * r - 16}")
        if r < 3:
            for i in range(4):
                b(f"v_pk_add_f16 v{B5 + 4 * r + i}, v{d[i + 1]}, v{d[i + 3]}")
            for i in range(4):
                b(f"v_pk_add_f16 v{B5 + 4 * r + i}, v{B5 + 4 * r + i}, v{B3 + 4 * r + i}")
            rdy(f"ds_write_b128 v5, {v4(B5 + 4 * r)} offset:{C_B5 + 1024 * r - 16}")
        if r < 2:
            for i in range(4):
                b(f"v_pk_add_f16 v{B7 + 4 * r + i}, v{SS + i}, v{SS + i + 3}")
            for i in range(4):
                b(f"v_pk_add_f16 v{B7 + 4 * r + i}, v{B7 + 4 * r + i}, v{B5 + 4 * r + i}")
            rdy(f"ds_write_b128 v5, {v4(B7 + 4 * r)} offset:{C_B7 + 1024 * r - 16}")
            for i in range(4):
                b(f"v_pk_add_f16 v{B9 + 4 * r + i}, v{d[i]}, v{d[i + 4]}")
            for i in range(4):
                b(f"v_pk_add_f16 v{B9 + 4 * r + i}, v{B9 + 4 * r + i}, v{B7 + 4 * r + i}")
            rdy(f"ds_write_b128 v5, {v4(B9 + 4 * r)} offset:{C_B9 + 1024 * r - 16}")
    n = len(b.L)
    c0, c1, c2 = [min(c, n) for c in PREP_CUTS]

    def wr(txt):
        if txt.startswith("M"):
            a(f"s_mov_b32 exec_hi, 1\n{txt[1:]}\ns_mov_b32 exec_hi, -1")
        else:
            a(txt)
    pend = list(done)
    for i, l in enumerate(b.L):
        a.L.append(l)
        if i + 1 == c1 or i + 1 == c0:
            a("s_barrier")
        if i + 1 == c2:
            Lg = a.newlabel("g28")
            a(f"v_mov_b32 v5, {K1_CTL}\ns_cmp_ge_u32 s{sIDX}, 30\ns_cselect_b32 s97, 0, 8")
            a.label(Lg)
            a(f"ds_read_b32 v7, v5 offset:28\ns_sleep 1\ns_waitcnt lgkmcnt(0)\nv_readfirstlane_b32 s96, v7\ns_cmp_ge_u32 s96, s97\ns_cbranch_scc0 {Lg}")
            stamp(a, 3)
            a(f"""v_add_u32 v5, s{sRB}, v2
            v_mov_b64 v[104:105], 0
            v_mov_b64 v[106:107], 0
            s_mov_b32 exec_hi, 0xff
            ds_write_b128 v5, v[104:107]
            s_mov_b64 exec, 7
            ds_write_b128 v5, v[104:107] offset:{C_U2 - 64}
            ds_write_b128 v5, v[104:107] offset:{C_B3 - 64}
            ds_write_b128 v5, v[104:107] offset:{C_B5 - 64}
            ds_write_b128 v5, v[104:107] offset:{C_B7 - 64}
            ds_write_b128 v5, v[104:107] offset:{C_B9 - 64}
            s_mov_b64 exec, -1""")
        if i + 1 >= c2 and pend and pend[0][0] <= i + 1 :
            wr(pend.pop(0)[1])
    for _, txt in pend:
        wr(txt)
    a("s_waitcnt lgkmcnt(0)")


CREGS = dict(ACC=8, KF=28, DF=96, ND=4, bU=116, bK0=117, bD={1: 118, 2: 119, 3: 120}, bK={1: 121, 2: 122, 3: 123}, PF=112)


def conv_setup(a, sRB, sKT, sCH):
    regs = CREGS
    i16, hq, par, h8, rr, cc, T = 96, 97, 98, 99, 100, 101, 102
    a(f"""
    v_and_b32 v{i16}, 15, v0
    v_lshrrev_b32 v{hq}, 4, v0
    v_and_b32 v{par}, 1, v{hq}
    v_lshrrev_b32 v{h8}, 1, v{hq}
    v_bfe_u32 v{rr}, v0, 2, 2
    v_and_b32 v{cc}, 3, v0
    v_sub_u32 v{T}, v{i16}, v{h8}
    v_lshlrev_b32 v{T}, 5, v{T}
    v_lshl_add_u32 v{T}, v{par}, 4, v{T}
    s_add_u32 s96, s{sRB}, {C_U - 512}
    v_add_u32 v{regs['bU']}, s96, v{T}
    v_lshlrev_b32 v{T}, 3, v{par}
    v_sub_u32 v{T}, v{T}, v{i16}
    v_lshlrev_b32 v{T+1}, 4, v{h8}
    v_sub_u32 v{T}, v{T}, v{T+1}
    v_add_u32 v{T}, 32, v{T}
    v_lshlrev_b32 v{T}, 1, v{T}
    v_and_b32 v{T+2}, 1, v{i16}
    v_mul_u32_u24 v{T+1}, {T0O - T0E - 2}, v{T+2}
    v_add3_u32 v{regs['bK0']}, v{T}, v{T+1}, s{sKT}
    """)
    segs = {1: (4, C_B3, 5, 0, C_U2, 5, 0, T1E, T1O), 2: (8, C_B5, 35, 0, C_B3, 34, 4, T2E, T2O), 3: (16, C_B9, 50, 0, C_B7, 49, 8, T3EE, T3OE)}
    for sg, (Dd, Ae, pe, oe, Ao, po, oo, Te, To) in segs.items():
        ce = Ae - 2 * Dd * (pe + 4) - 2 * oe
        co = Ao - 2 * Dd * (po + 4) - 2 * oo
        a(f"""
        v_lshl_add_u32 v{T}, v{h8}, 3, v{rr}
        v_mul_u32_u24 v{T}, {2 * Dd}, v{T}
        v_lshlrev_b32 v{T+1}, 3, v{cc}
        v_sub_u32 v{T}, v{T+1}, v{T}
        v_mul_i32_i24 v{T+1}, {co - ce}, v{par}
        v_add3_u32 v{T}, v{T}, v{T+1}, s{sRB}
        v_add_u32 v{regs['bD'][sg]}, {ce}, v{T}
        v_mul_u32_u24 v{T}, {2 * 16 // Dd}, v{i16}
        v_lshl_add_u32 v{T}, v{h8}, 4, v{T}
        v_mul_u32_u24 v{T+1}, {To - Te}, v{par}
        v_add3_u32 v{T}, v{T}, v{T+1}, s{sKT}
        v_add_u32 v{regs['bK'][sg]}, {Te}, v{T}
        """)
    a(f"v_mul_u32_u24 v{T+1}, 158, v{T+2}\nv_add_u32 v{regs['bK'][3]}, v{regs['bK'][3]}, v{T+1}")
    PF = regs["PF"]
    a(f"""
    v_lshlrev_b32 v{T}, 4, v{h8}
    v_lshlrev_b32 v{T+1}, 3, v{par}
    v_sub_u32 v{T}, v{T}, v{T+1}
    v_add3_u32 v{T}, v{T}, v{i16}, -6
    v_mov_b32 v{T+3}, 0xffff
    v_mov_b32 v{cc}, 0xffff0000
    """)
    for p in range(4):
        a(f"""v_subrev_u32 v{T+1}, {2 * p}, v{T}
        v_subrev_u32 v{T+2}, {2 * p + 1}, v{T}
        v_cmp_gt_u32 vcc, 7, v{T+1}
        v_cmp_gt_u32 s[96:97], 7, v{T+2}
        s_nop 1
        v_cndmask_b32 v{T+1}, 0, v{T+3}, vcc
        v_cndmask_b32 v{T+2}, 0, v{cc}, s[96:97]
        v_or_b32 v{PF + p}, v{T+1}, v{T+2}""")
    a(f"""v_lshlrev_b32 v126, 5, v{i16}
    v_lshl_add_u32 v126, v{hq}, 3, v126
    s_add_u32 s96, s{sKT}, {TK1024}
    v_mov_b32 v124, s96
    s_lshl_b32 s93, s{sCH}, 12
    s_add_u32 s93, s93, {WS_Y}""")


def conv_run(a, sHALF):
    regs = CREGS
    PF = regs["PF"]
    a("ds_read_b64 v[124:125], v124")
    for r in range(8, 28, 2):
        a(f"v_mov_b64 {v2(r)}, 0")
    a(f"s_waitcnt lgkmcnt(0)\nv_and_b32 v124, 0xffff, v124\nv_lshl_or_b32 v124, v124, 16, v124")
    for p in range(4):
        a(f"v_and_b32 v{PF + p}, v{PF + p}, v124")
    LB = a.newlabel("halfB"); LJ = a.newlabel("cjoin")
    a(f"s_cmp_eq_u32 s{sHALF}, 1\ns_cbranch_scc1 {LB}")
    for tiles, lab in (([0, 1, 2, 3, 4], None), ([5, 6, 7], LB)):
        if lab:
            a.label(lab)
        conv_mfma(a, tiles, regs)
        a("s_nop 7")
        for i, t in enumerate(tiles):
            c = 8 + 4 * i
            for r in range(4):
                a(f"v_mul_f32 v{c + r}, v{c + r}, v125")
            a(f"v_cvt_pk_bf16_f32 v{c}, v{c}, v{c+1}\nv_cvt_pk_bf16_f32 v{c+1}, v{c+2}, v{c+3}")
            a(f"buffer_store_dwordx2 {v2(c)}, v126, {s4(S_WS)}, s93 offen offset:{512 * t} sc1")
        if not lab:
            a(f"s_branch {LJ}")
    a.label(LJ)


NR2 = 8
NEARLY = 6
ROT2 = 7
P2_H = NR2 * 10240
P2_X = 149504
P2_Y = P2_X
assert NEARLY * 10240 <= 2 * SLOT - C_SZ and P2_H + NR2 * 8192 <= P2_X and K1_STA <= P2_X and P2_X + 11968 <= K1_CTL
YSTAGE = 8


def p2_loader(a):
    vL, vT = 2, 3
    sW = 58
    a(f"""
    v_lshlrev_b32 v{vL}, 4, v0
    s_mul_i32 s{sW}, s{sNI2}, {48 * 5120}
    s_add_u32 s{sW}, s{sW}, {WS_WD}
    v_mov_b32 v5, {K1_CTL}
    v_mov_b32 v6, 1
    s_and_b32 s65, s{sIDX}, 7
    s_mul_i32 s65, s65, 3
    s_lshr_b32 s96, s{sIDX}, 3
    s_mul_i32 s96, s96, {ROT2}
    s_add_u32 s65, s65, s96
    s_cmp_ge_u32 s65, 24
    s_cselect_b32 s96, 24, 0
    s_sub_u32 s65, s65, s96
    {"s_mov_b32 s65, 0" if "rot" not in EXP else ""}
    s_mov_b32 s66, s65
    s_cmp_ge_u32 s{sIDX}, 30
    s_cselect_b32 s98, 0, 8
    """)

    def adv(r):
        a(f"s_add_u32 s{r}, s{r}, 1\ns_cmp_eq_u32 s{r}, 24\ns_cselect_b32 s{r}, 0, s{r}")
    Lq = a.newlabel("pq")
    a.label(Lq)
    a(f"""ds_read_b128 v[8:11], v5
    ds_read_b32 v12, v5 offset:16
    s_sleep 1
    s_waitcnt lgkmcnt(0)
    v_and_b32 v8, v8, v9
    v_and_b32 v8, v8, v10
    v_readfirstlane_b32 s97, v12
    v_readfirstlane_b32 s96, v8
    s_cmp_ge_u32 s97, s98
    s_cbranch_scc0 {Lq}
    s_cmp_eq_u32 s96, 1
    s_cbranch_scc0 {Lq}""")
    L1 = a.newlabel("p2l1")
    a(f"s_cmp_eq_u32 s{sWAVE}, 1\ns_cbranch_scc1 {L1}")

    def issw(s):
        slot = (s % NR2) * 10240
        a(f"s_mul_i32 s67, s65, 10240\ns_add_u32 s67, s67, s{sW}")
        adv(65)
        for g, n in ((0, 4), (4, 4), (8, 1)):
            a(f"s_mov_b32 m0, {slot + 1024 * g}\ns_add_u32 s97, s67, {1024 * g}")
            for j in range(n):
                a(f"buffer_load_dwordx4 v{vL}, {s4(S_WS)}, s97 offen offset:{1024 * j} sc1 lds")
    for s in range(NEARLY):
        issw(s)
    a(f"v_lshlrev_b32 v8, 7, v0\ns_mul_i32 s96, s{sIDX}, 61440\ns_add_u32 s96, s96, {WS_WD}")
    for j in range(8):
        a(f"buffer_load_dword v9, v8, {s4(S_WS)}, s96 offen sc1\ns_add_u32 s96, s96, 7680")
    a("s_waitcnt vmcnt(0)\ns_barrier")
    issw(6)
    issw(7)
    a("s_barrier")
    for s in range(23):
        infl = min(s + NR2 - 1, 23) - (s + 1)
        a(f"s_waitcnt vmcnt({9 * infl})\ns_barrier")
        if CSTAMP:
            stamp(a, 16 + s)
        if s + NR2 < 24:
            issw(s + NR2)
    stamp_end(a, 0, S_WS, sWAVE)

    a.label(L1)
    a(f"""
    v_lshrrev_b32 v{vT}, 3, v0
    v_and_b32 v4, 7, v0
    v_lshlrev_b32 v{vT}, 12, v{vT}
    v_lshl_add_u32 v{vT}, v4, 4, v{vT}          ; ch8*4096 + 16k
    s_mul_i32 s60, s{sNI2}, {80 * 4096}
    s_lshl_b32 s96, s{sMI2}, 7
    s_add_u32 s60, s60, s96
    s_mul_i32 s59, s{sMI2}, {4 * 49152}
    s_add_u32 s59, s59, {WS_H}
    s_add_u32 s68, s{sW}, 9216
    """)

    def tile(src, dst):
        a(f"s_add_u32 s96, s60, {src}")
        for p in range(10):
            a(f"s_mov_b32 m0, {dst + 1024 * p}\ns_add_u32 s97, s96, {p * 8 * 4096}\nbuffer_load_dwordx4 v{vT}, {s4(S_WS)}, s97 offen sc1 lds")

    def issw9(s):
        a(f"s_mul_i32 s97, s65, 10240\ns_mov_b32 m0, {(s % NR2) * 10240 + 9216}\ns_add_u32 s97, s97, s68\nbuffer_load_dwordx4 v{vL}, {s4(S_WS)}, s97 offen sc1 lds")
        adv(65)

    def issh(s):
        slot = P2_H + (s % NR2) * 8192
        a(f"s_lshl_b32 s67, s66, 11\ns_add_u32 s67, s67, s59")
        adv(66)
        for t_ in range(4):
            a(f"s_mov_b32 m0, {slot + t_ * 2048}\ns_add_u32 s97, s67, {t_ * 49152}")
            for j in range(2):
                a(f"buffer_load_dwordx4 v{vL}, {s4(S_WS)}, s97 offen offset:{1024 * j} sc1 lds")
        if s >= NEARLY:
            issw9(s)
        return 8 + (s >= NEARLY)
    tile(WS_XT, P2_X)
    for s in range(NEARLY):
        issw9(s)
    Lw = a.newlabel("own"); Lp = a.newlabel("hp"); Lgo = a.newlabel("hgo")
    a(f"""s_lshl_b32 s96, s{sMI2}, 6
    s_mul_i32 s97, s96, 5042
    s_lshr_b32 s97, s97, 20                     ; row/208
    s_add_u32 s96, s96, 63
    s_mul_i32 s96, s96, 5042
    s_lshr_b32 s96, s96, 20
    s_lshl_b32 s97, s97, 7
    s_lshl_b32 s96, s96, 7
    v_mov_b32 v7, s97
    v_mov_b32 v8, s96
    v_cmp_gt_u32 vcc, 32, v0
    v_and_b32 v9, 31, v0
    v_min_u32 v9, 23, v9
    v_cndmask_b32 v7, v8, v7, vcc
    v_lshl_add_u32 v7, v9, 2, v7
    s_mov_b32 s61, {WS_FH}
    s_mov_b32 s62, 0
    s_cmp_ge_u32 s{sIDX}, 30
    s_cselect_b32 s63, 32, 16
    s_cselect_b32 s98, 5, 8
    v_add_u32 v10, s63, v5
    s_waitcnt vmcnt(0)
    ds_write_b32 v5, v6 offset:24""")
    a.label(Lw)
    a(f"ds_read_b32 v11, v10\ns_sleep 2\ns_waitcnt lgkmcnt(0)\nv_readfirstlane_b32 s96, v11\ns_cmp_ge_u32 s96, s98\ns_cbranch_scc0 {Lw}")
    stamp(a, 8)
    a.label(Lp)
    a(f"""s_sleep 8
    buffer_load_dword v11, v7, {s4(S_WS)}, s61 offen sc0 sc1
    s_add_u32 s62, s62, 1
    s_waitcnt vmcnt(0)
    v_cmp_eq_u32 vcc, 1, v11
    s_and_b32 s96, vcc_lo, vcc_hi
    s_cmp_eq_u32 s96, -1
    s_cbranch_scc1 {Lgo}
    s_cmp_lt_u32 s62, 200000
    s_cbranch_scc1 {Lp}""")
    a.label(Lgo)
    stamp(a, 9)
    a("s_barrier")
    stamp(a, 10)
    vq = LQ(a, cnt="vmcnt", cap=63)

    def trk(tag, n):
        vq.q += [tag] * n
    for s in range(NR2 - 1):
        trk(f"h{s}", issh(s))
    a(f"v_lshlrev_b32 v8, 2, v0\ns_mov_b32 s61, {WS_FY}")
    vq.wait("h0")
    a("s_barrier")
    trk(f"h{NR2 - 1}", issh(NR2 - 1))
    stamp(a, 11)

    def ypoll():
        for q in range(4):
            a(f"buffer_load_dword v{12 + q}, v8, {s4(S_WS)}, s61 offen offset:{256 * q} sc0 sc1")
    for s in range(23):
        tags = [f"h{s + 1}"]
        if s == YSTAGE + 8:
            tags.append("yt")
        vq.wait(*tags)
        a("s_barrier")
        if s == YSTAGE:
            ypoll(); trk("yp", 4)
        if s + NR2 < 24:
            trk(f"h{s + NR2}", issh(s + NR2))
        if s == YSTAGE + 4:
            Lyo = a.newlabel("yok"); Lc = a.newlabel("yc")
            vq.wait("yp")
            a("s_mov_b32 s62, 0")
            a.label(Lc)
            a(f"""v_and_b32 v12, v12, v13
            v_and_b32 v14, v14, v15
            v_and_b32 v12, v12, v14
            v_cmp_eq_u32 vcc, 1, v12
            s_and_b32 s96, vcc_lo, vcc_hi
            s_cmp_eq_u32 s96, -1
            s_cbranch_scc1 {Lyo}
            s_sleep 16""")
            ypoll()
            a(f"""s_add_u32 s62, s62, 1
            s_waitcnt vmcnt(0)
            s_cmp_lt_u32 s62, 200000
            s_cbranch_scc1 {Lc}""")
            a.label(Lyo)
            tile(WS_Y, P2_Y); trk("yt", 10)
    stamp_end(a, 0, S_WS, sWAVE)


P2_BASE = 0


def p2_base(a):
    XB, TB, DD = 8, 18, 28
    vTR = 2
    sW4 = 60
    a(f"""
    s_setprio 0
    s_sub_u32 s{sW4}, s{sWAVE}, 6
    v_and_b32 v4, 15, v0
    v_lshrrev_b32 v5, 4, v0
    v_lshlrev_b32 v6, 3, v4
    v_lshlrev_b32 v7, 3, v5
    s_lshl_b32 s61, s{sMI2}, 2
    s_add_u32 s61, s61, s{sW4}              ; l tile
    s_lshl_b32 s96, s61, 7
    s_add_u32 s96, s96, {WS_STATB}
    s_mul_i32 s62, s{sNI2}, 160
    buffer_load_dwordx2 v[38:39], v6, {s4(S_WS)}, s96 offen sc0 sc1
    """)
    for dt in range(5):
        a(f"buffer_load_dwordx2 {v2(DD + 2 * dt)}, v7, {s4(S_DSK)}, s62 offen offset:{32 * dt}")
    a(f"""
    v_lshrrev_b32 v{vTR}, 2, v0
    v_and_b32 v3, 3, v0
    v_lshlrev_b32 v{vTR}, 7, v{vTR}
    v_lshl_add_u32 v{vTR}, v3, 3, v{vTR}
    s_lshl_b32 s96, s{sW4}, 5
    s_add_u32 s96, s96, {P2_X}
    v_add_u32 v{vTR}, s96, v{vTR}
    v_mov_b32 v3, {K1_CTL}
    """)
    Lx = a.newlabel("xw")
    a.label(Lx)
    a(f"ds_read_b32 v6, v3 offset:24\ns_sleep 1\ns_waitcnt lgkmcnt(0)\nv_readfirstlane_b32 s96, v6\ns_cmp_ge_u32 s96, 1\ns_cbranch_scc0 {Lx}")
    for dt in range(5):
        a(f"ds_read_b64_tr_b16 {v2(XB + 2 * dt)}, v{vTR} offset:{2048 * dt}")
    a("s_waitcnt vmcnt(0)\nv_rcp_f32 v39, v39\ns_waitcnt lgkmcnt(0)")

    def unpack(b, d, s):
        b(f"v_and_b32 v{d + 1}, 0xffff0000, v{s}\nv_lshlrev_b32 v{d}, 16, v{s}")
    T = 40

    def part1(b):
        def rnd():
            for h in range(2):
                b(f"v_cvt_pk_bf16_f32 v{T + 2 * h}, v{T + 2 * h}, v{T + 1 + 2 * h}")
            for h in range(2):
                unpack(b, T + 2 * h, T + 2 * h)
        for dt in range(5):
            for h in range(2):
                unpack(b, T + 2 * h, XB + 2 * dt + h)
            for h in range(2):
                unpack(b, T + 4 + 2 * h, DD + 2 * dt + h)
            for i in range(4):
                b(f"v_sub_f32 v{T + i}, v{T + i}, v38")
            rnd()
            for i in range(4):
                b(f"v_mul_f32 v{T + i}, v{T + i}, v39")
            rnd()
            for i in range(4):
                b(f"v_mul_f32 v{T + i}, v{T + i}, v{T + 4 + i}")
            for h in range(2):
                b(f"v_cvt_pk_bf16_f32 v{TB + 2 * dt + h}, v{T + 2 * h}, v{T + 1 + 2 * h}")
    part1(a)
    a("s_barrier\n" * (2 + YSTAGE + 9))
    Y = 28

    def part2(b):
        for dt in range(5):
            b(f"ds_read_b64_tr_b16 {v2(Y + 2 * dt)}, v{vTR} offset:{2048 * dt}")
        b(f"s_mul_i32 s96, s{sW4}, 2560\ns_add_u32 s96, s96, {P2_BASE}\nv_lshlrev_b32 v3, 3, v0\nv_add_u32 v3, s96, v3\ns_waitcnt lgkmcnt(0)")
        for dt in range(5):
            for h in range(2):
                unpack(b, T + 2 * h, Y + 2 * dt + h)
                unpack(b, T + 4 + 2 * h, TB + 2 * dt + h)
            for i in range(4):
                b(f"v_add_f32 v{T + i}, v{T + i}, v{T + 4 + i}")
            for h in range(2):
                b(f"v_cvt_pk_bf16_f32 v{T + 2 * h}, v{T + 2 * h}, v{T + 1 + 2 * h}")
                unpack(b, T + 4 + 2 * h, XB + 2 * dt + h)
            for h in range(2):
                unpack(b, T + 2 * h, T + 2 * h)
            for i in range(4):
                b(f"v_add_f32 v{T + i}, v{T + i}, v{T + 4 + i}")
            for h in range(2):
                b(f"v_cvt_pk_bf16_f32 v{XB + 2 * dt + h}, v{T + 2 * h}, v{T + 1 + 2 * h}")
    sliced(a, part2, 5)
    for dt in range(5):
        a(f"ds_write_b64 v3, {v2(XB + 2 * dt)} offset:{512 * dt}")
    a("s_waitcnt lgkmcnt(0)\n" + "s_barrier\n" * (23 - (YSTAGE + 9) - 5))
    stamp_end(a, 0, S_WS, sWAVE)


def p2_gemm(a):
    ACC = 8
    F = [28, 52, 76, 100]
    vW, vL, vW2 = 2, 3, 124
    sW4 = 60
    a(f"""
    s_setprio 1
    s_sub_u32 s{sW4}, s{sWAVE}, 2
    s_lshl_b32 s61, s{sMI2}, 2
    s_add_u32 s61, s61, s{sW4}              ; l tile
    s_mul_i32 s62, s{sNI2}, 160
    v_lshlrev_b32 v{vW}, 4, v0
    s_lshl_b32 s96, s{sW4}, 11
    s_add_u32 s96, s96, {P2_H}
    v_add_u32 v{vL}, s96, v{vW}
    v_add_u32 v{vW2}, 0x10000, v{vW}
    v_and_b32 v4, 15, v0
    v_lshrrev_b32 v5, 4, v0
    v_mul_u32_u24 v4, 176, v4
    v_lshl_add_u32 v4, v5, 3, v4
    s_mul_i32 s63, s{sW4}, 2816
    s_add_u32 s63, s63, {P2_X}
    v_add_u32 v4, s63, v4
    s_mul_i32 s96, s{sW4}, 2560
    s_add_u32 s96, s96, {P2_BASE}
    v_lshlrev_b32 v5, 3, v0
    v_add_u32 v5, s96, v5
    """)
    for r in range(ACC, ACC + 20, 2):
        a(f"v_mov_b64 {v2(r)}, 0")
    a("s_barrier\ns_barrier")
    stamp(a, 8)

    def rdw(lq, k):
        s, kk = divmod(k, 2)
        f = F[k % 4]
        lq.issue(f"w{k}", f"ds_read_b128 {v4(f + 20)}, v{vL} offset:{(s % NR2) * 8192 + kk * 1024}")
        for dt in range(5):
            off = (s % NR2) * 10240 + kk * 5120 + 1024 * dt
            lq.issue(f"w{k}", f"ds_read_b128 {v4(f + 4 * dt)}, v{vW if off < 65536 else vW2} offset:{off % 65536}")

    def mf(k):
        f = F[k % 4]
        for dt in range(5):
            a(f"v_mfma_f32_16x16x32_bf16 {v4(ACC + 4 * dt)}, {v4(f + 4 * dt)}, {v4(f + 20)}, {v4(ACC + 4 * dt)}")
    lq = LQ(a)
    rdw(lq, 0)
    rdw(lq, 1)
    for s in range(24):
        lq.drain()
        if s < 23:
            a("s_barrier")
            n0 = len(a.L)
            rdw(lq, 2 * s + 2)
            rdw(lq, 2 * s + 3)
            R = a.L[n0:]; del a.L[n0:]
            mf(2 * s)
            mf(2 * s + 1)
            M = a.L[n0:]; del a.L[n0:]
            a.L += R[:3]
            R = R[3:]
            for m in M:
                a.L.append(m)
                if R:
                    a.L.append(R.pop(0))
        else:
            XB = 28
            for dt in range(5):
                lq.issue("b", f"ds_read_b64 {v2(XB + 2 * dt)}, v5 offset:{512 * dt}")
            mf(2 * s)
            mf(2 * s + 1)
    stamp(a, 9)
    for i in range(3):
        a(f"""v_add_u32 v6, {64 * i}, v0
        v_mul_u32_u24 v7, 205, v6
        v_lshrrev_b32 v7, 11, v7
        v_mul_u32_u24 v{60 + i}, 10, v7
        v_sub_u32 v6, v6, v{60 + i}
        v_mul_u32_u24 v{60 + i}, 176, v7
        v_lshl_add_u32 v{60 + i}, v6, 4, v{60 + i}
        v_add_u32 v{60 + i}, s63, v{60 + i}
        v_mul_u32_u24 v{64 + i}, 1280, v7
        v_lshl_add_u32 v{64 + i}, v6, 4, v{64 + i}""")
    a("s_waitcnt lgkmcnt(0)")
    O = 40
    for dt in range(5):
        for h in range(2):
            c = ACC + 4 * dt + 2 * h
            t = 52 + 2 * h
            a(f"""v_cvt_pk_bf16_f32 v{c}, v{c}, v{c+1}
            v_and_b32 v{t+1}, 0xffff0000, v{XB + 2 * dt + h}
            v_and_b32 v{c+1}, 0xffff0000, v{c}
            v_lshlrev_b32 v{c}, 16, v{c}
            v_lshlrev_b32 v{t}, 16, v{XB + 2 * dt + h}
            v_add_f32 v{c+1}, v{c+1}, v{t+1}
            v_add_f32 v{c}, v{c}, v{t}
            v_cvt_pk_bf16_f32 v{O + 2 * dt + h}, v{c}, v{c+1}""")
        a(f"ds_write_b64 v4, {v2(O + 2 * dt)} offset:{32 * dt}")
    for i in range(3):
        a(f"ds_read_b128 {v4(76 + 4 * i)}, v{60 + i}")
    a(f"""
    s_mul_i32 s96, s61, {16 * 1280}
    s_add_u32 s96, s96, s62
    s_waitcnt lgkmcnt(2)
    buffer_store_dwordx4 v[76:79], v64, {s4(S_OUT)}, s96 offen
    s_waitcnt lgkmcnt(1)
    buffer_store_dwordx4 v[80:83], v65, {s4(S_OUT)}, s96 offen
    s_waitcnt lgkmcnt(0)
    s_mov_b32 exec_hi, 0
    buffer_store_dwordx4 v[84:87], v66, {s4(S_OUT)}, s96 offen
    s_mov_b64 exec, -1
    """)
    stamp(a, 10)
    stamp_end(a, 0, S_WS, sWAVE)
```

```python
import sys, os, struct

NAME = "parallel_sum__ssm_conv_s4d__glu_gated_glu__prompt"

WS_H = 0
WS_WD = WS_H + 128 * 48 * 1024
WS_XT = WS_WD + 8 * 48 * 5 * 1024
WS_Y = WS_XT + 640 * 4096
KT_BYTES = 3584
WS_KT = WS_Y + 640 * 4096
WS_STATA = WS_KT + 640 * KT_BYTES
WS_STATB = WS_STATA + 2048 * 8
WS_CS = WS_STATB + 2048 * 8
WS_FH = WS_CS + 5 * 3072 * 4
WS_FY = WS_FH + 16 * 128
WS_END = WS_FY + 8 * 128

T0E, T0O, T1E, T1O, T2E, T2O = 0, 640, 1280, 1664, 2048, 2304
T3EE, T3EO, T3OE, T3OO = 2560, 2720, 2880, 3040
TK1024, TSIG = 3200, 3204

PROF = int(os.environ.get("PROF", "0"))
EXP = os.environ.get("EXP", "")
CSTAMP = int(os.environ.get("CSTAMP", "0"))
PREP_PRIO = int(os.environ.get("PREP_PRIO", "3"))
PFW = int(os.environ.get("PFW", "0"))
TOUCH_AT = int(os.environ.get("TOUCH_AT", "3"))
WS_PROF = 0x2000000
class _St:
    r = 127
    def __format__(self, spec): return str(self.r)


vSTAMP = _St()


def f32(x):
    return "0x%08x" % struct.unpack("<I", struct.pack("<f", x))[0]


class Asm:
    def __init__(self):
        self.L = []
        self.uid = 0

    def __call__(self, s):
        for line in s.split("\n"):
            line = line.strip()
            if line:
                self.L.append("  " + line)

    def label(self, n):
        self.L.append(n + ":")

    def newlabel(self, base):
        self.uid += 1
        return f"L_{base}_{self.uid}"

    def raw(self, s):
        self.L.append(s)

    def text(self):
        return "\n".join(self.L) + "\n"


class LQ:
    def __init__(self, a, seed=(), cnt="lgkmcnt", cap=15):
        self.a = a
        self.q = list(seed)
        self.cnt = cnt
        self.cap = cap

    def issue(self, tag, s):
        self.a(s)
        self.q.append(tag)

    def wait(self, *tags):
        idx = -1
        for t in tags:
            for i, x in enumerate(self.q):
                if x == t:
                    idx = max(idx, i)
        if idx < 0:
            return
        n = len(self.q) - 1 - idx
        self.a(f"s_waitcnt {self.cnt}({min(n, self.cap)})")
        self.q = self.q[idx + 1:] if n <= self.cap else self.q[len(self.q) - self.cap:]

    def drain(self):
        self.a(f"s_waitcnt {self.cnt}(0)")
        self.q = []


def stamp(a, i, real=False):
    if PROF:
        a(f"s_waitcnt lgkmcnt(0)\n{'s_memrealtime' if real else 's_memtime'} s[100:101]\ns_waitcnt lgkmcnt(0)\nv_writelane_b32 v{vSTAMP}, s100, {i}")


def stamp_dyn(a, sidx, base, mul=1):
    if PROF:
        a(f"s_waitcnt lgkmcnt(0)\ns_memtime s[100:101]\ns_mul_i32 s99, s{sidx}, {mul}\ns_add_u32 m0, s99, {base}\ns_waitcnt lgkmcnt(0)\nv_writelane_b32 v{vSTAMP}, s100, m0")


def stamp_end(a, kern, S_WS_, swave):
    if "diag" in EXP:
        Ld = a.newlabel("diag")
        if kern == 0:
            a(f"""s_cmp_lg_u32 s{swave}, 9
            s_cbranch_scc1 {Ld}
            s_waitcnt vmcnt(0) lgkmcnt(0)
            s_memrealtime s[100:101]
            s_lshl_b32 s98, s2, 2
            s_add_u32 s98, s98, {WS_END + 1024}
            v_mov_b32 v5, 0
            s_waitcnt lgkmcnt(0)
            v_mov_b32 v6, s100
            s_mov_b64 exec, 1
            buffer_store_dword v6, v5, s[{S_WS_}:{S_WS_+3}], s98 offen""")
        else:
            a(f"""s_cmp_lg_u32 s{swave}, 0
            s_cbranch_scc1 {Ld}
            s_lshl_b32 s98, s2, 2
            s_add_u32 s98, s98, {WS_END}
            v_mov_b32 v5, 0
            s_mov_b64 exec, 1
            buffer_load_dword v7, v5, s[{S_WS_}:{S_WS_+3}], s98 offen
            buffer_load_dword v8, v5, s[{S_WS_}:{S_WS_+3}], s98 offen offset:1024
            s_waitcnt vmcnt(0) lgkmcnt(0)
            s_memrealtime s[100:101]
            s_waitcnt lgkmcnt(0)
            v_mov_b32 v6, s100
            v_and_b32 v6, 0xffffff, v6
            v_and_b32 v7, 0xffffff, v7
            v_and_b32 v8, 0xffffff, v8
            v_and_b32 v9, 0xffffff, v165
            v_sub_u32 v10, 0xffffff, v7
            v_sub_u32 v11, 0xffffff, v9
            buffer_atomic_umax v10, v5, s[16:19], 0 offen offset:0
            buffer_atomic_umax v7, v5, s[16:19], 0 offen offset:4
            buffer_atomic_umax v8, v5, s[16:19], 0 offen offset:8
            buffer_atomic_umax v11, v5, s[16:19], 0 offen offset:12
            buffer_atomic_umax v9, v5, s[16:19], 0 offen offset:16
            buffer_atomic_umax v6, v5, s[16:19], 0 offen offset:20""")
        a.label(Ld)
    if PROF:
        a("s_waitcnt vmcnt(0)")
        stamp(a, 6)
        stamp(a, 7, True)
        a(f"""s_lshl_b32 s100, s2, 4
        s_add_u32 s100, s100, s{swave}
        s_lshl_b32 s100, s100, 8
        s_add_u32 s100, s100, {WS_PROF + kern * 0x100000}
        v_lshlrev_b32 v1, 2, v0
        buffer_store_dword v{vSTAMP}, v1, s[{S_WS_}:{S_WS_+3}], s100 offen
        s_waitcnt vmcnt(0)""")
    a("s_endpgm")


def code_prefetch(a, first, last, nchunk, sidx, swave, wsel, vtmp, sp):
    if "nopf" in EXP:
        return
    L = a.newlabel("nopf"); H = a.newlabel("here")
    a(f"s_cmp_lg_u32 s{swave}, {wsel}\ns_cbranch_scc1 {L}\ns_cmp_ge_u32 s{sidx}, {nchunk}\ns_cbranch_scc1 {L}\ns_getpc_b64 s[{sp}:{sp+1}]")
    a.label(H)
    a(f"""s_sub_u32 s{sp}, s{sp}, {H}-{first}
    s_subb_u32 s{sp+1}, s{sp+1}, 0
    s_lshl_b32 s{sp+2}, s{sidx}, 13
    v_lshl_add_u32 v{vtmp}, v0, 7, s{sp+2}
    v_min_u32 v{vtmp}, {last}-{first}-4, v{vtmp}
    global_load_dword v{vtmp}, v{vtmp}, s[{sp}:{sp+1}]""")
    a.label(L)


def srd(a, d, lo, nbytes):
    a(f"s_mov_b32 s{d}, s{lo}\ns_mov_b32 s{d+1}, s{lo+1}\ns_mov_b32 s{d+2}, {nbytes}\ns_mov_b32 s{d+3}, 0x00020000")


def v4(r): return f"v[{r}:{r+3}]"
def v2(r): return f"v[{r}:{r+1}]"
def s4(r): return f"s[{r}:{r+3}]"


def dpp_row_allreduce(a, op, regs):
    for sh in (8, 4, 2, 1):
        if len(regs) < 3:
            a("s_nop 1")
        for r in regs:
            a(f"{op}_dpp v{r}, v{r}, v{r} row_ror:{sh} row_mask:0xf bank_mask:0xf")


def wave_max_u32_to_sgpr(a, v, sd, st):
    dpp_row_allreduce(a, "v_max_u32", [v])
    a(f"""s_nop 0
    v_readlane_b32 s{sd}, v{v}, 0
    v_readlane_b32 s{st}, v{v}, 16
    s_max_u32 s{sd}, s{sd}, s{st}
    v_readlane_b32 s{st}, v{v}, 32
    s_max_u32 s{sd}, s{sd}, s{st}
    v_readlane_b32 s{st}, v{v}, 48
    s_max_u32 s{sd}, s{sd}, s{st}""")


def round_bf16(a, d, s):
    a(f"v_cvt_pk_bf16_f32 v{d}, v{s}, v{s}\nv_lshlrev_b32 v{d}, 16, v{d}")


XSZ = 208 * 128
WSZ = 16384
SLOT = XSZ + WSZ
K1_STAT = 3 * SLOT
K1_CS = K1_STAT + 2048
TBL = 3328
K1_KG = K1_CS + 512
K1_STA = K1_KG + 3 * TBL
K1_SCR = K1_STAT
K1_CTL = 163840 - 64
assert K1_STA + 20480 <= K1_CTL
K1_LDS = 163840
assert K1_CTL + 64 <= K1_LDS

S_X, S_WG, S_WU, S_WD, S_WS, S_DBG = 4, 8, 12, 16, 20, 24
S_LA, S_AI, S_CR, S_CI, S_DT = 28, 32, 36, 40, 44
S_TMP = 48
S_OUT, S_DSK = 72, 76
sMI2, sNI2 = 80, 81
sWAVE, sMI, sNI, sROW0, sGI, sIDX, sXCD = 3, 52, 53, 54, 55, 56, 57
sMODE = 64


def k1_loader(a, parts):
    vOX, vOW = 16, 20
    sT, sXO, sWO, sDSL, sPEND = 58, 59, 60, 61, 62
    a(f"""
    v_lshrrev_b32 v8, 3, v0            ; rho
    v_and_b32 v9, 7, v0                ; c'
    v_xor_b32 v10, v9, v8
    v_mul_u32_u24 v{vOX}, 1280, v8
    v_lshl_add_u32 v{vOX}, v10, 4, v{vOX}
    v_bfe_u32 v10, v8, 1, 1
    v_lshrrev_b32 v11, 1, v9
    v_xor_b32 v11, v11, v10
    v_and_b32 v12, 1, v9
    v_lshl_add_u32 v11, v11, 1, v12
    v_mul_u32_u24 v{vOW}, 3072, v8
    v_lshl_add_u32 v{vOW}, v11, 4, v{vOW}
    v_xor_b32 v13, 64, v{vOW}
    v_add_u32 v{vOW + 1}, {8 * 3072 - 1024}, v13
    v_add_u32 v{vOW + 2}, {2 * (8 * 3072 - 1024)}, v{vOW}
    v_add_u32 v{vOW + 3}, {3 * (8 * 3072 - 1024)}, v13
    v_add_u32 v{vOX + 1}, {8 * 1280 - 1024}, v{vOX}
    v_add_u32 v{vOX + 2}, {2 * (8 * 1280 - 1024)}, v{vOX}
    v_add_u32 v{vOX + 3}, {3 * (8 * 1280 - 1024)}, v{vOX}
    s_mul_i32 s{sT}, s{sWAVE}, 104
    s_add_u32 s{sXO}, s{sROW0}, s{sT}
    s_mul_i32 s{sXO}, s{sXO}, 1280
    s_lshl_b32 s{sWO}, s{sNI}, 7
    s_cmp_eq_u32 s{sWAVE}, 0
    s_cselect_b32 s{S_TMP}, s{S_WG}, s{S_WU}
    s_cselect_b32 s{S_TMP+1}, s{S_WG+1}, s{S_WU+1}
    s_mov_b32 s{S_TMP+2}, {640 * 3072}
    s_mov_b32 s{S_TMP+3}, 0x00020000
    s_mul_i32 s92, s{sWAVE}, {13 * 1024}
    s_mul_i32 s93, s{sWAVE}, 8192
    s_add_u32 s93, s93, {XSZ}
    v_lshlrev_b32 v24, 2, v0
    v_lshlrev_b32 v25, 4, v0
    """)
    groups = [("w", 0, 4), ("x", 0, 4), ("x", 4, 4), ("x", 8, 4), ("x", 12, 1), ("w", 4, 4)]

    def issue(st):
        slot = (st % 3) * SLOT
        Lsk = a.newlabel("noiss")
        a(f"s_cmp_ge_u32 s{sIDX}, 30\ns_cbranch_scc1 {Lsk}")
        for (k, i0, n) in groups:
            if k == "x":
                a(f"s_add_u32 m0, s92, {slot + i0 * 1024}\ns_add_u32 s98, s{sXO}, {i0 * 8 * 1280 + st * 128}")
                for j in range(n):
                    a(f"buffer_load_dwordx4 v{vOX + j}, {s4(S_X)}, s98 offen offset:{1024 * j} lds")
            else:
                a(f"s_add_u32 m0, s93, {slot + i0 * 1024}\ns_add_u32 s98, s{sWO}, {(st * 64 + i0 * 8) * 3072}")
                for j in range(n):
                    a(f"buffer_load_dwordx4 v{vOW + j}, {s4(S_TMP)}, s98 offen offset:{1024 * j} lds")
        a.label(Lsk)

    def stage_loads():
        a(f"""s_lshl_b32 s98, s{sROW0}, 3
        s_mov_b32 m0, {K1_STAT}
        s_add_u32 s98, s98, {WS_STATB}
        buffer_load_dwordx4 v25, {s4(S_WS)}, s98 offen sc0 sc1 lds
        buffer_load_dwordx4 v25, {s4(S_WS)}, s98 offen offset:1024 sc0 sc1 lds
        s_lshl_b32 s97, s{sNI}, 8
        s_add_u32 s97, s97, {WS_CS}""")
        for rc in range(5):
            a(f"s_add_u32 s98, s97, {rc * 12288}\nbuffer_load_dword v{32 + rc}, v24, {s4(S_WS)}, s98 offen sc0 sc1")
            a(f"s_add_u32 s98, s97, {rc * 12288 + 6144}\nbuffer_load_dword v{37 + rc}, v24, {s4(S_WS)}, s98 offen sc0 sc1")

    def flags_ok(Lno):
        a(f"v_cmp_le_u32 vcc, 4, v30\ns_and_b32 s{sT}, vcc_lo, vcc_hi\ns_cmp_eq_u32 s{sT}, -1\ns_cbranch_scc0 {Lno}")

    issue(0)
    a("s_setprio 0")
    issue(1)
    stamp(a, 2)
    a("s_barrier")
    a("s_waitcnt vmcnt(21)\ns_setprio 3")
    stamp(a, 3)
    a("s_barrier")
    issue(2)
    L1 = a.newlabel("ldr1"); L4 = a.newlabel("b4")
    for s in range(5):
        a("s_waitcnt vmcnt(21)\ns_barrier")
        issue(s + 3)
    a("s_waitcnt vmcnt(21)\ns_barrier")
    a(f"s_cmp_eq_u32 s{sWAVE}, 1\ns_cbranch_scc1 {L1}")
    issue(8)
    a(f"s_waitcnt vmcnt(21)\ns_branch {L4}")
    a.label(L1)
    Lb = a.newlabel("bk")
    a(f"s_cmp_lt_u32 s{sIDX}, 30\ns_cbranch_scc1 {Lb}\ns_sleep 100")
    a.label(Lb)
    a(f"buffer_load_dword v30, v24, {s4(S_DBG)}, 0 offen sc0 sc1")
    issue(8)
    Lv = a.newlabel("v")
    a(f"s_waitcnt vmcnt(21)\ns_cmp_lt_u32 s{sIDX}, 30\ns_cbranch_scc1 {Lv}\ns_waitcnt vmcnt(0)")
    a.label(Lv)
    Lsp = a.newlabel("spin"); Lchk = a.newlabel("chk")
    a(f"s_mov_b32 s{sPEND}, 0")
    a.label(Lchk)
    flags_ok(Lsp)
    a(f"s_branch {L4}")
    a.label(Lsp)
    a(f"""s_sleep 12
    buffer_load_dword v30, v24, {s4(S_DBG)}, 0 offen sc0 sc1
    s_add_u32 s{sPEND}, s{sPEND}, 1
    s_waitcnt vmcnt(0)
    s_cmp_lt_u32 s{sPEND}, 200000
    s_cbranch_scc1 {Lchk}""")
    a.label(L4)
    a("s_barrier")
    stamp(a, 5)
    Ln = a.newlabel("nocs"); Ln2 = a.newlabel("nocs")
    a(f"s_cmp_eq_u32 s{sWAVE}, 0\ns_cbranch_scc1 {Ln}")
    stage_loads()
    issue(9)
    a("s_waitcnt vmcnt(33)\ns_barrier\ns_waitcnt vmcnt(0)")
    for rc in range(1, 5):
        a(f"v_add_f32 v32, v32, v{32 + rc}\nv_add_f32 v37, v37, v{37 + rc}")
    a(f"""v_add_u32 v26, {K1_CS}, v24
    ds_write_b32 v26, v32
    ds_write_b32 v26, v37 offset:256
    s_waitcnt lgkmcnt(0)
    s_branch {Ln2}""")
    a.label(Ln)
    issue(9)
    for g in range(4):
        a(f"s_mov_b32 m0, {K1_STA + 4096 * g}\ns_mov_b32 s97, {WS_STATA + 4096 * g}")
        for j in range(4):
            a(f"buffer_load_dwordx4 v25, {s4(S_WS)}, s97 offen offset:{1024 * j} sc0 sc1 lds")
    Lq = a.newlabel("q")
    a(f"s_waitcnt vmcnt(37)\ns_barrier\ns_waitcnt vmcnt(16)\ns_barrier\ns_waitcnt vmcnt(0)\nv_mov_b32 v5, {K1_CTL}\nv_mov_b32 v6, 1\nds_write_b32 v5, v6 offset:12\ns_branch {Lq}")
    a.label(Ln2)
    a("s_barrier")
    a.label(Lq)
    stamp(a, 4)
    import gen2
    gen2.p2_loader(a)


def k1_gemm(a, var):
    extra = 1 if var < 2 else 0
    NB = 3 + extra
    A = [6, 22]
    B = [38, 54]
    ACC = 70
    vA0, vA1, vAW, vAW1 = 2, 3, 4, 5
    sST, sSLOT, sT = 58, 60, 62
    sFP, sLQ = 95, 94
    T0 = 38

    a(f"s_sub_u32 s{sT}, s{sWAVE}, 2\ns_and_b32 s{sFP}, s{sT}, 1\ns_lshr_b32 s{sLQ}, s{sT}, 1")
    a(f"""
    v_and_b32 v{T0}, 15, v0
    v_lshrrev_b32 v{T0+1}, 4, v0
    v_and_b32 v{T0+2}, 7, v{T0}
    v_xor_b32 v{T0+2}, v{T0+2}, v{T0+1}
    v_lshlrev_b32 v{vA0}, 7, v{T0}
    v_lshl_add_u32 v{vA0}, v{T0+2}, 4, v{vA0}
    s_mul_i32 s{sT}, s{sLQ}, {3 * 2048}
    v_add_u32 v{vA0}, s{sT}, v{vA0}
    v_xor_b32 v{vA1}, 64, v{vA0}
    v_lshrrev_b32 v{T0+2}, 2, v{T0}           ; r
    v_and_b32 v{T0+3}, 3, v{T0}               ; c
    v_lshrrev_b32 v{T0+4}, 1, v{T0+2}
    v_and_b32 v{T0+5}, 1, v{T0+1}
    v_lshl_or_b32 v{T0+4}, v{T0+5}, 1, v{T0+4}
    s_lshl_b32 s{sT}, s{sFP}, 1
    v_xor_b32 v{T0+4}, s{sT}, v{T0+4}
    v_lshl_add_u32 v{T0+5}, v{T0+1}, 3, v{T0+2}     ; 8hq + r
    v_lshlrev_b32 v{vAW}, 7, v{T0+5}
    v_lshl_add_u32 v{vAW}, v{T0+4}, 5, v{vAW}
    v_lshl_add_u32 v{vAW}, v{T0+3}, 3, v{vAW}
    v_add_u32 v{vAW}, {XSZ}, v{vAW}
    v_xor_b32 v{vAW1}, 32, v{vAW}
    """)
    for r in range(ACC, ACC + 48 + 8 * extra, 2):
        a(f"v_mov_b64 {v2(r)}, 0")

    def next_addr():
        a(f"""s_add_u32 s{sSLOT}, s{sSLOT}, 1
        s_cmp_eq_u32 s{sSLOT}, 3
        s_cselect_b32 s{sT}, s63, {SLOT}
        s_cselect_b32 s{sSLOT}, 0, s{sSLOT}""")

    def set_addr():
        for r in (vAW, vA0, vAW1, vA1):
            a(f"v_add_u32 v{r}, s{sT}, v{r}")

    def reads(kk):
        R = []

        def rA(fr):
            for s in range(2):
                R.append((f"A{kk}{fr}", f"ds_read_b64_tr_b16 {v2(A[kk] + 4 * fr + 2 * s)}, v{vAW1 if fr >= 2 else vAW} offset:{kk * 4096 + s * 512 + (8192 if fr & 1 else 0)}"))

        def rB(t):
            off = (12 - 3 * var) * 2048 if t == 3 else t * 2048
            R.append((f"B{kk}{t}", f"ds_read_b128 {v4(B[kk] + 4 * t)}, v{vA1 if kk else vA0} offset:{off}"))
        rA(0); rB(0); rA(1); rA(2); rA(3)
        for t in range(1, NB):
            rB(t)
        return R

    def mf(t, fr, kk):
        acc = ACC + 48 + 4 * (fr & 1) if t == 3 else ACC + 16 * t + 4 * fr
        a(f"v_mfma_f32_16x16x32_bf16 {v4(acc)}, {v4(A[kk] + 4 * fr)}, {v4(B[kk] + 4 * t)}, {v4(acc)}")

    def phase(lq, kk, R):
        R = list(R)
        for t in range(3):
            for fr in range(4):
                lq.wait(f"A{kk}{fr}", f"B{kk}{t}")
                mf(t, fr, kk)
                if R:
                    tg, ins = R.pop(0)
                    lq.issue(tg, ins)
        while R:
            tg, ins = R.pop(0)
            lq.issue(tg, ins)
        if extra:
            lq.wait(f"B{kk}3")
            mf(3, 2 * var, kk); mf(3, 2 * var + 1, kk)

    stamp(a, 2)
    a(f"s_mov_b32 s{sSLOT}, 0\ns_mov_b32 s{sST}, 0\ns_mov_b32 s63, {(-2 * SLOT) & 0xffffffff}\ns_setprio 2\ns_waitcnt lgkmcnt(0)\ns_barrier")
    stamp(a, 3)
    lq = LQ(a)
    for tg, ins in reads(0):
        lq.issue(tg, ins)
    seed = list(lq.q)

    def body(last):
        lq = LQ(a, seed)
        phase(lq, 0, reads(1))
        if not last:
            next_addr()
            lq.drain()
            a("s_waitcnt vmcnt(0)")
            set_addr()
            if CSTAMP == 1:
                stamp_dyn(a, sST, 8, 2)
            a("s_barrier")
            if CSTAMP == 1:
                stamp_dyn(a, sST, 9, 2)
            phase(lq, 1, reads(0))
        else:
            lq.drain()
            a(f"v_mov_b32 v{vA0}, {K1_CTL}\nv_mov_b32 v{vA1}, 1\ns_mov_b64 exec, 1\nds_add_u32 v{vA0}, v{vA1} offset:28\ns_mov_b64 exec, -1")
            phase(lq, 1, [])

    Lloop = a.newlabel("gloop")
    a.label(Lloop)
    body(False)
    a(f"s_add_u32 s{sST}, s{sST}, 1\ns_cmp_lt_u32 s{sST}, 9\ns_cbranch_scc1 {Lloop}")
    body(True)

    stamp(a, 4)
    vSA, vCA, vHO = 2, 3, 4
    CS = 8
    ST = 24
    a(f"""
    v_and_b32 v{T0}, 15, v0
    v_lshrrev_b32 v{T0+1}, 4, v0
    s_mul_i32 s{sT}, s{sLQ}, {3 * 128}
    s_add_u32 s{sT}, s{sT}, {K1_STAT}
    v_lshl_add_u32 v{vSA}, v{T0}, 3, s{sT}
    s_lshl_b32 s{sT}, s{sFP}, 7
    s_add_u32 s{sT}, s{sT}, {K1_CS}
    v_lshl_add_u32 v{vCA}, v{T0+1}, 4, s{sT}
    ds_read_b128 {v4(CS)}, v{vCA}
    ds_read_b128 {v4(CS + 4)}, v{vCA} offset:256
    ds_read_b128 {v4(CS + 8)}, v{vCA} offset:64
    ds_read_b128 {v4(CS + 12)}, v{vCA} offset:320
    """)
    for t in range(3):
        a(f"ds_read_b64 {v2(ST + 2 * t)}, v{vSA} offset:{t * 128}")
    if extra:
        a(f"ds_read_b64 {v2(ST + 6)}, v{vSA} offset:{(12 - 3 * var) * 128}")
    a(f"""
    v_lshlrev_b32 v{vHO}, 4, v0
    s_lshr_b32 s96, s{sROW0}, 4
    s_mul_i32 s96, s96, 49152
    s_lshl_b32 s97, s{sNI}, 1
    s_add_u32 s97, s97, s{sFP}
    s_lshl_b32 s97, s97, 10
    s_add_u32 s96, s96, s97
    s_add_u32 s96, s96, {WS_H}
    s_mul_i32 s97, s{sLQ}, {3 * 49152}
    s_add_u32 s99, s96, s97
    s_mov_b32 s98, 0xbfb8aa3b           ; -log2e
    s_waitcnt lgkmcnt(0)
    """)
    TM = 40
    PK = 48
    c1 = 56

    def act(g, u, csg, csu, m, s, pk):
        for r in range(4):
            a(f"v_fma_f32 v{TM + r}, -v{m}, v{csg + r}, v{g + r}")
        for r in range(4):
            a(f"v_mul_f32 v{TM + r}, v{TM + r}, v{c1}")
        for r in range(4):
            a(f"v_exp_f32 v{TM + r}, v{TM + r}")
        for r in range(4):
            a(f"v_fma_f32 v{TM + 4 + r}, -v{m}, v{csu + r}, v{u + r}")
        for r in range(4):
            a(f"v_fma_f32 v{TM + r}, v{TM + r}, v{s}, v{s}")
        for r in range(4):
            a(f"v_rcp_f32 v{TM + r}, v{TM + r}")
        a("s_nop 0")
        for r in range(4):
            a(f"v_mul_f32 v{TM + 4 + r}, v{TM + 4 + r}, v{TM + r}")
        a(f"v_cvt_pk_bf16_f32 v{pk}, v{TM + 4}, v{TM + 5}\nv_cvt_pk_bf16_f32 v{pk + 1}, v{TM + 6}, v{TM + 7}")

    for t in range(3):
        m, s = ST + 2 * t, ST + 2 * t + 1
        Lsk = None
        if var == 0 and t < 2:
            Lsk = a.newlabel("skipst")
            a(f"s_cmp_eq_u32 s{sMI}, 9\ns_cbranch_scc1 {Lsk}")
        a(f"v_rcp_f32 v{c1}, v{s}\ns_nop 0\nv_mul_f32 v{c1}, s98, v{c1}")
        b = PK + 4 * (t & 1)
        act(ACC + 16 * t, ACC + 16 * t + 4, CS, CS + 4, m, s, b)
        act(ACC + 16 * t + 8, ACC + 16 * t + 12, CS + 8, CS + 12, m, s, b + 2)
        a(f"s_add_u32 s97, s99, {t * 49152}")
        a(f"buffer_store_dwordx4 {v4(b)}, v{vHO}, {s4(S_WS)}, s97 offen")
        if Lsk:
            a.label(Lsk)
    if extra:
        m, s = ST + 6, ST + 7
        a(f"v_rcp_f32 v{c1}, v{s}\ns_nop 0\nv_mul_f32 v{c1}, s98, v{c1}")
        act(ACC + 48, ACC + 52, CS + 8 * var, CS + 4 + 8 * var, m, s, PK + 4)
        a(f"s_add_u32 s97, s96, {12 * 49152 + 8 * var}")
        a(f"buffer_store_dwordx2 {v2(PK + 4)}, v{vHO}, {s4(S_WS)}, s97 offen")
    stamp(a, 5)
    a("s_branch L_k1_hsig")


def sliced(a, fn, nbar):
    b = Asm()
    b.uid = a.uid + 1000
    fn(b)
    a.uid = b.uid
    n = len(b.L)
    cuts = {(n * (i + 1)) // nbar for i in range(nbar)}
    assert len(cuts) == nbar
    for i, l in enumerate(b.L):
        a.L.append(l)
        if i + 1 in cuts:
            a("s_barrier")


def k1_stats_loads(a):
    a(f"""
    v_lshrrev_b32 v5, 4, v0
    v_and_b32 v6, 15, v0
    v_mul_u32_u24 v7, 1280, v5
    v_lshl_add_u32 v7, v6, 4, v7
    s_and_b32 s58, s{sXCD}, 1
    s_lshl_b32 s58, s58, 10
    s_lshr_b32 s59, s{sXCD}, 1
    s_lshl_b32 s59, s59, 8
    s_add_u32 s58, s58, s59
    s_lshl_b32 s59, s{sIDX}, 3
    s_add_u32 s58, s58, s59
    s_mul_i32 s59, s58, 1280
    s_add_u32 s60, s59, {4 * 1280}
    """)
    for p in range(2):
        for j in range(5):
            a(f"buffer_load_dwordx4 {v4(8 + 20 * p + 4 * j)}, v7, {s4(S_X)}, s{59 + p} offen offset:{256 * j}")


def k1_stats(a, nlater):
    RAW = 8
    AC = 48
    D = 56
    a(f"""
    v_mov_b32 v72, 0x3f803f80
    s_mov_b32 s92, 0x9999999a
    s_mov_b32 s93, 0x3f599999           ; 1/640 (f64)
    s_mov_b32 s94, 0x3727c5ac           ; 1e-5
    s_lshl_b32 s59, s58, 3
    v_lshl_add_u32 v73, v5, 3, s59
    v_lshrrev_b32 v74, 1, v5
    v_lshlrev_b32 v74, 12, v74
    v_and_b32 v75, 1, v5
    v_lshl_add_u32 v74, v75, 3, v74
    s_lshl_b32 s59, s58, 1
    v_add_u32 v74, s59, v74
    """)
    for r in range(AC, AC + 8, 2):
        a(f"v_mov_b64 {v2(r)}, 0")
    for p in range(2):
        a(f"s_waitcnt vmcnt({nlater + 5 - 5 * p})")
        for i in range(20):
            x = RAW + 20 * p + i
            a(f"v_dot2c_f32_bf16 v{AC + 4 * p + (i & 1)}, v{x}, v72\nv_dot2c_f32_bf16 v{AC + 4 * p + 2 + (i & 1)}, v{x}, v{x}")
    a("s_nop 2")
    for c in range(4):
        a(f"v_cvt_f64_f32 {v2(D + 2 * c)}, v{AC + 2 * c}\nv_cvt_f64_f32 {v2(D + 8 + 2 * c)}, v{AC + 2 * c + 1}")
    for c in range(4):
        a(f"v_add_f64 {v2(D + 2 * c)}, {v2(D + 2 * c)}, {v2(D + 8 + 2 * c)}")
    for sh in (8, 4, 2, 1):
        for c in range(4):
            for h in range(2):
                a(f"v_mov_b32_dpp v{D + 8 + 2 * c + h}, v{D + 2 * c + h} row_ror:{sh} row_mask:0xf bank_mask:0xf")
        for c in range(4):
            a(f"v_add_f64 {v2(D + 2 * c)}, {v2(D + 2 * c)}, {v2(D + 8 + 2 * c)}")
    for p in range(2):
        m, v = D + 4 * p, D + 4 * p + 2
        a(f"""v_mul_f64 {v2(m)}, {v2(m)}, s[92:93]
        v_mul_f64 {v2(v)}, {v2(v)}, s[92:93]
        v_fma_f64 {v2(v)}, -{v2(m)}, {v2(m)}, {v2(v)}
        v_cvt_f32_f64 v76, {v2(m)}
        v_cvt_f32_f64 v77, {v2(v)}
        v_max_f32 v77, 0, v77""")
        round_bf16(a, 78, 76)
        round_bf16(a, 77, 77)
        a("v_add_f32 v77, s94, v77")
        round_bf16(a, 77, 77)
        a("v_sqrt_f32 v77, v77\ns_nop 0")
        round_bf16(a, 79, 77)
        a("v_rcp_f32 v80, v79\ns_nop 0\nv_mul_f32_e64 v81, -v78, v80")
        a(f"""
        v_cmp_eq_u32 vcc, 0, v6
        s_and_saveexec_b64 s[96:97], vcc
        s_mov_b32 s98, {WS_STATB + 32 * p}
        s_mov_b32 s99, {WS_STATA + 8192 * p}
        buffer_store_dwordx2 v[78:79], v73, {s4(S_WS)}, s98 offen sc0 sc1
        buffer_store_dwordx2 v[80:81], v74, {s4(S_WS)}, s99 offen sc0 sc1
        s_mov_b64 exec, -1
        """)


def k1_colsum_loads(a):
    a(f"""
    v_lshrrev_b32 v5, 3, v0
    v_and_b32 v6, 7, v0
    v_mul_u32_u24 v7, 3072, v5
    v_lshl_add_u32 v7, v6, 4, v7
    s_and_b32 s58, s{sXCD}, 1
    s_mul_i32 s58, s58, 30
    s_add_u32 s58, s58, s{sIDX}         ; u
    s_mul_i32 s59, s58, 43
    s_lshr_b32 s59, s59, 9              ; rc = u/12
    s_mul_i32 s60, s59, 12
    s_sub_u32 s60, s58, s60             ; cbl
    s_cmp_ge_u32 s60, 6
    s_cselect_b32 s{S_TMP}, s{S_WU}, s{S_WG}
    s_cselect_b32 s{S_TMP+1}, s{S_WU+1}, s{S_WG+1}
    s_cselect_b32 s96, 6, 0
    s_cselect_b32 s97, 24, 0
    s_mov_b32 s{S_TMP+2}, {640 * 3072}
    s_mov_b32 s{S_TMP+3}, 0x00020000
    s_sub_u32 s60, s60, s96
    s_lshr_b32 s96, s{sXCD}, 1
    s_mul_i32 s96, s96, 6
    s_add_u32 s60, s60, s96             ; n tile
    s_lshl_b32 s96, s60, 7
    s_mul_i32 s98, s59, {128 * 3072}
    s_add_u32 s96, s96, s98
    s_add_u32 s60, s60, s97
    """)
    for i in range(16):
        a(f"s_add_u32 s98, s96, {i * 8 * 3072}\nbuffer_load_dwordx4 {v4(8 + 4 * i)}, v7, {s4(S_TMP)}, s98 offen")


def k1_colsum(a, nlater):
    RAW = 8
    AC = 72
    a("v_mov_b32 v80, 0x00003f80\nv_mov_b32 v81, 0x3f800000")
    for r in range(AC, AC + 8, 2):
        a(f"v_mov_b64 {v2(r)}, 0")
    for i in range(16):
        if i % 4 == 0:
            a(f"s_waitcnt vmcnt({nlater + 12 - i})")
        for k in range(4):
            r = RAW + 4 * i + k
            a(f"v_dot2c_f32_bf16 v{AC + 2 * k}, v{r}, v80\nv_dot2c_f32_bf16 v{AC + 2 * k + 1}, v{r}, v81")
    a(f"""
    v_lshlrev_b32 v80, 5, v0
    v_add_u32 v80, {K1_SCR}, v80
    v_lshlrev_b32 v81, 2, v0
    v_add_u32 v82, {K1_SCR}, v81
    ds_write_b128 v80, {v4(AC)}
    ds_write_b128 v80, {v4(AC + 4)} offset:16
    """)
    for i in range(8):
        a(f"ds_read_b32 v{RAW + i}, v82 offset:{256 * i}")
    a("s_waitcnt lgkmcnt(0)")
    for i in range(1, 8):
        a(f"v_add_f32 v{RAW}, v{RAW}, v{RAW + i}")
    a(f"""
    s_mul_i32 s96, s59, {3072 * 4}
    s_lshl_b32 s97, s60, 8
    s_add_u32 s96, s96, s97
    s_add_u32 s96, s96, {WS_CS}
    buffer_store_dword v{RAW}, v81, {s4(S_WS)}, s96 offen sc0 sc1
    """)


KG_P = 8
KG_TILE = 60
KG_ACC = 16


def kgen_loads(a, sCH, sRND, D=KG_P):
    a(f"""
    s_lshl_b32 s96, s{sRND}, 7
    v_lshl_add_u32 v2, v0, 1, s96
    s_mul_i32 s96, s{sCH}, 384
    s_lshl_b32 s97, s{sCH}, 1
    v_mov_b32 v3, 0
    buffer_load_ushort v{D+4}, v3, {s4(S_DT)}, s97 offen
    buffer_load_ushort v{D}, v2, {s4(S_LA)}, s96 offen
    buffer_load_ushort v{D+1}, v2, {s4(S_AI)}, s96 offen
    buffer_load_ushort v{D+2}, v2, {s4(S_CR)}, s96 offen
    buffer_load_ushort v{D+3}, v2, {s4(S_CI)}, s96 offen
    """)


def kgen_valu(a):
    vLA, vAI, vCR, vCI, vDT = KG_P, KG_P + 1, KG_P + 2, KG_P + 3, KG_P + 4
    lr, th = 13, 14
    T = 16
    nxt = [24]

    def creg():
        r = nxt[0]
        nxt[0] += 2
        assert r + 1 < KG_TILE
        return (r, r + 1)

    def preg():
        r = nxt[0]
        nxt[0] += 1
        assert r < KG_TILE
        return r

    a("s_mov_b32 s88, 0x3fb8aa3b\ns_mov_b32 s89, 0x32a57060\ns_mov_b32 s90, 0x3f317218")

    def expbf(d, x, t):
        a(f"""v_mul_f32 v{t}, s88, v{x}
        v_fma_f32 v{t+1}, v{x}, s88, -v{t}
        v_exp_f32 v{t}, v{t}
        v_fma_f32 v{t+1}, v{x}, s89, v{t+1}
        v_mul_f32 v{t+1}, s90, v{t+1}
        v_fma_f32 v{t}, v{t}, v{t+1}, v{t}""")
        round_bf16(a, d, t)

    for r in range(5):
        a(f"v_lshlrev_b32 v{KG_P + r}, 16, v{KG_P + r}")
    a(f"""v_and_b32 v{T+2}, 0x7fffffff, v{vCR}
    v_and_b32 v{T+3}, 0x7fffffff, v{vCI}
    v_max_u32 v{T+2}, v{T+2}, v{T+3}""")
    expbf(vDT, vDT, T)
    expbf(vLA, vLA, T)
    a(f"""v_mul_f32 v{lr}, v{vLA}, v{vDT}
    v_mul_f32 v{th}, v{vAI}, v{vDT}
    v_mul_f32_e64 v{lr}, -v{lr}, s88
    v_mul_f32 v{th}, 0.15915494, v{th}""")
    wave_max_u32_to_sgpr(a, T + 2, 92, 93)
    a(f"""s_lshr_b32 s92, s92, 23
    s_max_u32 s92, s92, 1
    s_min_u32 s92, s92, 252
    s_sub_u32 s93, 253, s92
    s_lshl_b32 s93, s93, 23             ; sc
    s_add_u32 s92, s92, 2
    s_lshl_b32 s92, s92, 23             ; 2/sc
    v_mul_f32 v{vCR}, s93, v{vCR}
    v_mul_f32 v{vCI}, s93, v{vCI}
    v_mul_f32 v{vDT}, s92, v{vDT}""")

    def anchors(specs):
        ds = [creg() for _ in specs]
        for d, (e, cj) in zip(ds, specs):
            a(f"v_mul_f32 v{d[0]}, {f32(e)}, v{lr}\nv_mul_f32 v{d[1]}, {f32(e)}, v{th}")
        for d in ds:
            a(f"v_exp_f32 v{d[0]}, v{d[0]}\nv_fract_f32 v{d[1]}, v{d[1]}")
        for i, d in enumerate(ds):
            a(f"v_cos_f32 v{T + 2 * i}, v{d[1]}\nv_sin_f32 v{T + 2 * i + 1}, v{d[1]}")
        for i, (d, (e, cj)) in enumerate(zip(ds, specs)):
            a(f"v_mul_f32_e64 v{d[1]}, {'-' if cj else ''}v{d[0]}, v{T + 2 * i + 1}\nv_mul_f32 v{d[0]}, v{d[0]}, v{T + 2 * i}")
        return ds

    tsel = [0]

    def cmul(x, y, d=None):
        d = d or creg()
        t = T + 2 * (tsel[0] & 1)
        tsel[0] += 1
        a(f"""v_mul_f32 v{t}, v{x[1]}, v{y[1]}
        v_mul_f32 v{t+1}, v{x[0]}, v{y[1]}
        v_fma_f32 v{d[0]}, v{x[0]}, v{y[0]}, -v{t}
        v_fma_f32 v{d[1]}, v{x[1]}, v{y[0]}, v{t+1}""")
        return d

    def packm(x):
        d = preg()
        a(f"v_cvt_pk_f16_f32 v{d}, v{x[0]}, v{x[1]}")
        return d

    def packpair(x, y, dre, dim):
        a(f"v_cvt_pk_f16_f32 v{dre}, {x[0]}, {y[0]}\nv_cvt_pk_f16_f32 v{dim}, {x[1]}, {y[1]}")

    def V(x): return (f"v{x[0]}", f"v{x[1]}")

    def pmul(sre, sim, m, dre, dim):
        a(f"""v_pk_mul_f16 v{dre}, v{sre}, v{m} op_sel:[0,0] op_sel_hi:[1,0]
        v_pk_mul_f16 v{dim}, v{sre}, v{m} op_sel:[0,1] op_sel_hi:[1,1]
        v_pk_fma_f16 v{dre}, v{sim}, v{m}, v{dre} op_sel:[0,1,0] op_sel_hi:[1,1,1] neg_lo:[0,1,0] neg_hi:[0,1,0]
        v_pk_fma_f16 v{dim}, v{sim}, v{m}, v{dim} op_sel:[0,0,0] op_sel_hi:[1,0,1]""")

    def RE(t, i): return KG_TILE + 16 * t + i
    def IM(t, i): return KG_TILE + 16 * t + 8 + i

    mark = nxt[0]
    z8, z32 = anchors([(8.0, True), (32.0, True)])
    a("s_nop 0")
    z16 = cmul(z8, z8); z64 = cmul(z32, z32); z24 = cmul(z16, z8); z96 = cmul(z64, z32)
    packpair(("1.0", "0"), V(z8), RE(0, 0), IM(0, 0))
    packpair(V(z16), V(z24), RE(0, 1), IM(0, 1))
    ms = [packm(X) for X in (z32, z64, z96)]
    for i, m in enumerate(ms):
        for b in range(2):
            pmul(RE(0, b), IM(0, b), m, RE(0, 2 + 2 * i + b), IM(0, 2 + 2 * i + b))
    nxt[0] = mark
    z1, z128, z1024 = anchors([(1.0, False), (128.0, False), (1024.0, False)])
    c = [(vCR, vCI)]
    for i in range(7):
        c.append(cmul(c[-1], z1))
    m128 = packm(z128)
    for i in range(4):
        packpair(V(c[2 * i]), V(c[2 * i + 1]), RE(1, i), IM(1, i))
    for i in range(4):
        pmul(RE(1, i), IM(1, i), m128, RE(1, 4 + i), IM(1, 4 + i))
    p02 = creg(); p46 = creg(); p04 = creg()
    packpair(V(c[0]), V(c[2]), *p02); packpair(V(c[4]), V(c[6]), *p46); packpair(V(c[0]), V(c[4]), *p04)
    z256 = cmul(z128, z128, c[1]); b0 = cmul(c[0], z1024, c[7]); z384 = cmul(z256, z128, c[2]); z512 = cmul(z256, z256, c[3])
    b1 = cmul(b0, z128, z1); z640 = cmul(z512, z128, c[4]); z768 = cmul(z384, z384, c[5]); z896 = cmul(z768, z128, c[6])
    M = {k: packm(v) for k, v in (("256", z256), ("384", z384), ("512", z512), ("640", z640), ("768", z768), ("896", z896))}
    c2048 = cmul(b0, z1024, z256)
    for i, k in enumerate(("256", "384")):
        pmul(p02[0], p02[1], M[k], RE(2, 2 * i), IM(2, 2 * i))
        pmul(p46[0], p46[1], M[k], RE(2, 2 * i + 1), IM(2, 2 * i + 1))
    for i, k in enumerate(("512", "640", "768", "896")):
        pmul(p04[0], p04[1], M[k], RE(2, 4 + i), IM(2, 4 + i))
    packpair(V(b0), V(b1), RE(3, 0), IM(3, 0))
    for i, k in enumerate(("256", "512", "768")):
        pmul(RE(3, 0), IM(3, 0), M[k], RE(3, 1 + i), IM(3, 1 + i))
    packpair(V(c2048), ("0", "0"), RE(3, 4), IM(3, 4))
    a(f"v_mov_b32 v{RE(3, 5)}, 0\nv_mov_b32 v{IM(3, 5)}, 0\nv_mov_b64 {v2(RE(3, 6))}, 0\nv_mov_b64 {v2(IM(3, 6))}, 0")


def kgen_addr(a, sKB):
    T = 16
    a(f"""
    v_bfe_u32 v{T}, v0, 1, 2
    v_lshlrev_b32 v{T+1}, 6, v0
    v_add_u32 v{T+1}, s{sKB}, v{T+1}
    v_lshl_add_u32 v2, v{T}, 4, v{T+1}
    v_xor_b32 v3, 16, v2
    v_xor_b32 v4, 32, v2
    v_xor_b32 v5, 48, v2
    v_lshrrev_b32 v{T}, 4, v0                ; hq
    v_bfe_u32 v{T+1}, v0, 2, 2               ; r
    v_and_b32 v{T+2}, 3, v0                  ; c
    v_lshrrev_b32 v{T+3}, 1, v{T+1}
    v_lshl_add_u32 v{T+3}, v{T}, 1, v{T+3}
    v_lshlrev_b32 v6, 6, v{T+3}
    v_and_b32 v{T+1}, 1, v{T+1}
    v_lshrrev_b32 v{T+3}, 1, v{T+2}
    v_lshl_add_u32 v{T+1}, v{T+1}, 1, v{T+3}
    v_xor_b32 v{T+1}, v{T+1}, v{T}
    v_lshl_add_u32 v6, v{T+1}, 4, v6
    v_and_b32 v{T+2}, 1, v{T+2}
    v_lshl_add_u32 v6, v{T+2}, 3, v6
    v_add_u32 v6, s{sKB}, v6
    """)
    for r in range(KG_ACC, KG_ACC + 12, 2):
        a(f"v_mov_b64 {v2(r)}, 0")


def kgen_flush(a):
    lq = LQ(a)
    for t in range(4):
        for q in range(4):
            lq.issue(f"w{t}", f"ds_write_b128 v{2 + q}, {v4(KG_TILE + 16 * t + 4 * q)}")
        for k in range(4):
            for s in range(2):
                lq.issue(f"f{t}{k}", f"ds_read_b64_tr_b16 {v2(KG_TILE + 16 * t + 4 * k + 2 * s)}, v6 offset:{1024 * k + 512 * s}")
        if t >= 2:
            for k in range(4):
                lq.wait(f"f{t-1}{k}")
                a(f"v_mfma_f32_16x16x32_f16 {v4(KG_ACC + 4 * (t - 2))}, {v4(KG_TILE + 16 * (t - 1) + 4 * k)}, {v4(KG_TILE + 4 * k)}, {v4(KG_ACC + 4 * (t - 2))}")
    for k in range(4):
        lq.wait(f"f3{k}")
        a(f"v_mfma_f32_16x16x32_f16 {v4(KG_ACC + 8)}, {v4(KG_TILE + 48 + 4 * k)}, {v4(KG_TILE + 4 * k)}, {v4(KG_ACC + 8)}")
    a("s_nop 7")
    for r in range(KG_ACC, KG_ACC + 12):
        a(f"v_mul_f32 v{r}, v{r}, v{KG_P + 4}")


def kgen_final(a, sCH, sKB, sPB, store):
    from_lds = True
    KACC = KG_ACC
    P = 88
    T = 80
    a(f"v_lshlrev_b32 v{T}, 4, v0\nv_add_u32 v{T+1}, s{sKB}, v{T}\nv_add_u32 v{T+2}, s{sPB}, v{T}")
    for w in range(2):
        for t in range(3):
            a(f"ds_read_b128 {v4(P + 12 * w + 4 * t)}, v{T+2} offset:{4096 * w + 1024 * t}")
    a(f"v_mov_b32 v48, 0\nv_mov_b32 v49, 0\nv_mov_b32 v50, 0\nv_mov_b32 v51, 0")
    for i in range(3):
        a(f"ds_write_b128 v{T+1}, v[48:51] offset:{1024 * i}")
    a(f"s_mov_b64 exec, 0xffff\nds_write_b128 v{T+1}, v[48:51] offset:3072\ns_mov_b64 exec, -1")
    j, hq = T + 2, T + 3
    b0, b2 = 52, 53
    a1 = 54
    a(f"""
    v_and_b32 v{j}, 15, v0
    v_lshrrev_b32 v{hq}, 4, v0
    v_lshrrev_b32 v{T+4}, 1, v{hq}
    v_and_b32 v{T+5}, 1, v{hq}
    v_lshlrev_b32 v{T+6}, 7, v{T+4}
    v_lshl_add_u32 v{T+6}, v{T+5}, 2, v{T+6}
    v_lshl_add_u32 v{T+6}, v{j}, 3, v{T+6}
    v_sub_u32 v{T+6}, 285, v{T+6}
    v_lshl_add_u32 v{b0}, v{T+6}, 1, s{sKB}
    v_lshlrev_b32 v{T+6}, 6, v{T+5}                 ; 64*(hq&1)
    v_add_u32 v{T+6}, s{sKB}, v{T+6}
    v_lshl_add_u32 v{T+7}, v{j}, 2, v{T+6}
    v_lshl_add_u32 v{T+6}, v{j}, 1, v{T+6}
    v_cmp_gt_u32 vcc, 2, v{hq}
    """)
    for r in range(4):
        lo = (T1O if r & 1 else T1E) + 2 * (59 + (r >> 1))
        hi = (T2O + 60 if r & 1 else T2E + 58) + 32 * (r >> 1)
        a(f"v_add_u32 v60, {lo}, v{T+7}\nv_add_u32 v61, {hi}, v{T+6}\nv_cndmask_b32 v{a1 + r}, v61, v60, vcc")
    a(f"""
    s_add_u32 s96, s{sKB}, {T0E + 64}
    v_writelane_b32 v{a1}, s96, 0
    s_add_u32 s96, s{sKB}, {T0E + 60}
    v_writelane_b32 v{a1 + 1}, s96, 0
    s_add_u32 s96, s{sKB}, {T1E + 246}
    v_writelane_b32 v{a1}, s96, 32
    v_and_b32 v60, 1, v{j}
    v_mul_u32_u24 v60, {T3OE + 30 - (T3EE + 28)}, v60
    v_lshrrev_b32 v61, 1, v{j}
    v_lshl_add_u32 v61, v{hq}, 5, v61
    v_lshl_add_u32 v{b2}, v61, 1, v60
    s_add_u32 s96, s{sKB}, {T3EE + 28}
    v_add_u32 v{b2}, s96, v{b2}
    v_mov_b32 v62, s{sKB}
    s_waitcnt lgkmcnt(4)
    """)
    if from_lds:
        for r in range(12):
            a(f"v_add_f32 v{KACC + r}, v{KACC + r}, v{P + r}")
        for r in range(12):
            a(f"v_add_f32 v{KACC + r}, v{KACC + r}, v{P + 12 + r}")
    a(f"v_max3_f32 v63, abs(v{KACC}), abs(v{KACC+1}), abs(v{KACC+2})")
    for r in range(3, 11, 2):
        a(f"v_max3_f32 v63, v63, abs(v{KACC + r}), abs(v{KACC + r + 1})")
    a(f"v_max_f32_e64 v63, v63, abs(v{KACC + 11})")
    wave_max_u32_to_sgpr(a, 63, 92, 93)
    a(f"""s_lshr_b32 s92, s92, 23
    s_max_u32 s92, s92, 1
    s_min_u32 s92, s92, 252
    s_sub_u32 s93, 253, s92
    s_lshl_b32 s93, s93, 23             ; 1/sigma
    s_add_u32 s92, s92, 1
    s_lshl_b32 s92, s92, 23             ; sigma""")
    for r in range(12):
        a(f"v_mul_f32 v{KACC + r}, s93, v{KACC + r}")
    H = 64
    for i in range(6):
        a(f"v_cvt_pk_f16_f32 v{H + i}, v{KACC + 2 * i}, v{KACC + 2 * i + 1}")

    def w16(addr, r, tile, off):
        reg = H + 2 * tile + (r >> 1)
        a(f"ds_write_b16{'_d16_hi' if r & 1 else ''} v{addr}, v{reg} offset:{off}")
    for r in range(4):
        w16(b0, r, 0, T0E + 2 * (3 - r))
        w16(b0, r, 0, T0O - 2 + 2 * (3 - r))
        w16(a1 + r, r, 1, 0)
    a("s_mov_b32 exec_hi, 0")
    for r in range(1, 4):
        w16(b2, r, 2, 16 * r)
        w16(b2, r, 2, 16 * r + 158)
    a("s_mov_b32 exec_lo, 0xfffffffe\ns_mov_b32 exec_hi, 1")
    w16(b2, 0, 2, 0)
    w16(b2, 0, 2, 158)
    a("s_mov_b64 exec, 1")
    w16(62, 0, 1, T0E + 62); w16(62, 0, 1, T0O + 62); w16(62, 0, 1, T0O + 60); w16(62, 1, 1, T0O + 58)
    w16(62, 0, 2, TK1024)
    a(f"v_mov_b32 v63, s92\nds_write_b32 v62, v63 offset:{TSIG}")
    a("s_mov_b32 exec_lo, 0\ns_mov_b32 exec_hi, 1")
    w16(62, 0, 1, T1O + 246)
    a("s_mov_b64 exec, -1")
    if True:
        Lsk = store()
        for i in range(4):
            a(f"ds_read_b128 {v4(P + 4 * i)}, v{T+1} offset:{1024 * i}")
        a(f"s_mul_i32 s96, s{sCH}, {KT_BYTES}\ns_add_u32 s96, s96, {WS_KT}")
        for i in range(3):
            a(f"s_waitcnt lgkmcnt({3 - i})\nbuffer_store_dwordx4 {v4(P + 4 * i)}, v{T}, {s4(S_WS)}, s96 offen offset:{1024 * i}")
        a(f"s_waitcnt lgkmcnt(0)\ns_mov_b64 exec, 0xffff\nbuffer_store_dwordx4 {v4(P + 12)}, v{T}, {s4(S_WS)}, s96 offen offset:3072\ns_mov_b64 exec, -1")
        a.label(Lsk)


def kernel1(a, parts):
    a.raw(".globl k1_kernel\n.p2align 8\n.type k1_kernel,@function\nk1_kernel:")
    a(f"""
    s_cmp_ge_u32 s2, 256
    s_cbranch_scc1 L_k1_end
    s_load_dwordx16 s[64:79], s[0:1], 0
    s_load_dwordx8 s[80:87], s[0:1], 64
    s_load_dwordx4 s[88:91], s[0:1], 96
    v_lshrrev_b32 v1, 6, v0
    v_and_b32 v0, 63, v0
    s_and_b32 s{sXCD}, s2, 7
    v_readfirstlane_b32 s{sWAVE}, v1
    s_lshr_b32 s{sIDX}, s2, 3
    s_mul_i32 s58, s{sIDX}, 52
    s_lshr_b32 s58, s58, 8              ; q = idx/5
    s_mul_i32 s59, s58, 5
    s_sub_u32 s59, s{sIDX}, s59         ; r
    s_and_b32 s60, s{sXCD}, 1
    s_mul_i32 s60, s60, 5
    s_add_u32 s{sMI}, s60, s59
    s_lshr_b32 s60, s{sXCD}, 1
    s_mul_i32 s60, s60, 6
    s_add_u32 s{sNI}, s60, s58
    s_mul_i32 s{sROW0}, s{sMI}, 208
    s_min_u32 s{sROW0}, s{sROW0}, 1840
    s_mul_i32 s{sGI}, s{sXCD}, 30
    s_add_u32 s{sGI}, s{sGI}, s{sIDX}
    s_add_u32 s58, s{sWAVE}, 2
    s_sub_u32 s59, s{sWAVE}, 9
    s_cmp_lt_u32 s{sWAVE}, 9
    s_cselect_b32 s58, s58, s59
    s_cmp_lt_u32 s{sWAVE}, 11
    s_cselect_b32 s{sWAVE}, s58, s{sWAVE}
    """)
    a("s_waitcnt lgkmcnt(0)")
    srd(a, S_X, 64, 2048 * 1280)
    srd(a, S_WG, 80, 640 * 3072)
    srd(a, S_WU, 82, 640 * 3072)
    srd(a, S_WS, 90, 0x4000000 if PROF else WS_END + 4096)
    srd(a, S_DBG, 88, 256)
    srd(a, S_WD, 84, 1536 * 1280)
    if PROF:
        a(f"v_mov_b32 v{vSTAMP}, 0")
    stamp(a, 0, True)
    stamp(a, 1)
    if "diag" in EXP:
        Ld = a.newlabel("diag")
        a(f"""s_cmp_lg_u32 s{sWAVE}, 8
        s_cbranch_scc1 {Ld}
        s_memrealtime s[100:101]
        s_lshl_b32 s98, s2, 2
        s_add_u32 s98, s98, {WS_END}
        v_mov_b32 v5, 0
        s_waitcnt lgkmcnt(0)
        v_mov_b32 v6, s100
        s_mov_b64 exec, 1
        buffer_store_dword v6, v5, {s4(S_WS)}, s98 offen
        s_mov_b64 exec, -1""")
        a.label(Ld)
    srd(a, S_LA, 66, 640 * 384)
    srd(a, S_AI, 68, 640 * 384)
    srd(a, S_CR, 70, 640 * 384)
    srd(a, S_CI, 72, 640 * 384)
    srd(a, S_DT, 74, 1280)
    a("s_mov_b32 s96, s76\ns_mov_b32 s97, s77")
    srd(a, S_OUT, 86, 2048 * 1280)
    srd(a, S_DSK, 96, 1280)
    a(f"""
    s_lshl_b32 s{sMI2}, s{sXCD}, 2
    s_and_b32 s96, s{sIDX}, 3
    s_add_u32 s{sMI2}, s{sMI2}, s96
    s_lshr_b32 s{sNI2}, s{sIDX}, 2
    """)
    import gen2
    sCH, sRND, sKB, sGRP, sGP = 65, 66, 67, 68, 69
    a(f"""
    s_lshl_b32 s{sGP}, s{sXCD}, 5
    s_add_u32 s{sGP}, s{sGP}, s{sIDX}          ; g'
    s_cmp_ge_u32 s{sWAVE}, 2
    s_cbranch_scc1 L_k1_w
    """)
    k1_loader(a, parts)

    def chan(sd, sg):
        a(f"""s_lshl_b32 s{sd}, s{sGP}, 1
        s_add_u32 s{sd}, s{sd}, s{sg}
        s_lshr_b32 s96, s{sGP}, 1
        s_add_u32 s96, s96, 512
        s_cmp_eq_u32 s{sg}, 2
        s_cselect_b32 s{sd}, s96, s{sd}""")

    a.label("L_k1_w")
    a(f"""
    s_setprio 2
    s_cmp_ge_u32 s{sWAVE}, 11
    s_cbranch_scc1 L_k1_side
    ; K-gen round rho = w-2 : grp = rho/3, rnd = rho%3 ; grp 2 only in even g'
    s_sub_u32 s{sRND}, s{sWAVE}, 2
    s_mul_i32 s{sGRP}, s{sRND}, 86
    s_lshr_b32 s{sGRP}, s{sGRP}, 8
    s_mul_i32 s96, s{sGRP}, 3
    s_sub_u32 s{sRND}, s{sRND}, s96
    s_and_b32 s96, s{sGP}, 1
    s_lshl_b32 s96, s96, 1
    s_and_b32 s96, s96, s{sGRP}
    s_cmp_lg_u32 s96, 0
    s_cbranch_scc1 L_k1_idle
    s_sub_u32 s{sKB}, s{sWAVE}, 2
    s_lshl_b32 s{sKB}, s{sKB}, 12
    s_add_u32 s{sKB}, s{sKB}, {2 * SLOT}
    s_add_u32 s70, s{sKB}, 4096
    s_mul_i32 s71, s{sGRP}, {TBL}
    s_add_u32 s71, s71, {K1_KG}
    """)
    chan(sCH, sGRP)
    kgen_loads(a, sCH, sRND)
    a("s_setprio 0\ns_waitcnt vmcnt(0)")
    stamp(a, 8)
    kgen_valu(a)
    kgen_addr(a, sKB)
    stamp(a, 9)
    kgen_flush(a)
    stamp(a, 10)
    Lf = a.newlabel("kfin")
    a(f"s_cmp_eq_u32 s{sRND}, 0\ns_cbranch_scc1 {Lf}\nv_lshlrev_b32 v5, 4, v0\nv_add_u32 v5, s{sKB}, v5")
    for t in range(3):
        a(f"ds_write_b128 v5, {v4(KG_ACC + 4 * t)} offset:{1024 * t}")
    a("s_waitcnt lgkmcnt(0)")
    a.label("L_k1_idle")
    a("s_barrier\ns_branch L_k1_pdone")
    a.label(Lf)
    a("s_barrier")

    def store():
        L = a.newlabel("nost")
        a(f"s_cmp_lg_u32 s{sGRP}, 2\ns_cbranch_scc1 {L}")
        return L
    kgen_final(a, sCH, 71, 70, store)
    stamp(a, 11)
    a("s_branch L_k1_pdone")

    a.label("L_k1_side")
    a(f"""
    s_cmp_eq_u32 s{sWAVE}, 11
    s_cbranch_scc1 L_k1_xs
    s_cmp_eq_u32 s{sWAVE}, 12
    s_cbranch_scc1 L_k1_xc
    s_cmp_lt_u32 s{sWAVE}, 15
    s_cbranch_scc1 L_k1_xu
    v_mov_b32 v3, {K1_CTL}
    v_mov_b64 v[4:5], 0
    v_mov_b64 v[6:7], 0
    s_mov_b64 exec, 1
    ds_write_b128 v3, v[4:7]
    ds_write_b128 v3, v[4:7] offset:16
    ds_write_b128 v3, v[4:7] offset:32
    s_lshl_b32 s96, s{sGP}, 2
    s_add_u32 s96, s96, {WS_FY}
    buffer_store_dword v4, v4, {s4(S_WS)}, s96 offen sc0 sc1
    s_lshl_b32 s96, s{sMI}, 7
    s_lshl_b32 s97, s{sNI}, 2
    s_add_u32 s96, s96, s97
    s_add_u32 s96, s96, {WS_FH}
    s_cmp_ge_u32 s{sIDX}, 30
    s_cselect_b32 s96, {WS_FH + 15 * 128}, s96
    buffer_store_dword v4, v4, {s4(S_WS)}, s96 offen sc0 sc1
    s_mov_b64 exec, -1
    s_branch L_k1_idle
    """)
    a.label("L_k1_xs")
    k1_stats_loads(a)
    a("s_barrier")
    k1_stats(a, 0)
    stamp(a, 8)
    a("s_branch L_k1_x")
    a.label("L_k1_xc")
    a(f"s_cmp_ge_u32 s{sIDX}, 30\ns_cbranch_scc1 L_k1_idle")
    k1_colsum_loads(a)
    a("s_barrier")
    k1_colsum(a, 0)
    stamp(a, 8)
    a("s_branch L_k1_x")
    a.label("L_k1_xu")
    a(f"s_sub_u32 s{gen2.sSUB}, s{sWAVE}, 13\ns_mov_b32 s{gen2.sUB}, {K1_STA}")
    gen2.k1_unit_pre(a)
    a("s_barrier")
    gen2.k1_unit(a)
    stamp(a, 8)
    a("s_branch L_k1_x")
    a.label("L_k1_pdone")
    a(f"""
    s_cmp_ge_u32 s{sWAVE}, 10
    s_cbranch_scc1 L_k1_x
    s_cmp_ge_u32 s{sIDX}, 30
    s_cbranch_scc1 L_k1_gsp
    s_cmp_ge_u32 s{sWAVE}, 6
    s_cbranch_scc1 L_k1_g2
    s_cmp_ge_u32 s{sWAVE}, 4
    s_cbranch_scc1 L_k1_g1
    """)
    for v in range(3):
        a.label(f"L_k1_g{v}")
        k1_gemm(a, v)
    a.label("L_k1_gsp")
    a(f"s_waitcnt vmcnt(0) lgkmcnt(0)")
    a("s_barrier\n" * 10)
    a("s_branch L_k1_p2")
    a.label("L_k1_hsig")
    Lh = a.newlabel("hs")
    a(f"""s_waitcnt vmcnt(0)
    v_mov_b32 v3, {K1_CTL}
    v_mov_b32 v4, 1
    v_mov_b32 v5, 0
    s_mov_b64 exec, 1
    ds_add_rtn_u32 v6, v3, v4 offset:16
    s_waitcnt lgkmcnt(0)
    v_readfirstlane_b32 s96, v6
    s_cmp_lg_u32 s96, 7
    s_cbranch_scc1 {Lh}
    s_lshl_b32 s96, s{sMI}, 7
    s_lshl_b32 s97, s{sNI}, 2
    s_add_u32 s96, s96, s97
    s_add_u32 s96, s96, {WS_FH}
    buffer_store_dword v4, v5, {s4(S_WS)}, s96 offen sc0 sc1""")
    a.label(Lh)
    a("s_mov_b64 exec, -1")
    stamp(a, 12)
    a.label("L_k1_p2")
    a(f"s_cmp_ge_u32 s{sWAVE}, 6\ns_cbranch_scc1 L_k1_p2b")
    gen2.p2_gemm(a)
    a.label("L_k1_p2b")
    gen2.p2_base(a)

    a.label("L_k1_x")
    a(f"""
    s_setprio 0
    s_waitcnt lgkmcnt(0)
    s_barrier                           ; B_init
    """)
    a.label("L_k1_x1")
    a(f"""
    s_setprio 0
    s_barrier                           ; B_0
    s_waitcnt vmcnt(0)
    s_barrier
    s_cmp_lg_u32 s{sWAVE}, 15
    s_cbranch_scc1 L_k1_x2
    s_and_b32 s96, s2, 63
    s_lshl_b32 s96, s96, 2
    v_mov_b32 v5, s96
    v_mov_b32 v6, 1
    s_mov_b64 exec, 1
    buffer_atomic_add v6, v5, {s4(S_DBG)}, 0 offen sc1
    s_endpgm
    """)
    a.label("L_k1_x2")
    a(f"""
    s_sub_u32 s{sGRP}, s{sWAVE}, 11
    s_min_u32 s{sGRP}, s{sGRP}, 4       ; logical 11,12,13 -> 0,1,2 ; 14 -> 3 ; 10 -> 4
    s_cmp_ge_u32 s{sGRP}, 3
    s_cselect_b32 s59, 1, 0
    s_cselect_b32 s96, 3, 0
    s_mov_b32 s70, s59
    s_sub_u32 s{sGRP}, s{sGRP}, s96
    s_and_b32 s97, s{sGP}, 1
    s_mul_i32 s61, s{sGRP}, {gen2.C_SZ}
    s_add_u32 s61, s61, {2 * SLOT}
    s_cmp_eq_u32 s{sGRP}, 2
    s_cselect_b32 s59, s97, s59         ; half
    s_cselect_b32 s61, {2 * SLOT - gen2.C_SZ}, s61      ; region
    s_mul_i32 s60, s{sGRP}, {TBL}
    s_add_u32 s60, s60, {K1_KG}         ; tables
    s_mov_b32 s62, {K1_STA}
    """)
    chan(58, sGRP)
    sliced(a, lambda b: gen2.conv_setup(b, 61, 60, 58), 4)
    a("s_barrier")
    Lnp = a.newlabel("noprep"); Lnt = a.newlabel("notab")
    a(f"""s_lshl_b32 s96, s{sGRP}, 2
    s_add_u32 s96, s96, {K1_CTL}
    v_mov_b32 v3, s96
    v_mov_b32 v4, 1
    s_cmp_lg_u32 s70, 0
    s_cbranch_scc1 {Lnp}""")
    gen2.conv_xload(a, 58, 8)
    a(f"""s_and_b32 s96, s{sGP}, 1
    s_lshl_b32 s96, s96, 1
    s_and_b32 s96, s96, s{sGRP}
    s_cmp_eq_u32 s96, 0
    s_cbranch_scc1 {Lnt}
    s_mov_b32 m0, s60
    s_mul_i32 s96, s58, {KT_BYTES}
    s_add_u32 s96, s96, {WS_KT}""")
    for i in range(3):
        a(f"buffer_load_dwordx4 v2, {s4(S_WS)}, s96 offen offset:{1024 * i} sc0 sc1 lds")
    a(f"s_mov_b64 exec, 0xffff\nbuffer_load_dwordx4 v2, {s4(S_WS)}, s96 offen offset:3072 sc0 sc1 lds\ns_mov_b64 exec, -1")
    a.label(Lnt)
    Lpl = a.newlabel("pl")
    a(f"s_barrier\ns_barrier\ns_setprio {PREP_PRIO}\nv_mov_b32 v5, {K1_CTL}")
    a.label(Lpl)
    a(f"ds_read_b32 v7, v5 offset:12\ns_sleep 1\ns_waitcnt vmcnt(0) lgkmcnt(0)\nv_readfirstlane_b32 s96, v7\ns_cmp_ge_u32 s96, 1\ns_cbranch_scc0 {Lpl}")
    stamp(a, 2)
    gen2.conv_prep2(a, 61, 62)
    a("ds_write_b32 v3, v4\ns_setprio 0")
    stamp(a, 4)
    a("s_branch L_k1_cgo")
    a.label(Lnp)
    a("s_barrier\ns_barrier")
    Lw2 = a.newlabel("wprep")
    a.label(Lw2)
    a(f"ds_read_b32 v7, v3\ns_sleep 1\ns_waitcnt lgkmcnt(0)\nv_readfirstlane_b32 s96, v7\ns_cmp_ge_u32 s96, 1\ns_cbranch_scc0 {Lw2}")
    a.label("L_k1_cgo")
    a("s_setprio 1")
    stamp(a, 5)
    gen2.conv_run(a, 59)
    stamp(a, 12)
    Ly = a.newlabel("ys")
    a(f"""v_mov_b32 v3, {K1_CTL}
    s_mov_b64 exec, 1
    ds_add_u32 v3, v4 offset:32
    s_mov_b64 exec, -1
    s_barrier
    s_waitcnt vmcnt(0)
    v_mov_b32 v3, {K1_CTL}
    v_mov_b32 v5, 0
    s_mov_b64 exec, 1
    ds_add_rtn_u32 v6, v3, v4 offset:20
    s_waitcnt lgkmcnt(0)
    v_readfirstlane_b32 s96, v6
    s_cmp_lg_u32 s96, 4
    s_cbranch_scc1 {Ly}
    s_lshl_b32 s96, s{sGP}, 2
    s_add_u32 s96, s96, {WS_FY}
    buffer_store_dword v4, v5, {s4(S_WS)}, s96 offen sc0 sc1""")
    a.label(Ly)
    a("s_mov_b64 exec, -1")
    stamp_end(a, 0, S_WS, sWAVE)
    a.label("L_k1_end")
    a("s_endpgm")


def descriptor(name, vgpr, sgpr=102):
    acc = (vgpr + 3) // 4 * 4
    return f""".amdhsa_kernel {name}
  .amdhsa_next_free_vgpr {vgpr}
  .amdhsa_next_free_sgpr {sgpr}
  .amdhsa_accum_offset {acc}
  .amdhsa_group_segment_fixed_size 0
  .amdhsa_kernarg_size 112
  .amdhsa_user_sgpr_count 2
  .amdhsa_user_sgpr_kernarg_segment_ptr 1
  .amdhsa_system_sgpr_workgroup_id_x 1
.end_amdhsa_kernel
"""


HEADER = open("cdna_kernels/" + NAME + ".s.ref").read().split("; Override launch geometry")[0]


def build():
    a = Asm()
    kernel1(a, {})
    import re
    a.L = [re.sub(r"(buffer_store_dwordx[24] .* s\[20:23\], .* offen(?: offset:\d+)?)$", r"\1 sc1", l) for l in a.L]
    out = HEADER
    out += f"; @launch kernel=k1_kernel grid=(256,1,1) block=(1024,1,1) lds={K1_LDS}\n"
    desc = descriptor("k1_kernel", 128)
    out += '.amdgcn_target "amdgcn-amd-amdhsa--gfx950"\n.text\n' + a.text()
    out += '.section .rodata,"a"\n.p2align 6\n' + desc
    return out


if __name__ == "__main__":
    sys.modules["gen"] = sys.modules["__main__"]
    path = sys.argv[1] if len(sys.argv) > 1 else "k.s"
    open(path, "w").write(build())
    print("wrote", path)
```

```python
from gen import *

USCR = 2 * SLOT
sSUB = 94
sU0, sU1, sU2, sUB = 61, 62, 63, 95
vUA = 100


def k1_unit_pre(a):
    Lw = a.newlabel("uwd"); Le = a.newlabel("upe")
    a(f"""
    s_cmp_ge_u32 s{sIDX}, 20
    s_cselect_b32 s96, 12, 9
    s_lshl_b32 s96, s96, 10
    s_mul_i32 s96, s96, s{sSUB}
    s_add_u32 s{sUB}, s{sUB}, s96
    v_lshrrev_b32 v{vUA}, 3, v0
    v_and_b32 v{vUA+1}, 7, v0
    v_mul_u32_u24 v{vUA+2}, 1280, v{vUA}
    v_lshl_add_u32 v{vUA+2}, v{vUA+1}, 4, v{vUA+2}
    s_cmp_ge_u32 s{sIDX}, 20
    s_cbranch_scc1 {Lw}
    ; ---- x transpose unit: v = xn*20+idx ; rb = 8xm + v/10 ; cb = v%10
    s_lshr_b32 s96, s{sXCD}, 1
    s_mul_i32 s96, s96, 20
    s_add_u32 s96, s96, s{sIDX}
    s_mul_i32 s97, s96, 103
    s_lshr_b32 s97, s97, 10              ; v/10
    s_mul_i32 s98, s97, 10
    s_sub_u32 s{sU1}, s96, s98           ; cb
    s_and_b32 s96, s{sXCD}, 1
    s_lshl_b32 s96, s96, 3
    s_add_u32 s97, s97, s96              ; rb
    s_lshl_b32 s97, s97, 1
    s_add_u32 s97, s97, s{sSUB}
    s_lshl_b32 s{sU0}, s97, 6
    s_mul_i32 s96, s{sU0}, 1280
    s_lshl_b32 s97, s{sU1}, 7
    s_add_u32 s96, s96, s97
    """)
    for p in range(8):
        a(f"s_add_u32 m0, s{sUB}, {1024 * p}\ns_add_u32 s97, s96, {p * 8 * 1280}\nbuffer_load_dwordx4 v{vUA+2}, {s4(S_X)}, s97 offen lds")
    a(f"s_branch {Le}")
    a.label(Lw)
    a(f"""
    s_mul_i32 s96, s{sXCD}, 12
    s_add_u32 s96, s96, s{sIDX}
    s_sub_u32 s96, s96, 20
    s_lshr_b32 s{sU0}, s96, 1            ; kappa
    s_and_b32 s96, s96, 1
    s_mul_i32 s96, s96, 5
    s_mul_i32 s97, s{sSUB}, 3
    s_add_u32 s{sU1}, s96, s97
    s_mul_i32 s96, s{sU0}, {32 * 1280}
    s_lshl_b32 s97, s{sU1}, 7
    s_add_u32 s96, s96, s97
    """)
    for k in range(3):
        if k == 2:
            a(f"s_cmp_eq_u32 s{sSUB}, 1\ns_cbranch_scc1 {Le}")
        for p in range(4):
            a(f"s_add_u32 m0, s{sUB}, {4096 * k + 1024 * p}\ns_add_u32 s97, s96, {p * 8 * 1280 + 128 * k}\nbuffer_load_dwordx4 v{vUA+2}, {s4(S_WD)}, s97 offen lds")
    a.label(Le)


def k1_unit(a):
    Lw = a.newlabel("uwd"); Le = a.newlabel("uend")
    R = 8
    a(f"""
    v_lshrrev_b32 v{vUA+3}, 2, v0
    v_and_b32 v{vUA+4}, 3, v0
    v_lshlrev_b32 v{vUA+3}, 7, v{vUA+3}
    v_lshl_add_u32 v{vUA+3}, v{vUA+4}, 3, v{vUA+3}
    v_add_u32 v{vUA+3}, s{sUB}, v{vUA+3}
    s_waitcnt vmcnt(0)
    s_cmp_ge_u32 s{sIDX}, 20
    s_cbranch_scc1 {Lw}
    v_and_b32 v{vUA+4}, 15, v0
    v_lshrrev_b32 v{vUA+5}, 4, v0
    v_mul_u32_u24 v{vUA+4}, 144, v{vUA+4}
    v_lshl_add_u32 v{vUA+4}, v{vUA+5}, 3, v{vUA+4}
    s_mov_b32 s96, s{sUB}
    v_add_u32 v{vUA+4}, s96, v{vUA+4}
    v_mul_u32_u24 v{vUA+5}, 144, v{vUA}
    v_lshl_add_u32 v{vUA+5}, v{vUA+1}, 4, v{vUA+5}
    v_add_u32 v{vUA+5}, s96, v{vUA+5}
    v_lshlrev_b32 v{vUA+6}, 12, v{vUA}
    v_lshl_add_u32 v{vUA+6}, v{vUA+1}, 4, v{vUA+6}
    """)
    lq = LQ(a)
    for j in range(4):
        for g in range(4):
            i = 4 * j + g
            lq.issue(f"t{i}", f"ds_read_b64_tr_b16 {v2(R + 2 * i)}, v{vUA+3} offset:{g * 2048 + 32 * j}")
    for k in range(16):
        lq.wait(f"t{k}")
        lq.issue("w", f"ds_write_b64 v{vUA+4}, {v2(R + 2 * k)} offset:{(k >> 2) * 16 * 144 + 32 * (k & 3)}")
    O = 48
    for i in range(8):
        lq.issue(f"o{i}", f"ds_read_b128 {v4(O + 4 * i)}, v{vUA+5} offset:{i * 8 * 144}")
    a(f"s_lshl_b32 s96, s{sU1}, 18\ns_lshl_b32 s97, s{sU0}, 1\ns_add_u32 s96, s96, s97\ns_add_u32 s96, s96, {WS_XT}")
    for i in range(8):
        lq.wait(f"o{i}")
        a(f"s_add_u32 s97, s96, {i * 8 * 4096}\nbuffer_store_dwordx4 {v4(O + 4 * i)}, v{vUA+6}, {s4(S_WS)}, s97 offen")
    a(f"s_branch {Le}")
    a.label(Lw)
    a(f"v_lshlrev_b32 v{vUA+6}, 4, v0\ns_mul_i32 s{sU2}, s{sU0}, 5120\ns_add_u32 s{sU2}, s{sU2}, {WS_WD}")
    for k in range(3):
        if k == 2:
            a(f"s_cmp_eq_u32 s{sSUB}, 1\ns_cbranch_scc1 {Le}")
        lq = LQ(a)
        for j in range(4):
            for s in range(2):
                lq.issue(f"t{j}", f"ds_read_b64_tr_b16 {v2(R + 16 * k + 4 * j + 2 * s)}, v{vUA+3} offset:{4096 * k + 2048 * s + 32 * j}")
        for j in range(4):
            a(f"""s_lshl_b32 s96, s{sU1}, 2
            s_add_u32 s96, s96, {4 * k + j}
            s_mul_i32 s97, s96, 52
            s_lshr_b32 s97, s97, 8
            s_mul_i32 s98, s97, 5
            s_sub_u32 s96, s96, s98
            s_mul_i32 s97, s97, {48 * 5120}
            s_lshl_b32 s96, s96, 10
            s_add_u32 s96, s96, s97
            s_add_u32 s96, s96, s{sU2}""")
            lq.wait(f"t{j}")
            a(f"buffer_store_dwordx4 {v4(R + 16 * k + 4 * j)}, v{vUA+6}, {s4(S_WS)}, s96 offen")
    a.label(Le)


C_U = 640
C_U2 = C_U + 4096 + 64 + 64
C_B3 = C_U2 + 3584 + 64
C_B5 = C_B3 + 3584 + 64 + 64
C_B7 = C_B5 + 3072 + 64
C_B9 = C_B7 + 2048 + 64 + 80
C_SZ = C_B9 + 2048

NBLK1 = [0, 4, 8, 8, 8, 8, 8, 8]
NBLK2 = [0, 0, 2, 4, 6, 6, 6, 6]
NBLK3 = [0, 0, 0, 0, 1, 2, 3, 4]


def conv_mfma(a, tiles, regs):
    ACC, KF, DF = regs["ACC"], regs["KF"], regs["DF"]
    ND = regs["ND"]
    bU, bK0, bD, bK, PF = regs["bU"], regs["bK0"], regs["bD"], regs["bK"], regs["PF"]
    lq = LQ(a)

    def acc(t): return ACC + 4 * (t - tiles[0])

    def kload(seg, b, bank):
        r = KF + 36 * bank + 4 * b
        tag = f"K{seg}_{b}"
        if seg == 0:
            o = 16 * (8 - b)
            lq.issue(tag, f"ds_read2_b32 {v2(r)}, v{bK0} offset0:{o} offset1:{o + 1}")
            lq.issue(tag, f"ds_read2_b32 {v2(r + 2)}, v{bK0} offset0:{o + 2} offset1:{o + 3}")
        elif seg == 1:
            lq.issue(tag, f"ds_read_b64 {v2(r)}, v{bK[1]} offset:{32 * b}")
            lq.issue(tag, f"ds_read_b64 {v2(r + 2)}, v{bK[1]} offset:{32 * b + 8}")
        else:
            o = 8 * b
            lq.issue(tag, f"ds_read2_b32 {v2(r)}, v{bK[seg]} offset0:{o} offset1:{o + 1}")
            lq.issue(tag, f"ds_read2_b32 {v2(r + 2)}, v{bK[seg]} offset0:{o + 2} offset1:{o + 3}")

    work = []
    banks = {0: 0, 1: 1, 2: 0, 3: 1}
    for t in tiles:
        for k in range(9):
            if t == 0 and k == 8:
                continue
            work.append((("u", 512 * (t + 1) - 64 * k), [(t, 0, k)]))
    for seg, D, nb in ((1, 4, NBLK1), (2, 8, NBLK2), (3, 16, NBLK3)):
        es = {}
        for t in tiles:
            for b in range(nb[t]):
                es.setdefault((16 // D) * t - b, []).append((t, seg, b))
        for e in sorted(es):
            work.append((("tr", seg, D, e), es[e]))
    for t in tiles:
        if t >= 3:
            work.append((("u", 512 * (t + 1) - 2032), [(t, "p", 0)]))
    need = {s: sorted({b for _, us in work for (_, sg, b) in us if sg == s}) for s in range(4)}
    first = {}
    last = {}
    for i, (_, us) in enumerate(work):
        for (_, sg, b) in us:
            first.setdefault(sg, i)
            last[sg] = i
    kplan = {}
    for s in (1, 2, 3):
        if not need[s]:
            continue
        start = 0 if s == 1 else last[s - 2] + 1
        span = max(1, first[s] - start - 2)
        for j, b in enumerate(need[s]):
            kplan.setdefault(min(start + (j * span) // len(need[s]), first[s] - 1) if first[s] > start else start, []).append((s, b))

    def dload(i):
        spec = work[i][0]
        r = DF + 4 * (i % ND)
        if spec[0] == "u":
            lq.issue(f"D{i}", f"ds_read_b128 {v4(r)}, v{bU} offset:{spec[1]}")
        else:
            _, seg, D, e = spec
            for s in range(2):
                lq.issue(f"D{i}", f"ds_read_b64_tr_b16 {v2(r + 2 * s)}, v{bD[seg]} offset:{32 * D * e + (8 * D if s == 0 else 0)}")

    LA = ND - 1
    kload(0, need[0][0], 0)
    dload(0)
    for b in need[0][1:3]:
        kload(0, b, 0)
    for i in range(1, LA):
        dload(i)
    rest0 = need[0][3:]
    for i, (spec, us) in enumerate(work):
        for (s, b) in kplan.get(i, []):
            kload(s, b, banks[s])
        if rest0:
            kload(0, rest0.pop(0), 0)
        if i + LA < len(work):
            dload(i + LA)
        d = DF + 4 * (i % ND)
        for (t, sg, b) in us:
            if sg == "p":
                lq.wait(f"D{i}")
                a(f"v_mfma_f32_16x16x32_f16 {v4(acc(t))}, {v4(PF)}, {v4(d)}, {v4(acc(t))}")
                continue
            k = KF + 36 * banks[sg] + 4 * b
            lq.wait(f"D{i}", f"K{sg}_{b}")
            if sg == 0:
                a(f"v_mfma_f32_16x16x32_f16 {v4(acc(t))}, {v4(k)}, {v4(d)}, {v4(acc(t))}")
            else:
                a(f"v_mfma_f32_16x16x32_f16 {v4(acc(t))}, {v4(d)}, {v4(k)}, {v4(acc(t))}")


def conv_xload(a, sCH, X=100):
    a(f"v_lshlrev_b32 v2, 4, v0\ns_lshl_b32 s96, s{sCH}, 12\ns_add_u32 s96, s96, {WS_XT}")
    for r in range(4):
        a(f"buffer_load_dwordx4 {v4(X + 4 * r)}, v2, {s4(S_WS)}, s96 offen offset:{1024 * r} sc0 sc1")


PREP_CUTS = [int(x) for x in os.environ.get("PREP_CUTS", "0,0,100").split(",")]


def conv_prep2(a, sRB, sSTA):
    U, W, B3, B5, B7, B9, SS = 8, 25, 50, 66, 78, 86, 94
    b = Asm()
    b(f"v_lshlrev_b32 v2, 4, v0\nv_add_u32 v6, s{sSTA}, v2")
    S = 50
    X = 94
    lq = LQ(b)

    def ldst(r):
        for q in range(4):
            lq.issue(f"s{r}", f"ds_read_b128 {v4(S + 16 * (r & 1) + 4 * q)}, v6 offset:{4096 * q + 1024 * r}")
    ldst(0)
    for r in range(4):
        if r < 3:
            ldst(r + 1)
        for i in range(4):
            b(f"v_lshlrev_b32 v{X + 2 * i}, 16, v{U + 4 * r + i}\nv_and_b32 v{X + 2 * i + 1}, 0xffff0000, v{U + 4 * r + i}")
        lq.wait(f"s{r}")
        sb = S + 16 * (r & 1)
        for i in range(8):
            b(f"v_fma_f32 v{X + i}, v{X + i}, v{sb + 2 * i}, v{sb + 2 * i + 1}")
        for i in range(4):
            b(f"v_cvt_pk_f16_f32 v{U + 4 * r + i}, v{X + 2 * i}, v{X + 2 * i + 1}")
    dpp = "row_mask:0xf bank_mask:0xf"
    done = []

    def rdy(txt):
        done.append((len(b.L), txt))
    for r in range(4):
        rdy(f"ds_write_b128 v5, {v4(U + 4 * r)} offset:{C_U + 1024 * r}")
    for r in range(4):
        w = W + 6 * r
        d = [w, w + 1, w + 2, w + 3, w + 4, w + 5, U + 4 * r, U + 4 * r + 1]
        for i in range(4):
            if r == 0:
                b(f"v_mov_b32 v{d[2 + i]}, 0")
            else:
                b(f"v_mov_b32_dpp v{d[2 + i]}, v{U + 4 * (r - 1) + i} wave_ror:1 {dpp}")
        for i in range(2):
            if r == 0:
                b(f"v_mov_b32 v{d[i]}, 0")
            else:
                b(f"v_mov_b32_dpp v{d[i]}, v{W + 6 * (r - 1) + 4 + i} wave_ror:1 {dpp}")
        for i in (2, 3, 0, 1):
            b(f"v_mov_b32_dpp v{d[2 + i]}, v{U + 4 * r + i} wave_shr:1 {dpp}")
        for i in range(2):
            b(f"v_mov_b32_dpp v{d[i]}, v{d[4 + i]} wave_shr:1 {dpp}")
        lo = 0 if r < 2 else 1
        for i in range(lo, 7 - lo):
            b(f"v_alignbit_b32 v{SS + i}, v{d[i + 1]}, v{d[i]}, 16")
        m3 = "M" if r == 3 else ""
        rdy(f"{m3}ds_write_b128 v5, {v4(w + 1)} offset:{C_U2 + 1024 * r - 16}")
        for i in range(4):
            b(f"v_pk_add_f16 v{B3 + 4 * r + i}, v{SS + i + 1}, v{SS + i + 2}")
        for i in range(4):
            b(f"v_pk_add_f16 v{B3 + 4 * r + i}, v{B3 + 4 * r + i}, v{d[i + 2]}")
        rdy(f"{m3}ds_write_b128 v5, {v4(B3 + 4 * r)} offset:{C_B3 + 1024 * r - 16}")
        if r < 3:
            for i in range(4):
                b(f"v_pk_add_f16 v{B5 + 4 * r + i}, v{d[i + 1]}, v{d[i + 3]}")
            for i in range(4):
                b(f"v_pk_add_f16 v{B5 + 4 * r + i}, v{B5 + 4 * r + i}, v{B3 + 4 * r + i}")
            rdy(f"ds_write_b128 v5, {v4(B5 + 4 * r)} offset:{C_B5 + 1024 * r - 16}")
        if r < 2:
            for i in range(4):
                b(f"v_pk_add_f16 v{B7 + 4 * r + i}, v{SS + i}, v{SS + i + 3}")
            for i in range(4):
                b(f"v_pk_add_f16 v{B7 + 4 * r + i}, v{B7 + 4 * r + i}, v{B5 + 4 * r + i}")
            rdy(f"ds_write_b128 v5, {v4(B7 + 4 * r)} offset:{C_B7 + 1024 * r - 16}")
            for i in range(4):
                b(f"v_pk_add_f16 v{B9 + 4 * r + i}, v{d[i]}, v{d[i + 4]}")
            for i in range(4):
                b(f"v_pk_add_f16 v{B9 + 4 * r + i}, v{B9 + 4 * r + i}, v{B7 + 4 * r + i}")
            rdy(f"ds_write_b128 v5, {v4(B9 + 4 * r)} offset:{C_B9 + 1024 * r - 16}")
    n = len(b.L)
    c0, c1, c2 = [min(c, n) for c in PREP_CUTS]

    def wr(txt):
        if txt.startswith("M"):
            a(f"s_mov_b32 exec_hi, 1\n{txt[1:]}\ns_mov_b32 exec_hi, -1")
        else:
            a(txt)
    pend = list(done)
    for i, l in enumerate(b.L):
        a.L.append(l)
        if i + 1 == c1 or i + 1 == c0:
            a("s_barrier")
        if i + 1 == c2:
            Lg = a.newlabel("g28")
            a(f"v_mov_b32 v5, {K1_CTL}\ns_cmp_ge_u32 s{sIDX}, 30\ns_cselect_b32 s97, 0, 8")
            a.label(Lg)
            a(f"ds_read_b32 v7, v5 offset:28\ns_sleep 1\ns_waitcnt lgkmcnt(0)\nv_readfirstlane_b32 s96, v7\ns_cmp_ge_u32 s96, s97\ns_cbranch_scc0 {Lg}")
            stamp(a, 3)
            a(f"""v_add_u32 v5, s{sRB}, v2
            v_mov_b64 v[104:105], 0
            v_mov_b64 v[106:107], 0
            s_mov_b32 exec_hi, 0xff
            ds_write_b128 v5, v[104:107]
            s_mov_b64 exec, 7
            ds_write_b128 v5, v[104:107] offset:{C_U2 - 64}
            ds_write_b128 v5, v[104:107] offset:{C_B3 - 64}
            ds_write_b128 v5, v[104:107] offset:{C_B5 - 64}
            ds_write_b128 v5, v[104:107] offset:{C_B7 - 64}
            ds_write_b128 v5, v[104:107] offset:{C_B9 - 64}
            s_mov_b64 exec, -1""")
        if i + 1 >= c2 and pend and pend[0][0] <= i + 1 :
            wr(pend.pop(0)[1])
    for _, txt in pend:
        wr(txt)
    a("s_waitcnt lgkmcnt(0)")


CREGS = dict(ACC=8, KF=28, DF=96, ND=4, bU=116, bK0=117, bD={1: 118, 2: 119, 3: 120}, bK={1: 121, 2: 122, 3: 123}, PF=112)


def conv_setup(a, sRB, sKT, sCH):
    regs = CREGS
    i16, hq, par, h8, rr, cc, T = 96, 97, 98, 99, 100, 101, 102
    a(f"""
    v_and_b32 v{i16}, 15, v0
    v_lshrrev_b32 v{hq}, 4, v0
    v_and_b32 v{par}, 1, v{hq}
    v_lshrrev_b32 v{h8}, 1, v{hq}
    v_bfe_u32 v{rr}, v0, 2, 2
    v_and_b32 v{cc}, 3, v0
    v_sub_u32 v{T}, v{i16}, v{h8}
    v_lshlrev_b32 v{T}, 5, v{T}
    v_lshl_add_u32 v{T}, v{par}, 4, v{T}
    s_add_u32 s96, s{sRB}, {C_U - 512}
    v_add_u32 v{regs['bU']}, s96, v{T}
    v_lshlrev_b32 v{T}, 3, v{par}
    v_sub_u32 v{T}, v{T}, v{i16}
    v_lshlrev_b32 v{T+1}, 4, v{h8}
    v_sub_u32 v{T}, v{T}, v{T+1}
    v_add_u32 v{T}, 32, v{T}
    v_lshlrev_b32 v{T}, 1, v{T}
    v_and_b32 v{T+2}, 1, v{i16}
    v_mul_u32_u24 v{T+1}, {T0O - T0E - 2}, v{T+2}
    v_add3_u32 v{regs['bK0']}, v{T}, v{T+1}, s{sKT}
    """)
    segs = {1: (4, C_B3, 5, 0, C_U2, 5, 0, T1E, T1O), 2: (8, C_B5, 35, 0, C_B3, 34, 4, T2E, T2O), 3: (16, C_B9, 50, 0, C_B7, 49, 8, T3EE, T3OE)}
    for sg, (Dd, Ae, pe, oe, Ao, po, oo, Te, To) in segs.items():
        ce = Ae - 2 * Dd * (pe + 4) - 2 * oe
        co = Ao - 2 * Dd * (po + 4) - 2 * oo
        a(f"""
        v_lshl_add_u32 v{T}, v{h8}, 3, v{rr}
        v_mul_u32_u24 v{T}, {2 * Dd}, v{T}
        v_lshlrev_b32 v{T+1}, 3, v{cc}
        v_sub_u32 v{T}, v{T+1}, v{T}
        v_mul_i32_i24 v{T+1}, {co - ce}, v{par}
        v_add3_u32 v{T}, v{T}, v{T+1}, s{sRB}
        v_add_u32 v{regs['bD'][sg]}, {ce}, v{T}
        v_mul_u32_u24 v{T}, {2 * 16 // Dd}, v{i16}
        v_lshl_add_u32 v{T}, v{h8}, 4, v{T}
        v_mul_u32_u24 v{T+1}, {To - Te}, v{par}
        v_add3_u32 v{T}, v{T}, v{T+1}, s{sKT}
        v_add_u32 v{regs['bK'][sg]}, {Te}, v{T}
        """)
    a(f"v_mul_u32_u24 v{T+1}, 158, v{T+2}\nv_add_u32 v{regs['bK'][3]}, v{regs['bK'][3]}, v{T+1}")
    PF = regs["PF"]
    a(f"""
    v_lshlrev_b32 v{T}, 4, v{h8}
    v_lshlrev_b32 v{T+1}, 3, v{par}
    v_sub_u32 v{T}, v{T}, v{T+1}
    v_add3_u32 v{T}, v{T}, v{i16}, -6
    v_mov_b32 v{T+3}, 0xffff
    v_mov_b32 v{cc}, 0xffff0000
    """)
    for p in range(4):
        a(f"""v_subrev_u32 v{T+1}, {2 * p}, v{T}
        v_subrev_u32 v{T+2}, {2 * p + 1}, v{T}
        v_cmp_gt_u32 vcc, 7, v{T+1}
        v_cmp_gt_u32 s[96:97], 7, v{T+2}
        s_nop 1
        v_cndmask_b32 v{T+1}, 0, v{T+3}, vcc
        v_cndmask_b32 v{T+2}, 0, v{cc}, s[96:97]
        v_or_b32 v{PF + p}, v{T+1}, v{T+2}""")
    a(f"""v_lshlrev_b32 v126, 5, v{i16}
    v_lshl_add_u32 v126, v{hq}, 3, v126
    s_add_u32 s96, s{sKT}, {TK1024}
    v_mov_b32 v124, s96
    s_lshl_b32 s93, s{sCH}, 12
    s_add_u32 s93, s93, {WS_Y}""")


def conv_run(a, sHALF):
    regs = CREGS
    PF = regs["PF"]
    a("ds_read_b64 v[124:125], v124")
    for r in range(8, 28, 2):
        a(f"v_mov_b64 {v2(r)}, 0")
    a(f"s_waitcnt lgkmcnt(0)\nv_and_b32 v124, 0xffff, v124\nv_lshl_or_b32 v124, v124, 16, v124")
    for p in range(4):
        a(f"v_and_b32 v{PF + p}, v{PF + p}, v124")
    LB = a.newlabel("halfB"); LJ = a.newlabel("cjoin")
    a(f"s_cmp_eq_u32 s{sHALF}, 1\ns_cbranch_scc1 {LB}")
    for tiles, lab in (([0, 1, 2, 3, 4], None), ([5, 6, 7], LB)):
        if lab:
            a.label(lab)
        conv_mfma(a, tiles, regs)
        a("s_nop 7")
        for i, t in enumerate(tiles):
            c = 8 + 4 * i
            for r in range(4):
                a(f"v_mul_f32 v{c + r}, v{c + r}, v125")
            a(f"v_cvt_pk_bf16_f32 v{c}, v{c}, v{c+1}\nv_cvt_pk_bf16_f32 v{c+1}, v{c+2}, v{c+3}")
            a(f"buffer_store_dwordx2 {v2(c)}, v126, {s4(S_WS)}, s93 offen offset:{512 * t} sc1")
        if not lab:
            a(f"s_branch {LJ}")
    a.label(LJ)


NR2 = 8
NEARLY = 6
ROT2 = 7
P2_H = NR2 * 10240
P2_X = 149504
P2_Y = P2_X
assert NEARLY * 10240 <= 2 * SLOT - C_SZ and P2_H + NR2 * 8192 <= P2_X and K1_STA <= P2_X and P2_X + 11968 <= K1_CTL
YSTAGE = 7


def p2_loader(a):
    vL, vT = 2, 3
    sW = 58
    a(f"""
    v_lshlrev_b32 v{vL}, 4, v0
    s_mul_i32 s{sW}, s{sNI2}, {48 * 5120}
    s_add_u32 s{sW}, s{sW}, {WS_WD}
    v_mov_b32 v5, {K1_CTL}
    v_mov_b32 v6, 1
    s_and_b32 s65, s{sIDX}, 7
    s_mul_i32 s65, s65, 3
    s_lshr_b32 s96, s{sIDX}, 3
    s_mul_i32 s96, s96, {ROT2}
    s_add_u32 s65, s65, s96
    s_cmp_ge_u32 s65, 24
    s_cselect_b32 s96, 24, 0
    s_sub_u32 s65, s65, s96
    {"s_mov_b32 s65, 0" if "rot" not in EXP else ""}
    s_mov_b32 s66, s65
    s_cmp_ge_u32 s{sIDX}, 30
    s_cselect_b32 s98, 0, 8
    """)

    def adv(r):
        a(f"s_add_u32 s{r}, s{r}, 1\ns_cmp_eq_u32 s{r}, 24\ns_cselect_b32 s{r}, 0, s{r}")
    L1 = a.newlabel("p2l1")
    a(f"s_cmp_eq_u32 s{sWAVE}, 1\ns_cbranch_scc1 {L1}")
    Lq = a.newlabel("pq")
    a.label(Lq)
    a(f"ds_read_b32 v12, v5 offset:28\ns_sleep 1\ns_waitcnt lgkmcnt(0)\nv_readfirstlane_b32 s97, v12\ns_cmp_ge_u32 s97, s98\ns_cbranch_scc0 {Lq}")

    def issw(s):
        slot = (s % NR2) * 10240
        a(f"s_mul_i32 s67, s65, 10240\ns_add_u32 s67, s67, s{sW}")
        adv(65)
        for g, n in ((0, 4), (4, 4), (8, 1)):
            a(f"s_mov_b32 m0, {slot + 1024 * g}\ns_add_u32 s97, s67, {1024 * g}")
            for j in range(n):
                a(f"buffer_load_dwordx4 v{vL}, {s4(S_WS)}, s97 offen offset:{1024 * j} sc1 lds")
    for s in range(NEARLY):
        issw(s)
    a("s_waitcnt vmcnt(0)\ns_barrier")
    issw(6)
    issw(7)
    a("s_barrier")
    for s in range(23):
        infl = min(s + NR2 - 1, 23) - (s + 1)
        a(f"s_waitcnt vmcnt({9 * infl})\ns_barrier")
        if CSTAMP:
            stamp(a, 16 + s)
        if s + NR2 < 24:
            issw(s + NR2)
    stamp_end(a, 0, S_WS, sWAVE)

    a.label(L1)
    a(f"""
    v_lshrrev_b32 v{vT}, 3, v0
    v_and_b32 v4, 7, v0
    v_lshlrev_b32 v{vT}, 12, v{vT}
    v_lshl_add_u32 v{vT}, v4, 4, v{vT}          ; ch8*4096 + 16k
    s_mul_i32 s60, s{sNI2}, {80 * 4096}
    s_lshl_b32 s96, s{sMI2}, 7
    s_add_u32 s60, s60, s96
    s_mul_i32 s59, s{sMI2}, {4 * 49152}
    s_add_u32 s59, s59, {WS_H}
    s_add_u32 s68, s{sW}, 9216
    """)

    def tile(src, dst, lo=0, hi=10):
        a(f"s_add_u32 s96, s60, {src}")
        for p in range(lo, hi):
            a(f"s_mov_b32 m0, {dst + 1024 * p}\ns_add_u32 s97, s96, {p * 8 * 4096}\nbuffer_load_dwordx4 v{vT}, {s4(S_WS)}, s97 offen sc1 lds")

    def issw9(s):
        a(f"s_mul_i32 s97, s65, 10240\ns_mov_b32 m0, {(s % NR2) * 10240 + 9216}\ns_add_u32 s97, s97, s68\nbuffer_load_dwordx4 v{vL}, {s4(S_WS)}, s97 offen sc1 lds")
        adv(65)

    def issh(s):
        slot = P2_H + (s % NR2) * 8192
        a(f"s_lshl_b32 s67, s66, 11\ns_add_u32 s67, s67, s59")
        adv(66)
        for t_ in range(4):
            a(f"s_mov_b32 m0, {slot + t_ * 2048}\ns_add_u32 s97, s67, {t_ * 49152}")
            for j in range(2):
                a(f"buffer_load_dwordx4 v{vL}, {s4(S_WS)}, s97 offen offset:{1024 * j} sc1 lds")
        if s >= NEARLY:
            issw9(s)
        return 8 + (s >= NEARLY)
    Lq2 = a.newlabel("pq")
    a.label(Lq2)
    a(f"""ds_read_b128 v[8:11], v5
    s_sleep 1
    s_waitcnt lgkmcnt(0)
    v_and_b32 v8, v8, v9
    v_and_b32 v8, v8, v10
    s_nop 0
    v_readfirstlane_b32 s96, v8
    s_cmp_eq_u32 s96, 1
    s_cbranch_scc0 {Lq2}""")
    tile(WS_XT, P2_X)
    for s in range(NEARLY):
        issw9(s)
    Lw = a.newlabel("own"); Lp = a.newlabel("hp"); Lgo = a.newlabel("hgo")
    a(f"""s_lshl_b32 s96, s{sMI2}, 6
    s_mul_i32 s97, s96, 5042
    s_lshr_b32 s97, s97, 20                     ; row/208
    s_add_u32 s96, s96, 63
    s_mul_i32 s96, s96, 5042
    s_lshr_b32 s96, s96, 20
    s_lshl_b32 s97, s97, 7
    s_lshl_b32 s96, s96, 7
    v_mov_b32 v7, s97
    v_mov_b32 v8, s96
    v_cmp_gt_u32 vcc, 32, v0
    v_and_b32 v9, 31, v0
    v_min_u32 v9, 23, v9
    v_cndmask_b32 v7, v8, v7, vcc
    v_lshl_add_u32 v7, v9, 2, v7
    s_mov_b32 s61, {WS_FH}
    s_mov_b32 s62, 0
    s_cmp_ge_u32 s{sIDX}, 30
    s_cselect_b32 s63, 32, 16
    s_cselect_b32 s98, 5, 8
    v_add_u32 v10, s63, v5
    s_waitcnt vmcnt(0)
    ds_write_b32 v5, v6 offset:24""")
    a.label(Lw)
    a(f"ds_read_b32 v11, v10\ns_sleep 2\ns_waitcnt lgkmcnt(0)\nv_readfirstlane_b32 s96, v11\ns_cmp_ge_u32 s96, s98\ns_cbranch_scc0 {Lw}")
    stamp(a, 8)
    a.label(Lp)
    a(f"""s_sleep 4
    buffer_load_dword v11, v7, {s4(S_WS)}, s61 offen sc0 sc1
    s_add_u32 s62, s62, 1
    s_waitcnt vmcnt(0)
    v_cmp_eq_u32 vcc, 1, v11
    s_and_b32 s96, vcc_lo, vcc_hi
    s_cmp_eq_u32 s96, -1
    s_cbranch_scc1 {Lgo}
    s_cmp_lt_u32 s62, 200000
    s_cbranch_scc1 {Lp}""")
    a.label(Lgo)
    stamp(a, 9)
    a("s_barrier")
    stamp(a, 10)
    vq = LQ(a, cnt="vmcnt", cap=63)

    def trk(tag, n):
        vq.q += [tag] * n
    for s in range(NR2 - 1):
        trk(f"h{s}", issh(s))
    a(f"v_lshlrev_b32 v8, 2, v0\ns_mov_b32 s61, {WS_FY}")
    vq.wait("h0")
    a("s_barrier")
    trk(f"h{NR2 - 1}", issh(NR2 - 1))
    stamp(a, 11)

    def ypoll():
        for q in range(4):
            a(f"buffer_load_dword v{12 + q}, v8, {s4(S_WS)}, s61 offen offset:{256 * q} sc0 sc1")
    for s in range(23):
        tags = [f"h{s + 1}"]
        if s == YSTAGE + 9:
            tags.append("yt")
        vq.wait(*tags)
        a("s_barrier")
        if s == YSTAGE:
            ypoll(); trk("yp", 4)
        if s + NR2 < 24:
            trk(f"h{s + NR2}", issh(s + NR2))
        if s == YSTAGE + 4:
            Lyo = a.newlabel("yok"); Lc = a.newlabel("yc")
            vq.wait("yp")
            a("s_mov_b32 s62, 0")
            a.label(Lc)
            a(f"""v_and_b32 v12, v12, v13
            v_and_b32 v14, v14, v15
            v_and_b32 v12, v12, v14
            v_cmp_eq_u32 vcc, 1, v12
            s_and_b32 s96, vcc_lo, vcc_hi
            s_cmp_eq_u32 s96, -1
            s_cbranch_scc1 {Lyo}
            s_sleep 16""")
            ypoll()
            a(f"""s_add_u32 s62, s62, 1
            s_waitcnt vmcnt(0)
            s_cmp_lt_u32 s62, 200000
            s_cbranch_scc1 {Lc}""")
            a.label(Lyo)
            tile(WS_Y, P2_Y, 0, 3); trk("yt", 3)
        if s == YSTAGE + 5:
            tile(WS_Y, P2_Y, 3, 6); trk("yt", 3)
        if s == YSTAGE + 6:
            tile(WS_Y, P2_Y, 6, 10); trk("yt", 4)
    stamp_end(a, 0, S_WS, sWAVE)


P2_BASE = 0


def p2_base(a):
    XB, TB, DD = 8, 18, 28
    vTR = 2
    sW4 = 60
    a(f"""
    s_setprio 0
    s_sub_u32 s{sW4}, s{sWAVE}, 6
    v_and_b32 v4, 15, v0
    v_lshrrev_b32 v5, 4, v0
    v_lshlrev_b32 v6, 3, v4
    v_lshlrev_b32 v7, 3, v5
    s_lshl_b32 s61, s{sMI2}, 2
    s_add_u32 s61, s61, s{sW4}              ; l tile
    s_lshl_b32 s96, s61, 7
    s_add_u32 s96, s96, {WS_STATB}
    s_mul_i32 s62, s{sNI2}, 160
    buffer_load_dwordx2 v[38:39], v6, {s4(S_WS)}, s96 offen sc0 sc1
    """)
    for dt in range(5):
        a(f"buffer_load_dwordx2 {v2(DD + 2 * dt)}, v7, {s4(S_DSK)}, s62 offen offset:{32 * dt}")
    a(f"""
    v_lshrrev_b32 v{vTR}, 2, v0
    v_and_b32 v3, 3, v0
    v_lshlrev_b32 v{vTR}, 7, v{vTR}
    v_lshl_add_u32 v{vTR}, v3, 3, v{vTR}
    s_lshl_b32 s96, s{sW4}, 5
    s_add_u32 s96, s96, {P2_X}
    v_add_u32 v{vTR}, s96, v{vTR}
    v_mov_b32 v3, {K1_CTL}
    """)
    Lx = a.newlabel("xw")
    a.label(Lx)
    a(f"ds_read_b32 v6, v3 offset:24\ns_sleep 1\ns_waitcnt lgkmcnt(0)\nv_readfirstlane_b32 s96, v6\ns_cmp_ge_u32 s96, 1\ns_cbranch_scc0 {Lx}")
    for dt in range(5):
        a(f"ds_read_b64_tr_b16 {v2(XB + 2 * dt)}, v{vTR} offset:{2048 * dt}")
    a("s_waitcnt vmcnt(0)\nv_rcp_f32 v39, v39\ns_waitcnt lgkmcnt(0)")

    def unpack(b, d, s):
        b(f"v_and_b32 v{d + 1}, 0xffff0000, v{s}\nv_lshlrev_b32 v{d}, 16, v{s}")
    T = 40

    def part1(b):
        def rnd():
            for h in range(2):
                b(f"v_cvt_pk_bf16_f32 v{T + 2 * h}, v{T + 2 * h}, v{T + 1 + 2 * h}")
            for h in range(2):
                unpack(b, T + 2 * h, T + 2 * h)
        for dt in range(5):
            for h in range(2):
                unpack(b, T + 2 * h, XB + 2 * dt + h)
            for h in range(2):
                unpack(b, T + 4 + 2 * h, DD + 2 * dt + h)
            for i in range(4):
                b(f"v_sub_f32 v{T + i}, v{T + i}, v38")
            rnd()
            for i in range(4):
                b(f"v_mul_f32 v{T + i}, v{T + i}, v39")
            rnd()
            for i in range(4):
                b(f"v_mul_f32 v{T + i}, v{T + i}, v{T + 4 + i}")
            for h in range(2):
                b(f"v_cvt_pk_bf16_f32 v{TB + 2 * dt + h}, v{T + 2 * h}, v{T + 1 + 2 * h}")
    part1(a)
    a("s_barrier\n" * (2 + YSTAGE + 10))
    Y = 28

    def part2(b):
        for dt in range(5):
            b(f"ds_read_b64_tr_b16 {v2(Y + 2 * dt)}, v{vTR} offset:{2048 * dt}")
        b(f"s_mul_i32 s96, s{sW4}, 2560\ns_add_u32 s96, s96, {P2_BASE}\nv_lshlrev_b32 v3, 3, v0\nv_add_u32 v3, s96, v3\ns_waitcnt lgkmcnt(0)")
        for dt in range(5):
            for h in range(2):
                unpack(b, T + 2 * h, Y + 2 * dt + h)
                unpack(b, T + 4 + 2 * h, TB + 2 * dt + h)
            for i in range(4):
                b(f"v_add_f32 v{T + i}, v{T + i}, v{T + 4 + i}")
            for h in range(2):
                b(f"v_cvt_pk_bf16_f32 v{T + 2 * h}, v{T + 2 * h}, v{T + 1 + 2 * h}")
                unpack(b, T + 4 + 2 * h, XB + 2 * dt + h)
            for h in range(2):
                unpack(b, T + 2 * h, T + 2 * h)
            for i in range(4):
                b(f"v_add_f32 v{T + i}, v{T + i}, v{T + 4 + i}")
            for h in range(2):
                b(f"v_cvt_pk_bf16_f32 v{XB + 2 * dt + h}, v{T + 2 * h}, v{T + 1 + 2 * h}")
    sliced(a, part2, 5)
    for dt in range(5):
        a(f"ds_write_b64 v3, {v2(XB + 2 * dt)} offset:{512 * dt}")
    a("s_waitcnt lgkmcnt(0)\n" + "s_barrier\n" * (23 - (YSTAGE + 10) - 5))
    stamp_end(a, 0, S_WS, sWAVE)


def p2_gemm(a):
    ACC = 8
    F = [28, 52, 76, 100]
    vW, vL, vW2 = 2, 3, 124
    sW4 = 60
    a(f"""
    s_setprio 1
    s_sub_u32 s{sW4}, s{sWAVE}, 2
    s_lshl_b32 s61, s{sMI2}, 2
    s_add_u32 s61, s61, s{sW4}              ; l tile
    s_mul_i32 s62, s{sNI2}, 160
    v_lshlrev_b32 v{vW}, 4, v0
    s_lshl_b32 s96, s{sW4}, 11
    s_add_u32 s96, s96, {P2_H}
    v_add_u32 v{vL}, s96, v{vW}
    v_add_u32 v{vW2}, 0x10000, v{vW}
    v_and_b32 v4, 15, v0
    v_lshrrev_b32 v5, 4, v0
    v_mul_u32_u24 v4, 176, v4
    v_lshl_add_u32 v4, v5, 3, v4
    s_mul_i32 s63, s{sW4}, 2816
    s_add_u32 s63, s63, {P2_X}
    v_add_u32 v4, s63, v4
    s_mul_i32 s96, s{sW4}, 2560
    s_add_u32 s96, s96, {P2_BASE}
    v_lshlrev_b32 v5, 3, v0
    v_add_u32 v5, s96, v5
    """)
    for r in range(ACC, ACC + 20, 2):
        a(f"v_mov_b64 {v2(r)}, 0")
    a("s_barrier\ns_barrier")
    stamp(a, 14)

    def rdw(lq, k):
        s, kk = divmod(k, 2)
        f = F[k % 4]
        lq.issue(f"w{k}", f"ds_read_b128 {v4(f + 20)}, v{vL} offset:{(s % NR2) * 8192 + kk * 1024}")
        for dt in range(5):
            off = (s % NR2) * 10240 + kk * 5120 + 1024 * dt
            lq.issue(f"w{k}", f"ds_read_b128 {v4(f + 4 * dt)}, v{vW if off < 65536 else vW2} offset:{off % 65536}")

    def mf(k):
        f = F[k % 4]
        for dt in range(5):
            a(f"v_mfma_f32_16x16x32_bf16 {v4(ACC + 4 * dt)}, {v4(f + 4 * dt)}, {v4(f + 20)}, {v4(ACC + 4 * dt)}")
    lq = LQ(a)
    rdw(lq, 0)
    rdw(lq, 1)
    for s in range(24):
        lq.drain()
        if s < 23:
            a("s_barrier")
            n0 = len(a.L)
            rdw(lq, 2 * s + 2)
            rdw(lq, 2 * s + 3)
            R = a.L[n0:]; del a.L[n0:]
            mf(2 * s)
            mf(2 * s + 1)
            M = a.L[n0:]; del a.L[n0:]
            a.L += R[:3]
            R = R[3:]
            for m in M:
                a.L.append(m)
                if R:
                    a.L.append(R.pop(0))
        else:
            XB = 28
            for dt in range(5):
                lq.issue("b", f"ds_read_b64 {v2(XB + 2 * dt)}, v5 offset:{512 * dt}")
            mf(2 * s)
            mf(2 * s + 1)
    stamp(a, 15)
    for i in range(3):
        a(f"""v_add_u32 v6, {64 * i}, v0
        v_mul_u32_u24 v7, 205, v6
        v_lshrrev_b32 v7, 11, v7
        v_mul_u32_u24 v{60 + i}, 10, v7
        v_sub_u32 v6, v6, v{60 + i}
        v_mul_u32_u24 v{60 + i}, 176, v7
        v_lshl_add_u32 v{60 + i}, v6, 4, v{60 + i}
        v_add_u32 v{60 + i}, s63, v{60 + i}
        v_mul_u32_u24 v{64 + i}, 1280, v7
        v_lshl_add_u32 v{64 + i}, v6, 4, v{64 + i}""")
    a("s_waitcnt lgkmcnt(0)")
    O = 40
    for dt in range(5):
        for h in range(2):
            c = ACC + 4 * dt + 2 * h
            t = 52 + 2 * h
            a(f"""v_cvt_pk_bf16_f32 v{c}, v{c}, v{c+1}
            v_and_b32 v{t+1}, 0xffff0000, v{XB + 2 * dt + h}
            v_and_b32 v{c+1}, 0xffff0000, v{c}
            v_lshlrev_b32 v{c}, 16, v{c}
            v_lshlrev_b32 v{t}, 16, v{XB + 2 * dt + h}
            v_add_f32 v{c+1}, v{c+1}, v{t+1}
            v_add_f32 v{c}, v{c}, v{t}
            v_cvt_pk_bf16_f32 v{O + 2 * dt + h}, v{c}, v{c+1}""")
        a(f"ds_write_b64 v4, {v2(O + 2 * dt)} offset:{32 * dt}")
    for i in range(3):
        a(f"ds_read_b128 {v4(76 + 4 * i)}, v{60 + i}")
    a(f"""
    s_mul_i32 s96, s61, {16 * 1280}
    s_add_u32 s96, s96, s62
    s_waitcnt lgkmcnt(2)
    buffer_store_dwordx4 v[76:79], v64, {s4(S_OUT)}, s96 offen
    s_waitcnt lgkmcnt(1)
    buffer_store_dwordx4 v[80:83], v65, {s4(S_OUT)}, s96 offen
    s_waitcnt lgkmcnt(0)
    s_mov_b32 exec_hi, 0
    buffer_store_dwordx4 v[84:87], v66, {s4(S_OUT)}, s96 offen
    s_mov_b64 exec, -1
    """)
    stamp(a, 16)
    stamp_end(a, 0, S_WS, sWAVE)
```

```python
import sys, os, struct

NAME = "parallel_sum__ssm_conv_s4d__glu_gated_glu__prompt"

WS_H = 0
WS_WD = WS_H + 128 * 48 * 1024
WS_XT = WS_WD + 8 * 48 * 5 * 1024
WS_Y = WS_XT + 640 * 4096
KT_BYTES = 3584
WS_KT = WS_Y + 640 * 4096
WS_STATA = WS_KT + 640 * KT_BYTES
WS_STATB = WS_STATA + 2048 * 8
WS_CS = WS_STATB + 2048 * 8
WS_FH = WS_CS + 5 * 3072 * 4
WS_FY = WS_FH + 16 * 128
WS_END = WS_FY + 8 * 128

T0E, T0O, T1E, T1O, T2E, T2O = 0, 640, 1280, 1664, 2048, 2304
T3EE, T3EO, T3OE, T3OO = 2560, 2720, 2880, 3040
TK1024, TSIG = 3200, 3204

PROF = int(os.environ.get("PROF", "0"))
EXP = os.environ.get("EXP", "")
CSTAMP = int(os.environ.get("CSTAMP", "0"))
CONV_PRIO = int(os.environ.get("CONV_PRIO", "1"))
PREP_PRIO = int(os.environ.get("PREP_PRIO", "0"))
PFW = int(os.environ.get("PFW", "0"))
TOUCH_AT = int(os.environ.get("TOUCH_AT", "3"))
WS_PROF = 0x2000000
class _St:
    r = 127
    def __format__(self, spec): return str(self.r)


vSTAMP = _St()


def f32(x):
    return "0x%08x" % struct.unpack("<I", struct.pack("<f", x))[0]


class Asm:
    def __init__(self):
        self.L = []
        self.uid = 0

    def __call__(self, s):
        for line in s.split("\n"):
            line = line.strip()
            if line:
                self.L.append("  " + line)

    def label(self, n):
        self.L.append(n + ":")

    def newlabel(self, base):
        self.uid += 1
        return f"L_{base}_{self.uid}"

    def raw(self, s):
        self.L.append(s)

    def text(self):
        return "\n".join(self.L) + "\n"


class LQ:
    def __init__(self, a, seed=(), cnt="lgkmcnt", cap=15):
        self.a = a
        self.q = list(seed)
        self.cnt = cnt
        self.cap = cap

    def issue(self, tag, s):
        self.a(s)
        self.q.append(tag)

    def wait(self, *tags):
        idx = -1
        for t in tags:
            for i, x in enumerate(self.q):
                if x == t:
                    idx = max(idx, i)
        if idx < 0:
            return
        n = len(self.q) - 1 - idx
        self.a(f"s_waitcnt {self.cnt}({min(n, self.cap)})")
        self.q = self.q[idx + 1:] if n <= self.cap else self.q[len(self.q) - self.cap:]

    def drain(self):
        self.a(f"s_waitcnt {self.cnt}(0)")
        self.q = []


def stamp(a, i, real=False):
    if PROF:
        a(f"s_waitcnt lgkmcnt(0)\n{'s_memrealtime' if real else 's_memtime'} s[100:101]\ns_waitcnt lgkmcnt(0)\nv_writelane_b32 v{vSTAMP}, s100, {i}")


def stamp_dyn(a, sidx, base, mul=1):
    if PROF:
        a(f"s_waitcnt lgkmcnt(0)\ns_memtime s[100:101]\ns_mul_i32 s99, s{sidx}, {mul}\ns_add_u32 m0, s99, {base}\ns_waitcnt lgkmcnt(0)\nv_writelane_b32 v{vSTAMP}, s100, m0")


def stamp_end(a, kern, S_WS_, swave):
    if "diag" in EXP:
        Ld = a.newlabel("diag")
        if kern == 0:
            a(f"""s_cmp_lg_u32 s{swave}, 9
            s_cbranch_scc1 {Ld}
            s_waitcnt vmcnt(0) lgkmcnt(0)
            s_memrealtime s[100:101]
            s_lshl_b32 s98, s2, 2
            s_add_u32 s98, s98, {WS_END + 1024}
            v_mov_b32 v5, 0
            s_waitcnt lgkmcnt(0)
            v_mov_b32 v6, s100
            s_mov_b64 exec, 1
            buffer_store_dword v6, v5, s[{S_WS_}:{S_WS_+3}], s98 offen""")
        else:
            a(f"""s_cmp_lg_u32 s{swave}, 0
            s_cbranch_scc1 {Ld}
            s_lshl_b32 s98, s2, 2
            s_add_u32 s98, s98, {WS_END}
            v_mov_b32 v5, 0
            s_mov_b64 exec, 1
            buffer_load_dword v7, v5, s[{S_WS_}:{S_WS_+3}], s98 offen
            buffer_load_dword v8, v5, s[{S_WS_}:{S_WS_+3}], s98 offen offset:1024
            s_waitcnt vmcnt(0) lgkmcnt(0)
            s_memrealtime s[100:101]
            s_waitcnt lgkmcnt(0)
            v_mov_b32 v6, s100
            v_and_b32 v6, 0xffffff, v6
            v_and_b32 v7, 0xffffff, v7
            v_and_b32 v8, 0xffffff, v8
            v_and_b32 v9, 0xffffff, v165
            v_sub_u32 v10, 0xffffff, v7
            v_sub_u32 v11, 0xffffff, v9
            buffer_atomic_umax v10, v5, s[16:19], 0 offen offset:0
            buffer_atomic_umax v7, v5, s[16:19], 0 offen offset:4
            buffer_atomic_umax v8, v5, s[16:19], 0 offen offset:8
            buffer_atomic_umax v11, v5, s[16:19], 0 offen offset:12
            buffer_atomic_umax v9, v5, s[16:19], 0 offen offset:16
            buffer_atomic_umax v6, v5, s[16:19], 0 offen offset:20""")
        a.label(Ld)
    if PROF:
        a("s_waitcnt vmcnt(0)")
        stamp(a, 6)
        stamp(a, 7, True)
        a(f"""s_lshl_b32 s100, s2, 4
        s_add_u32 s100, s100, s{swave}
        s_lshl_b32 s100, s100, 8
        s_add_u32 s100, s100, {WS_PROF + kern * 0x100000}
        v_lshlrev_b32 v1, 2, v0
        buffer_store_dword v{vSTAMP}, v1, s[{S_WS_}:{S_WS_+3}], s100 offen
        s_waitcnt vmcnt(0)""")
    a("s_endpgm")


def code_prefetch(a, first, last, nchunk, sidx, swave, wsel, vtmp, sp):
    if "nopf" in EXP:
        return
    L = a.newlabel("nopf"); H = a.newlabel("here")
    a(f"s_cmp_lg_u32 s{swave}, {wsel}\ns_cbranch_scc1 {L}\ns_cmp_ge_u32 s{sidx}, {nchunk}\ns_cbranch_scc1 {L}\ns_getpc_b64 s[{sp}:{sp+1}]")
    a.label(H)
    a(f"""s_sub_u32 s{sp}, s{sp}, {H}-{first}
    s_subb_u32 s{sp+1}, s{sp+1}, 0
    s_lshl_b32 s{sp+2}, s{sidx}, 13
    v_lshl_add_u32 v{vtmp}, v0, 7, s{sp+2}
    v_min_u32 v{vtmp}, {last}-{first}-4, v{vtmp}
    global_load_dword v{vtmp}, v{vtmp}, s[{sp}:{sp+1}]""")
    a.label(L)


def srd(a, d, lo, nbytes):
    a(f"s_mov_b32 s{d}, s{lo}\ns_mov_b32 s{d+1}, s{lo+1}\ns_mov_b32 s{d+2}, {nbytes}\ns_mov_b32 s{d+3}, 0x00020000")


def v4(r): return f"v[{r}:{r+3}]"
def v2(r): return f"v[{r}:{r+1}]"
def s4(r): return f"s[{r}:{r+3}]"


def dpp_row_allreduce(a, op, regs):
    for sh in (8, 4, 2, 1):
        if len(regs) < 3:
            a("s_nop 1")
        for r in regs:
            a(f"{op}_dpp v{r}, v{r}, v{r} row_ror:{sh} row_mask:0xf bank_mask:0xf")


def wave_max_u32_to_sgpr(a, v, sd, st):
    dpp_row_allreduce(a, "v_max_u32", [v])
    a(f"""s_nop 0
    v_readlane_b32 s{sd}, v{v}, 0
    v_readlane_b32 s{st}, v{v}, 16
    s_max_u32 s{sd}, s{sd}, s{st}
    v_readlane_b32 s{st}, v{v}, 32
    s_max_u32 s{sd}, s{sd}, s{st}
    v_readlane_b32 s{st}, v{v}, 48
    s_max_u32 s{sd}, s{sd}, s{st}""")


def round_bf16(a, d, s):
    a(f"v_cvt_pk_bf16_f32 v{d}, v{s}, v{s}\nv_lshlrev_b32 v{d}, 16, v{d}")


XSZ = 208 * 128
WSZ = 16384
SLOT = XSZ + WSZ
K1_STAT = 3 * SLOT
K1_CS = K1_STAT + 2048
TBL = 3328
K1_KG = K1_CS + 512
K1_STA = K1_KG + 3 * TBL
K1_SCR = K1_STAT
K1_CTL = 163840 - 64
assert K1_STA + 20480 <= K1_CTL
K1_LDS = 163840
assert K1_CTL + 64 <= K1_LDS

S_X, S_WG, S_WU, S_WD, S_WS, S_DBG = 4, 8, 12, 16, 20, 24
S_LA, S_AI, S_CR, S_CI, S_DT = 28, 32, 36, 40, 44
S_TMP = 48
S_OUT, S_DSK = 72, 76
sMI2, sNI2 = 80, 81
sWAVE, sMI, sNI, sROW0, sGI, sIDX, sXCD = 3, 52, 53, 54, 55, 56, 57
sMODE = 64


def k1_loader(a, parts):
    vOX, vOW = 16, 20
    sT, sXO, sWO, sDSL, sPEND = 58, 59, 60, 61, 62
    a(f"""
    v_lshrrev_b32 v8, 3, v0            ; rho
    v_and_b32 v9, 7, v0                ; c'
    v_xor_b32 v10, v9, v8
    v_mul_u32_u24 v{vOX}, 1280, v8
    v_lshl_add_u32 v{vOX}, v10, 4, v{vOX}
    v_bfe_u32 v10, v8, 1, 1
    v_lshrrev_b32 v11, 1, v9
    v_xor_b32 v11, v11, v10
    v_and_b32 v12, 1, v9
    v_lshl_add_u32 v11, v11, 1, v12
    v_mul_u32_u24 v{vOW}, 3072, v8
    v_lshl_add_u32 v{vOW}, v11, 4, v{vOW}
    v_xor_b32 v13, 64, v{vOW}
    v_add_u32 v{vOW + 1}, {8 * 3072 - 1024}, v13
    v_add_u32 v{vOW + 2}, {2 * (8 * 3072 - 1024)}, v{vOW}
    v_add_u32 v{vOW + 3}, {3 * (8 * 3072 - 1024)}, v13
    v_add_u32 v{vOX + 1}, {8 * 1280 - 1024}, v{vOX}
    v_add_u32 v{vOX + 2}, {2 * (8 * 1280 - 1024)}, v{vOX}
    v_add_u32 v{vOX + 3}, {3 * (8 * 1280 - 1024)}, v{vOX}
    s_mul_i32 s{sT}, s{sWAVE}, 104
    s_add_u32 s{sXO}, s{sROW0}, s{sT}
    s_mul_i32 s{sXO}, s{sXO}, 1280
    s_lshl_b32 s{sWO}, s{sNI}, 7
    s_cmp_eq_u32 s{sWAVE}, 0
    s_cselect_b32 s{S_TMP}, s{S_WG}, s{S_WU}
    s_cselect_b32 s{S_TMP+1}, s{S_WG+1}, s{S_WU+1}
    s_mov_b32 s{S_TMP+2}, {640 * 3072}
    s_mov_b32 s{S_TMP+3}, 0x00020000
    s_mul_i32 s92, s{sWAVE}, {13 * 1024}
    s_mul_i32 s93, s{sWAVE}, 8192
    s_add_u32 s93, s93, {XSZ}
    v_lshlrev_b32 v24, 2, v0
    v_lshlrev_b32 v25, 4, v0
    """)
    groups = [("w", 0, 4), ("x", 0, 4), ("x", 4, 4), ("x", 8, 4), ("x", 12, 1), ("w", 4, 4)]

    def issue(st):
        slot = (st % 3) * SLOT
        Lsk = a.newlabel("noiss")
        a(f"s_cmp_ge_u32 s{sIDX}, 30\ns_cbranch_scc1 {Lsk}")
        for (k, i0, n) in groups:
            if k == "x":
                a(f"s_add_u32 m0, s92, {slot + i0 * 1024}\ns_add_u32 s98, s{sXO}, {i0 * 8 * 1280 + st * 128}")
                for j in range(n):
                    a(f"buffer_load_dwordx4 v{vOX + j}, {s4(S_X)}, s98 offen offset:{1024 * j} lds")
            else:
                a(f"s_add_u32 m0, s93, {slot + i0 * 1024}\ns_add_u32 s98, s{sWO}, {(st * 64 + i0 * 8) * 3072}")
                for j in range(n):
                    a(f"buffer_load_dwordx4 v{vOW + j}, {s4(S_TMP)}, s98 offen offset:{1024 * j} lds")
        a.label(Lsk)

    def stage_loads():
        a(f"""s_lshl_b32 s98, s{sROW0}, 3
        s_mov_b32 m0, {K1_STAT}
        s_add_u32 s98, s98, {WS_STATB}
        buffer_load_dwordx4 v25, {s4(S_WS)}, s98 offen sc0 sc1 lds
        buffer_load_dwordx4 v25, {s4(S_WS)}, s98 offen offset:1024 sc0 sc1 lds
        s_lshl_b32 s97, s{sNI}, 8
        s_add_u32 s97, s97, {WS_CS}""")
        for rc in range(5):
            a(f"s_add_u32 s98, s97, {rc * 12288}\nbuffer_load_dword v{32 + rc}, v24, {s4(S_WS)}, s98 offen sc0 sc1")
            a(f"s_add_u32 s98, s97, {rc * 12288 + 6144}\nbuffer_load_dword v{37 + rc}, v24, {s4(S_WS)}, s98 offen sc0 sc1")

    def flags_ok(Lno):
        a(f"v_cmp_le_u32 vcc, 4, v30\ns_and_b32 s{sT}, vcc_lo, vcc_hi\ns_cmp_eq_u32 s{sT}, -1\ns_cbranch_scc0 {Lno}")

    issue(0)
    a("s_setprio 0")
    issue(1)
    stamp(a, 2)
    a("s_barrier")
    a("s_waitcnt vmcnt(21)\ns_setprio 3")
    stamp(a, 3)
    a("s_barrier")
    issue(2)
    L1 = a.newlabel("ldr1"); L4 = a.newlabel("b4")
    for s in range(5):
        a("s_waitcnt vmcnt(21)")
        if CSTAMP == 3:
            stamp(a, 20 + 2 * s)
        a("s_barrier")
        if CSTAMP == 3:
            stamp(a, 21 + 2 * s)
        issue(s + 3)
    a("s_waitcnt vmcnt(21)\ns_barrier")
    a(f"s_cmp_eq_u32 s{sWAVE}, 1\ns_cbranch_scc1 {L1}")
    issue(8)
    a(f"s_waitcnt vmcnt(21)\ns_branch {L4}")
    a.label(L1)
    Lb = a.newlabel("bk")
    a(f"s_cmp_lt_u32 s{sIDX}, 30\ns_cbranch_scc1 {Lb}\ns_sleep 100")
    a.label(Lb)
    a(f"buffer_load_dword v30, v24, {s4(S_DBG)}, 0 offen sc0 sc1")
    issue(8)
    Lv = a.newlabel("v")
    a(f"s_waitcnt vmcnt(21)\ns_cmp_lt_u32 s{sIDX}, 30\ns_cbranch_scc1 {Lv}\ns_waitcnt vmcnt(0)")
    a.label(Lv)
    Lsp = a.newlabel("spin"); Lchk = a.newlabel("chk")
    a(f"s_mov_b32 s{sPEND}, 0")
    a.label(Lchk)
    flags_ok(Lsp)
    a(f"s_branch {L4}")
    a.label(Lsp)
    a(f"""s_sleep 12
    buffer_load_dword v30, v24, {s4(S_DBG)}, 0 offen sc0 sc1
    s_add_u32 s{sPEND}, s{sPEND}, 1
    s_waitcnt vmcnt(0)
    s_cmp_lt_u32 s{sPEND}, 200000
    s_cbranch_scc1 {Lchk}""")
    a.label(L4)
    a("s_barrier")
    stamp(a, 5)
    Ln = a.newlabel("nocs"); Ln2 = a.newlabel("nocs")
    a(f"s_cmp_eq_u32 s{sWAVE}, 0\ns_cbranch_scc1 {Ln}")
    stage_loads()
    issue(9)
    a("s_waitcnt vmcnt(33)\ns_barrier\ns_waitcnt vmcnt(0)")
    for rc in range(1, 5):
        a(f"v_add_f32 v32, v32, v{32 + rc}\nv_add_f32 v37, v37, v{37 + rc}")
    a(f"""v_add_u32 v26, {K1_CS}, v24
    ds_write_b32 v26, v32
    ds_write_b32 v26, v37 offset:256
    s_waitcnt lgkmcnt(0)
    s_branch {Ln2}""")
    a.label(Ln)
    issue(9)
    for g in range(4):
        a(f"s_mov_b32 m0, {K1_STA + 4096 * g}\ns_mov_b32 s97, {WS_STATA + 4096 * g}")
        for j in range(4):
            a(f"buffer_load_dwordx4 v25, {s4(S_WS)}, s97 offen offset:{1024 * j} sc0 sc1 lds")
    Lq = a.newlabel("q")
    a("s_waitcnt vmcnt(37)\ns_barrier")
    a(f"v_lshlrev_b32 v8, 7, v0\ns_mul_i32 s96, s{sIDX}, 61440\ns_add_u32 s96, s96, {WS_WD}")
    for j in range(8):
        a(f"buffer_load_dword v9, v8, {s4(S_WS)}, s96 offen sc1\ns_add_u32 s96, s96, 7680")
    a(f"s_waitcnt vmcnt(24)\ns_barrier\ns_waitcnt vmcnt(8)\nv_mov_b32 v5, {K1_CTL}\nv_mov_b32 v6, 1\nds_write_b32 v5, v6 offset:12\ns_branch {Lq}")
    a.label(Ln2)
    a("s_barrier")
    a.label(Lq)
    stamp(a, 4)
    import gen2
    gen2.p2_loader(a)


def k1_gemm(a, var):
    extra = 1 if var < 2 else 0
    NB = 3 + extra
    A = [6, 22]
    B = [38, 54]
    ACC = 70
    vA0, vA1, vAW, vAW1 = 2, 3, 4, 5
    sST, sSLOT, sT = 58, 60, 62
    sFP, sLQ = 95, 94
    T0 = 38

    a(f"s_sub_u32 s{sT}, s{sWAVE}, 2\ns_and_b32 s{sFP}, s{sT}, 1\ns_lshr_b32 s{sLQ}, s{sT}, 1")
    a(f"""
    v_and_b32 v{T0}, 15, v0
    v_lshrrev_b32 v{T0+1}, 4, v0
    v_and_b32 v{T0+2}, 7, v{T0}
    v_xor_b32 v{T0+2}, v{T0+2}, v{T0+1}
    v_lshlrev_b32 v{vA0}, 7, v{T0}
    v_lshl_add_u32 v{vA0}, v{T0+2}, 4, v{vA0}
    s_mul_i32 s{sT}, s{sLQ}, {3 * 2048}
    v_add_u32 v{vA0}, s{sT}, v{vA0}
    v_xor_b32 v{vA1}, 64, v{vA0}
    v_lshrrev_b32 v{T0+2}, 2, v{T0}           ; r
    v_and_b32 v{T0+3}, 3, v{T0}               ; c
    v_lshrrev_b32 v{T0+4}, 1, v{T0+2}
    v_and_b32 v{T0+5}, 1, v{T0+1}
    v_lshl_or_b32 v{T0+4}, v{T0+5}, 1, v{T0+4}
    s_lshl_b32 s{sT}, s{sFP}, 1
    v_xor_b32 v{T0+4}, s{sT}, v{T0+4}
    v_lshl_add_u32 v{T0+5}, v{T0+1}, 3, v{T0+2}     ; 8hq + r
    v_lshlrev_b32 v{vAW}, 7, v{T0+5}
    v_lshl_add_u32 v{vAW}, v{T0+4}, 5, v{vAW}
    v_lshl_add_u32 v{vAW}, v{T0+3}, 3, v{vAW}
    v_add_u32 v{vAW}, {XSZ}, v{vAW}
    v_xor_b32 v{vAW1}, 32, v{vAW}
    """)
    for r in range(ACC, ACC + 48 + 8 * extra, 2):
        a(f"v_mov_b64 {v2(r)}, 0")

    def next_addr():
        a(f"""s_add_u32 s{sSLOT}, s{sSLOT}, 1
        s_cmp_eq_u32 s{sSLOT}, 3
        s_cselect_b32 s{sT}, s63, {SLOT}
        s_cselect_b32 s{sSLOT}, 0, s{sSLOT}""")

    def set_addr():
        for r in (vAW, vA0, vAW1, vA1):
            a(f"v_add_u32 v{r}, s{sT}, v{r}")

    def reads(kk):
        R = []

        def rA(fr):
            for s in range(2):
                R.append((f"A{kk}{fr}", f"ds_read_b64_tr_b16 {v2(A[kk] + 4 * fr + 2 * s)}, v{vAW1 if fr >= 2 else vAW} offset:{kk * 4096 + s * 512 + (8192 if fr & 1 else 0)}"))

        def rB(t):
            off = (12 - 3 * var) * 2048 if t == 3 else t * 2048
            R.append((f"B{kk}{t}", f"ds_read_b128 {v4(B[kk] + 4 * t)}, v{vA1 if kk else vA0} offset:{off}"))
        rA(0); rB(0); rA(1); rA(2); rA(3)
        for t in range(1, NB):
            rB(t)
        return R

    def mf(t, fr, kk):
        acc = ACC + 48 + 4 * (fr & 1) if t == 3 else ACC + 16 * t + 4 * fr
        a(f"v_mfma_f32_16x16x32_bf16 {v4(acc)}, {v4(A[kk] + 4 * fr)}, {v4(B[kk] + 4 * t)}, {v4(acc)}")

    def phase(lq, kk, R):
        R = list(R)
        for t in range(3):
            for fr in range(4):
                lq.wait(f"A{kk}{fr}", f"B{kk}{t}")
                mf(t, fr, kk)
                if R:
                    tg, ins = R.pop(0)
                    lq.issue(tg, ins)
        while R:
            tg, ins = R.pop(0)
            lq.issue(tg, ins)
        if extra:
            lq.wait(f"B{kk}3")
            mf(3, 2 * var, kk); mf(3, 2 * var + 1, kk)

    Lp1 = a.newlabel("p1")
    a(f"s_cmp_eq_u32 s70, 0\ns_cbranch_scc1 {Lp1}\ns_waitcnt lgkmcnt(0)\ns_barrier")
    a.label(Lp1)
    stamp(a, 2)
    a(f"s_mov_b32 s{sSLOT}, 0\ns_mov_b32 s{sST}, 0\ns_mov_b32 s63, {(-2 * SLOT) & 0xffffffff}\ns_setprio 2\ns_waitcnt lgkmcnt(0)\ns_barrier")
    stamp(a, 3)
    lq = LQ(a)
    for tg, ins in reads(0):
        lq.issue(tg, ins)
    seed = list(lq.q)

    def body(last):
        lq = LQ(a, seed)
        phase(lq, 0, reads(1))
        if not last:
            next_addr()
            lq.drain()
            a("s_waitcnt vmcnt(0)")
            set_addr()
            if CSTAMP == 1:
                stamp_dyn(a, sST, 8, 2)
            a("s_barrier")
            if CSTAMP == 1:
                stamp_dyn(a, sST, 9, 2)
            phase(lq, 1, reads(0))
        else:
            lq.drain()
            a(f"v_mov_b32 v{vA0}, {K1_CTL}\nv_mov_b32 v{vA1}, 1\ns_mov_b64 exec, 1\nds_add_u32 v{vA0}, v{vA1} offset:28\ns_mov_b64 exec, -1")
            phase(lq, 1, [])

    Lloop = a.newlabel("gloop")
    a.label(Lloop)
    body(False)
    a(f"s_add_u32 s{sST}, s{sST}, 1\ns_cmp_lt_u32 s{sST}, 9\ns_cbranch_scc1 {Lloop}")
    body(True)

    stamp(a, 4)
    vSA, vCA, vHO = 2, 3, 4
    CS = 8
    ST = 24
    a(f"""
    v_and_b32 v{T0}, 15, v0
    v_lshrrev_b32 v{T0+1}, 4, v0
    s_mul_i32 s{sT}, s{sLQ}, {3 * 128}
    s_add_u32 s{sT}, s{sT}, {K1_STAT}
    v_lshl_add_u32 v{vSA}, v{T0}, 3, s{sT}
    s_lshl_b32 s{sT}, s{sFP}, 7
    s_add_u32 s{sT}, s{sT}, {K1_CS}
    v_lshl_add_u32 v{vCA}, v{T0+1}, 4, s{sT}
    ds_read_b128 {v4(CS)}, v{vCA}
    ds_read_b128 {v4(CS + 4)}, v{vCA} offset:256
    ds_read_b128 {v4(CS + 8)}, v{vCA} offset:64
    ds_read_b128 {v4(CS + 12)}, v{vCA} offset:320
    """)
    for t in range(3):
        a(f"ds_read_b64 {v2(ST + 2 * t)}, v{vSA} offset:{t * 128}")
    if extra:
        a(f"ds_read_b64 {v2(ST + 6)}, v{vSA} offset:{(12 - 3 * var) * 128}")
    a(f"""
    v_lshlrev_b32 v{vHO}, 4, v0
    s_lshr_b32 s96, s{sROW0}, 4
    s_mul_i32 s96, s96, 49152
    s_lshl_b32 s97, s{sNI}, 1
    s_add_u32 s97, s97, s{sFP}
    s_lshl_b32 s97, s97, 10
    s_add_u32 s96, s96, s97
    s_add_u32 s96, s96, {WS_H}
    s_mul_i32 s97, s{sLQ}, {3 * 49152}
    s_add_u32 s99, s96, s97
    s_mov_b32 s98, 0xbfb8aa3b           ; -log2e
    s_waitcnt lgkmcnt(0)
    """)
    TM = 40
    PK = 48
    c1 = 56

    def act(g, u, csg, csu, m, s, pk):
        for r in range(4):
            a(f"v_fma_f32 v{TM + r}, -v{m}, v{csg + r}, v{g + r}")
        for r in range(4):
            a(f"v_mul_f32 v{TM + r}, v{TM + r}, v{c1}")
        for r in range(4):
            a(f"v_exp_f32 v{TM + r}, v{TM + r}")
        for r in range(4):
            a(f"v_fma_f32 v{TM + 4 + r}, -v{m}, v{csu + r}, v{u + r}")
        for r in range(4):
            a(f"v_fma_f32 v{TM + r}, v{TM + r}, v{s}, v{s}")
        for r in range(4):
            a(f"v_rcp_f32 v{TM + r}, v{TM + r}")
        a("s_nop 0")
        for r in range(4):
            a(f"v_mul_f32 v{TM + 4 + r}, v{TM + 4 + r}, v{TM + r}")
        a(f"v_cvt_pk_bf16_f32 v{pk}, v{TM + 4}, v{TM + 5}\nv_cvt_pk_bf16_f32 v{pk + 1}, v{TM + 6}, v{TM + 7}")

    for t in range(3):
        m, s = ST + 2 * t, ST + 2 * t + 1
        Lsk = None
        if var == 0 and t < 2:
            Lsk = a.newlabel("skipst")
            a(f"s_cmp_eq_u32 s{sMI}, 9\ns_cbranch_scc1 {Lsk}")
        a(f"v_rcp_f32 v{c1}, v{s}\ns_nop 0\nv_mul_f32 v{c1}, s98, v{c1}")
        b = PK + 4 * (t & 1)
        act(ACC + 16 * t, ACC + 16 * t + 4, CS, CS + 4, m, s, b)
        act(ACC + 16 * t + 8, ACC + 16 * t + 12, CS + 8, CS + 12, m, s, b + 2)
        a(f"s_add_u32 s97, s99, {t * 49152}")
        a(f"buffer_store_dwordx4 {v4(b)}, v{vHO}, {s4(S_WS)}, s97 offen")
        if Lsk:
            a.label(Lsk)
    if extra:
        m, s = ST + 6, ST + 7
        a(f"v_rcp_f32 v{c1}, v{s}\ns_nop 0\nv_mul_f32 v{c1}, s98, v{c1}")
        act(ACC + 48, ACC + 52, CS + 8 * var, CS + 4 + 8 * var, m, s, PK + 4)
        a(f"s_add_u32 s97, s96, {12 * 49152 + 8 * var}")
        a(f"buffer_store_dwordx2 {v2(PK + 4)}, v{vHO}, {s4(S_WS)}, s97 offen")
    stamp(a, 5)
    a("s_branch L_k1_hsig")


def sliced(a, fn, nbar):
    b = Asm()
    b.uid = a.uid + 1000
    fn(b)
    a.uid = b.uid
    n = len(b.L)
    cuts = {(n * (i + 1)) // nbar for i in range(nbar)}
    assert len(cuts) == nbar
    for i, l in enumerate(b.L):
        a.L.append(l)
        if i + 1 in cuts:
            a("s_barrier")


def k1_stats_loads(a):
    a(f"""
    v_lshrrev_b32 v5, 4, v0
    v_and_b32 v6, 15, v0
    v_mul_u32_u24 v7, 1280, v5
    v_lshl_add_u32 v7, v6, 4, v7
    s_and_b32 s58, s{sXCD}, 1
    s_lshl_b32 s58, s58, 10
    s_lshr_b32 s59, s{sXCD}, 1
    s_lshl_b32 s59, s59, 8
    s_add_u32 s58, s58, s59
    s_lshl_b32 s59, s{sIDX}, 3
    s_add_u32 s58, s58, s59
    s_mul_i32 s59, s58, 1280
    s_add_u32 s60, s59, {4 * 1280}
    """)
    for p in range(2):
        for j in range(5):
            a(f"buffer_load_dwordx4 {v4(8 + 20 * p + 4 * j)}, v7, {s4(S_X)}, s{59 + p} offen offset:{256 * j}")


def k1_stats(a, nlater):
    RAW = 8
    AC = 48
    D = 56
    a(f"""
    v_mov_b32 v72, 0x3f803f80
    s_mov_b32 s92, 0x9999999a
    s_mov_b32 s93, 0x3f599999           ; 1/640 (f64)
    s_mov_b32 s94, 0x3727c5ac           ; 1e-5
    s_lshl_b32 s59, s58, 3
    v_lshl_add_u32 v73, v5, 3, s59
    v_lshrrev_b32 v74, 1, v5
    v_lshlrev_b32 v74, 12, v74
    v_and_b32 v75, 1, v5
    v_lshl_add_u32 v74, v75, 3, v74
    s_lshl_b32 s59, s58, 1
    v_add_u32 v74, s59, v74
    """)
    for r in range(AC, AC + 8, 2):
        a(f"v_mov_b64 {v2(r)}, 0")
    for p in range(2):
        a(f"s_waitcnt vmcnt({nlater + 5 - 5 * p})")
        for i in range(20):
            x = RAW + 20 * p + i
            a(f"v_dot2c_f32_bf16 v{AC + 4 * p + (i & 1)}, v{x}, v72\nv_dot2c_f32_bf16 v{AC + 4 * p + 2 + (i & 1)}, v{x}, v{x}")
    a("s_nop 2")
    for c in range(4):
        a(f"v_cvt_f64_f32 {v2(D + 2 * c)}, v{AC + 2 * c}\nv_cvt_f64_f32 {v2(D + 8 + 2 * c)}, v{AC + 2 * c + 1}")
    for c in range(4):
        a(f"v_add_f64 {v2(D + 2 * c)}, {v2(D + 2 * c)}, {v2(D + 8 + 2 * c)}")
    for sh in (8, 4, 2, 1):
        for c in range(4):
            for h in range(2):
                a(f"v_mov_b32_dpp v{D + 8 + 2 * c + h}, v{D + 2 * c + h} row_ror:{sh} row_mask:0xf bank_mask:0xf")
        for c in range(4):
            a(f"v_add_f64 {v2(D + 2 * c)}, {v2(D + 2 * c)}, {v2(D + 8 + 2 * c)}")
    for p in range(2):
        m, v = D + 4 * p, D + 4 * p + 2
        a(f"""v_mul_f64 {v2(m)}, {v2(m)}, s[92:93]
        v_mul_f64 {v2(v)}, {v2(v)}, s[92:93]
        v_fma_f64 {v2(v)}, -{v2(m)}, {v2(m)}, {v2(v)}
        v_cvt_f32_f64 v76, {v2(m)}
        v_cvt_f32_f64 v77, {v2(v)}
        v_max_f32 v77, 0, v77""")
        round_bf16(a, 78, 76)
        round_bf16(a, 77, 77)
        a("v_add_f32 v77, s94, v77")
        round_bf16(a, 77, 77)
        a("v_sqrt_f32 v77, v77\ns_nop 0")
        round_bf16(a, 79, 77)
        a("v_rcp_f32 v80, v79\ns_nop 0\nv_mul_f32_e64 v81, -v78, v80")
        a(f"""
        v_cmp_eq_u32 vcc, 0, v6
        s_and_saveexec_b64 s[96:97], vcc
        s_mov_b32 s98, {WS_STATB + 32 * p}
        s_mov_b32 s99, {WS_STATA + 8192 * p}
        buffer_store_dwordx2 v[78:79], v73, {s4(S_WS)}, s98 offen sc0 sc1
        buffer_store_dwordx2 v[80:81], v74, {s4(S_WS)}, s99 offen sc0 sc1
        s_mov_b64 exec, -1
        """)


def k1_colsum_loads(a):
    a(f"""
    v_lshrrev_b32 v5, 3, v0
    v_and_b32 v6, 7, v0
    v_mul_u32_u24 v7, 3072, v5
    v_lshl_add_u32 v7, v6, 4, v7
    s_and_b32 s58, s{sXCD}, 1
    s_mul_i32 s58, s58, 30
    s_add_u32 s58, s58, s{sIDX}         ; u
    s_mul_i32 s59, s58, 43
    s_lshr_b32 s59, s59, 9              ; rc = u/12
    s_mul_i32 s60, s59, 12
    s_sub_u32 s60, s58, s60             ; cbl
    s_cmp_ge_u32 s60, 6
    s_cselect_b32 s{S_TMP}, s{S_WU}, s{S_WG}
    s_cselect_b32 s{S_TMP+1}, s{S_WU+1}, s{S_WG+1}
    s_cselect_b32 s96, 6, 0
    s_cselect_b32 s97, 24, 0
    s_mov_b32 s{S_TMP+2}, {640 * 3072}
    s_mov_b32 s{S_TMP+3}, 0x00020000
    s_sub_u32 s60, s60, s96
    s_lshr_b32 s96, s{sXCD}, 1
    s_mul_i32 s96, s96, 6
    s_add_u32 s60, s60, s96             ; n tile
    s_lshl_b32 s96, s60, 7
    s_mul_i32 s98, s59, {128 * 3072}
    s_add_u32 s96, s96, s98
    s_add_u32 s60, s60, s97
    """)
    for i in range(16):
        a(f"s_add_u32 s98, s96, {i * 8 * 3072}\nbuffer_load_dwordx4 {v4(8 + 4 * i)}, v7, {s4(S_TMP)}, s98 offen")


def k1_colsum(a, nlater):
    RAW = 8
    AC = 72
    a("v_mov_b32 v80, 0x00003f80\nv_mov_b32 v81, 0x3f800000")
    for r in range(AC, AC + 8, 2):
        a(f"v_mov_b64 {v2(r)}, 0")
    for i in range(16):
        if i % 4 == 0:
            a(f"s_waitcnt vmcnt({nlater + 12 - i})")
        for k in range(4):
            r = RAW + 4 * i + k
            a(f"v_dot2c_f32_bf16 v{AC + 2 * k}, v{r}, v80\nv_dot2c_f32_bf16 v{AC + 2 * k + 1}, v{r}, v81")
    a(f"""
    v_lshlrev_b32 v80, 5, v0
    v_add_u32 v80, {K1_SCR}, v80
    v_lshlrev_b32 v81, 2, v0
    v_add_u32 v82, {K1_SCR}, v81
    ds_write_b128 v80, {v4(AC)}
    ds_write_b128 v80, {v4(AC + 4)} offset:16
    """)
    for i in range(8):
        a(f"ds_read_b32 v{RAW + i}, v82 offset:{256 * i}")
    a("s_waitcnt lgkmcnt(0)")
    for i in range(1, 8):
        a(f"v_add_f32 v{RAW}, v{RAW}, v{RAW + i}")
    a(f"""
    s_mul_i32 s96, s59, {3072 * 4}
    s_lshl_b32 s97, s60, 8
    s_add_u32 s96, s96, s97
    s_add_u32 s96, s96, {WS_CS}
    buffer_store_dword v{RAW}, v81, {s4(S_WS)}, s96 offen sc0 sc1
    """)


KG_P = 8
KG_TILE = 60
KG_ACC = 16


def kgen_loads(a, sCH, sRND, D=KG_P):
    a(f"""
    s_lshl_b32 s96, s{sRND}, 7
    v_lshl_add_u32 v2, v0, 1, s96
    s_mul_i32 s96, s{sCH}, 384
    s_lshl_b32 s97, s{sCH}, 1
    v_mov_b32 v3, 0
    buffer_load_ushort v{D+4}, v3, {s4(S_DT)}, s97 offen
    buffer_load_ushort v{D}, v2, {s4(S_LA)}, s96 offen
    buffer_load_ushort v{D+1}, v2, {s4(S_AI)}, s96 offen
    buffer_load_ushort v{D+2}, v2, {s4(S_CR)}, s96 offen
    buffer_load_ushort v{D+3}, v2, {s4(S_CI)}, s96 offen
    """)


def kgen_valu(a, tile_done=lambda t: None):
    vLA, vAI, vCR, vCI, vDT = KG_P, KG_P + 1, KG_P + 2, KG_P + 3, KG_P + 4
    lr, th = 13, 14
    T = 16
    nxt = [24]

    def creg():
        r = nxt[0]
        nxt[0] += 2
        assert r + 1 < KG_TILE
        return (r, r + 1)

    def preg():
        r = nxt[0]
        nxt[0] += 1
        assert r < KG_TILE
        return r

    a("s_mov_b32 s88, 0x3fb8aa3b\ns_mov_b32 s89, 0x32a57060\ns_mov_b32 s90, 0x3f317218")

    def expbf(d, x, t):
        a(f"""v_mul_f32 v{t}, s88, v{x}
        v_fma_f32 v{t+1}, v{x}, s88, -v{t}
        v_exp_f32 v{t}, v{t}
        v_fma_f32 v{t+1}, v{x}, s89, v{t+1}
        v_mul_f32 v{t+1}, s90, v{t+1}
        v_fma_f32 v{t}, v{t}, v{t+1}, v{t}""")
        round_bf16(a, d, t)

    for r in range(5):
        a(f"v_lshlrev_b32 v{KG_P + r}, 16, v{KG_P + r}")
    a(f"""v_and_b32 v{T+2}, 0x7fffffff, v{vCR}
    v_and_b32 v{T+3}, 0x7fffffff, v{vCI}
    v_max_u32 v{T+2}, v{T+2}, v{T+3}""")
    expbf(vDT, vDT, T)
    expbf(vLA, vLA, T)
    a(f"""v_mul_f32 v{lr}, v{vLA}, v{vDT}
    v_mul_f32 v{th}, v{vAI}, v{vDT}
    v_mul_f32_e64 v{lr}, -v{lr}, s88
    v_mul_f32 v{th}, 0.15915494, v{th}""")
    wave_max_u32_to_sgpr(a, T + 2, 92, 93)
    a(f"""s_lshr_b32 s92, s92, 23
    s_max_u32 s92, s92, 1
    s_min_u32 s92, s92, 252
    s_sub_u32 s93, 253, s92
    s_lshl_b32 s93, s93, 23             ; sc
    s_add_u32 s92, s92, 2
    s_lshl_b32 s92, s92, 23             ; 2/sc
    v_mul_f32 v{vCR}, s93, v{vCR}
    v_mul_f32 v{vCI}, s93, v{vCI}
    v_mul_f32 v{vDT}, s92, v{vDT}""")

    def anchors(specs):
        ds = [creg() for _ in specs]
        for d, (e, cj) in zip(ds, specs):
            a(f"v_mul_f32 v{d[0]}, {f32(e)}, v{lr}\nv_mul_f32 v{d[1]}, {f32(e)}, v{th}")
        for d in ds:
            a(f"v_exp_f32 v{d[0]}, v{d[0]}\nv_fract_f32 v{d[1]}, v{d[1]}")
        for i, d in enumerate(ds):
            a(f"v_cos_f32 v{T + 2 * i}, v{d[1]}\nv_sin_f32 v{T + 2 * i + 1}, v{d[1]}")
        for i, (d, (e, cj)) in enumerate(zip(ds, specs)):
            a(f"v_mul_f32_e64 v{d[1]}, {'-' if cj else ''}v{d[0]}, v{T + 2 * i + 1}\nv_mul_f32 v{d[0]}, v{d[0]}, v{T + 2 * i}")
        return ds

    tsel = [0]

    def cmul(x, y, d=None):
        d = d or creg()
        t = T + 2 * (tsel[0] & 1)
        tsel[0] += 1
        a(f"""v_mul_f32 v{t}, v{x[1]}, v{y[1]}
        v_mul_f32 v{t+1}, v{x[0]}, v{y[1]}
        v_fma_f32 v{d[0]}, v{x[0]}, v{y[0]}, -v{t}
        v_fma_f32 v{d[1]}, v{x[1]}, v{y[0]}, v{t+1}""")
        return d

    def packm(x):
        d = preg()
        a(f"v_cvt_pk_f16_f32 v{d}, v{x[0]}, v{x[1]}")
        return d

    def packpair(x, y, dre, dim):
        a(f"v_cvt_pk_f16_f32 v{dre}, {x[0]}, {y[0]}\nv_cvt_pk_f16_f32 v{dim}, {x[1]}, {y[1]}")

    def V(x): return (f"v{x[0]}", f"v{x[1]}")

    def pmul(sre, sim, m, dre, dim):
        a(f"""v_pk_mul_f16 v{dre}, v{sre}, v{m} op_sel:[0,0] op_sel_hi:[1,0]
        v_pk_mul_f16 v{dim}, v{sre}, v{m} op_sel:[0,1] op_sel_hi:[1,1]
        v_pk_fma_f16 v{dre}, v{sim}, v{m}, v{dre} op_sel:[0,1,0] op_sel_hi:[1,1,1] neg_lo:[0,1,0] neg_hi:[0,1,0]
        v_pk_fma_f16 v{dim}, v{sim}, v{m}, v{dim} op_sel:[0,0,0] op_sel_hi:[1,0,1]""")

    def RE(t, i): return KG_TILE + 16 * t + i
    def IM(t, i): return KG_TILE + 16 * t + 8 + i

    mark = nxt[0]
    z8, z32 = anchors([(8.0, True), (32.0, True)])
    a("s_nop 0")
    z16 = cmul(z8, z8); z64 = cmul(z32, z32); z24 = cmul(z16, z8); z96 = cmul(z64, z32)
    packpair(("1.0", "0"), V(z8), RE(0, 0), IM(0, 0))
    packpair(V(z16), V(z24), RE(0, 1), IM(0, 1))
    ms = [packm(X) for X in (z32, z64, z96)]
    for i, m in enumerate(ms):
        for b in range(2):
            pmul(RE(0, b), IM(0, b), m, RE(0, 2 + 2 * i + b), IM(0, 2 + 2 * i + b))
    tile_done(0)
    nxt[0] = mark
    z1, z128, z1024 = anchors([(1.0, False), (128.0, False), (1024.0, False)])
    c = [(vCR, vCI)]
    for i in range(7):
        c.append(cmul(c[-1], z1))
    m128 = packm(z128)
    for i in range(4):
        packpair(V(c[2 * i]), V(c[2 * i + 1]), RE(1, i), IM(1, i))
    for i in range(4):
        pmul(RE(1, i), IM(1, i), m128, RE(1, 4 + i), IM(1, 4 + i))
    tile_done(1)
    p02 = creg(); p46 = creg(); p04 = creg()
    packpair(V(c[0]), V(c[2]), *p02); packpair(V(c[4]), V(c[6]), *p46); packpair(V(c[0]), V(c[4]), *p04)
    z256 = cmul(z128, z128, c[1]); b0 = cmul(c[0], z1024, c[7]); z384 = cmul(z256, z128, c[2]); z512 = cmul(z256, z256, c[3])
    b1 = cmul(b0, z128, z1); z640 = cmul(z512, z128, c[4]); z768 = cmul(z384, z384, c[5]); z896 = cmul(z768, z128, c[6])
    M = {k: packm(v) for k, v in (("256", z256), ("384", z384), ("512", z512), ("640", z640), ("768", z768), ("896", z896))}
    c2048 = cmul(b0, z1024, z256)
    for i, k in enumerate(("256", "384")):
        pmul(p02[0], p02[1], M[k], RE(2, 2 * i), IM(2, 2 * i))
        pmul(p46[0], p46[1], M[k], RE(2, 2 * i + 1), IM(2, 2 * i + 1))
    for i, k in enumerate(("512", "640", "768", "896")):
        pmul(p04[0], p04[1], M[k], RE(2, 4 + i), IM(2, 4 + i))
    tile_done(2)
    packpair(V(b0), V(b1), RE(3, 0), IM(3, 0))
    for i, k in enumerate(("256", "512", "768")):
        pmul(RE(3, 0), IM(3, 0), M[k], RE(3, 1 + i), IM(3, 1 + i))
    packpair(V(c2048), ("0", "0"), RE(3, 4), IM(3, 4))
    a(f"v_mov_b32 v{RE(3, 5)}, 0\nv_mov_b32 v{IM(3, 5)}, 0\nv_mov_b64 {v2(RE(3, 6))}, 0\nv_mov_b64 {v2(IM(3, 6))}, 0")
    tile_done(3)


def kgen_addr(a, sKB):
    T = 16
    a(f"""
    v_bfe_u32 v{T}, v0, 1, 2
    v_lshlrev_b32 v{T+1}, 6, v0
    v_add_u32 v{T+1}, s{sKB}, v{T+1}
    v_lshl_add_u32 v2, v{T}, 4, v{T+1}
    v_xor_b32 v3, 16, v2
    v_xor_b32 v4, 32, v2
    v_xor_b32 v5, 48, v2
    v_lshrrev_b32 v{T}, 4, v0                ; hq
    v_bfe_u32 v{T+1}, v0, 2, 2               ; r
    v_and_b32 v{T+2}, 3, v0                  ; c
    v_lshrrev_b32 v{T+3}, 1, v{T+1}
    v_lshl_add_u32 v{T+3}, v{T}, 1, v{T+3}
    v_lshlrev_b32 v6, 6, v{T+3}
    v_and_b32 v{T+1}, 1, v{T+1}
    v_lshrrev_b32 v{T+3}, 1, v{T+2}
    v_lshl_add_u32 v{T+1}, v{T+1}, 1, v{T+3}
    v_xor_b32 v{T+1}, v{T+1}, v{T}
    v_lshl_add_u32 v6, v{T+1}, 4, v6
    v_and_b32 v{T+2}, 1, v{T+2}
    v_lshl_add_u32 v6, v{T+2}, 3, v6
    v_add_u32 v6, s{sKB}, v6
    """)


def kgen_all(a):
    lq = LQ(a)

    def tile_done(t):
        for q in range(4):
            lq.issue(f"w{t}", f"ds_write_b128 v{2 + q}, {v4(KG_TILE + 16 * t + 4 * q)}")
        for k in range(4):
            for s in range(2):
                lq.issue(f"f{t}{k}", f"ds_read_b64_tr_b16 {v2(KG_TILE + 16 * t + 4 * k + 2 * s)}, v6 offset:{1024 * k + 512 * s}")
    kgen_valu(a, tile_done)
    for t in range(1, 4):
        for k in range(4):
            lq.wait(f"f{t}{k}")
            c = v4(KG_ACC + 4 * (t - 1)) if k else "0"
            a(f"v_mfma_f32_16x16x32_f16 {v4(KG_ACC + 4 * (t - 1))}, {v4(KG_TILE + 16 * t + 4 * k)}, {v4(KG_TILE + 4 * k)}, {c}")
    a("s_nop 7")
    for r in range(KG_ACC, KG_ACC + 12):
        a(f"v_mul_f32 v{r}, v{r}, v{KG_P + 4}")


def kgen_final(a, sCH, sKB, sPB, store, sync):
    from_lds = True
    KACC = KG_ACC
    P = 88
    T = 80
    a(f"v_lshlrev_b32 v{T}, 4, v0\nv_add_u32 v{T+1}, s{sKB}, v{T}\nv_add_u32 v{T+2}, s{sPB}, v{T}")
    a(f"v_mov_b32 v112, v{T+2}")
    a(f"v_mov_b32 v48, 0\nv_mov_b32 v49, 0\nv_mov_b32 v50, 0\nv_mov_b32 v51, 0")
    for i in range(3):
        a(f"ds_write_b128 v{T+1}, v[48:51] offset:{1024 * i}")
    a(f"s_mov_b64 exec, 0xffff\nds_write_b128 v{T+1}, v[48:51] offset:3072\ns_mov_b64 exec, -1")
    j, hq = T + 2, T + 3
    b0, b2 = 52, 53
    a1 = 54
    a(f"""
    v_and_b32 v{j}, 15, v0
    v_lshrrev_b32 v{hq}, 4, v0
    v_lshrrev_b32 v{T+4}, 1, v{hq}
    v_and_b32 v{T+5}, 1, v{hq}
    v_lshlrev_b32 v{T+6}, 7, v{T+4}
    v_lshl_add_u32 v{T+6}, v{T+5}, 2, v{T+6}
    v_lshl_add_u32 v{T+6}, v{j}, 3, v{T+6}
    v_sub_u32 v{T+6}, 285, v{T+6}
    v_lshl_add_u32 v{b0}, v{T+6}, 1, s{sKB}
    v_lshlrev_b32 v{T+6}, 6, v{T+5}                 ; 64*(hq&1)
    v_add_u32 v{T+6}, s{sKB}, v{T+6}
    v_lshl_add_u32 v{T+7}, v{j}, 2, v{T+6}
    v_lshl_add_u32 v{T+6}, v{j}, 1, v{T+6}
    v_cmp_gt_u32 vcc, 2, v{hq}
    """)
    for r in range(4):
        lo = (T1O if r & 1 else T1E) + 2 * (59 + (r >> 1))
        hi = (T2O + 60 if r & 1 else T2E + 58) + 32 * (r >> 1)
        a(f"v_add_u32 v60, {lo}, v{T+7}\nv_add_u32 v61, {hi}, v{T+6}\nv_cndmask_b32 v{a1 + r}, v61, v60, vcc")
    a(f"""
    s_add_u32 s96, s{sKB}, {T0E + 64}
    v_writelane_b32 v{a1}, s96, 0
    s_add_u32 s96, s{sKB}, {T0E + 60}
    v_writelane_b32 v{a1 + 1}, s96, 0
    s_add_u32 s96, s{sKB}, {T1E + 246}
    v_writelane_b32 v{a1}, s96, 32
    v_and_b32 v60, 1, v{j}
    v_mul_u32_u24 v60, {T3OE + 30 - (T3EE + 28)}, v60
    v_lshrrev_b32 v61, 1, v{j}
    v_lshl_add_u32 v61, v{hq}, 5, v61
    v_lshl_add_u32 v{b2}, v61, 1, v60
    s_add_u32 s96, s{sKB}, {T3EE + 28}
    v_add_u32 v{b2}, s96, v{b2}
    v_mov_b32 v62, s{sKB}
    """)
    sync()
    for w in range(2):
        for t in range(3):
            a(f"ds_read_b128 {v4(P + 12 * w + 4 * t)}, v112 offset:{4096 * w + 1024 * t}")
    a("s_waitcnt lgkmcnt(0)")
    if from_lds:
        for r in range(12):
            a(f"v_add_f32 v{KACC + r}, v{KACC + r}, v{P + r}")
        for r in range(12):
            a(f"v_add_f32 v{KACC + r}, v{KACC + r}, v{P + 12 + r}")
    a(f"v_max3_f32 v63, abs(v{KACC}), abs(v{KACC+1}), abs(v{KACC+2})")
    for r in range(3, 11, 2):
        a(f"v_max3_f32 v63, v63, abs(v{KACC + r}), abs(v{KACC + r + 1})")
    a(f"v_max_f32_e64 v63, v63, abs(v{KACC + 11})")
    wave_max_u32_to_sgpr(a, 63, 92, 93)
    a(f"""s_lshr_b32 s92, s92, 23
    s_max_u32 s92, s92, 1
    s_min_u32 s92, s92, 252
    s_sub_u32 s93, 253, s92
    s_lshl_b32 s93, s93, 23             ; 1/sigma
    s_add_u32 s92, s92, 1
    s_lshl_b32 s92, s92, 23             ; sigma""")
    for r in range(12):
        a(f"v_mul_f32 v{KACC + r}, s93, v{KACC + r}")
    H = 64
    for i in range(6):
        a(f"v_cvt_pk_f16_f32 v{H + i}, v{KACC + 2 * i}, v{KACC + 2 * i + 1}")

    def w16(addr, r, tile, off):
        reg = H + 2 * tile + (r >> 1)
        a(f"ds_write_b16{'_d16_hi' if r & 1 else ''} v{addr}, v{reg} offset:{off}")
    for r in range(4):
        w16(b0, r, 0, T0E + 2 * (3 - r))
        w16(b0, r, 0, T0O - 2 + 2 * (3 - r))
        w16(a1 + r, r, 1, 0)
    a("s_mov_b32 exec_hi, 0")
    for r in range(1, 4):
        w16(b2, r, 2, 16 * r)
        w16(b2, r, 2, 16 * r + 158)
    a("s_mov_b32 exec_lo, 0xfffffffe\ns_mov_b32 exec_hi, 1")
    w16(b2, 0, 2, 0)
    w16(b2, 0, 2, 158)
    a("s_mov_b64 exec, 1")
    w16(62, 0, 1, T0E + 62); w16(62, 0, 1, T0O + 62); w16(62, 0, 1, T0O + 60); w16(62, 1, 1, T0O + 58)
    w16(62, 0, 2, TK1024)
    a(f"v_mov_b32 v63, s92\nds_write_b32 v62, v63 offset:{TSIG}")
    a("s_mov_b32 exec_lo, 0\ns_mov_b32 exec_hi, 1")
    w16(62, 0, 1, T1O + 246)
    a("s_mov_b64 exec, -1")
    if True:
        Lsk = store()
        for i in range(4):
            a(f"ds_read_b128 {v4(P + 4 * i)}, v{T+1} offset:{1024 * i}")
        a(f"s_mul_i32 s96, s{sCH}, {KT_BYTES}\ns_add_u32 s96, s96, {WS_KT}")
        for i in range(3):
            a(f"s_waitcnt lgkmcnt({3 - i})\nbuffer_store_dwordx4 {v4(P + 4 * i)}, v{T}, {s4(S_WS)}, s96 offen offset:{1024 * i}")
        a(f"s_waitcnt lgkmcnt(0)\ns_mov_b64 exec, 0xffff\nbuffer_store_dwordx4 {v4(P + 12)}, v{T}, {s4(S_WS)}, s96 offen offset:3072\ns_mov_b64 exec, -1")
        a.label(Lsk)


def kernel1(a, parts):
    a.raw(".globl k1_kernel\n.p2align 8\n.type k1_kernel,@function\nk1_kernel:")
    a(f"""
    s_cmp_ge_u32 s2, 256
    s_cbranch_scc1 L_k1_end
    s_load_dwordx16 s[64:79], s[0:1], 0
    s_load_dwordx8 s[80:87], s[0:1], 64
    s_load_dwordx4 s[88:91], s[0:1], 96
    v_lshrrev_b32 v1, 6, v0
    v_and_b32 v0, 63, v0
    s_and_b32 s{sXCD}, s2, 7
    v_readfirstlane_b32 s{sWAVE}, v1
    s_lshr_b32 s{sIDX}, s2, 3
    s_mul_i32 s58, s{sIDX}, 52
    s_lshr_b32 s58, s58, 8              ; q = idx/5
    s_mul_i32 s59, s58, 5
    s_sub_u32 s59, s{sIDX}, s59         ; r
    s_and_b32 s60, s{sXCD}, 1
    s_mul_i32 s60, s60, 5
    s_add_u32 s{sMI}, s60, s59
    s_lshr_b32 s60, s{sXCD}, 1
    s_mul_i32 s60, s60, 6
    s_add_u32 s{sNI}, s60, s58
    s_mul_i32 s{sROW0}, s{sMI}, 208
    s_min_u32 s{sROW0}, s{sROW0}, 1840
    s_mul_i32 s{sGI}, s{sXCD}, 30
    s_add_u32 s{sGI}, s{sGI}, s{sIDX}
    """)
    code_prefetch(a, "k1_kernel", "L_k1_end", 7, sIDX, sWAVE, PFW, 126, 96)
    a(f"""
    s_add_u32 s58, s{sWAVE}, 2
    s_sub_u32 s59, s{sWAVE}, 9
    s_cmp_lt_u32 s{sWAVE}, 9
    s_cselect_b32 s58, s58, s59
    s_cmp_lt_u32 s{sWAVE}, 11
    s_cselect_b32 s{sWAVE}, s58, s{sWAVE}
    """)
    a("s_waitcnt lgkmcnt(0)")
    srd(a, S_X, 64, 2048 * 1280)
    srd(a, S_WG, 80, 640 * 3072)
    srd(a, S_WU, 82, 640 * 3072)
    srd(a, S_WS, 90, 0x4000000 if PROF else WS_END + 4096)
    srd(a, S_DBG, 88, 256)
    srd(a, S_WD, 84, 1536 * 1280)
    if PROF:
        a(f"v_mov_b32 v{vSTAMP}, 0")
    stamp(a, 0, True)
    stamp(a, 1)
    if "diag" in EXP:
        Ld = a.newlabel("diag")
        a(f"""s_cmp_lg_u32 s{sWAVE}, 8
        s_cbranch_scc1 {Ld}
        s_memrealtime s[100:101]
        s_lshl_b32 s98, s2, 2
        s_add_u32 s98, s98, {WS_END}
        v_mov_b32 v5, 0
        s_waitcnt lgkmcnt(0)
        v_mov_b32 v6, s100
        s_mov_b64 exec, 1
        buffer_store_dword v6, v5, {s4(S_WS)}, s98 offen
        s_mov_b64 exec, -1""")
        a.label(Ld)
    srd(a, S_LA, 66, 640 * 384)
    srd(a, S_AI, 68, 640 * 384)
    srd(a, S_CR, 70, 640 * 384)
    srd(a, S_CI, 72, 640 * 384)
    srd(a, S_DT, 74, 1280)
    a("s_mov_b32 s96, s76\ns_mov_b32 s97, s77")
    srd(a, S_OUT, 86, 2048 * 1280)
    srd(a, S_DSK, 96, 1280)
    a(f"""
    s_lshl_b32 s{sMI2}, s{sXCD}, 2
    s_and_b32 s96, s{sIDX}, 3
    s_add_u32 s{sMI2}, s{sMI2}, s96
    s_lshr_b32 s{sNI2}, s{sIDX}, 2
    """)
    import gen2
    sCH, sRND, sKB, sGRP, sGP = 65, 66, 67, 68, 69
    a(f"""
    s_lshl_b32 s{sGP}, s{sXCD}, 5
    s_add_u32 s{sGP}, s{sGP}, s{sIDX}          ; g'
    s_cmp_ge_u32 s{sWAVE}, 2
    s_cbranch_scc1 L_k1_w
    """)
    k1_loader(a, parts)

    def chan(sd, sg):
        a(f"""s_lshl_b32 s{sd}, s{sGP}, 1
        s_add_u32 s{sd}, s{sd}, s{sg}
        s_lshr_b32 s96, s{sGP}, 1
        s_add_u32 s96, s96, 512
        s_cmp_eq_u32 s{sg}, 2
        s_cselect_b32 s{sd}, s96, s{sd}""")

    a.label("L_k1_w")
    a(f"""
    s_setprio 2
    s_cmp_ge_u32 s{sWAVE}, 11
    s_cbranch_scc1 L_k1_side
    ; K-gen round rho = w-2 : grp = rho/3, rnd = rho%3 ; grp 2 only in even g'
    s_sub_u32 s{sRND}, s{sWAVE}, 2
    s_mul_i32 s{sGRP}, s{sRND}, 86
    s_lshr_b32 s{sGRP}, s{sGRP}, 8
    s_mul_i32 s96, s{sGRP}, 3
    s_sub_u32 s{sRND}, s{sRND}, s96
    s_and_b32 s96, s{sGP}, 1
    s_lshl_b32 s96, s96, 1
    s_and_b32 s96, s96, s{sGRP}
    s_cmp_lg_u32 s96, 0
    s_cbranch_scc1 L_k1_idle
    s_sub_u32 s{sKB}, s{sWAVE}, 2
    s_lshl_b32 s{sKB}, s{sKB}, 12
    s_add_u32 s{sKB}, s{sKB}, {2 * SLOT}
    s_add_u32 s70, s{sKB}, 4096
    s_mul_i32 s71, s{sGRP}, {TBL}
    s_add_u32 s71, s71, {K1_KG}
    """)
    chan(sCH, sGRP)
    kgen_loads(a, sCH, sRND)
    kgen_addr(a, sKB)
    a("s_setprio 0\ns_waitcnt vmcnt(0)")
    stamp(a, 8)
    kgen_all(a)
    stamp(a, 10)
    Lf = a.newlabel("kfin")
    a(f"s_cmp_eq_u32 s{sRND}, 0\ns_cbranch_scc1 {Lf}\nv_lshlrev_b32 v5, 4, v0\nv_add_u32 v5, s{sKB}, v5")
    for t in range(3):
        a(f"ds_write_b128 v5, {v4(KG_ACC + 4 * t)} offset:{1024 * t}")
    a("s_waitcnt lgkmcnt(0)")
    a.label("L_k1_idle")
    a("s_mov_b32 s70, 1\ns_branch L_k1_pdone")
    a.label(Lf)

    def store():
        L = a.newlabel("nost")
        a(f"s_cmp_lg_u32 s{sGRP}, 2\ns_cbranch_scc1 {L}")
        return L
    kgen_final(a, sCH, 71, 70, store, lambda: a("s_barrier\ns_setprio 3"))
    stamp(a, 11)
    a(f"s_mov_b32 s70, 0\ns_branch L_k1_pdone")

    a.label("L_k1_side")
    a(f"""
    s_cmp_eq_u32 s{sWAVE}, 11
    s_cbranch_scc1 L_k1_xs
    s_cmp_eq_u32 s{sWAVE}, 12
    s_cbranch_scc1 L_k1_xc
    s_cmp_lt_u32 s{sWAVE}, 15
    s_cbranch_scc1 L_k1_xu
    v_mov_b32 v3, {K1_CTL}
    v_mov_b64 v[4:5], 0
    v_mov_b64 v[6:7], 0
    s_mov_b64 exec, 1
    ds_write_b128 v3, v[4:7]
    ds_write_b128 v3, v[4:7] offset:16
    ds_write_b128 v3, v[4:7] offset:32
    s_lshl_b32 s96, s{sGP}, 2
    s_add_u32 s96, s96, {WS_FY}
    buffer_store_dword v4, v4, {s4(S_WS)}, s96 offen sc0 sc1
    s_lshl_b32 s96, s{sMI}, 7
    s_lshl_b32 s97, s{sNI}, 2
    s_add_u32 s96, s96, s97
    s_add_u32 s96, s96, {WS_FH}
    s_cmp_ge_u32 s{sIDX}, 30
    s_cselect_b32 s96, {WS_FH + 15 * 128}, s96
    buffer_store_dword v4, v4, {s4(S_WS)}, s96 offen sc0 sc1
    s_mov_b64 exec, -1
    s_branch L_k1_idle
    """)
    a.label("L_k1_xs")
    k1_stats_loads(a)
    a("s_barrier")
    k1_stats(a, 0)
    stamp(a, 8)
    a("s_branch L_k1_x")
    a.label("L_k1_xc")
    a(f"s_cmp_ge_u32 s{sIDX}, 30\ns_cbranch_scc1 L_k1_idle")
    k1_colsum_loads(a)
    a("s_barrier")
    k1_colsum(a, 0)
    stamp(a, 8)
    a("s_branch L_k1_x")
    a.label("L_k1_xu")
    a(f"s_sub_u32 s{gen2.sSUB}, s{sWAVE}, 13\ns_mov_b32 s{gen2.sUB}, {K1_STA}")
    gen2.k1_unit_pre(a)
    a("s_barrier")
    gen2.k1_unit(a)
    stamp(a, 8)
    a("s_branch L_k1_x")
    a.label("L_k1_pdone")
    a(f"""
    s_cmp_ge_u32 s{sWAVE}, 10
    s_cbranch_scc1 L_k1_x0
    s_cmp_ge_u32 s{sIDX}, 30
    s_cbranch_scc1 L_k1_gsp
    s_cmp_ge_u32 s{sWAVE}, 6
    s_cbranch_scc1 L_k1_g2
    s_cmp_ge_u32 s{sWAVE}, 4
    s_cbranch_scc1 L_k1_g1
    """)
    for v in range(3):
        a.label(f"L_k1_g{v}")
        k1_gemm(a, v)
    a.label("L_k1_gsp")
    Lp2 = a.newlabel("p1")
    a(f"s_waitcnt vmcnt(0) lgkmcnt(0)\ns_cmp_eq_u32 s70, 0\ns_cbranch_scc1 {Lp2}\ns_barrier")
    a.label(Lp2)
    a("s_barrier\n" * 10)
    a("s_branch L_k1_p2")
    a.label("L_k1_hsig")
    Lh = a.newlabel("hs")
    a(f"""s_waitcnt vmcnt(0)
    v_mov_b32 v3, {K1_CTL}
    v_mov_b32 v4, 1
    v_mov_b32 v5, 0
    s_mov_b64 exec, 1
    ds_add_rtn_u32 v6, v3, v4 offset:16
    s_waitcnt lgkmcnt(0)
    v_readfirstlane_b32 s96, v6
    s_cmp_lg_u32 s96, 7
    s_cbranch_scc1 {Lh}
    s_lshl_b32 s96, s{sMI}, 7
    s_lshl_b32 s97, s{sNI}, 2
    s_add_u32 s96, s96, s97
    s_add_u32 s96, s96, {WS_FH}
    buffer_store_dword v4, v5, {s4(S_WS)}, s96 offen sc0 sc1""")
    a.label(Lh)
    a("s_mov_b64 exec, -1")
    stamp(a, 12)
    a.label("L_k1_p2")
    a(f"s_cmp_ge_u32 s{sWAVE}, 6\ns_cbranch_scc1 L_k1_p2b")
    gen2.p2_gemm(a)
    a.label("L_k1_p2b")
    gen2.p2_base(a)

    a.label("L_k1_x0")
    a("s_waitcnt lgkmcnt(0)\ns_barrier")
    a.label("L_k1_x")
    a(f"""
    s_setprio 0
    s_waitcnt lgkmcnt(0)
    s_barrier                           ; B_init
    """)
    a.label("L_k1_x1")
    a(f"""
    s_setprio 0
    s_barrier                           ; B_0
    s_waitcnt vmcnt(0)
    s_barrier
    s_cmp_lg_u32 s{sWAVE}, 15
    s_cbranch_scc1 L_k1_x2
    s_and_b32 s96, s2, 63
    s_lshl_b32 s96, s96, 2
    v_mov_b32 v5, s96
    v_mov_b32 v6, 1
    s_mov_b64 exec, 1
    buffer_atomic_add v6, v5, {s4(S_DBG)}, 0 offen sc1
    s_endpgm
    """)
    a.label("L_k1_x2")
    a(f"""
    s_sub_u32 s{sGRP}, s{sWAVE}, 11
    s_min_u32 s{sGRP}, s{sGRP}, 4       ; logical 11,12,13 -> 0,1,2 ; 14 -> 3 ; 10 -> 4
    s_cmp_ge_u32 s{sGRP}, 3
    s_cselect_b32 s59, 1, 0
    s_cselect_b32 s96, 3, 0
    s_mov_b32 s70, s59
    s_sub_u32 s{sGRP}, s{sGRP}, s96
    s_and_b32 s97, s{sGP}, 1
    s_mul_i32 s61, s{sGRP}, {gen2.C_SZ}
    s_add_u32 s61, s61, {2 * SLOT}
    s_cmp_eq_u32 s{sGRP}, 2
    s_cselect_b32 s59, s97, s59         ; half
    s_cselect_b32 s61, {2 * SLOT - gen2.C_SZ}, s61      ; region
    s_mul_i32 s60, s{sGRP}, {TBL}
    s_add_u32 s60, s60, {K1_KG}         ; tables
    s_mov_b32 s62, {K1_STA}
    """)
    chan(58, sGRP)
    sliced(a, lambda b: gen2.conv_setup(b, 61, 60, 58), 4)
    a("s_barrier")
    Lnp = a.newlabel("noprep"); Lnt = a.newlabel("notab")
    a(f"""s_lshl_b32 s96, s{sGRP}, 2
    s_add_u32 s96, s96, {K1_CTL}
    v_mov_b32 v3, s96
    v_mov_b32 v4, 1
    s_cmp_lg_u32 s70, 0
    s_cbranch_scc1 {Lnp}""")
    gen2.conv_xload(a, 58, 8)
    a(f"""s_and_b32 s96, s{sGP}, 1
    s_lshl_b32 s96, s96, 1
    s_and_b32 s96, s96, s{sGRP}
    s_cmp_eq_u32 s96, 0
    s_cbranch_scc1 {Lnt}
    s_mov_b32 m0, s60
    s_mul_i32 s96, s58, {KT_BYTES}
    s_add_u32 s96, s96, {WS_KT}""")
    for i in range(3):
        a(f"buffer_load_dwordx4 v2, {s4(S_WS)}, s96 offen offset:{1024 * i} sc0 sc1 lds")
    a(f"s_mov_b64 exec, 0xffff\nbuffer_load_dwordx4 v2, {s4(S_WS)}, s96 offen offset:3072 sc0 sc1 lds\ns_mov_b64 exec, -1")
    a.label(Lnt)
    Lpl = a.newlabel("pl")
    a(f"s_barrier\ns_barrier\ns_setprio {PREP_PRIO}\nv_mov_b32 v5, {K1_CTL}")
    a.label(Lpl)
    a(f"ds_read_b32 v7, v5 offset:12\ns_sleep 1\ns_waitcnt vmcnt(0) lgkmcnt(0)\nv_readfirstlane_b32 s96, v7\ns_cmp_ge_u32 s96, 1\ns_cbranch_scc0 {Lpl}")
    stamp(a, 2)
    gen2.conv_prep2(a, 61, 62)
    a("ds_write_b32 v3, v4\ns_setprio 0")
    stamp(a, 4)
    a("s_branch L_k1_cgo")
    a.label(Lnp)
    a("s_barrier\ns_barrier")
    Lw2 = a.newlabel("wprep")
    a.label(Lw2)
    a(f"ds_read_b32 v7, v3\ns_sleep 1\ns_waitcnt lgkmcnt(0)\nv_readfirstlane_b32 s96, v7\ns_cmp_ge_u32 s96, 1\ns_cbranch_scc0 {Lw2}")
    a.label("L_k1_cgo")
    a(f"s_setprio {CONV_PRIO}")
    stamp(a, 5)
    gen2.conv_run(a, 59)
    stamp(a, 12)
    Ly = a.newlabel("ys")
    a(f"""v_mov_b32 v3, {K1_CTL}
    s_mov_b64 exec, 1
    ds_add_u32 v3, v4 offset:32
    s_mov_b64 exec, -1
    s_barrier
    s_waitcnt vmcnt(0)
    v_mov_b32 v3, {K1_CTL}
    v_mov_b32 v5, 0
    s_mov_b64 exec, 1
    ds_add_rtn_u32 v6, v3, v4 offset:20
    s_waitcnt lgkmcnt(0)
    v_readfirstlane_b32 s96, v6
    s_cmp_lg_u32 s96, 4
    s_cbranch_scc1 {Ly}
    s_lshl_b32 s96, s{sGP}, 2
    s_add_u32 s96, s96, {WS_FY}
    buffer_store_dword v4, v5, {s4(S_WS)}, s96 offen sc0 sc1""")
    a.label(Ly)
    a("s_mov_b64 exec, -1")
    stamp_end(a, 0, S_WS, sWAVE)
    a.label("L_k1_end")
    a("s_endpgm")


def descriptor(name, vgpr, sgpr=102):
    acc = (vgpr + 3) // 4 * 4
    return f""".amdhsa_kernel {name}
  .amdhsa_next_free_vgpr {vgpr}
  .amdhsa_next_free_sgpr {sgpr}
  .amdhsa_accum_offset {acc}
  .amdhsa_group_segment_fixed_size 0
  .amdhsa_kernarg_size 112
  .amdhsa_user_sgpr_count 2
  .amdhsa_user_sgpr_kernarg_segment_ptr 1
  .amdhsa_system_sgpr_workgroup_id_x 1
.end_amdhsa_kernel
"""


HEADER = open("cdna_kernels/" + NAME + ".s.ref").read().split("; Override launch geometry")[0]


def build():
    a = Asm()
    kernel1(a, {})
    import re
    a.L = [re.sub(r"(buffer_store_dwordx[24] .* s\[20:23\], .* offen(?: offset:\d+)?)$", r"\1 sc1", l) for l in a.L]
    out = HEADER
    out += f"; @launch kernel=k1_kernel grid=(256,1,1) block=(1024,1,1) lds={K1_LDS}\n"
    desc = descriptor("k1_kernel", 128)
    out += '.amdgcn_target "amdgcn-amd-amdhsa--gfx950"\n.text\n' + a.text()
    out += '.section .rodata,"a"\n.p2align 6\n' + desc
    return out


if __name__ == "__main__":
    sys.modules["gen"] = sys.modules["__main__"]
    path = sys.argv[1] if len(sys.argv) > 1 else "k.s"
    open(path, "w").write(build())
    print("wrote", path)
```

```python
from gen import *

USCR = 2 * SLOT
sSUB = 94
sU0, sU1, sU2, sUB = 61, 62, 63, 95
vUA = 100


def k1_unit_pre(a):
    Lw = a.newlabel("uwd"); Le = a.newlabel("upe")
    a(f"""
    s_cmp_ge_u32 s{sIDX}, 20
    s_cselect_b32 s96, 12, 9
    s_lshl_b32 s96, s96, 10
    s_mul_i32 s96, s96, s{sSUB}
    s_add_u32 s{sUB}, s{sUB}, s96
    v_lshrrev_b32 v{vUA}, 3, v0
    v_and_b32 v{vUA+1}, 7, v0
    v_mul_u32_u24 v{vUA+2}, 1280, v{vUA}
    v_lshl_add_u32 v{vUA+2}, v{vUA+1}, 4, v{vUA+2}
    s_cmp_ge_u32 s{sIDX}, 20
    s_cbranch_scc1 {Lw}
    ; ---- x transpose unit: v = xn*20+idx ; rb = 8xm + v/10 ; cb = v%10
    s_lshr_b32 s96, s{sXCD}, 1
    s_mul_i32 s96, s96, 20
    s_add_u32 s96, s96, s{sIDX}
    s_mul_i32 s97, s96, 103
    s_lshr_b32 s97, s97, 10              ; v/10
    s_mul_i32 s98, s97, 10
    s_sub_u32 s{sU1}, s96, s98           ; cb
    s_and_b32 s96, s{sXCD}, 1
    s_lshl_b32 s96, s96, 3
    s_add_u32 s97, s97, s96              ; rb
    s_lshl_b32 s97, s97, 1
    s_add_u32 s97, s97, s{sSUB}
    s_lshl_b32 s{sU0}, s97, 6
    s_mul_i32 s96, s{sU0}, 1280
    s_lshl_b32 s97, s{sU1}, 7
    s_add_u32 s96, s96, s97
    """)
    for p in range(8):
        a(f"s_add_u32 m0, s{sUB}, {1024 * p}\ns_add_u32 s97, s96, {p * 8 * 1280}\nbuffer_load_dwordx4 v{vUA+2}, {s4(S_X)}, s97 offen lds")
    a(f"s_branch {Le}")
    a.label(Lw)
    a(f"""
    s_mul_i32 s96, s{sXCD}, 12
    s_add_u32 s96, s96, s{sIDX}
    s_sub_u32 s96, s96, 20
    s_lshr_b32 s{sU0}, s96, 1            ; kappa
    s_and_b32 s96, s96, 1
    s_mul_i32 s96, s96, 5
    s_mul_i32 s97, s{sSUB}, 3
    s_add_u32 s{sU1}, s96, s97
    s_mul_i32 s96, s{sU0}, {32 * 1280}
    s_lshl_b32 s97, s{sU1}, 7
    s_add_u32 s96, s96, s97
    """)
    for k in range(3):
        if k == 2:
            a(f"s_cmp_eq_u32 s{sSUB}, 1\ns_cbranch_scc1 {Le}")
        for p in range(4):
            a(f"s_add_u32 m0, s{sUB}, {4096 * k + 1024 * p}\ns_add_u32 s97, s96, {p * 8 * 1280 + 128 * k}\nbuffer_load_dwordx4 v{vUA+2}, {s4(S_WD)}, s97 offen lds")
    a.label(Le)


def k1_unit(a):
    Lw = a.newlabel("uwd"); Le = a.newlabel("uend")
    R = 8
    a(f"""
    v_lshrrev_b32 v{vUA+3}, 2, v0
    v_and_b32 v{vUA+4}, 3, v0
    v_lshlrev_b32 v{vUA+3}, 7, v{vUA+3}
    v_lshl_add_u32 v{vUA+3}, v{vUA+4}, 3, v{vUA+3}
    v_add_u32 v{vUA+3}, s{sUB}, v{vUA+3}
    s_waitcnt vmcnt(0)
    s_cmp_ge_u32 s{sIDX}, 20
    s_cbranch_scc1 {Lw}
    v_and_b32 v{vUA+4}, 15, v0
    v_lshrrev_b32 v{vUA+5}, 4, v0
    v_mul_u32_u24 v{vUA+4}, 144, v{vUA+4}
    v_lshl_add_u32 v{vUA+4}, v{vUA+5}, 3, v{vUA+4}
    s_mov_b32 s96, s{sUB}
    v_add_u32 v{vUA+4}, s96, v{vUA+4}
    v_mul_u32_u24 v{vUA+5}, 144, v{vUA}
    v_lshl_add_u32 v{vUA+5}, v{vUA+1}, 4, v{vUA+5}
    v_add_u32 v{vUA+5}, s96, v{vUA+5}
    v_lshlrev_b32 v{vUA+6}, 12, v{vUA}
    v_lshl_add_u32 v{vUA+6}, v{vUA+1}, 4, v{vUA+6}
    """)
    lq = LQ(a)
    for j in range(4):
        for g in range(4):
            i = 4 * j + g
            lq.issue(f"t{i}", f"ds_read_b64_tr_b16 {v2(R + 2 * i)}, v{vUA+3} offset:{g * 2048 + 32 * j}")
    for k in range(16):
        lq.wait(f"t{k}")
        lq.issue("w", f"ds_write_b64 v{vUA+4}, {v2(R + 2 * k)} offset:{(k >> 2) * 16 * 144 + 32 * (k & 3)}")
    O = 48
    for i in range(8):
        lq.issue(f"o{i}", f"ds_read_b128 {v4(O + 4 * i)}, v{vUA+5} offset:{i * 8 * 144}")
    a(f"s_lshl_b32 s96, s{sU1}, 18\ns_lshl_b32 s97, s{sU0}, 1\ns_add_u32 s96, s96, s97\ns_add_u32 s96, s96, {WS_XT}")
    for i in range(8):
        lq.wait(f"o{i}")
        a(f"s_add_u32 s97, s96, {i * 8 * 4096}\nbuffer_store_dwordx4 {v4(O + 4 * i)}, v{vUA+6}, {s4(S_WS)}, s97 offen")
    a(f"s_branch {Le}")
    a.label(Lw)
    a(f"v_lshlrev_b32 v{vUA+6}, 4, v0\ns_mul_i32 s{sU2}, s{sU0}, 5120\ns_add_u32 s{sU2}, s{sU2}, {WS_WD}")
    for k in range(3):
        if k == 2:
            a(f"s_cmp_eq_u32 s{sSUB}, 1\ns_cbranch_scc1 {Le}")
        lq = LQ(a)
        for j in range(4):
            for s in range(2):
                lq.issue(f"t{j}", f"ds_read_b64_tr_b16 {v2(R + 16 * k + 4 * j + 2 * s)}, v{vUA+3} offset:{4096 * k + 2048 * s + 32 * j}")
        for j in range(4):
            a(f"""s_lshl_b32 s96, s{sU1}, 2
            s_add_u32 s96, s96, {4 * k + j}
            s_mul_i32 s97, s96, 52
            s_lshr_b32 s97, s97, 8
            s_mul_i32 s98, s97, 5
            s_sub_u32 s96, s96, s98
            s_mul_i32 s97, s97, {48 * 5120}
            s_lshl_b32 s96, s96, 10
            s_add_u32 s96, s96, s97
            s_add_u32 s96, s96, s{sU2}""")
            lq.wait(f"t{j}")
            a(f"buffer_store_dwordx4 {v4(R + 16 * k + 4 * j)}, v{vUA+6}, {s4(S_WS)}, s96 offen")
    a.label(Le)


C_U = 640
C_U2 = C_U + 4096 + 64 + 64
C_B3 = C_U2 + 3584 + 64
C_B5 = C_B3 + 3584 + 64 + 64
C_B7 = C_B5 + 3072 + 64
C_B9 = C_B7 + 2048 + 64 + 80
C_SZ = C_B9 + 2048

NBLK1 = [0, 4, 8, 8, 8, 8, 8, 8]
NBLK2 = [0, 0, 2, 4, 6, 6, 6, 6]
NBLK3 = [0, 0, 0, 0, 1, 2, 3, 4]


def conv_mfma(a, tiles, regs):
    ACC, KF, DF = regs["ACC"], regs["KF"], regs["DF"]
    ND = regs["ND"]
    bU, bK0, bD, bK, PF = regs["bU"], regs["bK0"], regs["bD"], regs["bK"], regs["PF"]
    lq = LQ(a)

    def acc(t): return ACC + 4 * (t - tiles[0])

    def kload(seg, b, bank):
        r = KF + 36 * bank + 4 * b
        tag = f"K{seg}_{b}"
        if seg == 0:
            o = 16 * (8 - b)
            lq.issue(tag, f"ds_read2_b32 {v2(r)}, v{bK0} offset0:{o} offset1:{o + 1}")
            lq.issue(tag, f"ds_read2_b32 {v2(r + 2)}, v{bK0} offset0:{o + 2} offset1:{o + 3}")
        elif seg == 1:
            lq.issue(tag, f"ds_read_b64 {v2(r)}, v{bK[1]} offset:{32 * b}")
            lq.issue(tag, f"ds_read_b64 {v2(r + 2)}, v{bK[1]} offset:{32 * b + 8}")
        else:
            o = 8 * b
            lq.issue(tag, f"ds_read2_b32 {v2(r)}, v{bK[seg]} offset0:{o} offset1:{o + 1}")
            lq.issue(tag, f"ds_read2_b32 {v2(r + 2)}, v{bK[seg]} offset0:{o + 2} offset1:{o + 3}")

    work = []
    banks = {0: 0, 1: 1, 2: 0, 3: 1}
    for t in tiles:
        for k in range(9):
            if t == 0 and k == 8:
                continue
            work.append((("u", 512 * (t + 1) - 64 * k), [(t, 0, k)]))
    for seg, D, nb in ((1, 4, NBLK1), (2, 8, NBLK2), (3, 16, NBLK3)):
        es = {}
        for t in tiles:
            for b in range(nb[t]):
                es.setdefault((16 // D) * t - b, []).append((t, seg, b))
        for e in sorted(es):
            work.append((("tr", seg, D, e), es[e]))
    for t in tiles:
        if t >= 3:
            work.append((("u", 512 * (t + 1) - 2032), [(t, "p", 0)]))
    need = {s: sorted({b for _, us in work for (_, sg, b) in us if sg == s}) for s in range(4)}
    first = {}
    last = {}
    for i, (_, us) in enumerate(work):
        for (_, sg, b) in us:
            first.setdefault(sg, i)
            last[sg] = i
    kplan = {}
    for s in (1, 2, 3):
        if not need[s]:
            continue
        start = 0 if s == 1 else last[s - 2] + 1
        span = max(1, first[s] - start - 2)
        for j, b in enumerate(need[s]):
            kplan.setdefault(min(start + (j * span) // len(need[s]), first[s] - 1) if first[s] > start else start, []).append((s, b))

    def dload(i):
        spec = work[i][0]
        r = DF + 4 * (i % ND)
        if spec[0] == "u":
            lq.issue(f"D{i}", f"ds_read_b128 {v4(r)}, v{bU} offset:{spec[1]}")
        else:
            _, seg, D, e = spec
            for s in range(2):
                lq.issue(f"D{i}", f"ds_read_b64_tr_b16 {v2(r + 2 * s)}, v{bD[seg]} offset:{32 * D * e + (8 * D if s == 0 else 0)}")

    LA = ND - 1
    kload(0, need[0][0], 0)
    dload(0)
    for b in need[0][1:3]:
        kload(0, b, 0)
    for i in range(1, LA):
        dload(i)
    rest0 = need[0][3:]
    for i, (spec, us) in enumerate(work):
        for (s, b) in kplan.get(i, []):
            kload(s, b, banks[s])
        if rest0:
            kload(0, rest0.pop(0), 0)
        if i + LA < len(work):
            dload(i + LA)
        d = DF + 4 * (i % ND)
        for (t, sg, b) in us:
            if sg == "p":
                lq.wait(f"D{i}")
                a(f"v_mfma_f32_16x16x32_f16 {v4(acc(t))}, {v4(PF)}, {v4(d)}, {v4(acc(t))}")
                continue
            k = KF + 36 * banks[sg] + 4 * b
            lq.wait(f"D{i}", f"K{sg}_{b}")
            if sg == 0:
                a(f"v_mfma_f32_16x16x32_f16 {v4(acc(t))}, {v4(k)}, {v4(d)}, {v4(acc(t))}")
            else:
                a(f"v_mfma_f32_16x16x32_f16 {v4(acc(t))}, {v4(d)}, {v4(k)}, {v4(acc(t))}")


def conv_xload(a, sCH, X=100):
    a(f"v_lshlrev_b32 v2, 4, v0\ns_lshl_b32 s96, s{sCH}, 12\ns_add_u32 s96, s96, {WS_XT}")
    for r in range(4):
        a(f"buffer_load_dwordx4 {v4(X + 4 * r)}, v2, {s4(S_WS)}, s96 offen offset:{1024 * r} sc0 sc1")


PREP_CUTS = [int(x) for x in os.environ.get("PREP_CUTS", "0,0,100").split(",")]


def conv_prep2(a, sRB, sSTA):
    U, W, B3, B5, B7, B9, SS = 8, 25, 50, 66, 78, 86, 94
    b = Asm()
    b(f"v_lshlrev_b32 v2, 4, v0\nv_add_u32 v6, s{sSTA}, v2")
    S = 50
    X = 94
    lq = LQ(b)

    def ldst(r):
        for q in range(4):
            lq.issue(f"s{r}", f"ds_read_b128 {v4(S + 16 * (r & 1) + 4 * q)}, v6 offset:{4096 * q + 1024 * r}")
    ldst(0)
    for r in range(4):
        if r < 3:
            ldst(r + 1)
        for i in range(4):
            b(f"v_lshlrev_b32 v{X + 2 * i}, 16, v{U + 4 * r + i}\nv_and_b32 v{X + 2 * i + 1}, 0xffff0000, v{U + 4 * r + i}")
        lq.wait(f"s{r}")
        sb = S + 16 * (r & 1)
        for i in range(8):
            b(f"v_fma_f32 v{X + i}, v{X + i}, v{sb + 2 * i}, v{sb + 2 * i + 1}")
        for i in range(4):
            b(f"v_cvt_pk_f16_f32 v{U + 4 * r + i}, v{X + 2 * i}, v{X + 2 * i + 1}")
    dpp = "row_mask:0xf bank_mask:0xf"
    done = []

    def rdy(txt):
        done.append((len(b.L), txt))
    for r in range(4):
        rdy(f"ds_write_b128 v5, {v4(U + 4 * r)} offset:{C_U + 1024 * r}")
    for r in range(4):
        w = W + 6 * r
        d = [w, w + 1, w + 2, w + 3, w + 4, w + 5, U + 4 * r, U + 4 * r + 1]
        for i in range(4):
            if r == 0:
                b(f"v_mov_b32 v{d[2 + i]}, 0")
            else:
                b(f"v_mov_b32_dpp v{d[2 + i]}, v{U + 4 * (r - 1) + i} wave_ror:1 {dpp}")
        for i in range(2):
            if r == 0:
                b(f"v_mov_b32 v{d[i]}, 0")
            else:
                b(f"v_mov_b32_dpp v{d[i]}, v{W + 6 * (r - 1) + 4 + i} wave_ror:1 {dpp}")
        for i in (2, 3, 0, 1):
            b(f"v_mov_b32_dpp v{d[2 + i]}, v{U + 4 * r + i} wave_shr:1 {dpp}")
        for i in range(2):
            b(f"v_mov_b32_dpp v{d[i]}, v{d[4 + i]} wave_shr:1 {dpp}")
        lo = 0 if r < 2 else 1
        for i in range(lo, 7 - lo):
            b(f"v_alignbit_b32 v{SS + i}, v{d[i + 1]}, v{d[i]}, 16")
        m3 = "M" if r == 3 else ""
        rdy(f"{m3}ds_write_b128 v5, {v4(w + 1)} offset:{C_U2 + 1024 * r - 16}")
        for i in range(4):
            b(f"v_pk_add_f16 v{B3 + 4 * r + i}, v{SS + i + 1}, v{SS + i + 2}")
        for i in range(4):
            b(f"v_pk_add_f16 v{B3 + 4 * r + i}, v{B3 + 4 * r + i}, v{d[i + 2]}")
        rdy(f"{m3}ds_write_b128 v5, {v4(B3 + 4 * r)} offset:{C_B3 + 1024 * r - 16}")
        if r < 3:
            for i in range(4):
                b(f"v_pk_add_f16 v{B5 + 4 * r + i}, v{d[i + 1]}, v{d[i + 3]}")
            for i in range(4):
                b(f"v_pk_add_f16 v{B5 + 4 * r + i}, v{B5 + 4 * r + i}, v{B3 + 4 * r + i}")
            rdy(f"ds_write_b128 v5, {v4(B5 + 4 * r)} offset:{C_B5 + 1024 * r - 16}")
        if r < 2:
            for i in range(4):
                b(f"v_pk_add_f16 v{B7 + 4 * r + i}, v{SS + i}, v{SS + i + 3}")
            for i in range(4):
                b(f"v_pk_add_f16 v{B7 + 4 * r + i}, v{B7 + 4 * r + i}, v{B5 + 4 * r + i}")
            rdy(f"ds_write_b128 v5, {v4(B7 + 4 * r)} offset:{C_B7 + 1024 * r - 16}")
            for i in range(4):
                b(f"v_pk_add_f16 v{B9 + 4 * r + i}, v{d[i]}, v{d[i + 4]}")
            for i in range(4):
                b(f"v_pk_add_f16 v{B9 + 4 * r + i}, v{B9 + 4 * r + i}, v{B7 + 4 * r + i}")
            rdy(f"ds_write_b128 v5, {v4(B9 + 4 * r)} offset:{C_B9 + 1024 * r - 16}")
    n = len(b.L)
    c0, c1, c2 = [min(c, n) for c in PREP_CUTS]

    def wr(txt):
        if txt.startswith("M"):
            a(f"s_mov_b32 exec_hi, 1\n{txt[1:]}\ns_mov_b32 exec_hi, -1")
        else:
            a(txt)
    pend = list(done)
    for i, l in enumerate(b.L):
        a.L.append(l)
        if i + 1 == c1 or i + 1 == c0:
            a("s_barrier")
        if i + 1 == c2:
            Lg = a.newlabel("g28")
            a(f"v_mov_b32 v5, {K1_CTL}\ns_cmp_ge_u32 s{sIDX}, 30\ns_cselect_b32 s97, 0, 8")
            a.label(Lg)
            a(f"ds_read_b32 v7, v5 offset:28\ns_sleep 1\ns_waitcnt lgkmcnt(0)\nv_readfirstlane_b32 s96, v7\ns_cmp_ge_u32 s96, s97\ns_cbranch_scc0 {Lg}")
            stamp(a, 3)
            a(f"""v_add_u32 v5, s{sRB}, v2
            v_mov_b64 v[104:105], 0
            v_mov_b64 v[106:107], 0
            s_mov_b32 exec_hi, 0xff
            ds_write_b128 v5, v[104:107]
            s_mov_b64 exec, 7
            ds_write_b128 v5, v[104:107] offset:{C_U2 - 64}
            ds_write_b128 v5, v[104:107] offset:{C_B3 - 64}
            ds_write_b128 v5, v[104:107] offset:{C_B5 - 64}
            ds_write_b128 v5, v[104:107] offset:{C_B7 - 64}
            ds_write_b128 v5, v[104:107] offset:{C_B9 - 64}
            s_mov_b64 exec, -1""")
        if i + 1 >= c2 and pend and pend[0][0] <= i + 1 :
            wr(pend.pop(0)[1])
    for _, txt in pend:
        wr(txt)
    a("s_waitcnt lgkmcnt(0)")


CREGS = dict(ACC=8, KF=28, DF=96, ND=4, bU=116, bK0=117, bD={1: 118, 2: 119, 3: 120}, bK={1: 121, 2: 122, 3: 123}, PF=112)


def conv_setup(a, sRB, sKT, sCH):
    regs = CREGS
    i16, hq, par, h8, rr, cc, T = 96, 97, 98, 99, 100, 101, 102
    a(f"""
    v_and_b32 v{i16}, 15, v0
    v_lshrrev_b32 v{hq}, 4, v0
    v_and_b32 v{par}, 1, v{hq}
    v_lshrrev_b32 v{h8}, 1, v{hq}
    v_bfe_u32 v{rr}, v0, 2, 2
    v_and_b32 v{cc}, 3, v0
    v_sub_u32 v{T}, v{i16}, v{h8}
    v_lshlrev_b32 v{T}, 5, v{T}
    v_lshl_add_u32 v{T}, v{par}, 4, v{T}
    s_add_u32 s96, s{sRB}, {C_U - 512}
    v_add_u32 v{regs['bU']}, s96, v{T}
    v_lshlrev_b32 v{T}, 3, v{par}
    v_sub_u32 v{T}, v{T}, v{i16}
    v_lshlrev_b32 v{T+1}, 4, v{h8}
    v_sub_u32 v{T}, v{T}, v{T+1}
    v_add_u32 v{T}, 32, v{T}
    v_lshlrev_b32 v{T}, 1, v{T}
    v_and_b32 v{T+2}, 1, v{i16}
    v_mul_u32_u24 v{T+1}, {T0O - T0E - 2}, v{T+2}
    v_add3_u32 v{regs['bK0']}, v{T}, v{T+1}, s{sKT}
    """)
    segs = {1: (4, C_B3, 5, 0, C_U2, 5, 0, T1E, T1O), 2: (8, C_B5, 35, 0, C_B3, 34, 4, T2E, T2O), 3: (16, C_B9, 50, 0, C_B7, 49, 8, T3EE, T3OE)}
    for sg, (Dd, Ae, pe, oe, Ao, po, oo, Te, To) in segs.items():
        ce = Ae - 2 * Dd * (pe + 4) - 2 * oe
        co = Ao - 2 * Dd * (po + 4) - 2 * oo
        a(f"""
        v_lshl_add_u32 v{T}, v{h8}, 3, v{rr}
        v_mul_u32_u24 v{T}, {2 * Dd}, v{T}
        v_lshlrev_b32 v{T+1}, 3, v{cc}
        v_sub_u32 v{T}, v{T+1}, v{T}
        v_mul_i32_i24 v{T+1}, {co - ce}, v{par}
        v_add3_u32 v{T}, v{T}, v{T+1}, s{sRB}
        v_add_u32 v{regs['bD'][sg]}, {ce}, v{T}
        v_mul_u32_u24 v{T}, {2 * 16 // Dd}, v{i16}
        v_lshl_add_u32 v{T}, v{h8}, 4, v{T}
        v_mul_u32_u24 v{T+1}, {To - Te}, v{par}
        v_add3_u32 v{T}, v{T}, v{T+1}, s{sKT}
        v_add_u32 v{regs['bK'][sg]}, {Te}, v{T}
        """)
    a(f"v_mul_u32_u24 v{T+1}, 158, v{T+2}\nv_add_u32 v{regs['bK'][3]}, v{regs['bK'][3]}, v{T+1}")
    PF = regs["PF"]
    a(f"""
    v_lshlrev_b32 v{T}, 4, v{h8}
    v_lshlrev_b32 v{T+1}, 3, v{par}
    v_sub_u32 v{T}, v{T}, v{T+1}
    v_add3_u32 v{T}, v{T}, v{i16}, -6
    v_mov_b32 v{T+3}, 0xffff
    v_mov_b32 v{cc}, 0xffff0000
    """)
    for p in range(4):
        a(f"""v_subrev_u32 v{T+1}, {2 * p}, v{T}
        v_subrev_u32 v{T+2}, {2 * p + 1}, v{T}
        v_cmp_gt_u32 vcc, 7, v{T+1}
        v_cmp_gt_u32 s[96:97], 7, v{T+2}
        s_nop 1
        v_cndmask_b32 v{T+1}, 0, v{T+3}, vcc
        v_cndmask_b32 v{T+2}, 0, v{cc}, s[96:97]
        v_or_b32 v{PF + p}, v{T+1}, v{T+2}""")
    a(f"""v_lshlrev_b32 v126, 5, v{i16}
    v_lshl_add_u32 v126, v{hq}, 3, v126
    s_add_u32 s96, s{sKT}, {TK1024}
    v_mov_b32 v124, s96
    s_lshl_b32 s93, s{sCH}, 12
    s_add_u32 s93, s93, {WS_Y}""")


def conv_run(a, sHALF):
    regs = CREGS
    PF = regs["PF"]
    a("ds_read_b64 v[124:125], v124")
    for r in range(8, 28, 2):
        a(f"v_mov_b64 {v2(r)}, 0")
    a(f"s_waitcnt lgkmcnt(0)\nv_and_b32 v124, 0xffff, v124\nv_lshl_or_b32 v124, v124, 16, v124")
    for p in range(4):
        a(f"v_and_b32 v{PF + p}, v{PF + p}, v124")
    LB = a.newlabel("halfB"); LJ = a.newlabel("cjoin")
    a(f"s_cmp_eq_u32 s{sHALF}, 1\ns_cbranch_scc1 {LB}")
    for tiles, lab in (([0, 1, 2, 3, 4], None), ([5, 6, 7], LB)):
        if lab:
            a.label(lab)
        conv_mfma(a, tiles, regs)
        a("s_nop 7")
        for i, t in enumerate(tiles):
            c = 8 + 4 * i
            for r in range(4):
                a(f"v_mul_f32 v{c + r}, v{c + r}, v125")
            a(f"v_cvt_pk_bf16_f32 v{c}, v{c}, v{c+1}\nv_cvt_pk_bf16_f32 v{c+1}, v{c+2}, v{c+3}")
            a(f"buffer_store_dwordx2 {v2(c)}, v126, {s4(S_WS)}, s93 offen offset:{512 * t} sc1")
        if not lab:
            a(f"s_branch {LJ}")
    a.label(LJ)


NR2 = 8
NEARLY = 6
ROT2 = 7
P2_H = NR2 * 10240
P2_X = 149504
P2_Y = P2_X
assert NEARLY * 10240 <= 2 * SLOT - C_SZ and P2_H + NR2 * 8192 <= P2_X and K1_STA <= P2_X and P2_X + 11968 <= K1_CTL
YSTAGE = 8


def p2_loader(a):
    vL, vT = 2, 3
    sW = 58
    a(f"""
    v_lshlrev_b32 v{vL}, 4, v0
    s_mul_i32 s{sW}, s{sNI2}, {48 * 5120}
    s_add_u32 s{sW}, s{sW}, {WS_WD}
    v_mov_b32 v5, {K1_CTL}
    v_mov_b32 v6, 1
    s_and_b32 s65, s{sIDX}, 7
    s_mul_i32 s65, s65, 3
    s_lshr_b32 s96, s{sIDX}, 3
    s_mul_i32 s96, s96, {ROT2}
    s_add_u32 s65, s65, s96
    s_cmp_ge_u32 s65, 24
    s_cselect_b32 s96, 24, 0
    s_sub_u32 s65, s65, s96
    {"s_mov_b32 s65, 0" if "rot" not in EXP else ""}
    s_mov_b32 s66, s65
    s_cmp_ge_u32 s{sIDX}, 30
    s_cselect_b32 s98, 0, 8
    """)

    def adv(r):
        a(f"s_add_u32 s{r}, s{r}, 1\ns_cmp_eq_u32 s{r}, 24\ns_cselect_b32 s{r}, 0, s{r}")
    L1 = a.newlabel("p2l1")
    a(f"s_cmp_eq_u32 s{sWAVE}, 1\ns_cbranch_scc1 {L1}")
    Lq = a.newlabel("pq")
    a.label(Lq)
    a(f"ds_read_b32 v12, v5 offset:28\ns_sleep 1\ns_waitcnt lgkmcnt(0)\nv_readfirstlane_b32 s97, v12\ns_cmp_ge_u32 s97, s98\ns_cbranch_scc0 {Lq}")

    def issw(s):
        slot = (s % NR2) * 10240
        a(f"s_mul_i32 s67, s65, 10240\ns_add_u32 s67, s67, s{sW}")
        adv(65)
        for g, n in ((0, 4), (4, 4), (8, 1)):
            a(f"s_mov_b32 m0, {slot + 1024 * g}\ns_add_u32 s97, s67, {1024 * g}")
            for j in range(n):
                a(f"buffer_load_dwordx4 v{vL}, {s4(S_WS)}, s97 offen offset:{1024 * j} sc1 lds")
    for s in range(NEARLY):
        issw(s)
    a("s_waitcnt vmcnt(0)\ns_barrier")
    issw(6)
    issw(7)
    a("s_barrier")
    for s in range(23):
        infl = min(s + NR2 - 1, 23) - (s + 1)
        a(f"s_waitcnt vmcnt({9 * infl})\ns_barrier")
        if CSTAMP:
            stamp(a, 16 + s)
        if s + NR2 < 24:
            issw(s + NR2)
    stamp_end(a, 0, S_WS, sWAVE)

    a.label(L1)
    a(f"""
    v_lshrrev_b32 v{vT}, 3, v0
    v_and_b32 v4, 7, v0
    v_lshlrev_b32 v{vT}, 12, v{vT}
    v_lshl_add_u32 v{vT}, v4, 4, v{vT}          ; ch8*4096 + 16k
    s_mul_i32 s60, s{sNI2}, {80 * 4096}
    s_lshl_b32 s96, s{sMI2}, 7
    s_add_u32 s60, s60, s96
    s_mul_i32 s59, s{sMI2}, {4 * 49152}
    s_add_u32 s59, s59, {WS_H}
    s_add_u32 s68, s{sW}, 9216
    """)

    def tile(src, dst, lo=0, hi=10):
        a(f"s_add_u32 s96, s60, {src}")
        for p in range(lo, hi):
            a(f"s_mov_b32 m0, {dst + 1024 * p}\ns_add_u32 s97, s96, {p * 8 * 4096}\nbuffer_load_dwordx4 v{vT}, {s4(S_WS)}, s97 offen sc1 lds")

    def issw9(s):
        a(f"s_mul_i32 s97, s65, 10240\ns_mov_b32 m0, {(s % NR2) * 10240 + 9216}\ns_add_u32 s97, s97, s68\nbuffer_load_dwordx4 v{vL}, {s4(S_WS)}, s97 offen sc1 lds")
        adv(65)

    def issh(s):
        slot = P2_H + (s % NR2) * 8192
        a(f"s_lshl_b32 s67, s66, 11\ns_add_u32 s67, s67, s59")
        adv(66)
        for t_ in range(4):
            a(f"s_mov_b32 m0, {slot + t_ * 2048}\ns_add_u32 s97, s67, {t_ * 49152}")
            for j in range(2):
                a(f"buffer_load_dwordx4 v{vL}, {s4(S_WS)}, s97 offen offset:{1024 * j} sc1 lds")
        if s >= NEARLY:
            issw9(s)
        return 8 + (s >= NEARLY)
    Lq2 = a.newlabel("pq")
    a.label(Lq2)
    a(f"""ds_read_b128 v[8:11], v5
    s_sleep 1
    s_waitcnt lgkmcnt(0)
    v_and_b32 v8, v8, v9
    v_and_b32 v8, v8, v10
    s_nop 0
    v_readfirstlane_b32 s96, v8
    s_cmp_eq_u32 s96, 1
    s_cbranch_scc0 {Lq2}""")
    tile(WS_XT, P2_X)
    for s in range(NEARLY):
        issw9(s)
    Lw = a.newlabel("own"); Lp = a.newlabel("hp"); Lgo = a.newlabel("hgo")
    a(f"""s_lshl_b32 s96, s{sMI2}, 6
    s_mul_i32 s97, s96, 5042
    s_lshr_b32 s97, s97, 20                     ; row/208
    s_add_u32 s96, s96, 63
    s_mul_i32 s96, s96, 5042
    s_lshr_b32 s96, s96, 20
    s_lshl_b32 s97, s97, 7
    s_lshl_b32 s96, s96, 7
    v_mov_b32 v7, s97
    v_mov_b32 v8, s96
    v_cmp_gt_u32 vcc, 32, v0
    v_and_b32 v9, 31, v0
    v_min_u32 v9, 23, v9
    v_cndmask_b32 v7, v8, v7, vcc
    v_lshl_add_u32 v7, v9, 2, v7
    s_mov_b32 s61, {WS_FH}
    s_mov_b32 s62, 0
    s_cmp_ge_u32 s{sIDX}, 30
    s_cselect_b32 s63, 32, 16
    s_cselect_b32 s98, 5, 8
    v_add_u32 v10, s63, v5
    s_waitcnt vmcnt(0)
    ds_write_b32 v5, v6 offset:24""")
    a.label(Lw)
    a(f"ds_read_b32 v11, v10\ns_sleep 2\ns_waitcnt lgkmcnt(0)\nv_readfirstlane_b32 s96, v11\ns_cmp_ge_u32 s96, s98\ns_cbranch_scc0 {Lw}")
    stamp(a, 8)
    a.label(Lp)
    a(f"""s_sleep 4
    buffer_load_dword v11, v7, {s4(S_WS)}, s61 offen sc0 sc1
    s_add_u32 s62, s62, 1
    s_waitcnt vmcnt(0)
    v_cmp_eq_u32 vcc, 1, v11
    s_and_b32 s96, vcc_lo, vcc_hi
    s_cmp_eq_u32 s96, -1
    s_cbranch_scc1 {Lgo}
    s_cmp_lt_u32 s62, 200000
    s_cbranch_scc1 {Lp}""")
    a.label(Lgo)
    stamp(a, 9)
    a("s_barrier")
    stamp(a, 10)
    vq = LQ(a, cnt="vmcnt", cap=63)

    def trk(tag, n):
        vq.q += [tag] * n
    for s in range(NR2 - 1):
        trk(f"h{s}", issh(s))
    vq.wait("h0")
    a("s_barrier")
    trk(f"h{NR2 - 1}", issh(NR2 - 1))
    stamp(a, 11)

    for s in range(23):
        vq.wait(f"h{s + 1}")
        a("s_barrier")
        if s + NR2 < 24:
            trk(f"h{s + NR2}", issh(s + NR2))
    stamp_end(a, 0, S_WS, sWAVE)


P2_BASE = 0


def p2_base(a):
    XB, TB, DD = 8, 18, 28
    vTR = 2
    sW4 = 60
    a(f"""
    s_setprio 0
    s_sub_u32 s{sW4}, s{sWAVE}, 6
    v_and_b32 v4, 15, v0
    v_lshrrev_b32 v5, 4, v0
    v_lshlrev_b32 v6, 3, v4
    v_lshlrev_b32 v7, 3, v5
    s_lshl_b32 s61, s{sMI2}, 2
    s_add_u32 s61, s61, s{sW4}              ; l tile
    s_lshl_b32 s96, s61, 7
    s_add_u32 s96, s96, {WS_STATB}
    s_mul_i32 s62, s{sNI2}, 160
    buffer_load_dwordx2 v[38:39], v6, {s4(S_WS)}, s96 offen sc0 sc1
    """)
    for dt in range(5):
        a(f"buffer_load_dwordx2 {v2(DD + 2 * dt)}, v7, {s4(S_DSK)}, s62 offen offset:{32 * dt}")
    a(f"""
    v_lshrrev_b32 v{vTR}, 2, v0
    v_and_b32 v3, 3, v0
    v_lshlrev_b32 v{vTR}, 7, v{vTR}
    v_lshl_add_u32 v{vTR}, v3, 3, v{vTR}
    s_lshl_b32 s96, s{sW4}, 5
    s_add_u32 s96, s96, {P2_X}
    v_add_u32 v{vTR}, s96, v{vTR}
    v_mov_b32 v3, {K1_CTL}
    """)
    Lx = a.newlabel("xw")
    a.label(Lx)
    a(f"ds_read_b32 v6, v3 offset:24\ns_sleep 1\ns_waitcnt lgkmcnt(0)\nv_readfirstlane_b32 s96, v6\ns_cmp_ge_u32 s96, 1\ns_cbranch_scc0 {Lx}")
    for dt in range(5):
        a(f"ds_read_b64_tr_b16 {v2(XB + 2 * dt)}, v{vTR} offset:{2048 * dt}")
    a("s_waitcnt vmcnt(0)\nv_rcp_f32 v39, v39\ns_waitcnt lgkmcnt(0)")

    def unpack(b, d, s):
        b(f"v_and_b32 v{d + 1}, 0xffff0000, v{s}\nv_lshlrev_b32 v{d}, 16, v{s}")
    T = 40

    def part1(b):
        def rnd():
            for h in range(2):
                b(f"v_cvt_pk_bf16_f32 v{T + 2 * h}, v{T + 2 * h}, v{T + 1 + 2 * h}")
            for h in range(2):
                unpack(b, T + 2 * h, T + 2 * h)
        for dt in range(5):
            for h in range(2):
                unpack(b, T + 2 * h, XB + 2 * dt + h)
            for h in range(2):
                unpack(b, T + 4 + 2 * h, DD + 2 * dt + h)
            for i in range(4):
                b(f"v_sub_f32 v{T + i}, v{T + i}, v38")
            rnd()
            for i in range(4):
                b(f"v_mul_f32 v{T + i}, v{T + i}, v39")
            rnd()
            for i in range(4):
                b(f"v_mul_f32 v{T + i}, v{T + i}, v{T + 4 + i}")
            for h in range(2):
                b(f"v_cvt_pk_bf16_f32 v{TB + 2 * dt + h}, v{T + 2 * h}, v{T + 1 + 2 * h}")
    part1(a)
    a(f"""v_lshlrev_b32 v48, 2, v0
    v_lshrrev_b32 v49, 3, v0
    v_and_b32 v50, 7, v0
    v_lshlrev_b32 v49, 12, v49
    v_lshl_add_u32 v49, v50, 4, v49
    s_mul_i32 s63, s{sNI2}, {80 * 4096}
    s_lshl_b32 s96, s{sMI2}, 7
    s_add_u32 s63, s63, s96
    s_lshl_b32 s96, s{sW4}, 15
    s_add_u32 s63, s63, s96
    s_add_u32 s63, s63, {WS_Y}
    s_lshl_b32 s59, s{sW4}, 10
    s_add_u32 s59, s59, {P2_Y}
    s_mov_b32 s61, {WS_FY}""")
    a("s_barrier\n" * (2 + YSTAGE))

    def ypoll():
        for q in range(4):
            a(f"buffer_load_dword v{52 + q}, v48, {s4(S_WS)}, s61 offen offset:{256 * q} sc0 sc1")
    Ln = a.newlabel("nyp"); Ln2 = a.newlabel("nyp"); Lc = a.newlabel("yc")
    a(f"s_cmp_lg_u32 s{sW4}, 0\ns_cbranch_scc1 {Ln}")
    ypoll()
    a.label(Ln)
    a("s_barrier\n" * 3)
    a(f"s_cmp_lg_u32 s{sW4}, 0\ns_cbranch_scc1 {Ln2}\ns_waitcnt vmcnt(0)\ns_mov_b32 s62, 0")
    a.label(Lc)
    a(f"""v_and_b32 v52, v52, v53
    v_and_b32 v54, v54, v55
    v_and_b32 v52, v52, v54
    v_cmp_eq_u32 vcc, 1, v52
    s_and_b32 s96, vcc_lo, vcc_hi
    s_cmp_eq_u32 s96, -1
    s_cbranch_scc1 {Ln2}
    s_sleep 16""")
    ypoll()
    a(f"s_add_u32 s62, s62, 1\ns_waitcnt vmcnt(0)\ns_cmp_lt_u32 s62, 200000\ns_cbranch_scc1 {Lc}")
    a.label(Ln2)
    a("s_barrier")
    Ln3 = a.newlabel("ny3")
    for j in range(3):
        if j == 2:
            a(f"s_cmp_ge_u32 s{sW4}, 2\ns_cbranch_scc1 {Ln3}")
        a(f"s_add_u32 m0, s59, {4096 * j}\ns_add_u32 s97, s63, {4 * j * 8 * 4096}\nbuffer_load_dwordx4 v49, {s4(S_WS)}, s97 offen sc1 lds")
    a.label(Ln3)
    a("s_barrier\n" * 3 + "s_waitcnt vmcnt(0)\ns_barrier")
    NB2 = YSTAGE + 8
    Y = 28

    for dt in range(5):
        a(f"ds_read_b64_tr_b16 {v2(Y + 2 * dt)}, v{vTR} offset:{2048 * dt}")
    a("s_barrier")

    def part2(b):
        b(f"s_mul_i32 s96, s{sW4}, 2560\ns_add_u32 s96, s96, {P2_BASE}\nv_lshlrev_b32 v3, 3, v0\nv_add_u32 v3, s96, v3\ns_waitcnt lgkmcnt(0)")
        for dt in range(5):
            for h in range(2):
                unpack(b, T + 2 * h, Y + 2 * dt + h)
                unpack(b, T + 4 + 2 * h, TB + 2 * dt + h)
            for i in range(4):
                b(f"v_add_f32 v{T + i}, v{T + i}, v{T + 4 + i}")
            for h in range(2):
                b(f"v_cvt_pk_bf16_f32 v{T + 2 * h}, v{T + 2 * h}, v{T + 1 + 2 * h}")
                unpack(b, T + 4 + 2 * h, XB + 2 * dt + h)
            for h in range(2):
                unpack(b, T + 2 * h, T + 2 * h)
            for i in range(4):
                b(f"v_add_f32 v{T + i}, v{T + i}, v{T + 4 + i}")
            for h in range(2):
                b(f"v_cvt_pk_bf16_f32 v{XB + 2 * dt + h}, v{T + 2 * h}, v{T + 1 + 2 * h}")
    sliced(a, part2, 5)
    for dt in range(5):
        a(f"ds_write_b64 v3, {v2(XB + 2 * dt)} offset:{512 * dt}")
    a("s_waitcnt lgkmcnt(0)\n" + "s_barrier\n" * (23 - NB2 - 6))
    stamp_end(a, 0, S_WS, sWAVE)


def p2_gemm(a):
    ACC = 8
    F = [28, 52, 76, 100]
    vW, vL, vW2 = 2, 3, 124
    sW4 = 60
    a(f"""
    s_setprio 1
    s_sub_u32 s{sW4}, s{sWAVE}, 2
    s_lshl_b32 s61, s{sMI2}, 2
    s_add_u32 s61, s61, s{sW4}              ; l tile
    s_mul_i32 s62, s{sNI2}, 160
    v_lshlrev_b32 v{vW}, 4, v0
    s_lshl_b32 s96, s{sW4}, 11
    s_add_u32 s96, s96, {P2_H}
    v_add_u32 v{vL}, s96, v{vW}
    v_add_u32 v{vW2}, 0x10000, v{vW}
    v_and_b32 v4, 15, v0
    v_lshrrev_b32 v5, 4, v0
    v_mul_u32_u24 v4, 176, v4
    v_lshl_add_u32 v4, v5, 3, v4
    s_mul_i32 s63, s{sW4}, 2816
    s_add_u32 s63, s63, {P2_X}
    v_add_u32 v4, s63, v4
    s_mul_i32 s96, s{sW4}, 2560
    s_add_u32 s96, s96, {P2_BASE}
    v_lshlrev_b32 v5, 3, v0
    v_add_u32 v5, s96, v5
    """)
    for r in range(ACC, ACC + 20, 2):
        a(f"v_mov_b64 {v2(r)}, 0")
    a("s_barrier\ns_barrier")
    stamp(a, 14)

    def rdw(lq, k):
        s, kk = divmod(k, 2)
        f = F[k % 4]
        lq.issue(f"w{k}", f"ds_read_b128 {v4(f + 20)}, v{vL} offset:{(s % NR2) * 8192 + kk * 1024}")
        for dt in range(5):
            off = (s % NR2) * 10240 + kk * 5120 + 1024 * dt
            lq.issue(f"w{k}", f"ds_read_b128 {v4(f + 4 * dt)}, v{vW if off < 65536 else vW2} offset:{off % 65536}")

    def mf(k):
        f = F[k % 4]
        for dt in range(5):
            a(f"v_mfma_f32_16x16x32_bf16 {v4(ACC + 4 * dt)}, {v4(f + 4 * dt)}, {v4(f + 20)}, {v4(ACC + 4 * dt)}")
    lq = LQ(a)
    rdw(lq, 0)
    rdw(lq, 1)
    for s in range(24):
        lq.drain()
        if s < 23:
            a("s_barrier")
            n0 = len(a.L)
            rdw(lq, 2 * s + 2)
            rdw(lq, 2 * s + 3)
            R = a.L[n0:]; del a.L[n0:]
            mf(2 * s)
            mf(2 * s + 1)
            M = a.L[n0:]; del a.L[n0:]
            a.L += R[:3]
            R = R[3:]
            for m in M:
                a.L.append(m)
                if R:
                    a.L.append(R.pop(0))
        else:
            XB = 28
            for dt in range(5):
                lq.issue("b", f"ds_read_b64 {v2(XB + 2 * dt)}, v5 offset:{512 * dt}")
            mf(2 * s)
            for i in range(3):
                a(f"""v_add_u32 v6, {64 * i}, v0
                v_mul_u32_u24 v7, 205, v6
                v_lshrrev_b32 v7, 11, v7
                v_mul_u32_u24 v{60 + i}, 10, v7
                v_sub_u32 v6, v6, v{60 + i}
                v_mul_u32_u24 v{60 + i}, 176, v7
                v_lshl_add_u32 v{60 + i}, v6, 4, v{60 + i}
                v_add_u32 v{60 + i}, s63, v{60 + i}
                v_mul_u32_u24 v{64 + i}, 1280, v7
                v_lshl_add_u32 v{64 + i}, v6, 4, v{64 + i}""")
            mf(2 * s + 1)
    stamp(a, 15)
    a("s_nop 7")
    a("s_waitcnt lgkmcnt(0)")
    O = 40
    for dt in range(5):
        for h in range(2):
            c = ACC + 4 * dt + 2 * h
            t = 52 + 2 * h
            a(f"""v_cvt_pk_bf16_f32 v{c}, v{c}, v{c+1}
            v_and_b32 v{t+1}, 0xffff0000, v{XB + 2 * dt + h}
            v_and_b32 v{c+1}, 0xffff0000, v{c}
            v_lshlrev_b32 v{c}, 16, v{c}
            v_lshlrev_b32 v{t}, 16, v{XB + 2 * dt + h}
            v_add_f32 v{c+1}, v{c+1}, v{t+1}
            v_add_f32 v{c}, v{c}, v{t}
            v_cvt_pk_bf16_f32 v{O + 2 * dt + h}, v{c}, v{c+1}""")
        a(f"ds_write_b64 v4, {v2(O + 2 * dt)} offset:{32 * dt}")
    for i in range(3):
        a(f"ds_read_b128 {v4(76 + 4 * i)}, v{60 + i}")
    a(f"""
    s_mul_i32 s96, s61, {16 * 1280}
    s_add_u32 s96, s96, s62
    s_waitcnt lgkmcnt(2)
    buffer_store_dwordx4 v[76:79], v64, {s4(S_OUT)}, s96 offen
    s_waitcnt lgkmcnt(1)
    buffer_store_dwordx4 v[80:83], v65, {s4(S_OUT)}, s96 offen
    s_waitcnt lgkmcnt(0)
    s_mov_b32 exec_hi, 0
    buffer_store_dwordx4 v[84:87], v66, {s4(S_OUT)}, s96 offen
    s_mov_b64 exec, -1
    """)
    stamp(a, 16)
    stamp_end(a, 0, S_WS, sWAVE)
```

```python
import sys, os, struct

NAME = "parallel_sum__ssm_conv_s4d__glu_gated_glu__prompt"

WS_H = 0
WS_WD = WS_H + 128 * 48 * 1024
WS_XT = WS_WD + 8 * 48 * 5 * 1024
WS_Y = WS_XT + 640 * 4096
KT_BYTES = 3584
WS_KT = WS_Y + 640 * 4096
WS_STATA = WS_KT + 640 * KT_BYTES
WS_STATB = WS_STATA + 2048 * 8
WS_CS = WS_STATB + 2048 * 8
WS_FH = WS_CS + 5 * 3072 * 4
WS_FY = WS_FH + 16 * 128
WS_END = WS_FY + 8 * 128

T0E, T0O, T1E, T1O, T2E, T2O = 0, 640, 1280, 1664, 2048, 2304
T3EE, T3EO, T3OE, T3OO = 2560, 2720, 2880, 3040
TK1024, TSIG = 3200, 3204

PROF = int(os.environ.get("PROF", "0"))
EXP = os.environ.get("EXP", "")
CSTAMP = int(os.environ.get("CSTAMP", "0"))
CONV_PRIO = int(os.environ.get("CONV_PRIO", "1"))
PREP_PRIO = int(os.environ.get("PREP_PRIO", "0"))
PFW = int(os.environ.get("PFW", "0"))
TOUCH_AT = int(os.environ.get("TOUCH_AT", "3"))
WS_PROF = 0x2000000
class _St:
    r = 127
    def __format__(self, spec): return str(self.r)


vSTAMP = _St()


def f32(x):
    return "0x%08x" % struct.unpack("<I", struct.pack("<f", x))[0]


class Asm:
    def __init__(self):
        self.L = []
        self.uid = 0

    def __call__(self, s):
        for line in s.split("\n"):
            line = line.strip()
            if line:
                self.L.append("  " + line)

    def label(self, n):
        self.L.append(n + ":")

    def newlabel(self, base):
        self.uid += 1
        return f"L_{base}_{self.uid}"

    def raw(self, s):
        self.L.append(s)

    def text(self):
        return "\n".join(self.L) + "\n"


class LQ:
    def __init__(self, a, seed=(), cnt="lgkmcnt", cap=15):
        self.a = a
        self.q = list(seed)
        self.cnt = cnt
        self.cap = cap

    def issue(self, tag, s):
        self.a(s)
        self.q.append(tag)

    def wait(self, *tags):
        idx = -1
        for t in tags:
            for i, x in enumerate(self.q):
                if x == t:
                    idx = max(idx, i)
        if idx < 0:
            return
        n = len(self.q) - 1 - idx
        self.a(f"s_waitcnt {self.cnt}({min(n, self.cap)})")
        self.q = self.q[idx + 1:] if n <= self.cap else self.q[len(self.q) - self.cap:]

    def drain(self):
        self.a(f"s_waitcnt {self.cnt}(0)")
        self.q = []


def stamp(a, i, real=False):
    if PROF:
        a(f"s_waitcnt lgkmcnt(0)\n{'s_memrealtime' if real else 's_memtime'} s[100:101]\ns_waitcnt lgkmcnt(0)\nv_writelane_b32 v{vSTAMP}, s100, {i}")


def stamp_dyn(a, sidx, base, mul=1):
    if PROF:
        a(f"s_waitcnt lgkmcnt(0)\ns_memtime s[100:101]\ns_mul_i32 s99, s{sidx}, {mul}\ns_add_u32 m0, s99, {base}\ns_waitcnt lgkmcnt(0)\nv_writelane_b32 v{vSTAMP}, s100, m0")


def stamp_end(a, kern, S_WS_, swave):
    if "diag" in EXP:
        Ld = a.newlabel("diag")
        if kern == 0:
            a(f"""s_cmp_lg_u32 s{swave}, 9
            s_cbranch_scc1 {Ld}
            s_waitcnt vmcnt(0) lgkmcnt(0)
            s_memrealtime s[100:101]
            s_lshl_b32 s98, s2, 2
            s_add_u32 s98, s98, {WS_END + 1024}
            v_mov_b32 v5, 0
            s_waitcnt lgkmcnt(0)
            v_mov_b32 v6, s100
            s_mov_b64 exec, 1
            buffer_store_dword v6, v5, s[{S_WS_}:{S_WS_+3}], s98 offen""")
        else:
            a(f"""s_cmp_lg_u32 s{swave}, 0
            s_cbranch_scc1 {Ld}
            s_lshl_b32 s98, s2, 2
            s_add_u32 s98, s98, {WS_END}
            v_mov_b32 v5, 0
            s_mov_b64 exec, 1
            buffer_load_dword v7, v5, s[{S_WS_}:{S_WS_+3}], s98 offen
            buffer_load_dword v8, v5, s[{S_WS_}:{S_WS_+3}], s98 offen offset:1024
            s_waitcnt vmcnt(0) lgkmcnt(0)
            s_memrealtime s[100:101]
            s_waitcnt lgkmcnt(0)
            v_mov_b32 v6, s100
            v_and_b32 v6, 0xffffff, v6
            v_and_b32 v7, 0xffffff, v7
            v_and_b32 v8, 0xffffff, v8
            v_and_b32 v9, 0xffffff, v165
            v_sub_u32 v10, 0xffffff, v7
            v_sub_u32 v11, 0xffffff, v9
            buffer_atomic_umax v10, v5, s[16:19], 0 offen offset:0
            buffer_atomic_umax v7, v5, s[16:19], 0 offen offset:4
            buffer_atomic_umax v8, v5, s[16:19], 0 offen offset:8
            buffer_atomic_umax v11, v5, s[16:19], 0 offen offset:12
            buffer_atomic_umax v9, v5, s[16:19], 0 offen offset:16
            buffer_atomic_umax v6, v5, s[16:19], 0 offen offset:20""")
        a.label(Ld)
    if PROF:
        a("s_waitcnt vmcnt(0)")
        stamp(a, 6)
        stamp(a, 7, True)
        a(f"""s_lshl_b32 s100, s2, 4
        s_add_u32 s100, s100, s{swave}
        s_lshl_b32 s100, s100, 8
        s_add_u32 s100, s100, {WS_PROF + kern * 0x100000}
        v_lshlrev_b32 v1, 2, v0
        buffer_store_dword v{vSTAMP}, v1, s[{S_WS_}:{S_WS_+3}], s100 offen
        s_waitcnt vmcnt(0)""")
    a("s_endpgm")


def code_prefetch(a, first, last, nchunk, sidx, swave, wsel, vtmp, sp):
    if "nopf" in EXP:
        return
    L = a.newlabel("nopf"); H = a.newlabel("here")
    a(f"s_cmp_lg_u32 s{swave}, {wsel}\ns_cbranch_scc1 {L}\ns_cmp_ge_u32 s{sidx}, {nchunk}\ns_cbranch_scc1 {L}\ns_getpc_b64 s[{sp}:{sp+1}]")
    a.label(H)
    a(f"""s_sub_u32 s{sp}, s{sp}, {H}-{first}
    s_subb_u32 s{sp+1}, s{sp+1}, 0
    s_lshl_b32 s{sp+2}, s{sidx}, 13
    v_lshl_add_u32 v{vtmp}, v0, 7, s{sp+2}
    v_min_u32 v{vtmp}, {last}-{first}-4, v{vtmp}
    global_load_dword v{vtmp}, v{vtmp}, s[{sp}:{sp+1}]""")
    a.label(L)


def srd(a, d, lo, nbytes):
    a(f"s_mov_b32 s{d}, s{lo}\ns_mov_b32 s{d+1}, s{lo+1}\ns_mov_b32 s{d+2}, {nbytes}\ns_mov_b32 s{d+3}, 0x00020000")


def v4(r): return f"v[{r}:{r+3}]"
def v2(r): return f"v[{r}:{r+1}]"
def s4(r): return f"s[{r}:{r+3}]"


def dpp_row_allreduce(a, op, regs):
    for sh in (8, 4, 2, 1):
        if len(regs) < 3:
            a("s_nop 1")
        for r in regs:
            a(f"{op}_dpp v{r}, v{r}, v{r} row_ror:{sh} row_mask:0xf bank_mask:0xf")


def wave_max_u32_to_sgpr(a, v, sd, st):
    dpp_row_allreduce(a, "v_max_u32", [v])
    a(f"""s_nop 0
    v_readlane_b32 s{sd}, v{v}, 0
    v_readlane_b32 s{st}, v{v}, 16
    s_max_u32 s{sd}, s{sd}, s{st}
    v_readlane_b32 s{st}, v{v}, 32
    s_max_u32 s{sd}, s{sd}, s{st}
    v_readlane_b32 s{st}, v{v}, 48
    s_max_u32 s{sd}, s{sd}, s{st}""")


def round_bf16(a, d, s):
    a(f"v_cvt_pk_bf16_f32 v{d}, v{s}, v{s}\nv_lshlrev_b32 v{d}, 16, v{d}")


XSZ = 208 * 128
WSZ = 16384
SLOT = XSZ + WSZ
K1_STAT = 3 * SLOT
K1_CS = K1_STAT + 2048
TBL = 3328
K1_KG = K1_CS + 512
K1_STA = K1_KG + 3 * TBL
K1_SCR = K1_STAT
K1_CTL = 163840 - 64
assert K1_STA + 20480 <= K1_CTL
K1_LDS = 163840
assert K1_CTL + 64 <= K1_LDS

S_X, S_WG, S_WU, S_WD, S_WS, S_DBG = 4, 8, 12, 16, 20, 24
S_LA, S_AI, S_CR, S_CI, S_DT = 28, 32, 36, 40, 44
S_TMP = 48
S_OUT, S_DSK = 72, 76
sMI2, sNI2 = 80, 81
sWAVE, sMI, sNI, sROW0, sGI, sIDX, sXCD = 3, 52, 53, 54, 55, 56, 57
sMODE = 64


def k1_loader(a, parts):
    vOX, vOW = 16, 20
    sT, sXO, sWO, sDSL, sPEND = 58, 59, 60, 61, 62
    a(f"""
    v_lshrrev_b32 v8, 3, v0            ; rho
    v_and_b32 v9, 7, v0                ; c'
    v_xor_b32 v10, v9, v8
    v_mul_u32_u24 v{vOX}, 1280, v8
    v_lshl_add_u32 v{vOX}, v10, 4, v{vOX}
    v_bfe_u32 v10, v8, 1, 1
    v_lshrrev_b32 v11, 1, v9
    v_xor_b32 v11, v11, v10
    v_and_b32 v12, 1, v9
    v_lshl_add_u32 v11, v11, 1, v12
    v_mul_u32_u24 v{vOW}, 3072, v8
    v_lshl_add_u32 v{vOW}, v11, 4, v{vOW}
    v_xor_b32 v13, 64, v{vOW}
    v_add_u32 v{vOW + 1}, {8 * 3072 - 1024}, v13
    v_add_u32 v{vOW + 2}, {2 * (8 * 3072 - 1024)}, v{vOW}
    v_add_u32 v{vOW + 3}, {3 * (8 * 3072 - 1024)}, v13
    v_add_u32 v{vOX + 1}, {8 * 1280 - 1024}, v{vOX}
    v_add_u32 v{vOX + 2}, {2 * (8 * 1280 - 1024)}, v{vOX}
    v_add_u32 v{vOX + 3}, {3 * (8 * 1280 - 1024)}, v{vOX}
    s_mul_i32 s{sT}, s{sWAVE}, 104
    s_add_u32 s{sXO}, s{sROW0}, s{sT}
    s_mul_i32 s{sXO}, s{sXO}, 1280
    s_lshl_b32 s{sWO}, s{sNI}, 7
    s_cmp_eq_u32 s{sWAVE}, 0
    s_cselect_b32 s{S_TMP}, s{S_WG}, s{S_WU}
    s_cselect_b32 s{S_TMP+1}, s{S_WG+1}, s{S_WU+1}
    s_mov_b32 s{S_TMP+2}, {640 * 3072}
    s_mov_b32 s{S_TMP+3}, 0x00020000
    s_mul_i32 s92, s{sWAVE}, {13 * 1024}
    s_mul_i32 s93, s{sWAVE}, 8192
    s_add_u32 s93, s93, {XSZ}
    v_lshlrev_b32 v24, 2, v0
    v_lshlrev_b32 v25, 4, v0
    """)
    groups = [("w", 0, 4), ("x", 0, 4), ("x", 4, 4), ("x", 8, 4), ("x", 12, 1), ("w", 4, 4)]

    def issue(st):
        slot = (st % 3) * SLOT
        Lsk = a.newlabel("noiss")
        a(f"s_cmp_ge_u32 s{sIDX}, 30\ns_cbranch_scc1 {Lsk}")
        for (k, i0, n) in groups:
            if k == "x":
                a(f"s_add_u32 m0, s92, {slot + i0 * 1024}\ns_add_u32 s98, s{sXO}, {i0 * 8 * 1280 + st * 128}")
                for j in range(n):
                    a(f"buffer_load_dwordx4 v{vOX + j}, {s4(S_X)}, s98 offen offset:{1024 * j} lds")
            else:
                a(f"s_add_u32 m0, s93, {slot + i0 * 1024}\ns_add_u32 s98, s{sWO}, {(st * 64 + i0 * 8) * 3072}")
                for j in range(n):
                    a(f"buffer_load_dwordx4 v{vOW + j}, {s4(S_TMP)}, s98 offen offset:{1024 * j} lds")
        a.label(Lsk)

    def stage_loads():
        a(f"""s_lshl_b32 s98, s{sROW0}, 3
        s_mov_b32 m0, {K1_STAT}
        s_add_u32 s98, s98, {WS_STATB}
        buffer_load_dwordx4 v25, {s4(S_WS)}, s98 offen sc0 sc1 lds
        buffer_load_dwordx4 v25, {s4(S_WS)}, s98 offen offset:1024 sc0 sc1 lds
        s_lshl_b32 s97, s{sNI}, 8
        s_add_u32 s97, s97, {WS_CS}""")
        for rc in range(5):
            a(f"s_add_u32 s98, s97, {rc * 12288}\nbuffer_load_dword v{32 + rc}, v24, {s4(S_WS)}, s98 offen sc0 sc1")
            a(f"s_add_u32 s98, s97, {rc * 12288 + 6144}\nbuffer_load_dword v{37 + rc}, v24, {s4(S_WS)}, s98 offen sc0 sc1")

    def flags_ok(Lno):
        a(f"v_cmp_le_u32 vcc, 4, v30\ns_and_b32 s{sT}, vcc_lo, vcc_hi\ns_cmp_eq_u32 s{sT}, -1\ns_cbranch_scc0 {Lno}")

    issue(0)
    a("s_setprio 0")
    issue(1)
    stamp(a, 2)
    a("s_barrier")
    a("s_waitcnt vmcnt(21)\ns_setprio 3")
    stamp(a, 3)
    a("s_barrier")
    issue(2)
    L1 = a.newlabel("ldr1"); L4 = a.newlabel("b4")
    for s in range(4):
        a("s_waitcnt vmcnt(21)")
        if CSTAMP == 3:
            stamp(a, 20 + 2 * s)
        a("s_barrier")
        if CSTAMP == 3:
            stamp(a, 21 + 2 * s)
        issue(s + 3)
    a("s_waitcnt vmcnt(21)\ns_barrier")
    issue(7)
    a(f"s_cmp_eq_u32 s{sWAVE}, 1\ns_cbranch_scc1 {L1}")
    a("s_waitcnt vmcnt(21)\ns_barrier")
    issue(8)
    a(f"s_waitcnt vmcnt(21)\ns_branch {L4}")
    a.label(L1)
    Lb = a.newlabel("bk")
    a(f"s_cmp_lt_u32 s{sIDX}, 30\ns_cbranch_scc1 {Lb}\ns_sleep 100")
    a.label(Lb)
    a(f"buffer_load_dword v30, v24, {s4(S_DBG)}, 0 offen sc0 sc1")
    a("s_waitcnt vmcnt(22)\ns_barrier")
    issue(8)
    Lv = a.newlabel("v")
    a(f"s_waitcnt vmcnt(21)\ns_cmp_lt_u32 s{sIDX}, 30\ns_cbranch_scc1 {Lv}\ns_waitcnt vmcnt(0)")
    a.label(Lv)
    Lsp = a.newlabel("spin"); Lchk = a.newlabel("chk")
    a(f"s_mov_b32 s{sPEND}, 0")
    a.label(Lchk)
    flags_ok(Lsp)
    a(f"s_branch {L4}")
    a.label(Lsp)
    a(f"""s_sleep 12
    buffer_load_dword v30, v24, {s4(S_DBG)}, 0 offen sc0 sc1
    s_add_u32 s{sPEND}, s{sPEND}, 1
    s_waitcnt vmcnt(0)
    s_cmp_lt_u32 s{sPEND}, 200000
    s_cbranch_scc1 {Lchk}""")
    a.label(L4)
    a("s_barrier")
    stamp(a, 5)
    Ln = a.newlabel("nocs"); Ln2 = a.newlabel("nocs")
    a(f"s_cmp_eq_u32 s{sWAVE}, 0\ns_cbranch_scc1 {Ln}")
    issue(9)
    stage_loads()
    a("s_waitcnt vmcnt(33)\ns_barrier\ns_waitcnt vmcnt(0)")
    for rc in range(1, 5):
        a(f"v_add_f32 v32, v32, v{32 + rc}\nv_add_f32 v37, v37, v{37 + rc}")
    a(f"""v_add_u32 v26, {K1_CS}, v24
    ds_write_b32 v26, v32
    ds_write_b32 v26, v37 offset:256
    s_waitcnt lgkmcnt(0)
    s_branch {Ln2}""")
    a.label(Ln)
    issue(9)
    for g in range(4):
        a(f"s_mov_b32 m0, {K1_STA + 4096 * g}\ns_mov_b32 s97, {WS_STATA + 4096 * g}")
        for j in range(4):
            a(f"buffer_load_dwordx4 v25, {s4(S_WS)}, s97 offen offset:{1024 * j} sc0 sc1 lds")
    Lq = a.newlabel("q")
    a("s_waitcnt vmcnt(37)\ns_barrier")
    a(f"s_waitcnt vmcnt(16)\ns_barrier\ns_waitcnt vmcnt(0)\nv_mov_b32 v5, {K1_CTL}\nv_mov_b32 v6, 1\nds_write_b32 v5, v6 offset:12\ns_branch {Lq}")
    a.label(Ln2)
    a("s_barrier")
    a.label(Lq)
    stamp(a, 4)
    import gen2
    gen2.p2_loader(a)


def k1_gemm(a, var):
    extra = 1 if var < 2 else 0
    NB = 3 + extra
    A = [6, 22]
    B = [38, 54]
    ACC = 70
    vA0, vA1, vAW, vAW1 = 2, 3, 4, 5
    sST, sSLOT, sT = 58, 60, 62
    sFP, sLQ = 95, 94
    T0 = 38

    a(f"s_sub_u32 s{sT}, s{sWAVE}, 2\ns_and_b32 s{sFP}, s{sT}, 1\ns_lshr_b32 s{sLQ}, s{sT}, 1")
    a(f"""
    v_and_b32 v{T0}, 15, v0
    v_lshrrev_b32 v{T0+1}, 4, v0
    v_and_b32 v{T0+2}, 7, v{T0}
    v_xor_b32 v{T0+2}, v{T0+2}, v{T0+1}
    v_lshlrev_b32 v{vA0}, 7, v{T0}
    v_lshl_add_u32 v{vA0}, v{T0+2}, 4, v{vA0}
    s_mul_i32 s{sT}, s{sLQ}, {3 * 2048}
    v_add_u32 v{vA0}, s{sT}, v{vA0}
    v_xor_b32 v{vA1}, 64, v{vA0}
    v_lshrrev_b32 v{T0+2}, 2, v{T0}           ; r
    v_and_b32 v{T0+3}, 3, v{T0}               ; c
    v_lshrrev_b32 v{T0+4}, 1, v{T0+2}
    v_and_b32 v{T0+5}, 1, v{T0+1}
    v_lshl_or_b32 v{T0+4}, v{T0+5}, 1, v{T0+4}
    s_lshl_b32 s{sT}, s{sFP}, 1
    v_xor_b32 v{T0+4}, s{sT}, v{T0+4}
    v_lshl_add_u32 v{T0+5}, v{T0+1}, 3, v{T0+2}     ; 8hq + r
    v_lshlrev_b32 v{vAW}, 7, v{T0+5}
    v_lshl_add_u32 v{vAW}, v{T0+4}, 5, v{vAW}
    v_lshl_add_u32 v{vAW}, v{T0+3}, 3, v{vAW}
    v_add_u32 v{vAW}, {XSZ}, v{vAW}
    v_xor_b32 v{vAW1}, 32, v{vAW}
    """)
    for r in range(ACC, ACC + 48 + 8 * extra, 2):
        a(f"v_mov_b64 {v2(r)}, 0")

    def next_addr():
        a(f"""s_add_u32 s{sSLOT}, s{sSLOT}, 1
        s_cmp_eq_u32 s{sSLOT}, 3
        s_cselect_b32 s{sT}, s63, {SLOT}
        s_cselect_b32 s{sSLOT}, 0, s{sSLOT}""")

    def set_addr():
        for r in (vAW, vA0, vAW1, vA1):
            a(f"v_add_u32 v{r}, s{sT}, v{r}")

    def reads(kk):
        R = []

        def rA(fr):
            for s in range(2):
                R.append((f"A{kk}{fr}", f"ds_read_b64_tr_b16 {v2(A[kk] + 4 * fr + 2 * s)}, v{vAW1 if fr >= 2 else vAW} offset:{kk * 4096 + s * 512 + (8192 if fr & 1 else 0)}"))

        def rB(t):
            off = (12 - 3 * var) * 2048 if t == 3 else t * 2048
            R.append((f"B{kk}{t}", f"ds_read_b128 {v4(B[kk] + 4 * t)}, v{vA1 if kk else vA0} offset:{off}"))
        rA(0); rB(0); rA(1); rA(2); rA(3)
        for t in range(1, NB):
            rB(t)
        return R

    def mf(t, fr, kk):
        acc = ACC + 48 + 4 * (fr & 1) if t == 3 else ACC + 16 * t + 4 * fr
        a(f"v_mfma_f32_16x16x32_bf16 {v4(acc)}, {v4(A[kk] + 4 * fr)}, {v4(B[kk] + 4 * t)}, {v4(acc)}")

    def phase(lq, kk, R):
        R = list(R)
        for t in range(3):
            for fr in range(4):
                lq.wait(f"A{kk}{fr}", f"B{kk}{t}")
                mf(t, fr, kk)
                if R:
                    tg, ins = R.pop(0)
                    lq.issue(tg, ins)
        while R:
            tg, ins = R.pop(0)
            lq.issue(tg, ins)
        if extra:
            lq.wait(f"B{kk}3")
            mf(3, 2 * var, kk); mf(3, 2 * var + 1, kk)

    Lp1 = a.newlabel("p1")
    a(f"s_cmp_eq_u32 s70, 0\ns_cbranch_scc1 {Lp1}\ns_waitcnt lgkmcnt(0)\ns_barrier")
    a.label(Lp1)
    stamp(a, 2)
    a(f"s_mov_b32 s{sSLOT}, 0\ns_mov_b32 s{sST}, 0\ns_mov_b32 s63, {(-2 * SLOT) & 0xffffffff}\ns_setprio 2\ns_waitcnt lgkmcnt(0)\ns_barrier")
    stamp(a, 3)
    lq = LQ(a)
    for tg, ins in reads(0):
        lq.issue(tg, ins)
    seed = list(lq.q)

    def body(last):
        lq = LQ(a, seed)
        phase(lq, 0, reads(1))
        if not last:
            next_addr()
            lq.drain()
            a("s_waitcnt vmcnt(0)")
            set_addr()
            if CSTAMP == 1:
                stamp_dyn(a, sST, 8, 2)
            a("s_barrier")
            if CSTAMP == 1:
                stamp_dyn(a, sST, 9, 2)
            phase(lq, 1, reads(0))
        else:
            lq.drain()
            a(f"v_mov_b32 v{vA0}, {K1_CTL}\nv_mov_b32 v{vA1}, 1\ns_mov_b64 exec, 1\nds_add_u32 v{vA0}, v{vA1} offset:28\ns_mov_b64 exec, -1")
            phase(lq, 1, [])

    Lloop = a.newlabel("gloop")
    a.label(Lloop)
    body(False)
    a(f"s_add_u32 s{sST}, s{sST}, 1\ns_cmp_lt_u32 s{sST}, 9\ns_cbranch_scc1 {Lloop}")
    body(True)

    stamp(a, 4)
    vSA, vCA, vHO = 2, 3, 4
    CS = 8
    ST = 24
    a(f"""
    v_and_b32 v{T0}, 15, v0
    v_lshrrev_b32 v{T0+1}, 4, v0
    s_mul_i32 s{sT}, s{sLQ}, {3 * 128}
    s_add_u32 s{sT}, s{sT}, {K1_STAT}
    v_lshl_add_u32 v{vSA}, v{T0}, 3, s{sT}
    s_lshl_b32 s{sT}, s{sFP}, 7
    s_add_u32 s{sT}, s{sT}, {K1_CS}
    v_lshl_add_u32 v{vCA}, v{T0+1}, 4, s{sT}
    ds_read_b128 {v4(CS)}, v{vCA}
    ds_read_b128 {v4(CS + 4)}, v{vCA} offset:256
    ds_read_b128 {v4(CS + 8)}, v{vCA} offset:64
    ds_read_b128 {v4(CS + 12)}, v{vCA} offset:320
    """)
    for t in range(3):
        a(f"ds_read_b64 {v2(ST + 2 * t)}, v{vSA} offset:{t * 128}")
    if extra:
        a(f"ds_read_b64 {v2(ST + 6)}, v{vSA} offset:{(12 - 3 * var) * 128}")
    a(f"""
    v_lshlrev_b32 v{vHO}, 4, v0
    s_lshr_b32 s96, s{sROW0}, 4
    s_mul_i32 s96, s96, 49152
    s_lshl_b32 s97, s{sNI}, 1
    s_add_u32 s97, s97, s{sFP}
    s_lshl_b32 s97, s97, 10
    s_add_u32 s96, s96, s97
    s_add_u32 s96, s96, {WS_H}
    s_mul_i32 s97, s{sLQ}, {3 * 49152}
    s_add_u32 s99, s96, s97
    s_mov_b32 s98, 0xbfb8aa3b           ; -log2e
    s_waitcnt lgkmcnt(0)
    """)
    TM = 40
    PK = 48
    c1 = 56

    def act(g, u, csg, csu, m, s, pk):
        for r in range(4):
            a(f"v_fma_f32 v{TM + r}, -v{m}, v{csg + r}, v{g + r}")
        for r in range(4):
            a(f"v_mul_f32 v{TM + r}, v{TM + r}, v{c1}")
        for r in range(4):
            a(f"v_exp_f32 v{TM + r}, v{TM + r}")
        for r in range(4):
            a(f"v_fma_f32 v{TM + 4 + r}, -v{m}, v{csu + r}, v{u + r}")
        for r in range(4):
            a(f"v_fma_f32 v{TM + r}, v{TM + r}, v{s}, v{s}")
        for r in range(4):
            a(f"v_rcp_f32 v{TM + r}, v{TM + r}")
        a("s_nop 0")
        for r in range(4):
            a(f"v_mul_f32 v{TM + 4 + r}, v{TM + 4 + r}, v{TM + r}")
        a(f"v_cvt_pk_bf16_f32 v{pk}, v{TM + 4}, v{TM + 5}\nv_cvt_pk_bf16_f32 v{pk + 1}, v{TM + 6}, v{TM + 7}")

    for t in range(3):
        m, s = ST + 2 * t, ST + 2 * t + 1
        Lsk = None
        if var == 0 and t < 2:
            Lsk = a.newlabel("skipst")
            a(f"s_cmp_eq_u32 s{sMI}, 9\ns_cbranch_scc1 {Lsk}")
        a(f"v_rcp_f32 v{c1}, v{s}\ns_nop 0\nv_mul_f32 v{c1}, s98, v{c1}")
        b = PK + 4 * (t & 1)
        act(ACC + 16 * t, ACC + 16 * t + 4, CS, CS + 4, m, s, b)
        act(ACC + 16 * t + 8, ACC + 16 * t + 12, CS + 8, CS + 12, m, s, b + 2)
        a(f"s_add_u32 s97, s99, {t * 49152}")
        a(f"buffer_store_dwordx4 {v4(b)}, v{vHO}, {s4(S_WS)}, s97 offen")
        if Lsk:
            a.label(Lsk)
    if extra:
        m, s = ST + 6, ST + 7
        a(f"v_rcp_f32 v{c1}, v{s}\ns_nop 0\nv_mul_f32 v{c1}, s98, v{c1}")
        act(ACC + 48, ACC + 52, CS + 8 * var, CS + 4 + 8 * var, m, s, PK + 4)
        a(f"s_add_u32 s97, s96, {12 * 49152 + 8 * var}")
        a(f"buffer_store_dwordx2 {v2(PK + 4)}, v{vHO}, {s4(S_WS)}, s97 offen")
    stamp(a, 5)
    a("s_branch L_k1_hsig")


def sliced(a, fn, nbar):
    b = Asm()
    b.uid = a.uid + 1000
    fn(b)
    a.uid = b.uid
    n = len(b.L)
    cuts = {(n * (i + 1)) // nbar for i in range(nbar)}
    assert len(cuts) == nbar
    for i, l in enumerate(b.L):
        a.L.append(l)
        if i + 1 in cuts:
            a("s_barrier")


def k1_stats_loads(a):
    a(f"""
    v_lshrrev_b32 v5, 4, v0
    v_and_b32 v6, 15, v0
    v_mul_u32_u24 v7, 1280, v5
    v_lshl_add_u32 v7, v6, 4, v7
    s_and_b32 s58, s{sXCD}, 1
    s_lshl_b32 s58, s58, 10
    s_lshr_b32 s59, s{sXCD}, 1
    s_lshl_b32 s59, s59, 8
    s_add_u32 s58, s58, s59
    s_lshl_b32 s59, s{sIDX}, 3
    s_add_u32 s58, s58, s59
    s_mul_i32 s59, s58, 1280
    s_add_u32 s60, s59, {4 * 1280}
    """)
    for p in range(2):
        for j in range(5):
            a(f"buffer_load_dwordx4 {v4(8 + 20 * p + 4 * j)}, v7, {s4(S_X)}, s{59 + p} offen offset:{256 * j}")


def k1_stats(a, nlater):
    RAW = 8
    AC = 48
    D = 56
    a(f"""
    v_mov_b32 v72, 0x3f803f80
    s_mov_b32 s92, 0x9999999a
    s_mov_b32 s93, 0x3f599999           ; 1/640 (f64)
    s_mov_b32 s94, 0x3727c5ac           ; 1e-5
    s_lshl_b32 s59, s58, 3
    v_lshl_add_u32 v73, v5, 3, s59
    v_lshrrev_b32 v74, 1, v5
    v_lshlrev_b32 v74, 12, v74
    v_and_b32 v75, 1, v5
    v_lshl_add_u32 v74, v75, 3, v74
    s_lshl_b32 s59, s58, 1
    v_add_u32 v74, s59, v74
    """)
    for r in range(AC, AC + 8, 2):
        a(f"v_mov_b64 {v2(r)}, 0")
    for p in range(2):
        a(f"s_waitcnt vmcnt({nlater + 5 - 5 * p})")
        for i in range(20):
            x = RAW + 20 * p + i
            a(f"v_dot2c_f32_bf16 v{AC + 4 * p + (i & 1)}, v{x}, v72\nv_dot2c_f32_bf16 v{AC + 4 * p + 2 + (i & 1)}, v{x}, v{x}")
    a("s_nop 2")
    for c in range(4):
        a(f"v_cvt_f64_f32 {v2(D + 2 * c)}, v{AC + 2 * c}\nv_cvt_f64_f32 {v2(D + 8 + 2 * c)}, v{AC + 2 * c + 1}")
    for c in range(4):
        a(f"v_add_f64 {v2(D + 2 * c)}, {v2(D + 2 * c)}, {v2(D + 8 + 2 * c)}")
    for sh in (8, 4, 2, 1):
        for c in range(4):
            for h in range(2):
                a(f"v_mov_b32_dpp v{D + 8 + 2 * c + h}, v{D + 2 * c + h} row_ror:{sh} row_mask:0xf bank_mask:0xf")
        for c in range(4):
            a(f"v_add_f64 {v2(D + 2 * c)}, {v2(D + 2 * c)}, {v2(D + 8 + 2 * c)}")
    for p in range(2):
        m, v = D + 4 * p, D + 4 * p + 2
        a(f"""v_mul_f64 {v2(m)}, {v2(m)}, s[92:93]
        v_mul_f64 {v2(v)}, {v2(v)}, s[92:93]
        v_fma_f64 {v2(v)}, -{v2(m)}, {v2(m)}, {v2(v)}
        v_cvt_f32_f64 v76, {v2(m)}
        v_cvt_f32_f64 v77, {v2(v)}
        v_max_f32 v77, 0, v77""")
        round_bf16(a, 78, 76)
        round_bf16(a, 77, 77)
        a("v_add_f32 v77, s94, v77")
        round_bf16(a, 77, 77)
        a("v_sqrt_f32 v77, v77\ns_nop 0")
        round_bf16(a, 79, 77)
        a("v_rcp_f32 v80, v79\ns_nop 0\nv_mul_f32_e64 v81, -v78, v80")
        a(f"""
        v_cmp_eq_u32 vcc, 0, v6
        s_and_saveexec_b64 s[96:97], vcc
        s_mov_b32 s98, {WS_STATB + 32 * p}
        s_mov_b32 s99, {WS_STATA + 8192 * p}
        buffer_store_dwordx2 v[78:79], v73, {s4(S_WS)}, s98 offen sc0 sc1
        buffer_store_dwordx2 v[80:81], v74, {s4(S_WS)}, s99 offen sc0 sc1
        s_mov_b64 exec, -1
        """)


def k1_colsum_loads(a):
    a(f"""
    v_lshrrev_b32 v5, 3, v0
    v_and_b32 v6, 7, v0
    v_mul_u32_u24 v7, 3072, v5
    v_lshl_add_u32 v7, v6, 4, v7
    s_and_b32 s58, s{sXCD}, 1
    s_mul_i32 s58, s58, 30
    s_add_u32 s58, s58, s{sIDX}         ; u
    s_mul_i32 s59, s58, 43
    s_lshr_b32 s59, s59, 9              ; rc = u/12
    s_mul_i32 s60, s59, 12
    s_sub_u32 s60, s58, s60             ; cbl
    s_cmp_ge_u32 s60, 6
    s_cselect_b32 s{S_TMP}, s{S_WU}, s{S_WG}
    s_cselect_b32 s{S_TMP+1}, s{S_WU+1}, s{S_WG+1}
    s_cselect_b32 s96, 6, 0
    s_cselect_b32 s97, 24, 0
    s_mov_b32 s{S_TMP+2}, {640 * 3072}
    s_mov_b32 s{S_TMP+3}, 0x00020000
    s_sub_u32 s60, s60, s96
    s_lshr_b32 s96, s{sXCD}, 1
    s_mul_i32 s96, s96, 6
    s_add_u32 s60, s60, s96             ; n tile
    s_lshl_b32 s96, s60, 7
    s_mul_i32 s98, s59, {128 * 3072}
    s_add_u32 s96, s96, s98
    s_add_u32 s60, s60, s97
    """)
    for i in range(16):
        a(f"s_add_u32 s98, s96, {i * 8 * 3072}\nbuffer_load_dwordx4 {v4(8 + 4 * i)}, v7, {s4(S_TMP)}, s98 offen")


def k1_colsum(a, nlater):
    RAW = 8
    AC = 72
    a("v_mov_b32 v80, 0x00003f80\nv_mov_b32 v81, 0x3f800000")
    for r in range(AC, AC + 8, 2):
        a(f"v_mov_b64 {v2(r)}, 0")
    for i in range(16):
        if i % 4 == 0:
            a(f"s_waitcnt vmcnt({nlater + 12 - i})")
        for k in range(4):
            r = RAW + 4 * i + k
            a(f"v_dot2c_f32_bf16 v{AC + 2 * k}, v{r}, v80\nv_dot2c_f32_bf16 v{AC + 2 * k + 1}, v{r}, v81")
    a(f"""
    v_lshlrev_b32 v80, 5, v0
    v_add_u32 v80, {K1_SCR}, v80
    v_lshlrev_b32 v81, 2, v0
    v_add_u32 v82, {K1_SCR}, v81
    ds_write_b128 v80, {v4(AC)}
    ds_write_b128 v80, {v4(AC + 4)} offset:16
    """)
    for i in range(8):
        a(f"ds_read_b32 v{RAW + i}, v82 offset:{256 * i}")
    a("s_waitcnt lgkmcnt(0)")
    for i in range(1, 8):
        a(f"v_add_f32 v{RAW}, v{RAW}, v{RAW + i}")
    a(f"""
    s_mul_i32 s96, s59, {3072 * 4}
    s_lshl_b32 s97, s60, 8
    s_add_u32 s96, s96, s97
    s_add_u32 s96, s96, {WS_CS}
    buffer_store_dword v{RAW}, v81, {s4(S_WS)}, s96 offen sc0 sc1
    """)


KG_P = 8
KG_TILE = 60
KG_ACC = 16


def kgen_loads(a, sCH, sRND, D=KG_P):
    a(f"""
    s_lshl_b32 s96, s{sRND}, 7
    v_lshl_add_u32 v2, v0, 1, s96
    s_mul_i32 s96, s{sCH}, 384
    s_lshl_b32 s97, s{sCH}, 1
    v_mov_b32 v3, 0
    buffer_load_ushort v{D+4}, v3, {s4(S_DT)}, s97 offen
    buffer_load_ushort v{D}, v2, {s4(S_LA)}, s96 offen
    buffer_load_ushort v{D+1}, v2, {s4(S_AI)}, s96 offen
    buffer_load_ushort v{D+2}, v2, {s4(S_CR)}, s96 offen
    buffer_load_ushort v{D+3}, v2, {s4(S_CI)}, s96 offen
    """)


def kgen_valu(a, tile_done=lambda t: None):
    vLA, vAI, vCR, vCI, vDT = KG_P, KG_P + 1, KG_P + 2, KG_P + 3, KG_P + 4
    lr, th = 13, 14
    T = 16
    nxt = [24]

    def creg():
        r = nxt[0]
        nxt[0] += 2
        assert r + 1 < KG_TILE
        return (r, r + 1)

    def preg():
        r = nxt[0]
        nxt[0] += 1
        assert r < KG_TILE
        return r

    a("s_mov_b32 s88, 0x3fb8aa3b\ns_mov_b32 s89, 0x32a57060\ns_mov_b32 s90, 0x3f317218")

    def expbf(d, x, t):
        a(f"""v_mul_f32 v{t}, s88, v{x}
        v_fma_f32 v{t+1}, v{x}, s88, -v{t}
        v_exp_f32 v{t}, v{t}
        v_fma_f32 v{t+1}, v{x}, s89, v{t+1}
        v_mul_f32 v{t+1}, s90, v{t+1}
        v_fma_f32 v{t}, v{t}, v{t+1}, v{t}""")
        round_bf16(a, d, t)

    for r in range(5):
        a(f"v_lshlrev_b32 v{KG_P + r}, 16, v{KG_P + r}")
    a(f"""v_and_b32 v{T+2}, 0x7fffffff, v{vCR}
    v_and_b32 v{T+3}, 0x7fffffff, v{vCI}
    v_max_u32 v{T+2}, v{T+2}, v{T+3}""")
    expbf(vDT, vDT, T)
    expbf(vLA, vLA, T)
    a(f"""v_mul_f32 v{lr}, v{vLA}, v{vDT}
    v_mul_f32 v{th}, v{vAI}, v{vDT}
    v_mul_f32_e64 v{lr}, -v{lr}, s88
    v_mul_f32 v{th}, 0.15915494, v{th}""")
    wave_max_u32_to_sgpr(a, T + 2, 92, 93)
    a(f"""s_lshr_b32 s92, s92, 23
    s_max_u32 s92, s92, 1
    s_min_u32 s92, s92, 252
    s_sub_u32 s93, 253, s92
    s_lshl_b32 s93, s93, 23             ; sc
    s_add_u32 s92, s92, 2
    s_lshl_b32 s92, s92, 23             ; 2/sc
    v_mul_f32 v{vCR}, s93, v{vCR}
    v_mul_f32 v{vCI}, s93, v{vCI}
    v_mul_f32 v{vDT}, s92, v{vDT}""")

    def anchors(specs):
        ds = [creg() for _ in specs]
        for d, (e, cj) in zip(ds, specs):
            a(f"v_mul_f32 v{d[0]}, {f32(e)}, v{lr}\nv_mul_f32 v{d[1]}, {f32(e)}, v{th}")
        for d in ds:
            a(f"v_exp_f32 v{d[0]}, v{d[0]}\nv_fract_f32 v{d[1]}, v{d[1]}")
        for i, d in enumerate(ds):
            a(f"v_cos_f32 v{T + 2 * i}, v{d[1]}\nv_sin_f32 v{T + 2 * i + 1}, v{d[1]}")
        for i, (d, (e, cj)) in enumerate(zip(ds, specs)):
            a(f"v_mul_f32_e64 v{d[1]}, {'-' if cj else ''}v{d[0]}, v{T + 2 * i + 1}\nv_mul_f32 v{d[0]}, v{d[0]}, v{T + 2 * i}")
        return ds

    tsel = [0]

    def cmul(x, y, d=None):
        d = d or creg()
        t = T + 2 * (tsel[0] & 1)
        tsel[0] += 1
        a(f"""v_mul_f32 v{t}, v{x[1]}, v{y[1]}
        v_mul_f32 v{t+1}, v{x[0]}, v{y[1]}
        v_fma_f32 v{d[0]}, v{x[0]}, v{y[0]}, -v{t}
        v_fma_f32 v{d[1]}, v{x[1]}, v{y[0]}, v{t+1}""")
        return d

    def packm(x):
        d = preg()
        a(f"v_cvt_pk_f16_f32 v{d}, v{x[0]}, v{x[1]}")
        return d

    def packpair(x, y, dre, dim):
        a(f"v_cvt_pk_f16_f32 v{dre}, {x[0]}, {y[0]}\nv_cvt_pk_f16_f32 v{dim}, {x[1]}, {y[1]}")

    def V(x): return (f"v{x[0]}", f"v{x[1]}")

    def pmul(sre, sim, m, dre, dim):
        a(f"""v_pk_mul_f16 v{dre}, v{sre}, v{m} op_sel:[0,0] op_sel_hi:[1,0]
        v_pk_mul_f16 v{dim}, v{sre}, v{m} op_sel:[0,1] op_sel_hi:[1,1]
        v_pk_fma_f16 v{dre}, v{sim}, v{m}, v{dre} op_sel:[0,1,0] op_sel_hi:[1,1,1] neg_lo:[0,1,0] neg_hi:[0,1,0]
        v_pk_fma_f16 v{dim}, v{sim}, v{m}, v{dim} op_sel:[0,0,0] op_sel_hi:[1,0,1]""")

    def RE(t, i): return KG_TILE + 16 * t + i
    def IM(t, i): return KG_TILE + 16 * t + 8 + i

    mark = nxt[0]
    z8, z32 = anchors([(8.0, True), (32.0, True)])
    a("s_nop 0")
    z16 = cmul(z8, z8); z64 = cmul(z32, z32); z24 = cmul(z16, z8); z96 = cmul(z64, z32)
    packpair(("1.0", "0"), V(z8), RE(0, 0), IM(0, 0))
    packpair(V(z16), V(z24), RE(0, 1), IM(0, 1))
    ms = [packm(X) for X in (z32, z64, z96)]
    for i, m in enumerate(ms):
        for b in range(2):
            pmul(RE(0, b), IM(0, b), m, RE(0, 2 + 2 * i + b), IM(0, 2 + 2 * i + b))
    tile_done(0)
    nxt[0] = mark
    z1, z128, z1024 = anchors([(1.0, False), (128.0, False), (1024.0, False)])
    c = [(vCR, vCI)]
    for i in range(7):
        c.append(cmul(c[-1], z1))
    m128 = packm(z128)
    for i in range(4):
        packpair(V(c[2 * i]), V(c[2 * i + 1]), RE(1, i), IM(1, i))
    for i in range(4):
        pmul(RE(1, i), IM(1, i), m128, RE(1, 4 + i), IM(1, 4 + i))
    tile_done(1)
    p02 = creg(); p46 = creg(); p04 = creg()
    packpair(V(c[0]), V(c[2]), *p02); packpair(V(c[4]), V(c[6]), *p46); packpair(V(c[0]), V(c[4]), *p04)
    z256 = cmul(z128, z128, c[1]); b0 = cmul(c[0], z1024, c[7]); z384 = cmul(z256, z128, c[2]); z512 = cmul(z256, z256, c[3])
    b1 = cmul(b0, z128, z1); z640 = cmul(z512, z128, c[4]); z768 = cmul(z384, z384, c[5]); z896 = cmul(z768, z128, c[6])
    M = {k: packm(v) for k, v in (("256", z256), ("384", z384), ("512", z512), ("640", z640), ("768", z768), ("896", z896))}
    c2048 = cmul(b0, z1024, z256)
    for i, k in enumerate(("256", "384")):
        pmul(p02[0], p02[1], M[k], RE(2, 2 * i), IM(2, 2 * i))
        pmul(p46[0], p46[1], M[k], RE(2, 2 * i + 1), IM(2, 2 * i + 1))
    for i, k in enumerate(("512", "640", "768", "896")):
        pmul(p04[0], p04[1], M[k], RE(2, 4 + i), IM(2, 4 + i))
    tile_done(2)
    packpair(V(b0), V(b1), RE(3, 0), IM(3, 0))
    for i, k in enumerate(("256", "512", "768")):
        pmul(RE(3, 0), IM(3, 0), M[k], RE(3, 1 + i), IM(3, 1 + i))
    packpair(V(c2048), ("0", "0"), RE(3, 4), IM(3, 4))
    a(f"v_mov_b32 v{RE(3, 5)}, 0\nv_mov_b32 v{IM(3, 5)}, 0\nv_mov_b64 {v2(RE(3, 6))}, 0\nv_mov_b64 {v2(IM(3, 6))}, 0")
    tile_done(3)


def kgen_addr(a, sKB):
    T = 16
    a(f"""
    v_bfe_u32 v{T}, v0, 1, 2
    v_lshlrev_b32 v{T+1}, 6, v0
    v_add_u32 v{T+1}, s{sKB}, v{T+1}
    v_lshl_add_u32 v2, v{T}, 4, v{T+1}
    v_xor_b32 v3, 16, v2
    v_xor_b32 v4, 32, v2
    v_xor_b32 v5, 48, v2
    v_lshrrev_b32 v{T}, 4, v0                ; hq
    v_bfe_u32 v{T+1}, v0, 2, 2               ; r
    v_and_b32 v{T+2}, 3, v0                  ; c
    v_lshrrev_b32 v{T+3}, 1, v{T+1}
    v_lshl_add_u32 v{T+3}, v{T}, 1, v{T+3}
    v_lshlrev_b32 v6, 6, v{T+3}
    v_and_b32 v{T+1}, 1, v{T+1}
    v_lshrrev_b32 v{T+3}, 1, v{T+2}
    v_lshl_add_u32 v{T+1}, v{T+1}, 1, v{T+3}
    v_xor_b32 v{T+1}, v{T+1}, v{T}
    v_lshl_add_u32 v6, v{T+1}, 4, v6
    v_and_b32 v{T+2}, 1, v{T+2}
    v_lshl_add_u32 v6, v{T+2}, 3, v6
    v_add_u32 v6, s{sKB}, v6
    """)


def kgen_all(a):
    lq = LQ(a)

    def tile_done(t):
        for q in range(4):
            lq.issue(f"w{t}", f"ds_write_b128 v{2 + q}, {v4(KG_TILE + 16 * t + 4 * q)}")
        for k in range(4):
            for s in range(2):
                lq.issue(f"f{t}{k}", f"ds_read_b64_tr_b16 {v2(KG_TILE + 16 * t + 4 * k + 2 * s)}, v6 offset:{1024 * k + 512 * s}")
    kgen_valu(a, tile_done)
    for t in range(1, 4):
        for k in range(4):
            lq.wait(f"f{t}{k}")
            c = v4(KG_ACC + 4 * (t - 1)) if k else "0"
            a(f"v_mfma_f32_16x16x32_f16 {v4(KG_ACC + 4 * (t - 1))}, {v4(KG_TILE + 16 * t + 4 * k)}, {v4(KG_TILE + 4 * k)}, {c}")
    a("s_nop 7")
    for r in range(KG_ACC, KG_ACC + 12):
        a(f"v_mul_f32 v{r}, v{r}, v{KG_P + 4}")


def kgen_final(a, sCH, sKB, sPB, store, sync):
    from_lds = True
    KACC = KG_ACC
    P = 88
    T = 80
    a(f"v_lshlrev_b32 v{T}, 4, v0\nv_add_u32 v{T+1}, s{sKB}, v{T}\nv_add_u32 v{T+2}, s{sPB}, v{T}")
    a(f"v_mov_b32 v112, v{T+2}")
    a(f"v_mov_b32 v48, 0\nv_mov_b32 v49, 0\nv_mov_b32 v50, 0\nv_mov_b32 v51, 0")
    for i in range(3):
        a(f"ds_write_b128 v{T+1}, v[48:51] offset:{1024 * i}")
    a(f"s_mov_b64 exec, 0xffff\nds_write_b128 v{T+1}, v[48:51] offset:3072\ns_mov_b64 exec, -1")
    j, hq = T + 2, T + 3
    b0, b2 = 52, 53
    a1 = 54
    a(f"""
    v_and_b32 v{j}, 15, v0
    v_lshrrev_b32 v{hq}, 4, v0
    v_lshrrev_b32 v{T+4}, 1, v{hq}
    v_and_b32 v{T+5}, 1, v{hq}
    v_lshlrev_b32 v{T+6}, 7, v{T+4}
    v_lshl_add_u32 v{T+6}, v{T+5}, 2, v{T+6}
    v_lshl_add_u32 v{T+6}, v{j}, 3, v{T+6}
    v_sub_u32 v{T+6}, 285, v{T+6}
    v_lshl_add_u32 v{b0}, v{T+6}, 1, s{sKB}
    v_lshlrev_b32 v{T+6}, 6, v{T+5}                 ; 64*(hq&1)
    v_add_u32 v{T+6}, s{sKB}, v{T+6}
    v_lshl_add_u32 v{T+7}, v{j}, 2, v{T+6}
    v_lshl_add_u32 v{T+6}, v{j}, 1, v{T+6}
    v_cmp_gt_u32 vcc, 2, v{hq}
    """)
    for r in range(4):
        lo = (T1O if r & 1 else T1E) + 2 * (59 + (r >> 1))
        hi = (T2O + 60 if r & 1 else T2E + 58) + 32 * (r >> 1)
        a(f"v_add_u32 v60, {lo}, v{T+7}\nv_add_u32 v61, {hi}, v{T+6}\nv_cndmask_b32 v{a1 + r}, v61, v60, vcc")
    a(f"""
    s_add_u32 s96, s{sKB}, {T0E + 64}
    v_writelane_b32 v{a1}, s96, 0
    s_add_u32 s96, s{sKB}, {T0E + 60}
    v_writelane_b32 v{a1 + 1}, s96, 0
    s_add_u32 s96, s{sKB}, {T1E + 246}
    v_writelane_b32 v{a1}, s96, 32
    v_and_b32 v60, 1, v{j}
    v_mul_u32_u24 v60, {T3OE + 30 - (T3EE + 28)}, v60
    v_lshrrev_b32 v61, 1, v{j}
    v_lshl_add_u32 v61, v{hq}, 5, v61
    v_lshl_add_u32 v{b2}, v61, 1, v60
    s_add_u32 s96, s{sKB}, {T3EE + 28}
    v_add_u32 v{b2}, s96, v{b2}
    v_mov_b32 v62, s{sKB}
    """)
    sync()
    for w in range(2):
        for t in range(3):
            a(f"ds_read_b128 {v4(P + 12 * w + 4 * t)}, v112 offset:{4096 * w + 1024 * t}")
    a("s_waitcnt lgkmcnt(0)")
    if from_lds:
        for r in range(12):
            a(f"v_add_f32 v{KACC + r}, v{KACC + r}, v{P + r}")
        for r in range(12):
            a(f"v_add_f32 v{KACC + r}, v{KACC + r}, v{P + 12 + r}")
    a(f"v_max3_f32 v63, abs(v{KACC}), abs(v{KACC+1}), abs(v{KACC+2})")
    for r in range(3, 11, 2):
        a(f"v_max3_f32 v63, v63, abs(v{KACC + r}), abs(v{KACC + r + 1})")
    a(f"v_max_f32_e64 v63, v63, abs(v{KACC + 11})")
    wave_max_u32_to_sgpr(a, 63, 92, 93)
    a(f"""s_lshr_b32 s92, s92, 23
    s_max_u32 s92, s92, 1
    s_min_u32 s92, s92, 252
    s_sub_u32 s93, 253, s92
    s_lshl_b32 s93, s93, 23             ; 1/sigma
    s_add_u32 s92, s92, 1
    s_lshl_b32 s92, s92, 23             ; sigma""")
    for r in range(12):
        a(f"v_mul_f32 v{KACC + r}, s93, v{KACC + r}")
    H = 64
    for i in range(6):
        a(f"v_cvt_pk_f16_f32 v{H + i}, v{KACC + 2 * i}, v{KACC + 2 * i + 1}")

    def w16(addr, r, tile, off):
        reg = H + 2 * tile + (r >> 1)
        a(f"ds_write_b16{'_d16_hi' if r & 1 else ''} v{addr}, v{reg} offset:{off}")
    for r in range(4):
        w16(b0, r, 0, T0E + 2 * (3 - r))
        w16(b0, r, 0, T0O - 2 + 2 * (3 - r))
        w16(a1 + r, r, 1, 0)
    a("s_mov_b32 exec_hi, 0")
    for r in range(1, 4):
        w16(b2, r, 2, 16 * r)
        w16(b2, r, 2, 16 * r + 158)
    a("s_mov_b32 exec_lo, 0xfffffffe\ns_mov_b32 exec_hi, 1")
    w16(b2, 0, 2, 0)
    w16(b2, 0, 2, 158)
    a("s_mov_b64 exec, 1")
    w16(62, 0, 1, T0E + 62); w16(62, 0, 1, T0O + 62); w16(62, 0, 1, T0O + 60); w16(62, 1, 1, T0O + 58)
    w16(62, 0, 2, TK1024)
    a(f"v_mov_b32 v63, s92\nds_write_b32 v62, v63 offset:{TSIG}")
    a("s_mov_b32 exec_lo, 0\ns_mov_b32 exec_hi, 1")
    w16(62, 0, 1, T1O + 246)
    a("s_mov_b64 exec, -1")
    if True:
        Lsk = store()
        for i in range(4):
            a(f"ds_read_b128 {v4(P + 4 * i)}, v{T+1} offset:{1024 * i}")
        a(f"s_mul_i32 s96, s{sCH}, {KT_BYTES}\ns_add_u32 s96, s96, {WS_KT}")
        for i in range(3):
            a(f"s_waitcnt lgkmcnt({3 - i})\nbuffer_store_dwordx4 {v4(P + 4 * i)}, v{T}, {s4(S_WS)}, s96 offen offset:{1024 * i}")
        a(f"s_waitcnt lgkmcnt(0)\ns_mov_b64 exec, 0xffff\nbuffer_store_dwordx4 {v4(P + 12)}, v{T}, {s4(S_WS)}, s96 offen offset:3072\ns_mov_b64 exec, -1")
        a.label(Lsk)


def kernel1(a, parts):
    a.raw(".globl k1_kernel\n.p2align 8\n.type k1_kernel,@function\nk1_kernel:")
    a(f"""
    s_cmp_ge_u32 s2, 256
    s_cbranch_scc1 L_k1_end
    s_load_dwordx16 s[64:79], s[0:1], 0
    s_load_dwordx8 s[80:87], s[0:1], 64
    s_load_dwordx4 s[88:91], s[0:1], 96
    v_lshrrev_b32 v1, 6, v0
    v_and_b32 v0, 63, v0
    s_and_b32 s{sXCD}, s2, 7
    v_readfirstlane_b32 s{sWAVE}, v1
    s_lshr_b32 s{sIDX}, s2, 3
    s_mul_i32 s58, s{sIDX}, 52
    s_lshr_b32 s58, s58, 8              ; q = idx/5
    s_mul_i32 s59, s58, 5
    s_sub_u32 s59, s{sIDX}, s59         ; r
    s_and_b32 s60, s{sXCD}, 1
    s_mul_i32 s60, s60, 5
    s_add_u32 s{sMI}, s60, s59
    s_lshr_b32 s60, s{sXCD}, 1
    s_mul_i32 s60, s60, 6
    s_add_u32 s{sNI}, s60, s58
    s_mul_i32 s{sROW0}, s{sMI}, 208
    s_min_u32 s{sROW0}, s{sROW0}, 1840
    s_mul_i32 s{sGI}, s{sXCD}, 30
    s_add_u32 s{sGI}, s{sGI}, s{sIDX}
    """)
    code_prefetch(a, "k1_kernel", "L_k1_end", 7, sIDX, sWAVE, PFW, 126, 96)
    a(f"""
    s_add_u32 s58, s{sWAVE}, 2
    s_sub_u32 s59, s{sWAVE}, 9
    s_cmp_lt_u32 s{sWAVE}, 9
    s_cselect_b32 s58, s58, s59
    s_cmp_lt_u32 s{sWAVE}, 11
    s_cselect_b32 s{sWAVE}, s58, s{sWAVE}
    """)
    a("s_waitcnt lgkmcnt(0)")
    srd(a, S_X, 64, 2048 * 1280)
    srd(a, S_WG, 80, 640 * 3072)
    srd(a, S_WU, 82, 640 * 3072)
    srd(a, S_WS, 90, 0x4000000 if PROF else WS_END + 4096)
    srd(a, S_DBG, 88, 256)
    srd(a, S_WD, 84, 1536 * 1280)
    if PROF:
        a(f"v_mov_b32 v{vSTAMP}, 0")
    stamp(a, 0, True)
    stamp(a, 1)
    if "diag" in EXP:
        Ld = a.newlabel("diag")
        a(f"""s_cmp_lg_u32 s{sWAVE}, 8
        s_cbranch_scc1 {Ld}
        s_memrealtime s[100:101]
        s_lshl_b32 s98, s2, 2
        s_add_u32 s98, s98, {WS_END}
        v_mov_b32 v5, 0
        s_waitcnt lgkmcnt(0)
        v_mov_b32 v6, s100
        s_mov_b64 exec, 1
        buffer_store_dword v6, v5, {s4(S_WS)}, s98 offen
        s_mov_b64 exec, -1""")
        a.label(Ld)
    srd(a, S_LA, 66, 640 * 384)
    srd(a, S_AI, 68, 640 * 384)
    srd(a, S_CR, 70, 640 * 384)
    srd(a, S_CI, 72, 640 * 384)
    srd(a, S_DT, 74, 1280)
    a("s_mov_b32 s96, s76\ns_mov_b32 s97, s77")
    srd(a, S_OUT, 86, 2048 * 1280)
    srd(a, S_DSK, 96, 1280)
    a(f"""
    s_lshl_b32 s{sMI2}, s{sXCD}, 2
    s_and_b32 s96, s{sIDX}, 3
    s_add_u32 s{sMI2}, s{sMI2}, s96
    s_lshr_b32 s{sNI2}, s{sIDX}, 2
    """)
    import gen2
    sCH, sRND, sKB, sGRP, sGP = 65, 66, 67, 68, 69
    a(f"""
    s_lshl_b32 s{sGP}, s{sXCD}, 5
    s_add_u32 s{sGP}, s{sGP}, s{sIDX}          ; g'
    s_cmp_ge_u32 s{sWAVE}, 2
    s_cbranch_scc1 L_k1_w
    """)
    k1_loader(a, parts)

    def chan(sd, sg):
        a(f"""s_lshl_b32 s{sd}, s{sGP}, 1
        s_add_u32 s{sd}, s{sd}, s{sg}
        s_lshr_b32 s96, s{sGP}, 1
        s_add_u32 s96, s96, 512
        s_cmp_eq_u32 s{sg}, 2
        s_cselect_b32 s{sd}, s96, s{sd}""")

    a.label("L_k1_w")
    a(f"""
    s_setprio 2
    s_cmp_ge_u32 s{sWAVE}, 11
    s_cbranch_scc1 L_k1_side
    ; K-gen round rho = w-2 : grp = rho/3, rnd = rho%3 ; grp 2 only in even g'
    s_sub_u32 s{sRND}, s{sWAVE}, 2
    s_mul_i32 s{sGRP}, s{sRND}, 86
    s_lshr_b32 s{sGRP}, s{sGRP}, 8
    s_mul_i32 s96, s{sGRP}, 3
    s_sub_u32 s{sRND}, s{sRND}, s96
    s_and_b32 s96, s{sGP}, 1
    s_lshl_b32 s96, s96, 1
    s_and_b32 s96, s96, s{sGRP}
    s_cmp_lg_u32 s96, 0
    s_cbranch_scc1 L_k1_idle
    s_sub_u32 s{sKB}, s{sWAVE}, 2
    s_lshl_b32 s{sKB}, s{sKB}, 12
    s_add_u32 s{sKB}, s{sKB}, {2 * SLOT}
    s_add_u32 s70, s{sKB}, 4096
    s_mul_i32 s71, s{sGRP}, {TBL}
    s_add_u32 s71, s71, {K1_KG}
    """)
    chan(sCH, sGRP)
    kgen_loads(a, sCH, sRND)
    kgen_addr(a, sKB)
    a("s_setprio 0\ns_waitcnt vmcnt(0)")
    stamp(a, 8)
    kgen_all(a)
    stamp(a, 10)
    Lf = a.newlabel("kfin")
    a(f"s_cmp_eq_u32 s{sRND}, 0\ns_cbranch_scc1 {Lf}\nv_lshlrev_b32 v5, 4, v0\nv_add_u32 v5, s{sKB}, v5")
    for t in range(3):
        a(f"ds_write_b128 v5, {v4(KG_ACC + 4 * t)} offset:{1024 * t}")
    a("s_waitcnt lgkmcnt(0)")
    a.label("L_k1_idle")
    a("s_mov_b32 s70, 1\ns_branch L_k1_pdone")
    a.label(Lf)

    def store():
        L = a.newlabel("nost")
        a(f"s_cmp_lg_u32 s{sGRP}, 2\ns_cbranch_scc1 {L}")
        return L
    kgen_final(a, sCH, 71, 70, store, lambda: a("s_barrier\ns_setprio 3"))
    stamp(a, 11)
    a(f"s_mov_b32 s70, 0\ns_branch L_k1_pdone")

    a.label("L_k1_side")
    a(f"""
    s_cmp_eq_u32 s{sWAVE}, 11
    s_cbranch_scc1 L_k1_xs
    s_cmp_eq_u32 s{sWAVE}, 12
    s_cbranch_scc1 L_k1_xc
    s_cmp_lt_u32 s{sWAVE}, 15
    s_cbranch_scc1 L_k1_xu
    v_mov_b32 v3, {K1_CTL}
    v_mov_b64 v[4:5], 0
    v_mov_b64 v[6:7], 0
    s_mov_b64 exec, 1
    ds_write_b128 v3, v[4:7]
    ds_write_b128 v3, v[4:7] offset:16
    ds_write_b128 v3, v[4:7] offset:32
    s_lshl_b32 s96, s{sGP}, 2
    s_add_u32 s96, s96, {WS_FY}
    buffer_store_dword v4, v4, {s4(S_WS)}, s96 offen sc0 sc1
    s_lshl_b32 s96, s{sMI}, 7
    s_lshl_b32 s97, s{sNI}, 2
    s_add_u32 s96, s96, s97
    s_add_u32 s96, s96, {WS_FH}
    s_cmp_ge_u32 s{sIDX}, 30
    s_cselect_b32 s96, {WS_FH + 15 * 128}, s96
    buffer_store_dword v4, v4, {s4(S_WS)}, s96 offen sc0 sc1
    s_mov_b64 exec, -1
    s_branch L_k1_idle
    """)
    a.label("L_k1_xs")
    k1_stats_loads(a)
    a("s_barrier")
    k1_stats(a, 0)
    stamp(a, 8)
    a("s_branch L_k1_x")
    a.label("L_k1_xc")
    a(f"s_cmp_ge_u32 s{sIDX}, 30\ns_cbranch_scc1 L_k1_idle")
    k1_colsum_loads(a)
    a("s_barrier")
    k1_colsum(a, 0)
    stamp(a, 8)
    a("s_branch L_k1_x")
    a.label("L_k1_xu")
    a(f"s_sub_u32 s{gen2.sSUB}, s{sWAVE}, 13\ns_mov_b32 s{gen2.sUB}, {K1_STA}")
    gen2.k1_unit_pre(a)
    a("s_barrier")
    gen2.k1_unit(a)
    stamp(a, 8)
    a("s_branch L_k1_x")
    a.label("L_k1_pdone")
    a(f"""
    s_cmp_ge_u32 s{sWAVE}, 10
    s_cbranch_scc1 L_k1_x0
    s_cmp_ge_u32 s{sIDX}, 30
    s_cbranch_scc1 L_k1_gsp
    s_cmp_ge_u32 s{sWAVE}, 6
    s_cbranch_scc1 L_k1_g2
    s_cmp_ge_u32 s{sWAVE}, 4
    s_cbranch_scc1 L_k1_g1
    """)
    for v in range(3):
        a.label(f"L_k1_g{v}")
        k1_gemm(a, v)
    a.label("L_k1_gsp")
    Lp2 = a.newlabel("p1")
    a(f"s_waitcnt vmcnt(0) lgkmcnt(0)\ns_cmp_eq_u32 s70, 0\ns_cbranch_scc1 {Lp2}\ns_barrier")
    a.label(Lp2)
    a("s_barrier\n" * 10)
    a("s_branch L_k1_p2")
    a.label("L_k1_hsig")
    Lh = a.newlabel("hs")
    a(f"""s_waitcnt vmcnt(0)
    v_mov_b32 v3, {K1_CTL}
    v_mov_b32 v4, 1
    v_mov_b32 v5, 0
    s_mov_b64 exec, 1
    ds_add_rtn_u32 v6, v3, v4 offset:16
    s_waitcnt lgkmcnt(0)
    v_readfirstlane_b32 s96, v6
    s_cmp_lg_u32 s96, 7
    s_cbranch_scc1 {Lh}
    s_lshl_b32 s96, s{sMI}, 7
    s_lshl_b32 s97, s{sNI}, 2
    s_add_u32 s96, s96, s97
    s_add_u32 s96, s96, {WS_FH}
    buffer_store_dword v4, v5, {s4(S_WS)}, s96 offen sc0 sc1""")
    a.label(Lh)
    a("s_mov_b64 exec, -1")
    stamp(a, 12)
    a.label("L_k1_p2")
    a(f"s_cmp_ge_u32 s{sWAVE}, 6\ns_cbranch_scc1 L_k1_p2b")
    gen2.p2_gemm(a)
    a.label("L_k1_p2b")
    gen2.p2_base(a)

    a.label("L_k1_x0")
    a("s_waitcnt lgkmcnt(0)\ns_barrier")
    a.label("L_k1_x")
    a(f"""
    s_setprio 0
    s_waitcnt lgkmcnt(0)
    s_barrier                           ; B_init
    """)
    a.label("L_k1_x1")
    a(f"""
    s_setprio 0
    s_barrier                           ; B_0
    s_waitcnt vmcnt(0)
    s_barrier
    s_cmp_lg_u32 s{sWAVE}, 15
    s_cbranch_scc1 L_k1_x2
    s_and_b32 s96, s2, 63
    s_lshl_b32 s96, s96, 2
    v_mov_b32 v5, s96
    v_mov_b32 v6, 1
    s_mov_b64 exec, 1
    buffer_atomic_add v6, v5, {s4(S_DBG)}, 0 offen sc1
    s_endpgm
    """)
    a.label("L_k1_x2")
    a(f"""
    s_sub_u32 s{sGRP}, s{sWAVE}, 11
    s_min_u32 s{sGRP}, s{sGRP}, 4       ; logical 11,12,13 -> 0,1,2 ; 14 -> 3 ; 10 -> 4
    s_cmp_ge_u32 s{sGRP}, 3
    s_cselect_b32 s59, 1, 0
    s_cselect_b32 s96, 3, 0
    s_mov_b32 s70, s59
    s_sub_u32 s{sGRP}, s{sGRP}, s96
    s_and_b32 s97, s{sGP}, 1
    s_mul_i32 s61, s{sGRP}, {gen2.C_SZ}
    s_add_u32 s61, s61, {2 * SLOT}
    s_cmp_eq_u32 s{sGRP}, 2
    s_cselect_b32 s59, s97, s59         ; half
    s_cselect_b32 s61, {2 * SLOT - gen2.C_SZ}, s61      ; region
    s_mul_i32 s60, s{sGRP}, {TBL}
    s_add_u32 s60, s60, {K1_KG}         ; tables
    s_mov_b32 s62, {K1_STA}
    """)
    chan(58, sGRP)
    sliced(a, lambda b: gen2.conv_setup(b, 61, 60, 58), 4)
    a("s_barrier")
    Lnp = a.newlabel("noprep"); Lnt = a.newlabel("notab")
    a(f"""s_lshl_b32 s96, s{sGRP}, 2
    s_add_u32 s96, s96, {K1_CTL}
    v_mov_b32 v3, s96
    v_mov_b32 v4, 1
    s_cmp_lg_u32 s70, 0
    s_cbranch_scc1 {Lnp}""")
    gen2.conv_xload(a, 58, 8)
    a(f"""s_and_b32 s96, s{sGP}, 1
    s_lshl_b32 s96, s96, 1
    s_and_b32 s96, s96, s{sGRP}
    s_cmp_eq_u32 s96, 0
    s_cbranch_scc1 {Lnt}
    s_mov_b32 m0, s60
    s_mul_i32 s96, s58, {KT_BYTES}
    s_add_u32 s96, s96, {WS_KT}""")
    for i in range(3):
        a(f"buffer_load_dwordx4 v2, {s4(S_WS)}, s96 offen offset:{1024 * i} sc0 sc1 lds")
    a(f"s_mov_b64 exec, 0xffff\nbuffer_load_dwordx4 v2, {s4(S_WS)}, s96 offen offset:3072 sc0 sc1 lds\ns_mov_b64 exec, -1")
    a.label(Lnt)
    Lpl = a.newlabel("pl")
    a(f"s_barrier\ns_barrier\ns_setprio {PREP_PRIO}\nv_mov_b32 v5, {K1_CTL}")
    a.label(Lpl)
    a(f"ds_read_b32 v7, v5 offset:12\ns_sleep 1\ns_waitcnt vmcnt(0) lgkmcnt(0)\nv_readfirstlane_b32 s96, v7\ns_cmp_ge_u32 s96, 1\ns_cbranch_scc0 {Lpl}")
    stamp(a, 2)
    gen2.conv_prep2(a, 61, 62)
    a("ds_write_b32 v3, v4\ns_setprio 0")
    stamp(a, 4)
    a("s_branch L_k1_cgo")
    a.label(Lnp)
    a("s_barrier")
    a(f"v_lshlrev_b32 v8, 7, v0\ns_lshl_b32 s96, s{sIDX}, 1\ns_add_u32 s96, s96, s{sGRP}\ns_mul_i32 s96, s96, 30720\ns_add_u32 s96, s96, {WS_WD}")
    for j in range(4):
        a(f"buffer_load_dword v2, v8, {s4(S_WS)}, s96 offen sc1\ns_add_u32 s96, s96, 7680")
    a("s_barrier")
    Lw2 = a.newlabel("wprep")
    a.label(Lw2)
    a(f"ds_read_b32 v7, v3\ns_sleep 1\ns_waitcnt lgkmcnt(0)\nv_readfirstlane_b32 s96, v7\ns_cmp_ge_u32 s96, 1\ns_cbranch_scc0 {Lw2}")
    a.label("L_k1_cgo")
    a(f"s_setprio {CONV_PRIO}")
    stamp(a, 5)
    gen2.conv_run(a, 59)
    stamp(a, 12)
    Ly = a.newlabel("ys")
    a(f"""v_mov_b32 v3, {K1_CTL}
    s_mov_b64 exec, 1
    ds_add_u32 v3, v4 offset:32
    s_mov_b64 exec, -1
    s_barrier
    s_waitcnt vmcnt(0)
    v_mov_b32 v3, {K1_CTL}
    v_mov_b32 v5, 0
    s_mov_b64 exec, 1
    ds_add_rtn_u32 v6, v3, v4 offset:20
    s_waitcnt lgkmcnt(0)
    v_readfirstlane_b32 s96, v6
    s_cmp_lg_u32 s96, 4
    s_cbranch_scc1 {Ly}
    s_lshl_b32 s96, s{sGP}, 2
    s_add_u32 s96, s96, {WS_FY}
    buffer_store_dword v4, v5, {s4(S_WS)}, s96 offen sc0 sc1""")
    a.label(Ly)
    a("s_mov_b64 exec, -1")
    stamp_end(a, 0, S_WS, sWAVE)
    a.label("L_k1_end")
    a("s_endpgm")


def descriptor(name, vgpr, sgpr=102):
    acc = (vgpr + 3) // 4 * 4
    return f""".amdhsa_kernel {name}
  .amdhsa_next_free_vgpr {vgpr}
  .amdhsa_next_free_sgpr {sgpr}
  .amdhsa_accum_offset {acc}
  .amdhsa_group_segment_fixed_size 0
  .amdhsa_kernarg_size 112
  .amdhsa_user_sgpr_count 2
  .amdhsa_user_sgpr_kernarg_segment_ptr 1
  .amdhsa_system_sgpr_workgroup_id_x 1
.end_amdhsa_kernel
"""


HEADER = open("cdna_kernels/" + NAME + ".s.ref").read().split("; Override launch geometry")[0]


def build():
    a = Asm()
    kernel1(a, {})
    import re
    a.L = [re.sub(r"(buffer_store_dwordx[24] .* s\[20:23\], .* offen(?: offset:\d+)?)$", r"\1 sc1", l) for l in a.L]
    out = HEADER
    out += f"; @launch kernel=k1_kernel grid=(256,1,1) block=(1024,1,1) lds={K1_LDS}\n"
    desc = descriptor("k1_kernel", 128)
    out += '.amdgcn_target "amdgcn-amd-amdhsa--gfx950"\n.text\n' + a.text()
    out += '.section .rodata,"a"\n.p2align 6\n' + desc
    return out


if __name__ == "__main__":
    sys.modules["gen"] = sys.modules["__main__"]
    path = sys.argv[1] if len(sys.argv) > 1 else "k.s"
    open(path, "w").write(build())
    print("wrote", path)
```

```python
from gen import *

USCR = 2 * SLOT
sSUB = 94
sU0, sU1, sU2, sUB = 61, 62, 63, 95
vUA = 100


def k1_unit_pre(a):
    Lw = a.newlabel("uwd"); Le = a.newlabel("upe")
    a(f"""
    s_cmp_ge_u32 s{sIDX}, 20
    s_cselect_b32 s96, 12, 9
    s_lshl_b32 s96, s96, 10
    s_mul_i32 s96, s96, s{sSUB}
    s_add_u32 s{sUB}, s{sUB}, s96
    v_lshrrev_b32 v{vUA}, 3, v0
    v_and_b32 v{vUA+1}, 7, v0
    v_mul_u32_u24 v{vUA+2}, 1280, v{vUA}
    v_lshl_add_u32 v{vUA+2}, v{vUA+1}, 4, v{vUA+2}
    s_cmp_ge_u32 s{sIDX}, 20
    s_cbranch_scc1 {Lw}
    ; ---- x transpose unit: v = xn*20+idx ; rb = 8xm + v/10 ; cb = v%10
    s_lshr_b32 s96, s{sXCD}, 1
    s_mul_i32 s96, s96, 20
    s_add_u32 s96, s96, s{sIDX}
    s_mul_i32 s97, s96, 103
    s_lshr_b32 s97, s97, 10              ; v/10
    s_mul_i32 s98, s97, 10
    s_sub_u32 s{sU1}, s96, s98           ; cb
    s_and_b32 s96, s{sXCD}, 1
    s_lshl_b32 s96, s96, 3
    s_add_u32 s97, s97, s96              ; rb
    s_lshl_b32 s97, s97, 1
    s_add_u32 s97, s97, s{sSUB}
    s_lshl_b32 s{sU0}, s97, 6
    s_mul_i32 s96, s{sU0}, 1280
    s_lshl_b32 s97, s{sU1}, 7
    s_add_u32 s96, s96, s97
    """)
    for p in range(8):
        a(f"s_add_u32 m0, s{sUB}, {1024 * p}\ns_add_u32 s97, s96, {p * 8 * 1280}\nbuffer_load_dwordx4 v{vUA+2}, {s4(S_X)}, s97 offen lds")
    a(f"s_branch {Le}")
    a.label(Lw)
    a(f"""
    s_mul_i32 s96, s{sXCD}, 12
    s_add_u32 s96, s96, s{sIDX}
    s_sub_u32 s96, s96, 20
    s_lshr_b32 s{sU0}, s96, 1            ; kappa
    s_and_b32 s96, s96, 1
    s_mul_i32 s96, s96, 5
    s_mul_i32 s97, s{sSUB}, 3
    s_add_u32 s{sU1}, s96, s97
    s_mul_i32 s96, s{sU0}, {32 * 1280}
    s_lshl_b32 s97, s{sU1}, 7
    s_add_u32 s96, s96, s97
    """)
    for k in range(3):
        if k == 2:
            a(f"s_cmp_eq_u32 s{sSUB}, 1\ns_cbranch_scc1 {Le}")
        for p in range(4):
            a(f"s_add_u32 m0, s{sUB}, {4096 * k + 1024 * p}\ns_add_u32 s97, s96, {p * 8 * 1280 + 128 * k}\nbuffer_load_dwordx4 v{vUA+2}, {s4(S_WD)}, s97 offen lds")
    a.label(Le)


def k1_unit(a):
    Lw = a.newlabel("uwd"); Le = a.newlabel("uend")
    R = 8
    a(f"""
    v_lshrrev_b32 v{vUA+3}, 2, v0
    v_and_b32 v{vUA+4}, 3, v0
    v_lshlrev_b32 v{vUA+3}, 7, v{vUA+3}
    v_lshl_add_u32 v{vUA+3}, v{vUA+4}, 3, v{vUA+3}
    v_add_u32 v{vUA+3}, s{sUB}, v{vUA+3}
    s_waitcnt vmcnt(0)
    s_cmp_ge_u32 s{sIDX}, 20
    s_cbranch_scc1 {Lw}
    v_and_b32 v{vUA+4}, 15, v0
    v_lshrrev_b32 v{vUA+5}, 4, v0
    v_mul_u32_u24 v{vUA+4}, 144, v{vUA+4}
    v_lshl_add_u32 v{vUA+4}, v{vUA+5}, 3, v{vUA+4}
    s_mov_b32 s96, s{sUB}
    v_add_u32 v{vUA+4}, s96, v{vUA+4}
    v_mul_u32_u24 v{vUA+5}, 144, v{vUA}
    v_lshl_add_u32 v{vUA+5}, v{vUA+1}, 4, v{vUA+5}
    v_add_u32 v{vUA+5}, s96, v{vUA+5}
    v_lshlrev_b32 v{vUA+6}, 12, v{vUA}
    v_lshl_add_u32 v{vUA+6}, v{vUA+1}, 4, v{vUA+6}
    """)
    lq = LQ(a)
    for j in range(4):
        for g in range(4):
            i = 4 * j + g
            lq.issue(f"t{i}", f"ds_read_b64_tr_b16 {v2(R + 2 * i)}, v{vUA+3} offset:{g * 2048 + 32 * j}")
    for k in range(16):
        lq.wait(f"t{k}")
        lq.issue("w", f"ds_write_b64 v{vUA+4}, {v2(R + 2 * k)} offset:{(k >> 2) * 16 * 144 + 32 * (k & 3)}")
    O = 48
    for i in range(8):
        lq.issue(f"o{i}", f"ds_read_b128 {v4(O + 4 * i)}, v{vUA+5} offset:{i * 8 * 144}")
    a(f"s_lshl_b32 s96, s{sU1}, 18\ns_lshl_b32 s97, s{sU0}, 1\ns_add_u32 s96, s96, s97\ns_add_u32 s96, s96, {WS_XT}")
    for i in range(8):
        lq.wait(f"o{i}")
        a(f"s_add_u32 s97, s96, {i * 8 * 4096}\nbuffer_store_dwordx4 {v4(O + 4 * i)}, v{vUA+6}, {s4(S_WS)}, s97 offen")
    a(f"s_branch {Le}")
    a.label(Lw)
    a(f"v_lshlrev_b32 v{vUA+6}, 4, v0\ns_mul_i32 s{sU2}, s{sU0}, 5120\ns_add_u32 s{sU2}, s{sU2}, {WS_WD}")
    for k in range(3):
        if k == 2:
            a(f"s_cmp_eq_u32 s{sSUB}, 1\ns_cbranch_scc1 {Le}")
        lq = LQ(a)
        for j in range(4):
            for s in range(2):
                lq.issue(f"t{j}", f"ds_read_b64_tr_b16 {v2(R + 16 * k + 4 * j + 2 * s)}, v{vUA+3} offset:{4096 * k + 2048 * s + 32 * j}")
        for j in range(4):
            a(f"""s_lshl_b32 s96, s{sU1}, 2
            s_add_u32 s96, s96, {4 * k + j}
            s_mul_i32 s97, s96, 52
            s_lshr_b32 s97, s97, 8
            s_mul_i32 s98, s97, 5
            s_sub_u32 s96, s96, s98
            s_mul_i32 s97, s97, {48 * 5120}
            s_lshl_b32 s96, s96, 10
            s_add_u32 s96, s96, s97
            s_add_u32 s96, s96, s{sU2}""")
            lq.wait(f"t{j}")
            a(f"buffer_store_dwordx4 {v4(R + 16 * k + 4 * j)}, v{vUA+6}, {s4(S_WS)}, s96 offen")
    a.label(Le)


C_U = 640
C_U2 = C_U + 4096 + 64 + 64
C_B3 = C_U2 + 3584 + 64
C_B5 = C_B3 + 3584 + 64 + 64
C_B7 = C_B5 + 3072 + 64
C_B9 = C_B7 + 2048 + 64 + 80
C_SZ = C_B9 + 2048

NBLK1 = [0, 4, 8, 8, 8, 8, 8, 8]
NBLK2 = [0, 0, 2, 4, 6, 6, 6, 6]
NBLK3 = [0, 0, 0, 0, 1, 2, 3, 4]


def conv_mfma(a, tiles, regs):
    ACC, KF, DF = regs["ACC"], regs["KF"], regs["DF"]
    ND = regs["ND"]
    bU, bK0, bD, bK, PF = regs["bU"], regs["bK0"], regs["bD"], regs["bK"], regs["PF"]
    lq = LQ(a)

    def acc(t): return ACC + 4 * (t - tiles[0])

    def kload(seg, b, bank):
        r = KF + 36 * bank + 4 * b
        tag = f"K{seg}_{b}"
        if seg == 0:
            o = 16 * (8 - b)
            lq.issue(tag, f"ds_read2_b32 {v2(r)}, v{bK0} offset0:{o} offset1:{o + 1}")
            lq.issue(tag, f"ds_read2_b32 {v2(r + 2)}, v{bK0} offset0:{o + 2} offset1:{o + 3}")
        elif seg == 1:
            lq.issue(tag, f"ds_read_b64 {v2(r)}, v{bK[1]} offset:{32 * b}")
            lq.issue(tag, f"ds_read_b64 {v2(r + 2)}, v{bK[1]} offset:{32 * b + 8}")
        else:
            o = 8 * b
            lq.issue(tag, f"ds_read2_b32 {v2(r)}, v{bK[seg]} offset0:{o} offset1:{o + 1}")
            lq.issue(tag, f"ds_read2_b32 {v2(r + 2)}, v{bK[seg]} offset0:{o + 2} offset1:{o + 3}")

    work = []
    banks = {0: 0, 1: 1, 2: 0, 3: 1}
    for t in tiles:
        for k in range(9):
            if t == 0 and k == 8:
                continue
            work.append((("u", 512 * (t + 1) - 64 * k), [(t, 0, k)]))
    for seg, D, nb in ((1, 4, NBLK1), (2, 8, NBLK2), (3, 16, NBLK3)):
        es = {}
        for t in tiles:
            for b in range(nb[t]):
                es.setdefault((16 // D) * t - b, []).append((t, seg, b))
        for e in sorted(es):
            work.append((("tr", seg, D, e), es[e]))
    for t in tiles:
        if t >= 3:
            work.append((("u", 512 * (t + 1) - 2032), [(t, "p", 0)]))
    need = {s: sorted({b for _, us in work for (_, sg, b) in us if sg == s}) for s in range(4)}
    first = {}
    last = {}
    for i, (_, us) in enumerate(work):
        for (_, sg, b) in us:
            first.setdefault(sg, i)
            last[sg] = i
    kplan = {}
    for s in (1, 2, 3):
        if not need[s]:
            continue
        start = 0 if s == 1 else last[s - 2] + 1
        span = max(1, first[s] - start - 2)
        for j, b in enumerate(need[s]):
            kplan.setdefault(min(start + (j * span) // len(need[s]), first[s] - 1) if first[s] > start else start, []).append((s, b))

    def dload(i):
        spec = work[i][0]
        r = DF + 4 * (i % ND)
        if spec[0] == "u":
            lq.issue(f"D{i}", f"ds_read_b128 {v4(r)}, v{bU} offset:{spec[1]}")
        else:
            _, seg, D, e = spec
            for s in range(2):
                lq.issue(f"D{i}", f"ds_read_b64_tr_b16 {v2(r + 2 * s)}, v{bD[seg]} offset:{32 * D * e + (8 * D if s == 0 else 0)}")

    LA = ND - 1
    kload(0, need[0][0], 0)
    dload(0)
    for b in need[0][1:3]:
        kload(0, b, 0)
    for i in range(1, LA):
        dload(i)
    rest0 = need[0][3:]
    for i, (spec, us) in enumerate(work):
        for (s, b) in kplan.get(i, []):
            kload(s, b, banks[s])
        if rest0:
            kload(0, rest0.pop(0), 0)
        if i + LA < len(work):
            dload(i + LA)
        d = DF + 4 * (i % ND)
        for (t, sg, b) in us:
            if sg == "p":
                lq.wait(f"D{i}")
                a(f"v_mfma_f32_16x16x32_f16 {v4(acc(t))}, {v4(PF)}, {v4(d)}, {v4(acc(t))}")
                continue
            k = KF + 36 * banks[sg] + 4 * b
            lq.wait(f"D{i}", f"K{sg}_{b}")
            if sg == 0:
                a(f"v_mfma_f32_16x16x32_f16 {v4(acc(t))}, {v4(k)}, {v4(d)}, {v4(acc(t))}")
            else:
                a(f"v_mfma_f32_16x16x32_f16 {v4(acc(t))}, {v4(d)}, {v4(k)}, {v4(acc(t))}")


def conv_xload(a, sCH, X=100):
    a(f"v_lshlrev_b32 v2, 4, v0\ns_lshl_b32 s96, s{sCH}, 12\ns_add_u32 s96, s96, {WS_XT}")
    for r in range(4):
        a(f"buffer_load_dwordx4 {v4(X + 4 * r)}, v2, {s4(S_WS)}, s96 offen offset:{1024 * r} sc0 sc1")


PREP_CUTS = [int(x) for x in os.environ.get("PREP_CUTS", "0,0,100").split(",")]


def conv_prep2(a, sRB, sSTA):
    U, W, B3, B5, B7, B9, SS = 8, 25, 50, 66, 78, 86, 94
    b = Asm()
    b(f"v_lshlrev_b32 v2, 4, v0\nv_add_u32 v6, s{sSTA}, v2")
    S = 50
    X = 94
    lq = LQ(b)

    def ldst(r):
        for q in range(4):
            lq.issue(f"s{r}", f"ds_read_b128 {v4(S + 16 * (r & 1) + 4 * q)}, v6 offset:{4096 * q + 1024 * r}")
    ldst(0)
    for r in range(4):
        if r < 3:
            ldst(r + 1)
        for i in range(4):
            b(f"v_lshlrev_b32 v{X + 2 * i}, 16, v{U + 4 * r + i}\nv_and_b32 v{X + 2 * i + 1}, 0xffff0000, v{U + 4 * r + i}")
        lq.wait(f"s{r}")
        sb = S + 16 * (r & 1)
        for i in range(8):
            b(f"v_fma_f32 v{X + i}, v{X + i}, v{sb + 2 * i}, v{sb + 2 * i + 1}")
        for i in range(4):
            b(f"v_cvt_pk_f16_f32 v{U + 4 * r + i}, v{X + 2 * i}, v{X + 2 * i + 1}")
    dpp = "row_mask:0xf bank_mask:0xf"
    done = []

    def rdy(txt):
        done.append((len(b.L), txt))
    for r in range(4):
        rdy(f"ds_write_b128 v5, {v4(U + 4 * r)} offset:{C_U + 1024 * r}")
    for r in range(4):
        w = W + 6 * r
        d = [w, w + 1, w + 2, w + 3, w + 4, w + 5, U + 4 * r, U + 4 * r + 1]
        for i in range(4):
            if r == 0:
                b(f"v_mov_b32 v{d[2 + i]}, 0")
            else:
                b(f"v_mov_b32_dpp v{d[2 + i]}, v{U + 4 * (r - 1) + i} wave_ror:1 {dpp}")
        for i in range(2):
            if r == 0:
                b(f"v_mov_b32 v{d[i]}, 0")
            else:
                b(f"v_mov_b32_dpp v{d[i]}, v{W + 6 * (r - 1) + 4 + i} wave_ror:1 {dpp}")
        for i in (2, 3, 0, 1):
            b(f"v_mov_b32_dpp v{d[2 + i]}, v{U + 4 * r + i} wave_shr:1 {dpp}")
        for i in range(2):
            b(f"v_mov_b32_dpp v{d[i]}, v{d[4 + i]} wave_shr:1 {dpp}")
        lo = 0 if r < 2 else 1
        for i in range(lo, 7 - lo):
            b(f"v_alignbit_b32 v{SS + i}, v{d[i + 1]}, v{d[i]}, 16")
        m3 = "M" if r == 3 else ""
        rdy(f"{m3}ds_write_b128 v5, {v4(w + 1)} offset:{C_U2 + 1024 * r - 16}")
        for i in range(4):
            b(f"v_pk_add_f16 v{B3 + 4 * r + i}, v{SS + i + 1}, v{SS + i + 2}")
        for i in range(4):
            b(f"v_pk_add_f16 v{B3 + 4 * r + i}, v{B3 + 4 * r + i}, v{d[i + 2]}")
        rdy(f"{m3}ds_write_b128 v5, {v4(B3 + 4 * r)} offset:{C_B3 + 1024 * r - 16}")
        if r < 3:
            for i in range(4):
                b(f"v_pk_add_f16 v{B5 + 4 * r + i}, v{d[i + 1]}, v{d[i + 3]}")
            for i in range(4):
                b(f"v_pk_add_f16 v{B5 + 4 * r + i}, v{B5 + 4 * r + i}, v{B3 + 4 * r + i}")
            rdy(f"ds_write_b128 v5, {v4(B5 + 4 * r)} offset:{C_B5 + 1024 * r - 16}")
        if r < 2:
            for i in range(4):
                b(f"v_pk_add_f16 v{B7 + 4 * r + i}, v{SS + i}, v{SS + i + 3}")
            for i in range(4):
                b(f"v_pk_add_f16 v{B7 + 4 * r + i}, v{B7 + 4 * r + i}, v{B5 + 4 * r + i}")
            rdy(f"ds_write_b128 v5, {v4(B7 + 4 * r)} offset:{C_B7 + 1024 * r - 16}")
            for i in range(4):
                b(f"v_pk_add_f16 v{B9 + 4 * r + i}, v{d[i]}, v{d[i + 4]}")
            for i in range(4):
                b(f"v_pk_add_f16 v{B9 + 4 * r + i}, v{B9 + 4 * r + i}, v{B7 + 4 * r + i}")
            rdy(f"ds_write_b128 v5, {v4(B9 + 4 * r)} offset:{C_B9 + 1024 * r - 16}")
    n = len(b.L)
    c0, c1, c2 = [min(c, n) for c in PREP_CUTS]

    def wr(txt):
        if txt.startswith("M"):
            a(f"s_mov_b32 exec_hi, 1\n{txt[1:]}\ns_mov_b32 exec_hi, -1")
        else:
            a(txt)
    pend = list(done)
    for i, l in enumerate(b.L):
        a.L.append(l)
        if i + 1 == c1 or i + 1 == c0:
            a("s_barrier")
        if i + 1 == c2:
            Lg = a.newlabel("g28")
            a(f"v_mov_b32 v5, {K1_CTL}\ns_cmp_ge_u32 s{sIDX}, 30\ns_cselect_b32 s97, 0, 8")
            a.label(Lg)
            a(f"ds_read_b32 v7, v5 offset:28\ns_sleep 1\ns_waitcnt lgkmcnt(0)\nv_readfirstlane_b32 s96, v7\ns_cmp_ge_u32 s96, s97\ns_cbranch_scc0 {Lg}")
            stamp(a, 3)
            a(f"""v_add_u32 v5, s{sRB}, v2
            v_mov_b64 v[104:105], 0
            v_mov_b64 v[106:107], 0
            s_mov_b32 exec_hi, 0xff
            ds_write_b128 v5, v[104:107]
            s_mov_b64 exec, 7
            ds_write_b128 v5, v[104:107] offset:{C_U2 - 64}
            ds_write_b128 v5, v[104:107] offset:{C_B3 - 64}
            ds_write_b128 v5, v[104:107] offset:{C_B5 - 64}
            ds_write_b128 v5, v[104:107] offset:{C_B7 - 64}
            ds_write_b128 v5, v[104:107] offset:{C_B9 - 64}
            s_mov_b64 exec, -1""")
        if i + 1 >= c2 and pend and pend[0][0] <= i + 1 :
            wr(pend.pop(0)[1])
    for _, txt in pend:
        wr(txt)
    a("s_waitcnt lgkmcnt(0)")


CREGS = dict(ACC=8, KF=28, DF=96, ND=4, bU=116, bK0=117, bD={1: 118, 2: 119, 3: 120}, bK={1: 121, 2: 122, 3: 123}, PF=112)


def conv_setup(a, sRB, sKT, sCH):
    regs = CREGS
    i16, hq, par, h8, rr, cc, T = 96, 97, 98, 99, 100, 101, 102
    a(f"""
    v_and_b32 v{i16}, 15, v0
    v_lshrrev_b32 v{hq}, 4, v0
    v_and_b32 v{par}, 1, v{hq}
    v_lshrrev_b32 v{h8}, 1, v{hq}
    v_bfe_u32 v{rr}, v0, 2, 2
    v_and_b32 v{cc}, 3, v0
    v_sub_u32 v{T}, v{i16}, v{h8}
    v_lshlrev_b32 v{T}, 5, v{T}
    v_lshl_add_u32 v{T}, v{par}, 4, v{T}
    s_add_u32 s96, s{sRB}, {C_U - 512}
    v_add_u32 v{regs['bU']}, s96, v{T}
    v_lshlrev_b32 v{T}, 3, v{par}
    v_sub_u32 v{T}, v{T}, v{i16}
    v_lshlrev_b32 v{T+1}, 4, v{h8}
    v_sub_u32 v{T}, v{T}, v{T+1}
    v_add_u32 v{T}, 32, v{T}
    v_lshlrev_b32 v{T}, 1, v{T}
    v_and_b32 v{T+2}, 1, v{i16}
    v_mul_u32_u24 v{T+1}, {T0O - T0E - 2}, v{T+2}
    v_add3_u32 v{regs['bK0']}, v{T}, v{T+1}, s{sKT}
    """)
    segs = {1: (4, C_B3, 5, 0, C_U2, 5, 0, T1E, T1O), 2: (8, C_B5, 35, 0, C_B3, 34, 4, T2E, T2O), 3: (16, C_B9, 50, 0, C_B7, 49, 8, T3EE, T3OE)}
    for sg, (Dd, Ae, pe, oe, Ao, po, oo, Te, To) in segs.items():
        ce = Ae - 2 * Dd * (pe + 4) - 2 * oe
        co = Ao - 2 * Dd * (po + 4) - 2 * oo
        a(f"""
        v_lshl_add_u32 v{T}, v{h8}, 3, v{rr}
        v_mul_u32_u24 v{T}, {2 * Dd}, v{T}
        v_lshlrev_b32 v{T+1}, 3, v{cc}
        v_sub_u32 v{T}, v{T+1}, v{T}
        v_mul_i32_i24 v{T+1}, {co - ce}, v{par}
        v_add3_u32 v{T}, v{T}, v{T+1}, s{sRB}
        v_add_u32 v{regs['bD'][sg]}, {ce}, v{T}
        v_mul_u32_u24 v{T}, {2 * 16 // Dd}, v{i16}
        v_lshl_add_u32 v{T}, v{h8}, 4, v{T}
        v_mul_u32_u24 v{T+1}, {To - Te}, v{par}
        v_add3_u32 v{T}, v{T}, v{T+1}, s{sKT}
        v_add_u32 v{regs['bK'][sg]}, {Te}, v{T}
        """)
    a(f"v_mul_u32_u24 v{T+1}, 158, v{T+2}\nv_add_u32 v{regs['bK'][3]}, v{regs['bK'][3]}, v{T+1}")
    PF = regs["PF"]
    a(f"""
    v_lshlrev_b32 v{T}, 4, v{h8}
    v_lshlrev_b32 v{T+1}, 3, v{par}
    v_sub_u32 v{T}, v{T}, v{T+1}
    v_add3_u32 v{T}, v{T}, v{i16}, -6
    v_mov_b32 v{T+3}, 0xffff
    v_mov_b32 v{cc}, 0xffff0000
    """)
    for p in range(4):
        a(f"""v_subrev_u32 v{T+1}, {2 * p}, v{T}
        v_subrev_u32 v{T+2}, {2 * p + 1}, v{T}
        v_cmp_gt_u32 vcc, 7, v{T+1}
        v_cmp_gt_u32 s[96:97], 7, v{T+2}
        s_nop 1
        v_cndmask_b32 v{T+1}, 0, v{T+3}, vcc
        v_cndmask_b32 v{T+2}, 0, v{cc}, s[96:97]
        v_or_b32 v{PF + p}, v{T+1}, v{T+2}""")
    a(f"""v_lshlrev_b32 v126, 5, v{i16}
    v_lshl_add_u32 v126, v{hq}, 3, v126
    s_add_u32 s96, s{sKT}, {TK1024}
    v_mov_b32 v124, s96
    s_lshl_b32 s93, s{sCH}, 12
    s_add_u32 s93, s93, {WS_Y}""")


def conv_run(a, sHALF):
    regs = CREGS
    PF = regs["PF"]
    a("ds_read_b64 v[124:125], v124")
    for r in range(8, 28, 2):
        a(f"v_mov_b64 {v2(r)}, 0")
    a(f"s_waitcnt lgkmcnt(0)\nv_and_b32 v124, 0xffff, v124\nv_lshl_or_b32 v124, v124, 16, v124")
    for p in range(4):
        a(f"v_and_b32 v{PF + p}, v{PF + p}, v124")
    LB = a.newlabel("halfB"); LJ = a.newlabel("cjoin")
    a(f"s_cmp_eq_u32 s{sHALF}, 1\ns_cbranch_scc1 {LB}")
    for tiles, lab in (([0, 1, 2, 3, 4], None), ([5, 6, 7], LB)):
        if lab:
            a.label(lab)
        conv_mfma(a, tiles, regs)
        a("s_nop 7")
        for i, t in enumerate(tiles):
            c = 8 + 4 * i
            for r in range(4):
                a(f"v_mul_f32 v{c + r}, v{c + r}, v125")
            a(f"v_cvt_pk_bf16_f32 v{c}, v{c}, v{c+1}\nv_cvt_pk_bf16_f32 v{c+1}, v{c+2}, v{c+3}")
            a(f"buffer_store_dwordx2 {v2(c)}, v126, {s4(S_WS)}, s93 offen offset:{512 * t} sc1")
        if not lab:
            a(f"s_branch {LJ}")
    a.label(LJ)


NR2 = 8
NEARLY = 6
POLL_CONV = int(os.environ.get('POLL_CONV', '2'))
POLL_SLEEP = int(os.environ.get('POLL_SLEEP', '8'))
ROT2 = 7
P2_H = NR2 * 10240
P2_X = 149504
P2_Y = P2_X
assert NEARLY * 10240 <= 2 * SLOT - C_SZ and P2_H + NR2 * 8192 <= P2_X and K1_STA <= P2_X and P2_X + 11968 <= K1_CTL
YSTAGE = 8


def p2_loader(a):
    vL, vT = 2, 3
    sW = 58
    a(f"""
    v_lshlrev_b32 v{vL}, 4, v0
    s_mul_i32 s{sW}, s{sNI2}, {48 * 5120}
    s_add_u32 s{sW}, s{sW}, {WS_WD}
    v_mov_b32 v5, {K1_CTL}
    v_mov_b32 v6, 1
    s_and_b32 s65, s{sIDX}, 7
    s_mul_i32 s65, s65, 3
    s_lshr_b32 s96, s{sIDX}, 3
    s_mul_i32 s96, s96, {ROT2}
    s_add_u32 s65, s65, s96
    s_cmp_ge_u32 s65, 24
    s_cselect_b32 s96, 24, 0
    s_sub_u32 s65, s65, s96
    {"s_mov_b32 s65, 0" if "rot" not in EXP else ""}
    s_mov_b32 s66, s65
    s_cmp_ge_u32 s{sIDX}, 30
    s_cselect_b32 s98, 0, 8
    """)

    def adv(r):
        a(f"s_add_u32 s{r}, s{r}, 1\ns_cmp_eq_u32 s{r}, 24\ns_cselect_b32 s{r}, 0, s{r}")
    L1 = a.newlabel("p2l1")
    a(f"s_cmp_eq_u32 s{sWAVE}, 1\ns_cbranch_scc1 {L1}")
    Lq = a.newlabel("pq")
    a.label(Lq)
    a(f"ds_read_b32 v12, v5 offset:{16 if 'wlate' in EXP else 28}\ns_sleep 1\ns_waitcnt lgkmcnt(0)\nv_readfirstlane_b32 s97, v12\ns_cmp_ge_u32 s97, s98\ns_cbranch_scc0 {Lq}")

    def issw(s):
        slot = (s % NR2) * 10240
        a(f"s_mul_i32 s67, s65, 10240\ns_add_u32 s67, s67, s{sW}")
        adv(65)
        for g, n in ((0, 4), (4, 4), (8, 1)):
            a(f"s_mov_b32 m0, {slot + 1024 * g}\ns_add_u32 s97, s67, {1024 * g}")
            for j in range(n):
                a(f"buffer_load_dwordx4 v{vL}, {s4(S_WS)}, s97 offen offset:{1024 * j} sc1 lds")
    for s in range(NEARLY):
        issw(s)
    a("s_waitcnt vmcnt(0)\ns_barrier")
    issw(6)
    issw(7)
    a("s_barrier")
    for s in range(23):
        infl = min(s + NR2 - 1, 23) - (s + 1)
        a(f"s_waitcnt vmcnt({9 * infl})\ns_barrier")
        if CSTAMP:
            stamp(a, 16 + s)
        if s + NR2 < 24:
            issw(s + NR2)
    stamp_end(a, 0, S_WS, sWAVE)

    a.label(L1)
    a(f"""
    v_lshrrev_b32 v{vT}, 3, v0
    v_and_b32 v4, 7, v0
    v_lshlrev_b32 v{vT}, 12, v{vT}
    v_lshl_add_u32 v{vT}, v4, 4, v{vT}          ; ch8*4096 + 16k
    s_mul_i32 s60, s{sNI2}, {80 * 4096}
    s_lshl_b32 s96, s{sMI2}, 7
    s_add_u32 s60, s60, s96
    s_mul_i32 s59, s{sMI2}, {4 * 49152}
    s_add_u32 s59, s59, {WS_H}
    s_add_u32 s68, s{sW}, 9216
    """)

    def tile(src, dst, lo=0, hi=10):
        a(f"s_add_u32 s96, s60, {src}")
        for p in range(lo, hi):
            a(f"s_mov_b32 m0, {dst + 1024 * p}\ns_add_u32 s97, s96, {p * 8 * 4096}\nbuffer_load_dwordx4 v{vT}, {s4(S_WS)}, s97 offen sc1 lds")

    def issw9(s):
        a(f"s_mul_i32 s97, s65, 10240\ns_mov_b32 m0, {(s % NR2) * 10240 + 9216}\ns_add_u32 s97, s97, s68\nbuffer_load_dwordx4 v{vL}, {s4(S_WS)}, s97 offen sc1 lds")
        adv(65)

    def issh(s):
        slot = P2_H + (s % NR2) * 8192
        a(f"s_lshl_b32 s67, s66, 11\ns_add_u32 s67, s67, s59")
        adv(66)
        for t_ in range(4):
            a(f"s_mov_b32 m0, {slot + t_ * 2048}\ns_add_u32 s97, s67, {t_ * 49152}")
            for j in range(2):
                a(f"buffer_load_dwordx4 v{vL}, {s4(S_WS)}, s97 offen offset:{1024 * j} sc1 lds")
        if s >= NEARLY:
            issw9(s)
        return 8 + (s >= NEARLY)
    Lq2 = a.newlabel("pq")
    a.label(Lq2)
    a(f"""ds_read_b128 v[8:11], v5
    s_sleep 1
    s_waitcnt lgkmcnt(0)
    v_and_b32 v8, v8, v9
    v_and_b32 v8, v8, v10
    s_nop 0
    v_readfirstlane_b32 s96, v8
    s_cmp_eq_u32 s96, 1
    s_cbranch_scc0 {Lq2}""")
    tile(WS_XT, P2_X)
    for s in range(NEARLY):
        issw9(s)
    Lw = a.newlabel("own"); Lp = a.newlabel("hp"); Lgo = a.newlabel("hgo")
    a(f"""s_lshl_b32 s96, s{sMI2}, 6
    s_mul_i32 s97, s96, 5042
    s_lshr_b32 s97, s97, 20                     ; row/208
    s_add_u32 s96, s96, 63
    s_mul_i32 s96, s96, 5042
    s_lshr_b32 s96, s96, 20
    s_lshl_b32 s97, s97, 7
    s_lshl_b32 s96, s96, 7
    s_sub_u32 s96, s96, 96
    v_mov_b32 v7, s97
    v_mov_b32 v8, s96
    v_cmp_gt_u32 vcc, 6, v0
    v_lshlrev_b32 v9, 4, v0
    s_nop 0
    v_cndmask_b32 v7, v8, v7, vcc
    v_add_u32 v7, v7, v9
    s_mov_b32 s61, {WS_FH}
    s_mov_b32 s62, 0
    s_mov_b32 s98, {POLL_CONV}
    v_add_u32 v10, 32, v5
    s_waitcnt vmcnt(0)
    ds_write_b32 v5, v6 offset:24""")
    a.label(Lw)
    a(f"ds_read_b32 v11, v10\ns_sleep 2\ns_waitcnt lgkmcnt(0)\nv_readfirstlane_b32 s96, v11\ns_cmp_ge_u32 s96, s98\ns_cbranch_scc0 {Lw}")
    stamp(a, 8)
    a.label(Lp)
    a(f"""s_mov_b64 exec, 0xfff
    buffer_load_dwordx4 v[12:15], v7, {s4(S_WS)}, s61 offen {POLLF}
    s_mov_b64 exec, -1
    s_add_u32 s62, s62, 1
    s_waitcnt vmcnt(0)
    v_and_b32 v12, v12, v13
    v_and_b32 v14, v14, v15
    v_and_b32 v12, v12, v14
    v_cmp_eq_u32 vcc, 1, v12
    s_and_b32 s96, vcc_lo, 0xfff
    s_cmp_eq_u32 s96, 0xfff
    s_cbranch_scc1 {Lgo}
    s_sleep {POLL_SLEEP}
    s_cmp_lt_u32 s62, 200000
    s_cbranch_scc1 {Lp}""")
    a.label(Lgo)
    stamp(a, 9)
    a("s_barrier")
    stamp(a, 10)
    vq = LQ(a, cnt="vmcnt", cap=63)

    def trk(tag, n):
        vq.q += [tag] * n
    for s in range(NR2 - 1):
        trk(f"h{s}", issh(s))
    vq.wait("h0")
    a("s_barrier")
    trk(f"h{NR2 - 1}", issh(NR2 - 1))
    stamp(a, 11)

    for s in range(23):
        vq.wait(f"h{s + 1}")
        a("s_barrier")
        if s + NR2 < 24:
            trk(f"h{s + NR2}", issh(s + NR2))
    stamp_end(a, 0, S_WS, sWAVE)


P2_BASE = 0


def p2_base(a):
    XB, TB, DD = 8, 18, 28
    vTR = 2
    sW4 = 60
    a(f"""
    s_setprio 0
    s_sub_u32 s{sW4}, s{sWAVE}, 6
    v_and_b32 v4, 15, v0
    v_lshrrev_b32 v5, 4, v0
    v_lshlrev_b32 v6, 3, v4
    v_lshlrev_b32 v7, 3, v5
    s_lshl_b32 s61, s{sMI2}, 2
    s_add_u32 s61, s61, s{sW4}              ; l tile
    s_lshl_b32 s96, s61, 7
    s_add_u32 s96, s96, {WS_STATB}
    s_mul_i32 s62, s{sNI2}, 160
    buffer_load_dwordx2 v[38:39], v6, {s4(S_WS)}, s96 offen sc0 sc1
    """)
    for dt in range(5):
        a(f"buffer_load_dwordx2 {v2(DD + 2 * dt)}, v7, {s4(S_DSK)}, s62 offen offset:{32 * dt}")
    a(f"""
    v_lshrrev_b32 v{vTR}, 2, v0
    v_and_b32 v3, 3, v0
    v_lshlrev_b32 v{vTR}, 7, v{vTR}
    v_lshl_add_u32 v{vTR}, v3, 3, v{vTR}
    s_lshl_b32 s96, s{sW4}, 5
    s_add_u32 s96, s96, {P2_X}
    v_add_u32 v{vTR}, s96, v{vTR}
    v_mov_b32 v3, {K1_CTL}
    """)
    Lx = a.newlabel("xw")
    a.label(Lx)
    a(f"ds_read_b32 v6, v3 offset:24\ns_sleep 1\ns_waitcnt lgkmcnt(0)\nv_readfirstlane_b32 s96, v6\ns_cmp_ge_u32 s96, 1\ns_cbranch_scc0 {Lx}")
    for dt in range(5):
        a(f"ds_read_b64_tr_b16 {v2(XB + 2 * dt)}, v{vTR} offset:{2048 * dt}")
    a("s_waitcnt vmcnt(0)\nv_rcp_f32 v39, v39\ns_waitcnt lgkmcnt(0)")

    def unpack(b, d, s):
        b(f"v_and_b32 v{d + 1}, 0xffff0000, v{s}\nv_lshlrev_b32 v{d}, 16, v{s}")
    T = 40

    def part1(b):
        def rnd():
            for h in range(2):
                b(f"v_cvt_pk_bf16_f32 v{T + 2 * h}, v{T + 2 * h}, v{T + 1 + 2 * h}")
            for h in range(2):
                unpack(b, T + 2 * h, T + 2 * h)
        for dt in range(5):
            for h in range(2):
                unpack(b, T + 2 * h, XB + 2 * dt + h)
            for h in range(2):
                unpack(b, T + 4 + 2 * h, DD + 2 * dt + h)
            for i in range(4):
                b(f"v_sub_f32 v{T + i}, v{T + i}, v38")
            rnd()
            for i in range(4):
                b(f"v_mul_f32 v{T + i}, v{T + i}, v39")
            rnd()
            for i in range(4):
                b(f"v_mul_f32 v{T + i}, v{T + i}, v{T + 4 + i}")
            for h in range(2):
                b(f"v_cvt_pk_bf16_f32 v{TB + 2 * dt + h}, v{T + 2 * h}, v{T + 1 + 2 * h}")
    part1(a)
    a(f"""v_lshlrev_b32 v48, 4, v0
    v_lshrrev_b32 v49, 3, v0
    v_and_b32 v50, 7, v0
    v_lshlrev_b32 v49, 12, v49
    v_lshl_add_u32 v49, v50, 4, v49
    s_mul_i32 s63, s{sNI2}, {80 * 4096}
    s_lshl_b32 s96, s{sMI2}, 7
    s_add_u32 s63, s63, s96
    s_lshl_b32 s96, s{sW4}, 15
    s_add_u32 s63, s63, s96
    s_add_u32 s63, s63, {WS_Y}
    s_lshl_b32 s59, s{sW4}, 10
    s_add_u32 s59, s59, {P2_Y}
    s_mov_b32 s61, {WS_FY}""")
    a("s_barrier\n" * (2 + YSTAGE))

    def ypoll():
        a(f"buffer_load_dwordx4 v[52:55], v48, {s4(S_WS)}, s61 offen {POLLF}")
    Ln = a.newlabel("nyp"); Ln2 = a.newlabel("nyp"); Lc = a.newlabel("yc")
    a(f"s_cmp_lg_u32 s{sW4}, 0\ns_cbranch_scc1 {Ln}")
    ypoll()
    a.label(Ln)
    a("s_barrier\n" * 3)
    a(f"s_cmp_lg_u32 s{sW4}, 0\ns_cbranch_scc1 {Ln2}\ns_waitcnt vmcnt(0)\ns_mov_b32 s62, 0")
    a.label(Lc)
    a(f"""v_and_b32 v52, v52, v53
    v_and_b32 v54, v54, v55
    v_and_b32 v52, v52, v54
    v_cmp_eq_u32 vcc, 1, v52
    s_and_b32 s96, vcc_lo, vcc_hi
    s_cmp_eq_u32 s96, -1
    s_cbranch_scc1 {Ln2}
    s_sleep 16""")
    ypoll()
    a(f"s_add_u32 s62, s62, 1\ns_waitcnt vmcnt(0)\ns_cmp_lt_u32 s62, 200000\ns_cbranch_scc1 {Lc}")
    a.label(Ln2)
    a("s_barrier")
    Ln3 = a.newlabel("ny3")
    for j in range(3):
        if j == 2:
            a(f"s_cmp_ge_u32 s{sW4}, 2\ns_cbranch_scc1 {Ln3}")
        a(f"s_add_u32 m0, s59, {4096 * j}\ns_add_u32 s97, s63, {4 * j * 8 * 4096}\nbuffer_load_dwordx4 v49, {s4(S_WS)}, s97 offen sc1 lds")
    a.label(Ln3)
    a("s_barrier\n" * 3 + "s_waitcnt vmcnt(0)\ns_barrier")
    NB2 = YSTAGE + 8
    Y = 28

    for dt in range(5):
        a(f"ds_read_b64_tr_b16 {v2(Y + 2 * dt)}, v{vTR} offset:{2048 * dt}")
    a("s_barrier")

    def part2(b):
        b(f"s_mul_i32 s96, s{sW4}, 2560\ns_add_u32 s96, s96, {P2_BASE}\nv_lshlrev_b32 v3, 3, v0\nv_add_u32 v3, s96, v3\ns_waitcnt lgkmcnt(0)")
        for dt in range(5):
            for h in range(2):
                unpack(b, T + 2 * h, Y + 2 * dt + h)
                unpack(b, T + 4 + 2 * h, TB + 2 * dt + h)
            for i in range(4):
                b(f"v_add_f32 v{T + i}, v{T + i}, v{T + 4 + i}")
            for h in range(2):
                b(f"v_cvt_pk_bf16_f32 v{T + 2 * h}, v{T + 2 * h}, v{T + 1 + 2 * h}")
                unpack(b, T + 4 + 2 * h, XB + 2 * dt + h)
            for h in range(2):
                unpack(b, T + 2 * h, T + 2 * h)
            for i in range(4):
                b(f"v_add_f32 v{T + i}, v{T + i}, v{T + 4 + i}")
            for h in range(2):
                b(f"v_cvt_pk_bf16_f32 v{XB + 2 * dt + h}, v{T + 2 * h}, v{T + 1 + 2 * h}")
    sliced(a, part2, 5)
    for dt in range(5):
        a(f"ds_write_b64 v3, {v2(XB + 2 * dt)} offset:{512 * dt}")
    a("s_waitcnt lgkmcnt(0)\n" + "s_barrier\n" * (23 - NB2 - 6))
    stamp_end(a, 0, S_WS, sWAVE)


def p2_gemm(a):
    ACC = 8
    F = [28, 52, 76, 100]
    vW, vL, vW2 = 2, 3, 124
    sW4 = 60
    a(f"""
    s_setprio 1
    s_sub_u32 s{sW4}, s{sWAVE}, 2
    s_lshl_b32 s61, s{sMI2}, 2
    s_add_u32 s61, s61, s{sW4}              ; l tile
    s_mul_i32 s62, s{sNI2}, 160
    v_lshlrev_b32 v{vW}, 4, v0
    s_lshl_b32 s96, s{sW4}, 11
    s_add_u32 s96, s96, {P2_H}
    v_add_u32 v{vL}, s96, v{vW}
    v_add_u32 v{vW2}, 0x10000, v{vW}
    v_and_b32 v4, 15, v0
    v_lshrrev_b32 v5, 4, v0
    v_mul_u32_u24 v4, 176, v4
    v_lshl_add_u32 v4, v5, 3, v4
    s_mul_i32 s63, s{sW4}, 2816
    s_add_u32 s63, s63, {P2_X}
    v_add_u32 v4, s63, v4
    s_mul_i32 s96, s{sW4}, 2560
    s_add_u32 s96, s96, {P2_BASE}
    v_lshlrev_b32 v5, 3, v0
    v_add_u32 v5, s96, v5
    """)
    for r in range(ACC, ACC + 20, 2):
        a(f"v_mov_b64 {v2(r)}, 0")
    a("s_barrier\ns_barrier")
    stamp(a, 14)

    def rdw(lq, k):
        s, kk = divmod(k, 2)
        f = F[k % 4]
        lq.issue(f"w{k}", f"ds_read_b128 {v4(f + 20)}, v{vL} offset:{(s % NR2) * 8192 + kk * 1024}")
        for dt in range(5):
            off = (s % NR2) * 10240 + kk * 5120 + 1024 * dt
            lq.issue(f"w{k}", f"ds_read_b128 {v4(f + 4 * dt)}, v{vW if off < 65536 else vW2} offset:{off % 65536}")

    def mf(k):
        f = F[k % 4]
        for dt in range(5):
            a(f"v_mfma_f32_16x16x32_bf16 {v4(ACC + 4 * dt)}, {v4(f + 4 * dt)}, {v4(f + 20)}, {v4(ACC + 4 * dt)}")
    lq = LQ(a)
    rdw(lq, 0)
    rdw(lq, 1)
    for s in range(24):
        lq.drain()
        if s < 23:
            a("s_barrier")
            n0 = len(a.L)
            rdw(lq, 2 * s + 2)
            rdw(lq, 2 * s + 3)
            R = a.L[n0:]; del a.L[n0:]
            mf(2 * s)
            mf(2 * s + 1)
            M = a.L[n0:]; del a.L[n0:]
            a.L += R[:3]
            R = R[3:]
            for m in M:
                a.L.append(m)
                if R:
                    a.L.append(R.pop(0))
        else:
            XB = 28
            for dt in range(5):
                lq.issue("b", f"ds_read_b64 {v2(XB + 2 * dt)}, v5 offset:{512 * dt}")
            mf(2 * s)
            for i in range(3):
                a(f"""v_add_u32 v6, {64 * i}, v0
                v_mul_u32_u24 v7, 205, v6
                v_lshrrev_b32 v7, 11, v7
                v_mul_u32_u24 v{60 + i}, 10, v7
                v_sub_u32 v6, v6, v{60 + i}
                v_mul_u32_u24 v{60 + i}, 176, v7
                v_lshl_add_u32 v{60 + i}, v6, 4, v{60 + i}
                v_add_u32 v{60 + i}, s63, v{60 + i}
                v_mul_u32_u24 v{64 + i}, 1280, v7
                v_lshl_add_u32 v{64 + i}, v6, 4, v{64 + i}""")
            mf(2 * s + 1)
    stamp(a, 15)
    a("s_nop 7")
    a("s_waitcnt lgkmcnt(0)")
    O = 40
    for dt in range(5):
        for h in range(2):
            c = ACC + 4 * dt + 2 * h
            t = 52 + 2 * h
            a(f"""v_cvt_pk_bf16_f32 v{c}, v{c}, v{c+1}
            v_and_b32 v{t+1}, 0xffff0000, v{XB + 2 * dt + h}
            v_and_b32 v{c+1}, 0xffff0000, v{c}
            v_lshlrev_b32 v{c}, 16, v{c}
            v_lshlrev_b32 v{t}, 16, v{XB + 2 * dt + h}
            v_add_f32 v{c+1}, v{c+1}, v{t+1}
            v_add_f32 v{c}, v{c}, v{t}
            v_cvt_pk_bf16_f32 v{O + 2 * dt + h}, v{c}, v{c+1}""")
        a(f"ds_write_b64 v4, {v2(O + 2 * dt)} offset:{32 * dt}")
    for i in range(3):
        a(f"ds_read_b128 {v4(76 + 4 * i)}, v{60 + i}")
    a(f"""
    s_mul_i32 s96, s61, {16 * 1280}
    s_add_u32 s96, s96, s62
    s_waitcnt lgkmcnt(2)
    buffer_store_dwordx4 v[76:79], v64, {s4(S_OUT)}, s96 offen
    s_waitcnt lgkmcnt(1)
    buffer_store_dwordx4 v[80:83], v65, {s4(S_OUT)}, s96 offen
    s_waitcnt lgkmcnt(0)
    s_mov_b32 exec_hi, 0
    buffer_store_dwordx4 v[84:87], v66, {s4(S_OUT)}, s96 offen
    s_mov_b64 exec, -1
    """)
    stamp(a, 16)
    stamp_end(a, 0, S_WS, sWAVE)
```

```python
import sys, os, struct

NAME = "parallel_sum__ssm_conv_s4d__glu_gated_glu__prompt"

WS_H = 0
WS_WD = WS_H + 128 * 48 * 1024
WS_XT = WS_WD + 8 * 48 * 5 * 1024
WS_Y = WS_XT + 640 * 4096
KT_BYTES = 3584
WS_KT = WS_Y + 640 * 4096
WS_STATA = WS_KT + 640 * KT_BYTES
WS_STATB = WS_STATA + 2048 * 8
WS_CS = WS_STATB + 2048 * 8
WS_FH = WS_CS + 5 * 3072 * 4
WS_FY = WS_FH + 16 * 128
WS_END = WS_FY + 8 * 128

T0E, T0O, T1E, T1O, T2E, T2O = 0, 640, 1280, 1664, 2048, 2304
T3EE, T3EO, T3OE, T3OO = 2560, 2720, 2880, 3040
TK1024, TSIG = 3200, 3204

PROF = int(os.environ.get("PROF", "0"))
EXP = os.environ.get("EXP", "")
CSTAMP = int(os.environ.get("CSTAMP", "0"))
SIDE_EARLY = int(os.environ.get("SIDE_EARLY", "0"))
POLLF = os.environ.get("POLLF", "sc1")
SPIN1 = int(os.environ.get("SPIN1", "24"))
POLL_LATE = int(os.environ.get("POLL_LATE", "0"))
CONV_PRIO = int(os.environ.get("CONV_PRIO", "1"))
PREP_PRIO = int(os.environ.get("PREP_PRIO", "3"))
PFW = int(os.environ.get("PFW", "0"))
TOUCH_AT = int(os.environ.get("TOUCH_AT", "3"))
WS_PROF = 0x2000000
class _St:
    r = 127
    def __format__(self, spec): return str(self.r)


vSTAMP = _St()


def f32(x):
    return "0x%08x" % struct.unpack("<I", struct.pack("<f", x))[0]


class Asm:
    def __init__(self):
        self.L = []
        self.uid = 0

    def __call__(self, s):
        for line in s.split("\n"):
            line = line.strip()
            if line:
                self.L.append("  " + line)

    def label(self, n):
        self.L.append(n + ":")

    def newlabel(self, base):
        self.uid += 1
        return f"L_{base}_{self.uid}"

    def raw(self, s):
        self.L.append(s)

    def text(self):
        return "\n".join(self.L) + "\n"


class LQ:
    def __init__(self, a, seed=(), cnt="lgkmcnt", cap=15):
        self.a = a
        self.q = list(seed)
        self.cnt = cnt
        self.cap = cap

    def issue(self, tag, s):
        self.a(s)
        self.q.append(tag)

    def wait(self, *tags):
        idx = -1
        for t in tags:
            for i, x in enumerate(self.q):
                if x == t:
                    idx = max(idx, i)
        if idx < 0:
            return
        n = len(self.q) - 1 - idx
        self.a(f"s_waitcnt {self.cnt}({min(n, self.cap)})")
        self.q = self.q[idx + 1:] if n <= self.cap else self.q[len(self.q) - self.cap:]

    def drain(self):
        self.a(f"s_waitcnt {self.cnt}(0)")
        self.q = []


def stamp(a, i, real=False):
    if PROF:
        a(f"s_waitcnt lgkmcnt(0)\n{'s_memrealtime' if real else 's_memtime'} s[100:101]\ns_waitcnt lgkmcnt(0)\nv_writelane_b32 v{vSTAMP}, s100, {i}")


def stamp_dyn(a, sidx, base, mul=1):
    if PROF:
        a(f"s_waitcnt lgkmcnt(0)\ns_memtime s[100:101]\ns_mul_i32 s99, s{sidx}, {mul}\ns_add_u32 m0, s99, {base}\ns_waitcnt lgkmcnt(0)\nv_writelane_b32 v{vSTAMP}, s100, m0")


def stamp_end(a, kern, S_WS_, swave):
    if "diag" in EXP:
        Ld = a.newlabel("diag")
        if kern == 0:
            a(f"""s_cmp_lg_u32 s{swave}, 9
            s_cbranch_scc1 {Ld}
            s_waitcnt vmcnt(0) lgkmcnt(0)
            s_memrealtime s[100:101]
            s_lshl_b32 s98, s2, 2
            s_add_u32 s98, s98, {WS_END + 1024}
            v_mov_b32 v5, 0
            s_waitcnt lgkmcnt(0)
            v_mov_b32 v6, s100
            s_mov_b64 exec, 1
            buffer_store_dword v6, v5, s[{S_WS_}:{S_WS_+3}], s98 offen""")
        else:
            a(f"""s_cmp_lg_u32 s{swave}, 0
            s_cbranch_scc1 {Ld}
            s_lshl_b32 s98, s2, 2
            s_add_u32 s98, s98, {WS_END}
            v_mov_b32 v5, 0
            s_mov_b64 exec, 1
            buffer_load_dword v7, v5, s[{S_WS_}:{S_WS_+3}], s98 offen
            buffer_load_dword v8, v5, s[{S_WS_}:{S_WS_+3}], s98 offen offset:1024
            s_waitcnt vmcnt(0) lgkmcnt(0)
            s_memrealtime s[100:101]
            s_waitcnt lgkmcnt(0)
            v_mov_b32 v6, s100
            v_and_b32 v6, 0xffffff, v6
            v_and_b32 v7, 0xffffff, v7
            v_and_b32 v8, 0xffffff, v8
            v_and_b32 v9, 0xffffff, v165
            v_sub_u32 v10, 0xffffff, v7
            v_sub_u32 v11, 0xffffff, v9
            buffer_atomic_umax v10, v5, s[16:19], 0 offen offset:0
            buffer_atomic_umax v7, v5, s[16:19], 0 offen offset:4
            buffer_atomic_umax v8, v5, s[16:19], 0 offen offset:8
            buffer_atomic_umax v11, v5, s[16:19], 0 offen offset:12
            buffer_atomic_umax v9, v5, s[16:19], 0 offen offset:16
            buffer_atomic_umax v6, v5, s[16:19], 0 offen offset:20""")
        a.label(Ld)
    if PROF:
        a("s_waitcnt vmcnt(0)")
        stamp(a, 6)
        stamp(a, 7, True)
        a(f"""s_lshl_b32 s100, s2, 4
        s_add_u32 s100, s100, s{swave}
        s_lshl_b32 s100, s100, 8
        s_add_u32 s100, s100, {WS_PROF + kern * 0x100000}
        v_lshlrev_b32 v1, 2, v0
        buffer_store_dword v{vSTAMP}, v1, s[{S_WS_}:{S_WS_+3}], s100 offen
        s_waitcnt vmcnt(0)""")
    a("s_endpgm")


def code_prefetch(a, first, last, nchunk, sidx, swave, wsel, vtmp, sp):
    if "nopf" in EXP:
        return
    L = a.newlabel("nopf"); H = a.newlabel("here")
    a(f"s_cmp_lg_u32 s{swave}, {wsel}\ns_cbranch_scc1 {L}\ns_cmp_ge_u32 s{sidx}, {nchunk}\ns_cbranch_scc1 {L}\ns_getpc_b64 s[{sp}:{sp+1}]")
    a.label(H)
    a(f"""s_sub_u32 s{sp}, s{sp}, {H}-{first}
    s_subb_u32 s{sp+1}, s{sp+1}, 0
    s_lshl_b32 s{sp+2}, s{sidx}, 13
    v_lshl_add_u32 v{vtmp}, v0, 7, s{sp+2}
    v_min_u32 v{vtmp}, {last}-{first}-4, v{vtmp}
    global_load_dword v{vtmp}, v{vtmp}, s[{sp}:{sp+1}]""")
    a.label(L)


def srd(a, d, lo, nbytes):
    a(f"s_mov_b32 s{d}, s{lo}\ns_mov_b32 s{d+1}, s{lo+1}\ns_mov_b32 s{d+2}, {nbytes}\ns_mov_b32 s{d+3}, 0x00020000")


def v4(r): return f"v[{r}:{r+3}]"
def v2(r): return f"v[{r}:{r+1}]"
def s4(r): return f"s[{r}:{r+3}]"


def dpp_row_allreduce(a, op, regs):
    for sh in (8, 4, 2, 1):
        if len(regs) < 3:
            a("s_nop 1")
        for r in regs:
            a(f"{op}_dpp v{r}, v{r}, v{r} row_ror:{sh} row_mask:0xf bank_mask:0xf")


def wave_max_u32_to_sgpr(a, v, sd, st):
    dpp_row_allreduce(a, "v_max_u32", [v])
    a(f"""s_nop 0
    v_readlane_b32 s{sd}, v{v}, 0
    v_readlane_b32 s{st}, v{v}, 16
    s_max_u32 s{sd}, s{sd}, s{st}
    v_readlane_b32 s{st}, v{v}, 32
    s_max_u32 s{sd}, s{sd}, s{st}
    v_readlane_b32 s{st}, v{v}, 48
    s_max_u32 s{sd}, s{sd}, s{st}""")


def round_bf16(a, d, s):
    a(f"v_cvt_pk_bf16_f32 v{d}, v{s}, v{s}\nv_lshlrev_b32 v{d}, 16, v{d}")


XSZ = 208 * 128
WSZ = 16384
SLOT = XSZ + WSZ
K1_STAT = 3 * SLOT
K1_CS = K1_STAT + 2048
TBL = 3328
K1_KG = K1_CS + 512
K1_STA = K1_KG + 3 * TBL
K1_SCR = K1_STAT
K1_CTL = 163840 - 64
assert K1_STA + 20480 <= K1_CTL
K1_LDS = 163840
assert K1_CTL + 64 <= K1_LDS

S_X, S_WG, S_WU, S_WD, S_WS, S_DBG = 4, 8, 12, 16, 20, 24
S_LA, S_AI, S_CR, S_CI, S_DT = 28, 32, 36, 40, 44
S_TMP = 48
S_OUT, S_DSK = 72, 76
sMI2, sNI2 = 80, 81
sWAVE, sMI, sNI, sROW0, sGI, sIDX, sXCD = 3, 52, 53, 54, 55, 56, 57
sMODE = 64


def k1_loader(a, parts):
    vOX, vOW = 16, 20
    sT, sXO, sWO, sDSL, sPEND = 58, 59, 60, 61, 62
    a(f"""
    v_lshrrev_b32 v8, 3, v0            ; rho
    v_and_b32 v9, 7, v0                ; c'
    v_xor_b32 v10, v9, v8
    v_mul_u32_u24 v{vOX}, 1280, v8
    v_lshl_add_u32 v{vOX}, v10, 4, v{vOX}
    v_bfe_u32 v10, v8, 1, 1
    v_lshrrev_b32 v11, 1, v9
    v_xor_b32 v11, v11, v10
    v_and_b32 v12, 1, v9
    v_lshl_add_u32 v11, v11, 1, v12
    v_mul_u32_u24 v{vOW}, 3072, v8
    v_lshl_add_u32 v{vOW}, v11, 4, v{vOW}
    v_xor_b32 v13, 64, v{vOW}
    v_add_u32 v{vOW + 1}, {8 * 3072 - 1024}, v13
    v_add_u32 v{vOW + 2}, {2 * (8 * 3072 - 1024)}, v{vOW}
    v_add_u32 v{vOW + 3}, {3 * (8 * 3072 - 1024)}, v13
    v_add_u32 v{vOX + 1}, {8 * 1280 - 1024}, v{vOX}
    v_add_u32 v{vOX + 2}, {2 * (8 * 1280 - 1024)}, v{vOX}
    v_add_u32 v{vOX + 3}, {3 * (8 * 1280 - 1024)}, v{vOX}
    s_mul_i32 s{sT}, s{sWAVE}, 104
    s_add_u32 s{sXO}, s{sROW0}, s{sT}
    s_mul_i32 s{sXO}, s{sXO}, 1280
    s_lshl_b32 s{sWO}, s{sNI}, 7
    s_cmp_eq_u32 s{sWAVE}, 0
    s_cselect_b32 s{S_TMP}, s{S_WG}, s{S_WU}
    s_cselect_b32 s{S_TMP+1}, s{S_WG+1}, s{S_WU+1}
    s_mov_b32 s{S_TMP+2}, {640 * 3072}
    s_mov_b32 s{S_TMP+3}, 0x00020000
    s_mul_i32 s92, s{sWAVE}, {13 * 1024}
    s_mul_i32 s93, s{sWAVE}, 8192
    s_add_u32 s93, s93, {XSZ}
    v_lshlrev_b32 v24, 2, v0
    v_lshlrev_b32 v25, 4, v0
    """)
    groups = [("w", 0, 4), ("x", 0, 4), ("x", 4, 4), ("x", 8, 4), ("x", 12, 1), ("w", 4, 4)]

    def issue(st):
        slot = (st % 3) * SLOT
        Lsk = a.newlabel("noiss")
        a(f"s_cmp_ge_u32 s{sIDX}, 30\ns_cbranch_scc1 {Lsk}")
        for (k, i0, n) in groups:
            if k == "x":
                a(f"s_add_u32 m0, s92, {slot + i0 * 1024}\ns_add_u32 s98, s{sXO}, {i0 * 8 * 1280 + st * 128}")
                for j in range(n):
                    a(f"buffer_load_dwordx4 v{vOX + j}, {s4(S_X)}, s98 offen offset:{1024 * j} lds")
            else:
                a(f"s_add_u32 m0, s93, {slot + i0 * 1024}\ns_add_u32 s98, s{sWO}, {(st * 64 + i0 * 8) * 3072}")
                for j in range(n):
                    a(f"buffer_load_dwordx4 v{vOW + j}, {s4(S_TMP)}, s98 offen offset:{1024 * j} lds")
        a.label(Lsk)

    def stage_loads():
        a(f"""s_lshl_b32 s98, s{sROW0}, 3
        s_mov_b32 m0, {K1_STAT}
        s_add_u32 s98, s98, {WS_STATB}
        buffer_load_dwordx4 v25, {s4(S_WS)}, s98 offen sc0 sc1 lds
        buffer_load_dwordx4 v25, {s4(S_WS)}, s98 offen offset:1024 sc0 sc1 lds
        s_lshl_b32 s97, s{sNI}, 8
        s_add_u32 s97, s97, {WS_CS}""")
        for rc in range(5):
            a(f"s_add_u32 s98, s97, {rc * 12288}\nbuffer_load_dword v{32 + rc}, v24, {s4(S_WS)}, s98 offen sc0 sc1")
            a(f"s_add_u32 s98, s97, {rc * 12288 + 6144}\nbuffer_load_dword v{37 + rc}, v24, {s4(S_WS)}, s98 offen sc0 sc1")

    def flags_ok(Lno):
        a(f"v_min_u32 v44, v44, v45\nv_min3_u32 v44, v44, v46, v47\nv_cmp_le_u32 vcc, 4, v44\ns_and_b32 s{sT}, vcc_lo, 0xffff\ns_cmp_eq_u32 s{sT}, 0xffff\ns_cbranch_scc0 {Lno}")

    issue(0)
    a("s_setprio 0")
    if "late1" not in EXP:
        issue(1)
    stamp(a, 2)
    a("s_barrier")
    if "late1" in EXP:
        issue(1)
    a("s_waitcnt vmcnt(21)\ns_setprio 3")
    stamp(a, 3)
    a("s_barrier")
    issue(2)
    L1 = a.newlabel("ldr1"); L4 = a.newlabel("b4")
    for s in range(4):
        a("s_waitcnt vmcnt(21)")
        if CSTAMP == 3:
            stamp(a, 20 + 2 * s)
        a("s_barrier")
        if CSTAMP == 3:
            stamp(a, 21 + 2 * s)
        issue(s + 3)
    a("s_waitcnt vmcnt(21)\ns_barrier")
    issue(7)
    a(f"s_cmp_eq_u32 s{sWAVE}, 1\ns_cbranch_scc1 {L1}")
    a("s_waitcnt vmcnt(21)\ns_barrier")
    issue(8)
    a(f"s_waitcnt vmcnt(21)\ns_branch {L4}")
    a.label(L1)
    Lb = a.newlabel("bk")
    a(f"s_cmp_lt_u32 s{sIDX}, 30\ns_cbranch_scc1 {Lb}\ns_sleep 100")
    a.label(Lb)
    if POLL_LATE:
        a("s_waitcnt vmcnt(21)\ns_barrier")
        a(f"s_mov_b64 exec, 0xffff\nbuffer_load_dwordx4 v[44:47], v25, {s4(S_DBG)}, 0 offen {POLLF}\ns_mov_b64 exec, -1")
    else:
        a(f"s_mov_b64 exec, 0xffff\nbuffer_load_dwordx4 v[44:47], v25, {s4(S_DBG)}, 0 offen {POLLF}\ns_mov_b64 exec, -1")
        a("s_waitcnt vmcnt(22)\ns_barrier")
    issue(8)
    Lv = a.newlabel("v")
    a(f"s_waitcnt vmcnt(21)\ns_cmp_lt_u32 s{sIDX}, 30\ns_cbranch_scc1 {Lv}\ns_waitcnt vmcnt(0)")
    a.label(Lv)
    Lsp = a.newlabel("spin"); Lchk = a.newlabel("chk")
    a(f"s_mov_b32 s{sPEND}, 0")
    a.label(Lchk)
    flags_ok(Lsp)
    a(f"s_branch {L4}")
    a.label(Lsp)
    a(f"""s_sleep {SPIN1}
    s_mov_b64 exec, 0xffff
    buffer_load_dwordx4 v[44:47], v25, {s4(S_DBG)}, 0 offen {POLLF}
    s_mov_b64 exec, -1
    s_add_u32 s{sPEND}, s{sPEND}, 1
    s_waitcnt vmcnt(0)
    s_cmp_lt_u32 s{sPEND}, 200000
    s_cbranch_scc1 {Lchk}""")
    a.label(L4)
    a("s_barrier")
    stamp(a, 5)
    Ln = a.newlabel("nocs"); Ln2 = a.newlabel("nocs")
    a(f"s_cmp_eq_u32 s{sWAVE}, 0\ns_cbranch_scc1 {Ln}")
    issue(9)
    stage_loads()
    a("s_waitcnt vmcnt(33)\ns_barrier\ns_waitcnt vmcnt(0)")
    for rc in range(1, 5):
        a(f"v_add_f32 v32, v32, v{32 + rc}\nv_add_f32 v37, v37, v{37 + rc}")
    a(f"""v_add_u32 v26, {K1_CS}, v24
    ds_write_b32 v26, v32
    ds_write_b32 v26, v37 offset:256
    s_waitcnt lgkmcnt(0)
    s_branch {Ln2}""")
    a.label(Ln)
    issue(9)
    for g in range(4):
        a(f"s_mov_b32 m0, {K1_STA + 4096 * g}\ns_mov_b32 s97, {WS_STATA + 4096 * g}")
        for j in range(4):
            a(f"buffer_load_dwordx4 v25, {s4(S_WS)}, s97 offen offset:{1024 * j} sc0 sc1 lds")
    Lq = a.newlabel("q")
    a("s_waitcnt vmcnt(37)\ns_barrier")
    a(f"s_waitcnt vmcnt(16)\ns_barrier\ns_waitcnt vmcnt(0)\nv_mov_b32 v5, {K1_CTL}\nv_mov_b32 v6, 1\nds_write_b32 v5, v6 offset:12\ns_branch {Lq}")
    a.label(Ln2)
    a("s_barrier")
    a.label(Lq)
    stamp(a, 4)
    import gen2
    gen2.p2_loader(a)


def k1_gemm(a, var):
    extra = 1 if var < 2 else 0
    NB = 3 + extra
    A = [6, 22]
    B = [38, 54]
    ACC = 70
    vA0, vA1, vAW, vAW1 = 2, 3, 4, 5
    sST, sSLOT, sT = 58, 60, 62
    sFP, sLQ = 95, 94
    T0 = 38

    a(f"s_sub_u32 s{sT}, s{sWAVE}, 2\ns_and_b32 s{sFP}, s{sT}, 1\ns_lshr_b32 s{sLQ}, s{sT}, 1")
    a(f"""
    v_and_b32 v{T0}, 15, v0
    v_lshrrev_b32 v{T0+1}, 4, v0
    v_and_b32 v{T0+2}, 7, v{T0}
    v_xor_b32 v{T0+2}, v{T0+2}, v{T0+1}
    v_lshlrev_b32 v{vA0}, 7, v{T0}
    v_lshl_add_u32 v{vA0}, v{T0+2}, 4, v{vA0}
    s_mul_i32 s{sT}, s{sLQ}, {3 * 2048}
    v_add_u32 v{vA0}, s{sT}, v{vA0}
    v_xor_b32 v{vA1}, 64, v{vA0}
    v_lshrrev_b32 v{T0+2}, 2, v{T0}           ; r
    v_and_b32 v{T0+3}, 3, v{T0}               ; c
    v_lshrrev_b32 v{T0+4}, 1, v{T0+2}
    v_and_b32 v{T0+5}, 1, v{T0+1}
    v_lshl_or_b32 v{T0+4}, v{T0+5}, 1, v{T0+4}
    s_lshl_b32 s{sT}, s{sFP}, 1
    v_xor_b32 v{T0+4}, s{sT}, v{T0+4}
    v_lshl_add_u32 v{T0+5}, v{T0+1}, 3, v{T0+2}     ; 8hq + r
    v_lshlrev_b32 v{vAW}, 7, v{T0+5}
    v_lshl_add_u32 v{vAW}, v{T0+4}, 5, v{vAW}
    v_lshl_add_u32 v{vAW}, v{T0+3}, 3, v{vAW}
    v_add_u32 v{vAW}, {XSZ}, v{vAW}
    v_xor_b32 v{vAW1}, 32, v{vAW}
    """)
    for r in range(ACC, ACC + 48 + 8 * extra, 2):
        a(f"v_mov_b64 {v2(r)}, 0")

    def next_addr():
        a(f"""s_add_u32 s{sSLOT}, s{sSLOT}, 1
        s_cmp_eq_u32 s{sSLOT}, 3
        s_cselect_b32 s{sT}, s63, {SLOT}
        s_cselect_b32 s{sSLOT}, 0, s{sSLOT}""")

    def set_addr():
        for r in (vAW, vA0, vAW1, vA1):
            a(f"v_add_u32 v{r}, s{sT}, v{r}")

    def reads(kk):
        R = []

        def rA(fr):
            for s in range(2):
                R.append((f"A{kk}{fr}", f"ds_read_b64_tr_b16 {v2(A[kk] + 4 * fr + 2 * s)}, v{vAW1 if fr >= 2 else vAW} offset:{kk * 4096 + s * 512 + (8192 if fr & 1 else 0)}"))

        def rB(t):
            off = (12 - 3 * var) * 2048 if t == 3 else t * 2048
            R.append((f"B{kk}{t}", f"ds_read_b128 {v4(B[kk] + 4 * t)}, v{vA1 if kk else vA0} offset:{off}"))
        rA(0); rB(0); rA(1); rA(2); rA(3)
        for t in range(1, NB):
            rB(t)
        return R

    def mf(t, fr, kk):
        acc = ACC + 48 + 4 * (fr & 1) if t == 3 else ACC + 16 * t + 4 * fr
        a(f"v_mfma_f32_16x16x32_bf16 {v4(acc)}, {v4(A[kk] + 4 * fr)}, {v4(B[kk] + 4 * t)}, {v4(acc)}")

    def phase(lq, kk, R):
        R = list(R)
        for t in range(3):
            for fr in range(4):
                lq.wait(f"A{kk}{fr}", f"B{kk}{t}")
                mf(t, fr, kk)
                if R:
                    tg, ins = R.pop(0)
                    lq.issue(tg, ins)
        while R:
            tg, ins = R.pop(0)
            lq.issue(tg, ins)
        if extra:
            lq.wait(f"B{kk}3")
            mf(3, 2 * var, kk); mf(3, 2 * var + 1, kk)

    Lp1 = a.newlabel("p1")
    a(f"s_cmp_eq_u32 s70, 0\ns_cbranch_scc1 {Lp1}\ns_waitcnt lgkmcnt(0)\ns_barrier")
    a.label(Lp1)
    stamp(a, 2)
    a(f"s_mov_b32 s{sSLOT}, 0\ns_mov_b32 s{sST}, 0\ns_mov_b32 s63, {(-2 * SLOT) & 0xffffffff}\ns_setprio 2\ns_waitcnt lgkmcnt(0)\ns_barrier")
    stamp(a, 3)
    lq = LQ(a)
    for tg, ins in reads(0):
        lq.issue(tg, ins)
    seed = list(lq.q)

    def body(last):
        lq = LQ(a, seed)
        phase(lq, 0, reads(1))
        if not last:
            next_addr()
            lq.drain()
            a("s_waitcnt vmcnt(0)")
            set_addr()
            if CSTAMP == 1:
                stamp_dyn(a, sST, 20, 2)
            a("s_barrier")
            if CSTAMP == 1:
                stamp_dyn(a, sST, 21, 2)
            phase(lq, 1, reads(0))
        else:
            lq.drain()
            a(f"v_mov_b32 v{vA0}, {K1_CTL}\nv_mov_b32 v{vA1}, 1\ns_mov_b64 exec, 1\nds_add_u32 v{vA0}, v{vA1} offset:28\ns_mov_b64 exec, -1")
            phase(lq, 1, [])

    Lloop = a.newlabel("gloop")
    a.label(Lloop)
    body(False)
    a(f"s_add_u32 s{sST}, s{sST}, 1\ns_cmp_lt_u32 s{sST}, 9\ns_cbranch_scc1 {Lloop}")
    body(True)

    stamp(a, 4)
    vSA, vCA, vHO = 2, 3, 4
    CS = 8
    ST = 24
    a(f"""
    v_and_b32 v{T0}, 15, v0
    v_lshrrev_b32 v{T0+1}, 4, v0
    s_mul_i32 s{sT}, s{sLQ}, {3 * 128}
    s_add_u32 s{sT}, s{sT}, {K1_STAT}
    v_lshl_add_u32 v{vSA}, v{T0}, 3, s{sT}
    s_lshl_b32 s{sT}, s{sFP}, 7
    s_add_u32 s{sT}, s{sT}, {K1_CS}
    v_lshl_add_u32 v{vCA}, v{T0+1}, 4, s{sT}
    ds_read_b128 {v4(CS)}, v{vCA}
    ds_read_b128 {v4(CS + 4)}, v{vCA} offset:256
    ds_read_b128 {v4(CS + 8)}, v{vCA} offset:64
    ds_read_b128 {v4(CS + 12)}, v{vCA} offset:320
    """)
    for t in range(3):
        a(f"ds_read_b64 {v2(ST + 2 * t)}, v{vSA} offset:{t * 128}")
    if extra:
        a(f"ds_read_b64 {v2(ST + 6)}, v{vSA} offset:{(12 - 3 * var) * 128}")
    a(f"""
    v_lshlrev_b32 v{vHO}, 4, v0
    s_lshr_b32 s96, s{sROW0}, 4
    s_mul_i32 s96, s96, 49152
    s_lshl_b32 s97, s{sNI}, 1
    s_add_u32 s97, s97, s{sFP}
    s_lshl_b32 s97, s97, 10
    s_add_u32 s96, s96, s97
    s_add_u32 s96, s96, {WS_H}
    s_mul_i32 s97, s{sLQ}, {3 * 49152}
    s_add_u32 s99, s96, s97
    s_mov_b32 s98, 0xbfb8aa3b           ; -log2e
    s_waitcnt lgkmcnt(0)
    """)
    TM = 40
    PK = 48
    c1 = 56

    def act(g, u, csg, csu, m, s, pk):
        for r in range(4):
            a(f"v_fma_f32 v{TM + r}, -v{m}, v{csg + r}, v{g + r}")
        for r in range(4):
            a(f"v_mul_f32 v{TM + r}, v{TM + r}, v{c1}")
        for r in range(4):
            a(f"v_exp_f32 v{TM + r}, v{TM + r}")
        for r in range(4):
            a(f"v_fma_f32 v{TM + 4 + r}, -v{m}, v{csu + r}, v{u + r}")
        for r in range(4):
            a(f"v_fma_f32 v{TM + r}, v{TM + r}, v{s}, v{s}")
        for r in range(4):
            a(f"v_rcp_f32 v{TM + r}, v{TM + r}")
        a("s_nop 0")
        for r in range(4):
            a(f"v_mul_f32 v{TM + 4 + r}, v{TM + 4 + r}, v{TM + r}")
        a(f"v_cvt_pk_bf16_f32 v{pk}, v{TM + 4}, v{TM + 5}\nv_cvt_pk_bf16_f32 v{pk + 1}, v{TM + 6}, v{TM + 7}")

    for t in range(3):
        m, s = ST + 2 * t, ST + 2 * t + 1
        Lsk = None
        if var == 0 and t < 2:
            Lsk = a.newlabel("skipst")
            a(f"s_cmp_eq_u32 s{sMI}, 9\ns_cbranch_scc1 {Lsk}")
        a(f"v_rcp_f32 v{c1}, v{s}\ns_nop 0\nv_mul_f32 v{c1}, s98, v{c1}")
        b = PK + 4 * (t & 1)
        act(ACC + 16 * t, ACC + 16 * t + 4, CS, CS + 4, m, s, b)
        act(ACC + 16 * t + 8, ACC + 16 * t + 12, CS + 8, CS + 12, m, s, b + 2)
        a(f"s_add_u32 s97, s99, {t * 49152}")
        a(f"buffer_store_dwordx4 {v4(b)}, v{vHO}, {s4(S_WS)}, s97 offen")
        if Lsk:
            a.label(Lsk)
    if extra:
        m, s = ST + 6, ST + 7
        a(f"v_rcp_f32 v{c1}, v{s}\ns_nop 0\nv_mul_f32 v{c1}, s98, v{c1}")
        act(ACC + 48, ACC + 52, CS + 8 * var, CS + 4 + 8 * var, m, s, PK + 4)
        a(f"s_add_u32 s97, s96, {12 * 49152 + 8 * var}")
        a(f"buffer_store_dwordx2 {v2(PK + 4)}, v{vHO}, {s4(S_WS)}, s97 offen")
    stamp(a, 5)
    a("s_branch L_k1_hsig")


def sliced(a, fn, nbar):
    b = Asm()
    b.uid = a.uid + 1000
    fn(b)
    a.uid = b.uid
    n = len(b.L)
    cuts = {(n * (i + 1)) // nbar for i in range(nbar)}
    assert len(cuts) == nbar
    for i, l in enumerate(b.L):
        a.L.append(l)
        if i + 1 in cuts:
            a("s_barrier")


def k1_stats_loads(a):
    a(f"""
    v_lshrrev_b32 v5, 4, v0
    v_and_b32 v6, 15, v0
    v_mul_u32_u24 v7, 1280, v5
    v_lshl_add_u32 v7, v6, 4, v7
    s_and_b32 s58, s{sXCD}, 1
    s_lshl_b32 s58, s58, 10
    s_lshr_b32 s59, s{sXCD}, 1
    s_lshl_b32 s59, s59, 8
    s_add_u32 s58, s58, s59
    s_lshl_b32 s59, s{sIDX}, 3
    s_add_u32 s58, s58, s59
    s_mul_i32 s59, s58, 1280
    s_add_u32 s60, s59, {4 * 1280}
    """)
    for p in range(2):
        for j in range(5):
            a(f"buffer_load_dwordx4 {v4(8 + 20 * p + 4 * j)}, v7, {s4(S_X)}, s{59 + p} offen offset:{256 * j}")


def k1_stats(a, nlater):
    RAW = 8
    AC = 48
    D = 56
    a(f"""
    v_mov_b32 v72, 0x3f803f80
    s_mov_b32 s92, 0x9999999a
    s_mov_b32 s93, 0x3f599999           ; 1/640 (f64)
    s_mov_b32 s94, 0x3727c5ac           ; 1e-5
    s_lshl_b32 s59, s58, 3
    v_lshl_add_u32 v73, v5, 3, s59
    v_lshrrev_b32 v74, 1, v5
    v_lshlrev_b32 v74, 12, v74
    v_and_b32 v75, 1, v5
    v_lshl_add_u32 v74, v75, 3, v74
    s_lshl_b32 s59, s58, 1
    v_add_u32 v74, s59, v74
    """)
    for r in range(AC, AC + 8, 2):
        a(f"v_mov_b64 {v2(r)}, 0")
    for p in range(2):
        a(f"s_waitcnt vmcnt({nlater + 5 - 5 * p})")
        for i in range(20):
            x = RAW + 20 * p + i
            a(f"v_dot2c_f32_bf16 v{AC + 4 * p + (i & 1)}, v{x}, v72\nv_dot2c_f32_bf16 v{AC + 4 * p + 2 + (i & 1)}, v{x}, v{x}")
    a("s_nop 2")
    for c in range(4):
        a(f"v_cvt_f64_f32 {v2(D + 2 * c)}, v{AC + 2 * c}\nv_cvt_f64_f32 {v2(D + 8 + 2 * c)}, v{AC + 2 * c + 1}")
    for c in range(4):
        a(f"v_add_f64 {v2(D + 2 * c)}, {v2(D + 2 * c)}, {v2(D + 8 + 2 * c)}")
    for sh in (8, 4, 2, 1):
        for c in range(4):
            for h in range(2):
                a(f"v_mov_b32_dpp v{D + 8 + 2 * c + h}, v{D + 2 * c + h} row_ror:{sh} row_mask:0xf bank_mask:0xf")
        for c in range(4):
            a(f"v_add_f64 {v2(D + 2 * c)}, {v2(D + 2 * c)}, {v2(D + 8 + 2 * c)}")
    for p in range(2):
        m, v = D + 4 * p, D + 4 * p + 2
        a(f"""v_mul_f64 {v2(m)}, {v2(m)}, s[92:93]
        v_mul_f64 {v2(v)}, {v2(v)}, s[92:93]
        v_fma_f64 {v2(v)}, -{v2(m)}, {v2(m)}, {v2(v)}
        v_cvt_f32_f64 v76, {v2(m)}
        v_cvt_f32_f64 v77, {v2(v)}
        v_max_f32 v77, 0, v77""")
        round_bf16(a, 78, 76)
        round_bf16(a, 77, 77)
        a("v_add_f32 v77, s94, v77")
        round_bf16(a, 77, 77)
        a("v_sqrt_f32 v77, v77\ns_nop 0")
        round_bf16(a, 79, 77)
        a("v_rcp_f32 v80, v79\ns_nop 0\nv_mul_f32_e64 v81, -v78, v80")
        a(f"""
        v_cmp_eq_u32 vcc, 0, v6
        s_and_saveexec_b64 s[96:97], vcc
        s_mov_b32 s98, {WS_STATB + 32 * p}
        s_mov_b32 s99, {WS_STATA + 8192 * p}
        buffer_store_dwordx2 v[78:79], v73, {s4(S_WS)}, s98 offen sc0 sc1
        buffer_store_dwordx2 v[80:81], v74, {s4(S_WS)}, s99 offen sc0 sc1
        s_mov_b64 exec, -1
        """)


def k1_colsum_loads(a):
    a(f"""
    v_lshrrev_b32 v5, 3, v0
    v_and_b32 v6, 7, v0
    v_mul_u32_u24 v7, 3072, v5
    v_lshl_add_u32 v7, v6, 4, v7
    s_and_b32 s58, s{sXCD}, 1
    s_mul_i32 s58, s58, 30
    s_add_u32 s58, s58, s{sIDX}         ; u
    s_mul_i32 s59, s58, 43
    s_lshr_b32 s59, s59, 9              ; rc = u/12
    s_mul_i32 s60, s59, 12
    s_sub_u32 s60, s58, s60             ; cbl
    s_cmp_ge_u32 s60, 6
    s_cselect_b32 s{S_TMP}, s{S_WU}, s{S_WG}
    s_cselect_b32 s{S_TMP+1}, s{S_WU+1}, s{S_WG+1}
    s_cselect_b32 s96, 6, 0
    s_cselect_b32 s97, 24, 0
    s_mov_b32 s{S_TMP+2}, {640 * 3072}
    s_mov_b32 s{S_TMP+3}, 0x00020000
    s_sub_u32 s60, s60, s96
    s_lshr_b32 s96, s{sXCD}, 1
    s_mul_i32 s96, s96, 6
    s_add_u32 s60, s60, s96             ; n tile
    s_lshl_b32 s96, s60, 7
    s_mul_i32 s98, s59, {128 * 3072}
    s_add_u32 s96, s96, s98
    s_add_u32 s60, s60, s97
    """)
    for i in range(16):
        a(f"s_add_u32 s98, s96, {i * 8 * 3072}\nbuffer_load_dwordx4 {v4(8 + 4 * i)}, v7, {s4(S_TMP)}, s98 offen")


def k1_colsum(a, nlater):
    RAW = 8
    AC = 72
    a("v_mov_b32 v80, 0x00003f80\nv_mov_b32 v81, 0x3f800000")
    for r in range(AC, AC + 8, 2):
        a(f"v_mov_b64 {v2(r)}, 0")
    for i in range(16):
        if i % 4 == 0:
            a(f"s_waitcnt vmcnt({nlater + 12 - i})")
        for k in range(4):
            r = RAW + 4 * i + k
            a(f"v_dot2c_f32_bf16 v{AC + 2 * k}, v{r}, v80\nv_dot2c_f32_bf16 v{AC + 2 * k + 1}, v{r}, v81")
    a(f"""
    v_lshlrev_b32 v80, 5, v0
    v_add_u32 v80, {K1_SCR}, v80
    v_lshlrev_b32 v81, 2, v0
    v_add_u32 v82, {K1_SCR}, v81
    ds_write_b128 v80, {v4(AC)}
    ds_write_b128 v80, {v4(AC + 4)} offset:16
    """)
    for i in range(8):
        a(f"ds_read_b32 v{RAW + i}, v82 offset:{256 * i}")
    a("s_waitcnt lgkmcnt(0)")
    for i in range(1, 8):
        a(f"v_add_f32 v{RAW}, v{RAW}, v{RAW + i}")
    a(f"""
    s_mul_i32 s96, s59, {3072 * 4}
    s_lshl_b32 s97, s60, 8
    s_add_u32 s96, s96, s97
    s_add_u32 s96, s96, {WS_CS}
    buffer_store_dword v{RAW}, v81, {s4(S_WS)}, s96 offen sc0 sc1
    """)


KG_P = 8
KG_TILE = 60
KG_ACC = 16


def kgen_loads(a, sCH, sRND, D=KG_P):
    a(f"""
    s_lshl_b32 s96, s{sRND}, 7
    v_lshl_add_u32 v2, v0, 1, s96
    s_mul_i32 s96, s{sCH}, 384
    s_lshl_b32 s97, s{sCH}, 1
    v_mov_b32 v3, 0
    buffer_load_ushort v{D+4}, v3, {s4(S_DT)}, s97 offen
    buffer_load_ushort v{D}, v2, {s4(S_LA)}, s96 offen
    buffer_load_ushort v{D+1}, v2, {s4(S_AI)}, s96 offen
    buffer_load_ushort v{D+2}, v2, {s4(S_CR)}, s96 offen
    buffer_load_ushort v{D+3}, v2, {s4(S_CI)}, s96 offen
    """)


def kgen_valu(a, tile_done=lambda t: None):
    vLA, vAI, vCR, vCI, vDT = KG_P, KG_P + 1, KG_P + 2, KG_P + 3, KG_P + 4
    lr, th = 13, 14
    T = 16
    nxt = [24]

    def creg():
        r = nxt[0]
        nxt[0] += 2
        assert r + 1 < KG_TILE
        return (r, r + 1)

    def preg():
        r = nxt[0]
        nxt[0] += 1
        assert r < KG_TILE
        return r

    a("s_mov_b32 s88, 0x3fb8aa3b\ns_mov_b32 s89, 0x32a57060\ns_mov_b32 s90, 0x3f317218")

    def expbf(d, x, t):
        a(f"""v_mul_f32 v{t}, s88, v{x}
        v_fma_f32 v{t+1}, v{x}, s88, -v{t}
        v_exp_f32 v{t}, v{t}
        v_fma_f32 v{t+1}, v{x}, s89, v{t+1}
        v_mul_f32 v{t+1}, s90, v{t+1}
        v_fma_f32 v{t}, v{t}, v{t+1}, v{t}""")
        round_bf16(a, d, t)

    for r in range(5):
        a(f"v_lshlrev_b32 v{KG_P + r}, 16, v{KG_P + r}")
    a(f"""v_and_b32 v{T+2}, 0x7fffffff, v{vCR}
    v_and_b32 v{T+3}, 0x7fffffff, v{vCI}
    v_max_u32 v{T+2}, v{T+2}, v{T+3}""")
    expbf(vDT, vDT, T)
    expbf(vLA, vLA, T)
    a(f"""v_mul_f32 v{lr}, v{vLA}, v{vDT}
    v_mul_f32 v{th}, v{vAI}, v{vDT}
    v_mul_f32_e64 v{lr}, -v{lr}, s88
    v_mul_f32 v{th}, 0.15915494, v{th}""")
    wave_max_u32_to_sgpr(a, T + 2, 92, 93)
    a(f"""s_lshr_b32 s92, s92, 23
    s_max_u32 s92, s92, 1
    s_min_u32 s92, s92, 252
    s_sub_u32 s93, 253, s92
    s_lshl_b32 s93, s93, 23             ; sc
    s_add_u32 s92, s92, 2
    s_lshl_b32 s92, s92, 23             ; 2/sc
    v_mul_f32 v{vCR}, s93, v{vCR}
    v_mul_f32 v{vCI}, s93, v{vCI}
    v_mul_f32 v{vDT}, s92, v{vDT}""")

    def anchors(specs):
        ds = [creg() for _ in specs]
        for d, (e, cj) in zip(ds, specs):
            a(f"v_mul_f32 v{d[0]}, {f32(e)}, v{lr}\nv_mul_f32 v{d[1]}, {f32(e)}, v{th}")
        for d in ds:
            a(f"v_exp_f32 v{d[0]}, v{d[0]}\nv_fract_f32 v{d[1]}, v{d[1]}")
        for i, d in enumerate(ds):
            a(f"v_cos_f32 v{T + 2 * i}, v{d[1]}\nv_sin_f32 v{T + 2 * i + 1}, v{d[1]}")
        for i, (d, (e, cj)) in enumerate(zip(ds, specs)):
            a(f"v_mul_f32_e64 v{d[1]}, {'-' if cj else ''}v{d[0]}, v{T + 2 * i + 1}\nv_mul_f32 v{d[0]}, v{d[0]}, v{T + 2 * i}")
        return ds

    tsel = [0]

    def cmul(x, y, d=None):
        d = d or creg()
        t = T + 2 * (tsel[0] & 1)
        tsel[0] += 1
        a(f"""v_mul_f32 v{t}, v{x[1]}, v{y[1]}
        v_mul_f32 v{t+1}, v{x[0]}, v{y[1]}
        v_fma_f32 v{d[0]}, v{x[0]}, v{y[0]}, -v{t}
        v_fma_f32 v{d[1]}, v{x[1]}, v{y[0]}, v{t+1}""")
        return d

    def packm(x):
        d = preg()
        a(f"v_cvt_pk_f16_f32 v{d}, v{x[0]}, v{x[1]}")
        return d

    def packpair(x, y, dre, dim):
        a(f"v_cvt_pk_f16_f32 v{dre}, {x[0]}, {y[0]}\nv_cvt_pk_f16_f32 v{dim}, {x[1]}, {y[1]}")

    def V(x): return (f"v{x[0]}", f"v{x[1]}")

    def pmul(sre, sim, m, dre, dim):
        a(f"""v_pk_mul_f16 v{dre}, v{sre}, v{m} op_sel:[0,0] op_sel_hi:[1,0]
        v_pk_mul_f16 v{dim}, v{sre}, v{m} op_sel:[0,1] op_sel_hi:[1,1]
        v_pk_fma_f16 v{dre}, v{sim}, v{m}, v{dre} op_sel:[0,1,0] op_sel_hi:[1,1,1] neg_lo:[0,1,0] neg_hi:[0,1,0]
        v_pk_fma_f16 v{dim}, v{sim}, v{m}, v{dim} op_sel:[0,0,0] op_sel_hi:[1,0,1]""")

    def RE(t, i): return KG_TILE + 16 * t + i
    def IM(t, i): return KG_TILE + 16 * t + 8 + i

    mark = nxt[0]
    z8, z32 = anchors([(8.0, True), (32.0, True)])
    a("s_nop 0")
    z16 = cmul(z8, z8); z64 = cmul(z32, z32); z24 = cmul(z16, z8); z96 = cmul(z64, z32)
    packpair(("1.0", "0"), V(z8), RE(0, 0), IM(0, 0))
    packpair(V(z16), V(z24), RE(0, 1), IM(0, 1))
    ms = [packm(X) for X in (z32, z64, z96)]
    for i, m in enumerate(ms):
        for b in range(2):
            pmul(RE(0, b), IM(0, b), m, RE(0, 2 + 2 * i + b), IM(0, 2 + 2 * i + b))
    tile_done(0)
    nxt[0] = mark
    z1, z128, z1024 = anchors([(1.0, False), (128.0, False), (1024.0, False)])
    c = [(vCR, vCI)]
    for i in range(7):
        c.append(cmul(c[-1], z1))
    m128 = packm(z128)
    for i in range(4):
        packpair(V(c[2 * i]), V(c[2 * i + 1]), RE(1, i), IM(1, i))
    for i in range(4):
        pmul(RE(1, i), IM(1, i), m128, RE(1, 4 + i), IM(1, 4 + i))
    tile_done(1)
    p02 = creg(); p46 = creg(); p04 = creg()
    packpair(V(c[0]), V(c[2]), *p02); packpair(V(c[4]), V(c[6]), *p46); packpair(V(c[0]), V(c[4]), *p04)
    z256 = cmul(z128, z128, c[1]); b0 = cmul(c[0], z1024, c[7]); z384 = cmul(z256, z128, c[2]); z512 = cmul(z256, z256, c[3])
    b1 = cmul(b0, z128, z1); z640 = cmul(z512, z128, c[4]); z768 = cmul(z384, z384, c[5]); z896 = cmul(z768, z128, c[6])
    M = {k: packm(v) for k, v in (("256", z256), ("384", z384), ("512", z512), ("640", z640), ("768", z768), ("896", z896))}
    c2048 = cmul(b0, z1024, z256)
    for i, k in enumerate(("256", "384")):
        pmul(p02[0], p02[1], M[k], RE(2, 2 * i), IM(2, 2 * i))
        pmul(p46[0], p46[1], M[k], RE(2, 2 * i + 1), IM(2, 2 * i + 1))
    for i, k in enumerate(("512", "640", "768", "896")):
        pmul(p04[0], p04[1], M[k], RE(2, 4 + i), IM(2, 4 + i))
    tile_done(2)
    packpair(V(b0), V(b1), RE(3, 0), IM(3, 0))
    for i, k in enumerate(("256", "512", "768")):
        pmul(RE(3, 0), IM(3, 0), M[k], RE(3, 1 + i), IM(3, 1 + i))
    packpair(V(c2048), ("0", "0"), RE(3, 4), IM(3, 4))
    a(f"v_mov_b32 v{RE(3, 5)}, 0\nv_mov_b32 v{IM(3, 5)}, 0\nv_mov_b64 {v2(RE(3, 6))}, 0\nv_mov_b64 {v2(IM(3, 6))}, 0")
    tile_done(3)


def kgen_addr(a, sKB):
    T = 16
    a(f"""
    v_bfe_u32 v{T}, v0, 1, 2
    v_lshlrev_b32 v{T+1}, 6, v0
    v_add_u32 v{T+1}, s{sKB}, v{T+1}
    v_lshl_add_u32 v2, v{T}, 4, v{T+1}
    v_xor_b32 v3, 16, v2
    v_xor_b32 v4, 32, v2
    v_xor_b32 v5, 48, v2
    v_lshrrev_b32 v{T}, 4, v0                ; hq
    v_bfe_u32 v{T+1}, v0, 2, 2               ; r
    v_and_b32 v{T+2}, 3, v0                  ; c
    v_lshrrev_b32 v{T+3}, 1, v{T+1}
    v_lshl_add_u32 v{T+3}, v{T}, 1, v{T+3}
    v_lshlrev_b32 v6, 6, v{T+3}
    v_and_b32 v{T+1}, 1, v{T+1}
    v_lshrrev_b32 v{T+3}, 1, v{T+2}
    v_lshl_add_u32 v{T+1}, v{T+1}, 1, v{T+3}
    v_xor_b32 v{T+1}, v{T+1}, v{T}
    v_lshl_add_u32 v6, v{T+1}, 4, v6
    v_and_b32 v{T+2}, 1, v{T+2}
    v_lshl_add_u32 v6, v{T+2}, 3, v6
    v_add_u32 v6, s{sKB}, v6
    """)


def kgen_all(a):
    lq = LQ(a)

    def tile_done(t):
        for q in range(4):
            lq.issue(f"w{t}", f"ds_write_b128 v{2 + q}, {v4(KG_TILE + 16 * t + 4 * q)}")
        for k in range(4):
            for s in range(2):
                lq.issue(f"f{t}{k}", f"ds_read_b64_tr_b16 {v2(KG_TILE + 16 * t + 4 * k + 2 * s)}, v6 offset:{1024 * k + 512 * s}")
    kgen_valu(a, tile_done)
    for t in range(1, 4):
        for k in range(4):
            lq.wait(f"f{t}{k}")
            c = v4(KG_ACC + 4 * (t - 1)) if k else "0"
            a(f"v_mfma_f32_16x16x32_f16 {v4(KG_ACC + 4 * (t - 1))}, {v4(KG_TILE + 16 * t + 4 * k)}, {v4(KG_TILE + 4 * k)}, {c}")
    a("s_nop 7")
    for r in range(KG_ACC, KG_ACC + 12):
        a(f"v_mul_f32 v{r}, v{r}, v{KG_P + 4}")


def kgen_final(a, sCH, sKB, sPB, store, sync):
    from_lds = True
    KACC = KG_ACC
    P = 88
    T = 80
    a(f"v_lshlrev_b32 v{T}, 4, v0\nv_add_u32 v{T+1}, s{sKB}, v{T}\nv_add_u32 v{T+2}, s{sPB}, v{T}")
    a(f"v_mov_b32 v112, v{T+2}")
    a(f"v_mov_b32 v48, 0\nv_mov_b32 v49, 0\nv_mov_b32 v50, 0\nv_mov_b32 v51, 0")
    for i in range(3):
        a(f"ds_write_b128 v{T+1}, v[48:51] offset:{1024 * i}")
    a(f"s_mov_b64 exec, 0xffff\nds_write_b128 v{T+1}, v[48:51] offset:3072\ns_mov_b64 exec, -1")
    j, hq = T + 2, T + 3
    b0, b2 = 52, 53
    a1 = 54
    a(f"""
    v_and_b32 v{j}, 15, v0
    v_lshrrev_b32 v{hq}, 4, v0
    v_lshrrev_b32 v{T+4}, 1, v{hq}
    v_and_b32 v{T+5}, 1, v{hq}
    v_lshlrev_b32 v{T+6}, 7, v{T+4}
    v_lshl_add_u32 v{T+6}, v{T+5}, 2, v{T+6}
    v_lshl_add_u32 v{T+6}, v{j}, 3, v{T+6}
    v_sub_u32 v{T+6}, 285, v{T+6}
    v_lshl_add_u32 v{b0}, v{T+6}, 1, s{sKB}
    v_lshlrev_b32 v{T+6}, 6, v{T+5}                 ; 64*(hq&1)
    v_add_u32 v{T+6}, s{sKB}, v{T+6}
    v_lshl_add_u32 v{T+7}, v{j}, 2, v{T+6}
    v_lshl_add_u32 v{T+6}, v{j}, 1, v{T+6}
    v_cmp_gt_u32 vcc, 2, v{hq}
    """)
    for r in range(4):
        lo = (T1O if r & 1 else T1E) + 2 * (59 + (r >> 1))
        hi = (T2O + 60 if r & 1 else T2E + 58) + 32 * (r >> 1)
        a(f"v_add_u32 v60, {lo}, v{T+7}\nv_add_u32 v61, {hi}, v{T+6}\nv_cndmask_b32 v{a1 + r}, v61, v60, vcc")
    a(f"""
    s_add_u32 s96, s{sKB}, {T0E + 64}
    v_writelane_b32 v{a1}, s96, 0
    s_add_u32 s96, s{sKB}, {T0E + 60}
    v_writelane_b32 v{a1 + 1}, s96, 0
    s_add_u32 s96, s{sKB}, {T1E + 246}
    v_writelane_b32 v{a1}, s96, 32
    v_and_b32 v60, 1, v{j}
    v_mul_u32_u24 v60, {T3OE + 30 - (T3EE + 28)}, v60
    v_lshrrev_b32 v61, 1, v{j}
    v_lshl_add_u32 v61, v{hq}, 5, v61
    v_lshl_add_u32 v{b2}, v61, 1, v60
    s_add_u32 s96, s{sKB}, {T3EE + 28}
    v_add_u32 v{b2}, s96, v{b2}
    v_mov_b32 v62, s{sKB}
    """)
    sync()
    for w in range(2):
        for t in range(3):
            a(f"ds_read_b128 {v4(P + 12 * w + 4 * t)}, v112 offset:{4096 * w + 1024 * t}")
    a("s_waitcnt lgkmcnt(0)")
    if from_lds:
        for r in range(12):
            a(f"v_add_f32 v{KACC + r}, v{KACC + r}, v{P + r}")
        for r in range(12):
            a(f"v_add_f32 v{KACC + r}, v{KACC + r}, v{P + 12 + r}")
    a(f"v_max3_f32 v63, abs(v{KACC}), abs(v{KACC+1}), abs(v{KACC+2})")
    for r in range(3, 11, 2):
        a(f"v_max3_f32 v63, v63, abs(v{KACC + r}), abs(v{KACC + r + 1})")
    a(f"v_max_f32_e64 v63, v63, abs(v{KACC + 11})")
    wave_max_u32_to_sgpr(a, 63, 92, 93)
    a(f"""s_lshr_b32 s92, s92, 23
    s_max_u32 s92, s92, 1
    s_min_u32 s92, s92, 252
    s_sub_u32 s93, 253, s92
    s_lshl_b32 s93, s93, 23             ; 1/sigma
    s_add_u32 s92, s92, 1
    s_lshl_b32 s92, s92, 23             ; sigma""")
    for r in range(12):
        a(f"v_mul_f32 v{KACC + r}, s93, v{KACC + r}")
    H = 64
    for i in range(6):
        a(f"v_cvt_pk_f16_f32 v{H + i}, v{KACC + 2 * i}, v{KACC + 2 * i + 1}")

    def w16(addr, r, tile, off):
        reg = H + 2 * tile + (r >> 1)
        a(f"ds_write_b16{'_d16_hi' if r & 1 else ''} v{addr}, v{reg} offset:{off}")
    for r in range(4):
        w16(b0, r, 0, T0E + 2 * (3 - r))
        w16(b0, r, 0, T0O - 2 + 2 * (3 - r))
        w16(a1 + r, r, 1, 0)
    a("s_mov_b32 exec_hi, 0")
    for r in range(1, 4):
        w16(b2, r, 2, 16 * r)
        w16(b2, r, 2, 16 * r + 158)
    a("s_mov_b32 exec_lo, 0xfffffffe\ns_mov_b32 exec_hi, 1")
    w16(b2, 0, 2, 0)
    w16(b2, 0, 2, 158)
    a("s_mov_b64 exec, 1")
    w16(62, 0, 1, T0E + 62); w16(62, 0, 1, T0O + 62); w16(62, 0, 1, T0O + 60); w16(62, 1, 1, T0O + 58)
    w16(62, 0, 2, TK1024)
    a(f"v_mov_b32 v63, s92\nds_write_b32 v62, v63 offset:{TSIG}")
    a("s_mov_b32 exec_lo, 0\ns_mov_b32 exec_hi, 1")
    w16(62, 0, 1, T1O + 246)
    a("s_mov_b64 exec, -1")
    if True:
        Lsk = store()
        for i in range(4):
            a(f"ds_read_b128 {v4(P + 4 * i)}, v{T+1} offset:{1024 * i}")
        a(f"s_mul_i32 s96, s{sCH}, {KT_BYTES}\ns_add_u32 s96, s96, {WS_KT}")
        for i in range(3):
            a(f"s_waitcnt lgkmcnt({3 - i})\nbuffer_store_dwordx4 {v4(P + 4 * i)}, v{T}, {s4(S_WS)}, s96 offen offset:{1024 * i}")
        a(f"s_waitcnt lgkmcnt(0)\ns_mov_b64 exec, 0xffff\nbuffer_store_dwordx4 {v4(P + 12)}, v{T}, {s4(S_WS)}, s96 offen offset:3072\ns_mov_b64 exec, -1")
        a.label(Lsk)


def kernel1(a, parts):
    a.raw(".globl k1_kernel\n.p2align 8\n.type k1_kernel,@function\nk1_kernel:")
    a(f"""
    s_cmp_ge_u32 s2, 256
    s_cbranch_scc1 L_k1_end
    s_load_dwordx16 s[64:79], s[0:1], 0
    s_load_dwordx8 s[80:87], s[0:1], 64
    s_load_dwordx4 s[88:91], s[0:1], 96
    v_lshrrev_b32 v1, 6, v0
    v_and_b32 v0, 63, v0
    s_and_b32 s{sXCD}, s2, 7
    v_readfirstlane_b32 s{sWAVE}, v1
    s_lshr_b32 s{sIDX}, s2, 3
    s_mul_i32 s58, s{sIDX}, 52
    s_lshr_b32 s58, s58, 8              ; q = idx/5
    s_mul_i32 s59, s58, 5
    s_sub_u32 s59, s{sIDX}, s59         ; r
    s_and_b32 s60, s{sXCD}, 1
    s_mul_i32 s60, s60, 5
    s_add_u32 s{sMI}, s60, s59
    s_lshr_b32 s60, s{sXCD}, 1
    s_mul_i32 s60, s60, 6
    s_add_u32 s{sNI}, s60, s58
    s_mul_i32 s{sROW0}, s{sMI}, 208
    s_min_u32 s{sROW0}, s{sROW0}, 1840
    s_mul_i32 s{sGI}, s{sXCD}, 30
    s_add_u32 s{sGI}, s{sGI}, s{sIDX}
    """)
    code_prefetch(a, "k1_kernel", "L_k1_end", 7, sIDX, sWAVE, PFW, 126, 96)
    a(f"""
    s_add_u32 s58, s{sWAVE}, 2
    s_sub_u32 s59, s{sWAVE}, 9
    s_cmp_lt_u32 s{sWAVE}, 9
    s_cselect_b32 s58, s58, s59
    s_cmp_lt_u32 s{sWAVE}, 11
    s_cselect_b32 s{sWAVE}, s58, s{sWAVE}
    """)
    a("s_waitcnt lgkmcnt(0)")
    srd(a, S_X, 64, 2048 * 1280)
    srd(a, S_WG, 80, 640 * 3072)
    srd(a, S_WU, 82, 640 * 3072)
    srd(a, S_WS, 90, 0x4000000 if PROF else WS_END + 4096)
    srd(a, S_DBG, 88, 256)
    srd(a, S_WD, 84, 1536 * 1280)
    if PROF:
        a(f"v_mov_b32 v{vSTAMP}, 0")
    stamp(a, 0, True)
    stamp(a, 1)
    if "diag" in EXP:
        Ld = a.newlabel("diag")
        a(f"""s_cmp_lg_u32 s{sWAVE}, 8
        s_cbranch_scc1 {Ld}
        s_memrealtime s[100:101]
        s_lshl_b32 s98, s2, 2
        s_add_u32 s98, s98, {WS_END}
        v_mov_b32 v5, 0
        s_waitcnt lgkmcnt(0)
        v_mov_b32 v6, s100
        s_mov_b64 exec, 1
        buffer_store_dword v6, v5, {s4(S_WS)}, s98 offen
        s_mov_b64 exec, -1""")
        a.label(Ld)
    srd(a, S_LA, 66, 640 * 384)
    srd(a, S_AI, 68, 640 * 384)
    srd(a, S_CR, 70, 640 * 384)
    srd(a, S_CI, 72, 640 * 384)
    srd(a, S_DT, 74, 1280)
    a("s_mov_b32 s96, s76\ns_mov_b32 s97, s77")
    srd(a, S_OUT, 86, 2048 * 1280)
    srd(a, S_DSK, 96, 1280)
    a(f"""
    s_lshl_b32 s{sMI2}, s{sXCD}, 2
    s_and_b32 s96, s{sIDX}, 3
    s_add_u32 s{sMI2}, s{sMI2}, s96
    s_lshr_b32 s{sNI2}, s{sIDX}, 2
    """)
    import gen2
    sCH, sRND, sKB, sGRP, sGP = 65, 66, 67, 68, 69
    a(f"""
    s_lshl_b32 s{sGP}, s{sXCD}, 5
    s_add_u32 s{sGP}, s{sGP}, s{sIDX}          ; g'
    s_cmp_ge_u32 s{sWAVE}, 2
    s_cbranch_scc1 L_k1_w
    """)
    k1_loader(a, parts)

    def chan(sd, sg):
        a(f"""s_lshl_b32 s{sd}, s{sGP}, 1
        s_add_u32 s{sd}, s{sd}, s{sg}
        s_lshr_b32 s96, s{sGP}, 1
        s_add_u32 s96, s96, 512
        s_cmp_eq_u32 s{sg}, 2
        s_cselect_b32 s{sd}, s96, s{sd}""")

    a.label("L_k1_w")
    a(f"""
    s_setprio 2
    s_cmp_ge_u32 s{sWAVE}, 11
    s_cbranch_scc1 L_k1_side
    ; K-gen round rho = w-2 : grp = rho/3, rnd = rho%3 ; grp 2 only in even g'
    s_sub_u32 s{sRND}, s{sWAVE}, 2
    s_mul_i32 s{sGRP}, s{sRND}, 86
    s_lshr_b32 s{sGRP}, s{sGRP}, 8
    s_mul_i32 s96, s{sGRP}, 3
    s_sub_u32 s{sRND}, s{sRND}, s96
    s_and_b32 s96, s{sGP}, 1
    s_lshl_b32 s96, s96, 1
    s_and_b32 s96, s96, s{sGRP}
    s_cmp_lg_u32 s96, 0
    s_cbranch_scc1 L_k1_idle
    s_sub_u32 s{sKB}, s{sWAVE}, 2
    s_lshl_b32 s{sKB}, s{sKB}, 12
    s_add_u32 s{sKB}, s{sKB}, {2 * SLOT}
    s_add_u32 s70, s{sKB}, 4096
    s_mul_i32 s71, s{sGRP}, {TBL}
    s_add_u32 s71, s71, {K1_KG}
    """)
    chan(sCH, sGRP)
    kgen_loads(a, sCH, sRND)
    kgen_addr(a, sKB)
    a("s_setprio 0\ns_waitcnt vmcnt(0)")
    stamp(a, 8)
    kgen_all(a)
    stamp(a, 10)
    Lf = a.newlabel("kfin")
    a(f"s_cmp_eq_u32 s{sRND}, 0\ns_cbranch_scc1 {Lf}\nv_lshlrev_b32 v5, 4, v0\nv_add_u32 v5, s{sKB}, v5")
    for t in range(3):
        a(f"ds_write_b128 v5, {v4(KG_ACC + 4 * t)} offset:{1024 * t}")
    a("s_waitcnt lgkmcnt(0)")
    a.label("L_k1_idle")
    a("s_mov_b32 s70, 1\ns_branch L_k1_pdone")
    a.label(Lf)

    def store():
        L = a.newlabel("nost")
        a(f"s_cmp_lg_u32 s{sGRP}, 2\ns_cbranch_scc1 {L}")
        return L
    kgen_final(a, sCH, 71, 70, store, lambda: a("s_barrier\ns_setprio 3"))
    stamp(a, 11)
    a(f"s_mov_b32 s70, 0\ns_branch L_k1_pdone")

    a.label("L_k1_side")
    a(f"""
    s_cmp_eq_u32 s{sWAVE}, 11
    s_cbranch_scc1 L_k1_xs
    s_cmp_eq_u32 s{sWAVE}, 12
    s_cbranch_scc1 L_k1_xc
    s_cmp_lt_u32 s{sWAVE}, 15
    s_cbranch_scc1 L_k1_xu
    v_mov_b32 v3, {K1_CTL}
    v_mov_b64 v[4:5], 0
    v_mov_b64 v[6:7], 0
    s_mov_b64 exec, 1
    ds_write_b128 v3, v[4:7]
    ds_write_b128 v3, v[4:7] offset:16
    ds_write_b128 v3, v[4:7] offset:32
    s_lshl_b32 s96, s{sGP}, 2
    s_add_u32 s96, s96, {WS_FY}
    buffer_store_dword v4, v4, {s4(S_WS)}, s96 offen sc0 sc1
    s_lshl_b32 s96, s{sMI}, 7
    s_lshl_b32 s97, s{sNI}, 2
    s_add_u32 s96, s96, s97
    s_add_u32 s96, s96, {WS_FH}
    s_cmp_ge_u32 s{sIDX}, 30
    s_cselect_b32 s96, {WS_FH + 15 * 128}, s96
    buffer_store_dword v4, v4, {s4(S_WS)}, s96 offen sc0 sc1
    s_mov_b64 exec, -1
    s_branch L_k1_idle
    """)
    a.label("L_k1_xs")
    k1_stats_loads(a)
    if not SIDE_EARLY & 1:
        a("s_barrier")
    k1_stats(a, 0)
    stamp(a, 8)
    a("s_branch L_k1_x0" if SIDE_EARLY & 1 else "s_branch L_k1_x")
    a.label("L_k1_xc")
    a(f"s_cmp_ge_u32 s{sIDX}, 30\ns_cbranch_scc1 L_k1_idle")
    k1_colsum_loads(a)
    if not SIDE_EARLY & 1:
        a("s_barrier")
    k1_colsum(a, 0)
    stamp(a, 8)
    a("s_branch L_k1_x0" if SIDE_EARLY & 1 else "s_branch L_k1_x")
    a.label("L_k1_xu")
    a(f"s_sub_u32 s{gen2.sSUB}, s{sWAVE}, 13\ns_mov_b32 s{gen2.sUB}, {K1_STA}")
    gen2.k1_unit_pre(a)
    if not SIDE_EARLY & 2:
        a("s_barrier")
    gen2.k1_unit(a)
    stamp(a, 8)
    a("s_branch L_k1_x0" if SIDE_EARLY & 2 else "s_branch L_k1_x")
    a.label("L_k1_pdone")
    a(f"""
    s_cmp_ge_u32 s{sWAVE}, 10
    s_cbranch_scc1 L_k1_x0
    s_cmp_ge_u32 s{sIDX}, 30
    s_cbranch_scc1 L_k1_gsp
    s_cmp_ge_u32 s{sWAVE}, 6
    s_cbranch_scc1 L_k1_g2
    s_cmp_ge_u32 s{sWAVE}, 4
    s_cbranch_scc1 L_k1_g1
    """)
    for v in range(3):
        a.label(f"L_k1_g{v}")
        k1_gemm(a, v)
    a.label("L_k1_gsp")
    Lp2 = a.newlabel("p1")
    a(f"s_waitcnt vmcnt(0) lgkmcnt(0)\ns_cmp_eq_u32 s70, 0\ns_cbranch_scc1 {Lp2}\ns_barrier")
    a.label(Lp2)
    a("s_barrier\n" * 10)
    a("s_branch L_k1_p2")
    a.label("L_k1_hsig")
    Lh = a.newlabel("hs")
    a(f"""s_waitcnt vmcnt(0)
    v_mov_b32 v3, {K1_CTL}
    v_mov_b32 v4, 1
    v_mov_b32 v5, 0
    s_mov_b64 exec, 1
    ds_add_rtn_u32 v6, v3, v4 offset:16
    s_waitcnt lgkmcnt(0)
    v_readfirstlane_b32 s96, v6
    s_cmp_lg_u32 s96, 7
    s_cbranch_scc1 {Lh}
    s_lshl_b32 s96, s{sMI}, 7
    s_lshl_b32 s97, s{sNI}, 2
    s_add_u32 s96, s96, s97
    s_add_u32 s96, s96, {WS_FH}
    buffer_store_dword v4, v5, {s4(S_WS)}, s96 offen sc0 sc1""")
    a.label(Lh)
    a("s_mov_b64 exec, -1")
    stamp(a, 12)
    a.label("L_k1_p2")
    a(f"s_cmp_ge_u32 s{sWAVE}, 6\ns_cbranch_scc1 L_k1_p2b")
    gen2.p2_gemm(a)
    a.label("L_k1_p2b")
    gen2.p2_base(a)

    a.label("L_k1_x0")
    a("s_waitcnt lgkmcnt(0)\ns_barrier")
    a.label("L_k1_x")
    a(f"""
    s_setprio 0
    s_waitcnt lgkmcnt(0)
    s_barrier                           ; B_init
    """)
    a.label("L_k1_x1")
    a(f"""
    s_setprio 0
    s_barrier                           ; B_0
    s_waitcnt vmcnt(0)
    s_barrier
    s_cmp_lg_u32 s{sWAVE}, 15
    s_cbranch_scc1 L_k1_x2
    s_and_b32 s96, s2, 63
    s_lshl_b32 s96, s96, 2
    v_mov_b32 v5, s96
    v_mov_b32 v6, 1
    s_mov_b64 exec, 1
    buffer_atomic_add v6, v5, {s4(S_DBG)}, 0 offen sc1
    s_endpgm
    """)
    a.label("L_k1_x2")
    a(f"""
    s_sub_u32 s{sGRP}, s{sWAVE}, 11
    s_min_u32 s{sGRP}, s{sGRP}, 4       ; logical 11,12,13 -> 0,1,2 ; 14 -> 3 ; 10 -> 4
    s_cmp_ge_u32 s{sGRP}, 3
    s_cselect_b32 s59, 1, 0
    s_cselect_b32 s96, 3, 0
    s_mov_b32 s70, s59
    s_sub_u32 s{sGRP}, s{sGRP}, s96
    s_and_b32 s97, s{sGP}, 1
    s_mul_i32 s61, s{sGRP}, {gen2.C_SZ}
    s_add_u32 s61, s61, {2 * SLOT}
    s_cmp_eq_u32 s{sGRP}, 2
    s_cselect_b32 s59, s97, s59         ; half
    s_cselect_b32 s61, {2 * SLOT - gen2.C_SZ}, s61      ; region
    s_mul_i32 s60, s{sGRP}, {TBL}
    s_add_u32 s60, s60, {K1_KG}         ; tables
    s_mov_b32 s62, {K1_STA}
    """)
    chan(58, sGRP)
    sliced(a, lambda b: gen2.conv_setup(b, 61, 60, 58), 4)
    a("s_barrier")
    Lnp = a.newlabel("noprep"); Lnt = a.newlabel("notab")
    a(f"""s_lshl_b32 s96, s{sGRP}, 2
    s_add_u32 s96, s96, {K1_CTL}
    v_mov_b32 v3, s96
    v_mov_b32 v4, 1
    s_cmp_lg_u32 s70, 0
    s_cbranch_scc1 {Lnp}""")
    gen2.conv_xload(a, 58, 8)
    a(f"""s_and_b32 s96, s{sGP}, 1
    s_lshl_b32 s96, s96, 1
    s_and_b32 s96, s96, s{sGRP}
    s_cmp_eq_u32 s96, 0
    s_cbranch_scc1 {Lnt}
    s_mov_b32 m0, s60
    s_mul_i32 s96, s58, {KT_BYTES}
    s_add_u32 s96, s96, {WS_KT}""")
    for i in range(3):
        a(f"buffer_load_dwordx4 v2, {s4(S_WS)}, s96 offen offset:{1024 * i} sc0 sc1 lds")
    a(f"s_mov_b64 exec, 0xffff\nbuffer_load_dwordx4 v2, {s4(S_WS)}, s96 offen offset:3072 sc0 sc1 lds\ns_mov_b64 exec, -1")
    a.label(Lnt)
    Lpl = a.newlabel("pl")
    a(f"s_barrier\ns_barrier\ns_setprio {PREP_PRIO}\nv_mov_b32 v5, {K1_CTL}")
    a.label(Lpl)
    a(f"ds_read_b32 v7, v5 offset:12\ns_sleep 1\ns_waitcnt vmcnt(0) lgkmcnt(0)\nv_readfirstlane_b32 s96, v7\ns_cmp_ge_u32 s96, 1\ns_cbranch_scc0 {Lpl}")
    stamp(a, 2)
    gen2.conv_prep2(a, 61, 62)
    a("ds_write_b32 v3, v4\ns_setprio 0")
    stamp(a, 4)
    a("s_branch L_k1_cgo")
    a.label(Lnp)
    a("s_barrier")
    a(f"v_lshlrev_b32 v8, 7, v0\ns_lshl_b32 s96, s{sIDX}, 1\ns_add_u32 s96, s96, s{sGRP}\ns_mul_i32 s96, s96, 30720\ns_add_u32 s96, s96, {WS_WD}")
    for j in range(0 if "notouch" in EXP else 4):
        a(f"buffer_load_dword v2, v8, {s4(S_WS)}, s96 offen sc1\ns_add_u32 s96, s96, 7680")
    a("s_barrier")
    Lw2 = a.newlabel("wprep")
    a.label(Lw2)
    a(f"ds_read_b32 v7, v3\ns_sleep 1\ns_waitcnt lgkmcnt(0)\nv_readfirstlane_b32 s96, v7\ns_cmp_ge_u32 s96, 1\ns_cbranch_scc0 {Lw2}")
    a.label("L_k1_cgo")
    a(f"s_setprio {CONV_PRIO}")
    stamp(a, 5)
    gen2.conv_run(a, 59)
    stamp(a, 12)
    Ly = a.newlabel("ys")
    a(f"""v_mov_b32 v3, {K1_CTL}
    s_mov_b64 exec, 1
    ds_add_u32 v3, v4 offset:32
    s_mov_b64 exec, -1
    s_barrier
    s_waitcnt vmcnt(0)
    v_mov_b32 v3, {K1_CTL}
    v_mov_b32 v5, 0
    s_mov_b64 exec, 1
    ds_add_rtn_u32 v6, v3, v4 offset:20
    s_waitcnt lgkmcnt(0)
    v_readfirstlane_b32 s96, v6
    s_cmp_lg_u32 s96, 4
    s_cbranch_scc1 {Ly}
    s_lshl_b32 s96, s{sGP}, 2
    s_add_u32 s96, s96, {WS_FY}
    buffer_store_dword v4, v5, {s4(S_WS)}, s96 offen sc0 sc1""")
    a.label(Ly)
    a("s_mov_b64 exec, -1")
    stamp_end(a, 0, S_WS, sWAVE)
    a.label("L_k1_end")
    a("s_endpgm")


def descriptor(name, vgpr, sgpr=102):
    acc = (vgpr + 3) // 4 * 4
    return f""".amdhsa_kernel {name}
  .amdhsa_next_free_vgpr {vgpr}
  .amdhsa_next_free_sgpr {sgpr}
  .amdhsa_accum_offset {acc}
  .amdhsa_group_segment_fixed_size 0
  .amdhsa_kernarg_size 112
  .amdhsa_user_sgpr_count 2
  .amdhsa_user_sgpr_kernarg_segment_ptr 1
  .amdhsa_system_sgpr_workgroup_id_x 1
.end_amdhsa_kernel
"""


HEADER = open("cdna_kernels/" + NAME + ".s.ref").read().split("; Override launch geometry")[0]


def build():
    a = Asm()
    kernel1(a, {})
    import re
    a.L = [re.sub(r"(buffer_store_dwordx[24] .* s\[20:23\], .* offen(?: offset:\d+)?)$", r"\1 sc1", l) for l in a.L]
    if "sys" not in EXP:
        a.L = [l.replace(" sc0 sc1", " sc1") for l in a.L]
    out = HEADER
    out += f"; @launch kernel=k1_kernel grid=(256,1,1) block=(1024,1,1) lds={K1_LDS}\n"
    desc = descriptor("k1_kernel", 128)
    out += '.amdgcn_target "amdgcn-amd-amdhsa--gfx950"\n.text\n' + a.text()
    out += '.section .rodata,"a"\n.p2align 6\n' + desc
    return out


if __name__ == "__main__":
    sys.modules["gen"] = sys.modules["__main__"]
    path = sys.argv[1] if len(sys.argv) > 1 else "k.s"
    open(path, "w").write(build())
    print("wrote", path)
```
